```python
import torch

def _softmax(x, axis=-1):
    return torch.softmax(x, dim=axis)
def _gelu(x):
    return torch.nn.functional.gelu(x, approximate="tanh")
def _silu(x):
    return torch.nn.functional.silu(x)
def _sigmoid(x):
    return torch.sigmoid(x)
def _layernorm(x, axis=-1, eps=1e-5):
    m = x.mean(dim=axis, keepdim=True)
    v = x.var(dim=axis, keepdim=True, unbiased=False)
    return (x - m) / torch.sqrt(v + eps)
def _scatter_add(tgt, idx, src, axis=0):
    return tgt.clone().index_add_(axis, idx, src)
def _segment_sum(src, seg, n):
    out = torch.zeros((n,) + src.shape[1:], dtype=src.dtype)
    return out.index_add_(0, seg, src)
def _pad(x, pw):
    flat = tuple(v for pair in reversed(pw) for v in pair)
    return torch.nn.functional.pad(x, flat)

kernel_name = 'recurrent_scan__ssm_conv_s5__dense_activation_relu__prompt'

def setup_inputs():

    _w = (lambda a: (lambda t: t.to(torch.bfloat16) if t.is_floating_point() else t)(torch.as_tensor(a)))
    def _A_setup():
        B, S, D = 1, 2048, 640
        P = D
        Lambda_re = -0.5 * (lambda _x: torch.exp(torch.as_tensor(_x)))((lambda *s: torch.randn(*s, dtype=torch.bfloat16) * 0.2)(P))
        Lambda_im = (lambda *s: torch.randn(*s, dtype=torch.bfloat16) * 0.4)(P) * 1.0
        B_re = (lambda *s: torch.randn(*s, dtype=torch.bfloat16) * 0.2)(P, D) * (D ** -0.5)
        B_im = (lambda *s: torch.randn(*s, dtype=torch.bfloat16) * 0.2)(P, D) * (D ** -0.5)
        C_re = (lambda *s: torch.randn(*s, dtype=torch.bfloat16) * 0.2)(D, P) * (P ** -0.5)
        C_im = (lambda *s: torch.randn(*s, dtype=torch.bfloat16) * 0.2)(D, P) * (P ** -0.5)
        log_dt = (lambda *s: torch.randn(*s, dtype=torch.bfloat16) * 0.2)(P) * 0.3 - 2.0
        Dskip = (lambda *s: torch.randn(*s, dtype=torch.bfloat16) * 0.05)(D)
        return {
            "x": _w((lambda *s: torch.randn(*s, dtype=torch.bfloat16) * 0.05)(B, S, D)),
            "Lambda_re": _w(Lambda_re),
            "Lambda_im": _w(Lambda_im),
            "B_re": _w(B_re),
            "B_im": _w(B_im),
            "C_re": _w(C_re),
            "C_im": _w(C_im),
            "log_dt": _w(log_dt),
            "Dskip": _w(Dskip),
        }
    _A_in = _A_setup()

    def _B_setup():
        B, S, D, Dff = 1, 2048, 640, 1728
        return {
            "x": _w((lambda *s: torch.randn(*s, dtype=torch.bfloat16) * 0.05)(B, S, D)),
            "w1": _w((lambda *s: torch.randn(*s, dtype=torch.bfloat16) * 0.05)(D, Dff)),
            "w2": _w((lambda *s: torch.randn(*s, dtype=torch.bfloat16) * 0.05)(Dff, D)),
        }
    _B_in = _B_setup()

    return {
        "A_x": _A_in["x"],
        "A_Lambda_re": _A_in["Lambda_re"],
        "A_Lambda_im": _A_in["Lambda_im"],
        "A_B_re": _A_in["B_re"],
        "A_B_im": _A_in["B_im"],
        "A_C_re": _A_in["C_re"],
        "A_C_im": _A_in["C_im"],
        "A_log_dt": _A_in["log_dt"],
        "A_Dskip": _A_in["Dskip"],
        "B_x": _B_in["x"],
        "B_w1": _B_in["w1"],
        "B_w2": _B_in["w2"],
    }

def reference(A_x, A_Lambda_re, A_Lambda_im, A_B_re, A_B_im, A_C_re, A_C_im, A_log_dt, A_Dskip, B_x, B_w1, B_w2):
    def _A_ref(x, Lambda_re, Lambda_im, B_re, B_im, C_re, C_im, log_dt, Dskip):
        Bsz, L, H = x.shape
        Lam = Lambda_re + 1j * Lambda_im
        Bmat = B_re + 1j * B_im
        Cmat = C_re + 1j * C_im
        dt = torch.exp(log_dt)
        Lam_bar = torch.exp(dt * Lam)
        B_bar = ((Lam_bar - 1.0) / Lam)[:, None] * Bmat
        Bu = torch.einsum("bld,pd->blp", x + 0j, B_bar)
        h = torch.zeros_like(Bu[:, 0, :])
        hs = []
        for t in range(L):
            h = Lam_bar[None, :] * h + Bu[:, t, :]
            hs.append(h)
        hseq = torch.stack(hs, 1)
        y = 2.0 * torch.einsum("blp,dp->bld", hseq, Cmat).real + x * Dskip[None, None, :]
        return y

    def _B_ref(x, w1, w2):
        h = torch.einsum("bsd,df->bsf", x, w1)
        zero = torch.zeros_like(h)
        h = torch.maximum(h, zero)
        return torch.einsum("bsf,fd->bsd", h, w2)

    x = A_x
    xn = _layernorm(x, axis=-1)
    s = _A_ref(xn, A_Lambda_re, A_Lambda_im, A_B_re, A_B_im, A_C_re, A_C_im, A_log_dt, A_Dskip)
    g = _silu(_B_ref(xn, B_w1, B_w2))
    return x + s * g
```

```python
import re

def vr(a, n=1):
    return f"v{a}" if n == 1 else f"v[{a}:{a+n-1}]"
def sr(a, n=1):
    return f"s{a}" if n == 1 else f"s[{a}:{a+n-1}]"

REG_RE = re.compile(r"\b([vsa])(\d+)\b|\b([vsa])\[(\d+):(\d+)\]|\b(vcc|exec|m0|scc)\b")

def regs_of(tok):
    out = []
    for m in REG_RE.finditer(tok):
        if m.group(1):
            out.append((m.group(1), int(m.group(2))))
        elif m.group(3):
            for i in range(int(m.group(4)), int(m.group(5)) + 1):
                out.append((m.group(3), i))
        else:
            out.append((m.group(6), 0))
    return out

TRANS = ("v_exp_f32", "v_log_f32", "v_rcp_f32", "v_rsq_f32", "v_sqrt_f32", "v_sin_f32", "v_cos_f32", "v_rcp_iflag_f32")

def split_ops(s):
    ops = []; cur = ""; depth = 0
    for ch in s:
        if ch == "[": depth += 1
        if ch == "]": depth -= 1
        if ch == "," and depth == 0:
            ops.append(cur.strip()); cur = ""
        else:
            cur += ch
    if cur.strip(): ops.append(cur.strip())
    return ops

class Ins:
    def __init__(self, text):
        self.text = text
        t = text.split(";")[0].strip()
        self.label = t.endswith(":")
        self.directive = t.startswith(".")
        self.empty = (t == "")
        if self.label or self.directive or self.empty:
            self.mn = None; return
        parts = t.split(None, 1)
        self.mn = parts[0]
        rest = parts[1] if len(parts) > 1 else ""
        ops = split_ops(rest)
        self.mods = ""
        if ops:
            last = ops[-1].split(None, 1)
            if len(last) > 1:
                ops[-1] = last[0]; self.mods = last[1]
        self.ops = ops
        mn = self.mn
        self.is_mfma = mn.startswith("v_mfma")
        self.is_valu = mn.startswith("v_") and not self.is_mfma
        self.is_trans = any(mn.startswith(x) for x in TRANS)
        self.is_dpp = "_dpp" in mn or "row_" in self.mods or "quad_perm" in self.mods
        self.is_perml = mn.startswith("v_permlane")
        self.is_vmem = mn.startswith("buffer_") or mn.startswith("global_")
        self.is_ds = mn.startswith("ds_")
        self.is_salu = mn.startswith("s_")
        self.is_lds_dma = self.is_vmem and re.search(r"\blds\b", self.mods or "") is not None
        self.wr = []; self.rd = []
        if self.is_mfma:
            self.wr = regs_of(ops[0]); self.rdA = regs_of(ops[1]) + regs_of(ops[2]); self.rdC = regs_of(ops[3])
            self.rd = self.rdA + self.rdC
        elif self.is_valu:
            if mn.startswith("v_cmp"):
                self.wr = regs_of(ops[0]);
                for o in ops[1:]: self.rd += regs_of(o)
            elif self.is_perml:
                self.wr = regs_of(ops[0]) + regs_of(ops[1]); self.rd = list(self.wr)
            elif mn.startswith("v_readlane") or mn.startswith("v_readfirstlane"):
                self.wr = regs_of(ops[0])
                for o in ops[1:]: self.rd += regs_of(o)
            elif "_co_" in mn:
                self.wr = regs_of(ops[0]) + regs_of(ops[1])
                for o in ops[2:]: self.rd += regs_of(o)
            else:
                self.wr = regs_of(ops[0])
                for o in ops[1:]: self.rd += regs_of(o)
                if mn.startswith("v_fmac") or mn.startswith("v_dot2c") or self.is_dpp:
                    self.rd += self.wr
                if mn.startswith("v_cndmask") and len(ops) == 3:
                    self.rd.append(("vcc", 0))
        elif self.is_vmem:
            if "store" in mn or "atomic" in mn or self.is_lds_dma:
                for o in ops: self.rd += regs_of(o)
                self.store_data = []
                if "store" in mn:
                    d = ops[0] if mn.startswith("buffer_") else ops[1]
                    self.store_data = regs_of(d) if ("x4" in mn or "x3" in mn) else []
            else:
                self.wr = regs_of(ops[0])
                for o in ops[1:]: self.rd += regs_of(o)
        elif self.is_ds:
            if mn.startswith("ds_read") or mn.startswith("ds_bpermute") or mn.startswith("ds_swizzle"):
                self.wr = regs_of(ops[0])
                for o in ops[1:]: self.rd += regs_of(o)
            else:
                for o in ops: self.rd += regs_of(o)
        elif self.is_salu:
            if mn.startswith("s_cmp") or mn.startswith("s_cbranch") or mn.startswith("s_branch") or mn in ("s_waitcnt", "s_barrier", "s_nop", "s_endpgm", "s_sleep", "s_setprio"):
                for o in ops: self.rd += regs_of(o)
            else:
                if ops: self.wr = regs_of(ops[0])
                for o in ops[1:]: self.rd += regs_of(o)
    def states(self):
        if self.mn is None: return 0
        if self.mn == "s_nop":
            return int(self.ops[0], 0) + 1
        return 1

def fix_hazards(lines, verbose=False):
    out = []
    pos = 0
    last = {}
    def need(kind, reg, n):
        p = last.get((kind, reg))
        if p is None: return 0
        have = pos - p - 1
        return max(0, n - have)
    ninserted = 0
    for ln in lines:
        I = Ins(ln)
        if I.mn is None:
            out.append(ln); continue
        req = 0
        if I.is_mfma:
            for r in I.rd: req = max(req, need("valu_w", r, 2))
            for r in I.rdA: req = max(req, need("mfma_w", r, 8))
            for r in I.rdC:
                p = last.get(("mfma_w", r))
                if p is not None and last.get(("mfma_wset", r)) != tuple(I.rdC):
                    req = max(req, need("mfma_w", r, 6))
            req = max(req, need("exec_valu_w", ("exec", 0), 4))
        if I.is_valu:
            for r in I.rd + I.wr: req = max(req, need("mfma_w", r, 8))
            for r in I.wr:
                req = max(req, need("mfma_c", r, 3))
                req = max(req, need("store_d", r, 2))
            if not I.is_trans:
                for r in I.rd: req = max(req, need("trans_w", r, 1))
            else:
                pass
            if I.is_dpp or I.is_perml:
                for r in I.rd: req = max(req, need("valu_w", r, 2))
            if I.mn.startswith("v_readlane") or I.mn.startswith("v_readfirstlane"):
                for r in I.rd:
                    if r[0] == "v": req = max(req, need("valu_w", r, 1))
                    else: req = max(req, need("valu_sw", r, 4))
            for r in I.rd:
                if r[0] in ("s", "vcc"): req = max(req, need("valu_sw", r, 2))
        if I.is_vmem or I.is_ds:
            for r in I.rd + I.wr: req = max(req, need("mfma_w", r, 8))
            for r in I.rd:
                if r[0] in ("s", "vcc"): req = max(req, need("valu_sw", r, 5))
            for r in I.wr: req = max(req, need("store_d", r, 1))
            if I.is_lds_dma: req = max(req, need("m0_w", ("m0", 0), 1))
        if I.is_salu:
            for r in I.rd:
                if r[0] in ("s", "vcc"): req = max(req, need("valu_sw", r, 1))
        while req > 0:
            k = min(req, 16)
            out.append(f"s_nop {k-1}")
            pos += k; req -= k; ninserted += 1
        out.append(ln)
        if I.is_mfma:
            for r in I.wr:
                last[("mfma_w", r)] = pos; last[("mfma_wset", r)] = tuple(I.wr)
            for r in I.rdC: last[("mfma_c", r)] = pos
        elif I.is_valu:
            for r in I.wr:
                if r[0] == "v":
                    last[("valu_w", r)] = pos
                    last.pop(("mfma_w", r), None)
                    if I.is_trans: last[("trans_w", r)] = pos
                    else: last.pop(("trans_w", r), None)
                elif r[0] in ("s", "vcc"):
                    last[("valu_sw", r)] = pos
                elif r[0] == "exec":
                    last[("exec_valu_w", r)] = pos
        elif I.is_salu:
            for r in I.wr:
                if r[0] == "m0": last[("m0_w", r)] = pos
                last.pop(("valu_sw", r), None)
        elif I.is_vmem:
            for r in getattr(I, "store_data", []): last[("store_d", r)] = pos
            for r in I.wr:
                last.pop(("valu_w", r), None); last.pop(("trans_w", r), None)
        elif I.is_ds:
            for r in I.wr:
                last.pop(("valu_w", r), None); last.pop(("trans_w", r), None)
        pos += I.states()
    if verbose: print("hazard nops inserted:", ninserted)
    return out

class Asm:
    def __init__(self):
        self.lines = []
        self.nlabel = 0
    def __call__(self, s):
        for l in s.split("\n"):
            l = l.strip()
            if l: self.lines.append(l)
    def label(self, base="L"):
        self.nlabel += 1
        return f"{base}_{self.nlabel}"
```

```python
import sys, struct
from asmlib import *

T, D, DFF = 2048, 640, 1728
WS_STATS = 0x000000
WS_WSP   = 0x010000
WS_E     = 0x050000
WS_FLAG  = 0x080000
WS_CP    = 0x100000
WS_H1    = 0x400000
WS_HF    = 0xA00000
WS_S     = 0x1200000
WS_SIZE  = 0x1800000

def f2u(x): return struct.unpack("<I", struct.pack("<f", x))[0]
def hexf(x): return f"0x{f2u(x):08x}"
LOG2E = 1.4426950408889634
INV2PI = 0.15915494309189535

def divc(A, vq, vsrc, d, maxv):
    for sh in (16, 17, 18, 19, 20):
        mul = ((1 << sh) + d - 1) // d
        if all((c * mul) >> sh == c // d for c in range(maxv)) and maxv * mul < (1 << 32) and mul < (1 << 24):
            A(f"v_mul_u32_u24 {vr(vq)}, {mul}, {vr(vsrc)}")
            A(f"v_lshrrev_b32 {vr(vq)}, {sh}, {vr(vq)}")
            return
    raise Exception("no magic")

def srd(A, s, base, size):
    A(f"s_mov_b32 s{s}, s{base}")
    A(f"s_and_b32 s{s+1}, s{base+1}, 0xffff")
    A(f"s_mov_b32 s{s+2}, {size}")
    A(f"s_mov_b32 s{s+3}, 0x20000")

def cmul_add(A, dst, w, h, u):
    A(f"v_pk_fma_f32 {vr(dst,2)}, {vr(w,2)}, {vr(h,2)}, {vr(u,2)} op_sel:[0,0,0] op_sel_hi:[0,1,1]")
    A(f"v_pk_fma_f32 {vr(dst,2)}, {vr(w,2)}, {vr(h,2)}, {vr(dst,2)} op_sel:[1,1,0] op_sel_hi:[1,0,1] neg_lo:[1,0,0]")
def cmul(A, dst, w, h):
    A(f"v_pk_mul_f32 {vr(dst,2)}, {vr(w,2)}, {vr(h,2)} op_sel:[0,0] op_sel_hi:[0,1]")
    A(f"v_pk_fma_f32 {vr(dst,2)}, {vr(w,2)}, {vr(h,2)}, {vr(dst,2)} op_sel:[1,1,0] op_sel_hi:[1,0,1] neg_lo:[1,0,0]")

def wave_sum(A, regs):
    for mod in ("row_shr:1 row_mask:0xf bank_mask:0xf bound_ctrl:0", "row_shr:2 row_mask:0xf bank_mask:0xf bound_ctrl:0",
                "row_shr:4 row_mask:0xf bank_mask:0xf bound_ctrl:0", "row_shr:8 row_mask:0xf bank_mask:0xf bound_ctrl:0",
                "row_bcast:15 row_mask:0xa bank_mask:0xf", "row_bcast:31 row_mask:0xc bank_mask:0xf"):
        for r in regs:
            A(f"v_add_f32_dpp {vr(r)}, {vr(r)}, {vr(r)} {mod}")

def bf16r(A, r):
    A(f"v_cvt_pk_bf16_f32 {vr(r)}, {vr(r)}, {vr(r)}")
    A(f"v_lshlrev_b32 {vr(r)}, 16, {vr(r)}")

class Gemm:
    def __init__(s, A, name, MT, NT, a_mode, acc, frag, aaddr, baddr, abase, bbase,
                 a_imm, b_imm, nstages, NS, stage_bytes, dma_issue, dma_cnt, s_cur, s_cnt, wait_alt=None):
        s.__dict__.update(locals())
    def fragA(s, st, m): return s.frag + st * (s.MT + s.NT) * 4 + m * 4
    def fragB(s, st, n): return s.frag + st * (s.MT + s.NT) * 4 + s.MT * 4 + n * 4
    def accr(s, m, n): return s.acc + (m * s.NT + n) * 4
    def reads(s, st, kk):
        out = []
        for n in range(s.NT):
            out.append(f"ds_read_b128 {vr(s.fragB(st, n), 4)}, {vr(s.baddr[kk])} offset:{s.b_imm(n, kk)}")
        for m in range(s.MT):
            if s.a_mode == "direct":
                out.append(f"ds_read_b128 {vr(s.fragA(st, m), 4)}, {vr(s.aaddr[kk])} offset:{s.a_imm(m, kk, 0)}")
            else:
                for h in range(2):
                    reg, off = s.a_imm(m, kk, h)
                    out.append(f"ds_read_b64_tr_b16 {vr(s.fragA(st, m) + 2 * h, 2)}, {vr(s.aaddr[reg])} offset:{off}")
        return out
    def mfmas(s, st):
        out = []
        for m in range(s.MT):
            for n in range(s.NT):
                a = s.accr(m, n)
                out.append(f"v_mfma_f32_16x16x32_bf16 {vr(a,4)}, {vr(s.fragA(st,m),4)}, {vr(s.fragB(st,n),4)}, {vr(a,4)}")
        return out
    def interleave(s, mf, extra):
        A = s.A
        n = len(mf); k = len(extra)
        gi = 0
        for i, m in enumerate(mf):
            A(m)
            tgt = ((i + 1) * k + n - 1) // n if k > n else min(k, i + 1)
            while gi < tgt:
                for x in extra[gi]: A(x)
                gi += 1
        while gi < k:
            for x in extra[gi]: A(x)
            gi += 1
    def set_addr(s):
        A = s.A
        for i in range(2):
            A(f"v_add_u32 {vr(s.aaddr[i])}, s{s.s_cur}, {vr(s.abase[i])}")
            A(f"v_add_u32 {vr(s.baddr[i])}, s{s.s_cur}, {vr(s.bbase[i])}")
    def advance(s):
        A = s.A
        A(f"s_add_u32 s{s.s_cur}, s{s.s_cur}, {s.stage_bytes}")
        A(f"s_cmp_ge_u32 s{s.s_cur}, {s.stage_bytes * s.NS}")
        A(f"s_cselect_b32 s{s.s_cur}, 0, s{s.s_cur}")
        s.set_addr()
    def wait_vm(s, nst):
        A = s.A
        if s.wait_alt is None or nst == 0:
            A(f"s_waitcnt vmcnt({nst * s.dma_cnt}) lgkmcnt(0)")
        else:
            sreg, cnt2 = s.wait_alt
            l1 = A.label("W"); l2 = A.label("W")
            A(f"s_cmp_lg_u32 s{sreg}, 0")
            A(f"s_cbranch_scc1 {l1}")
            A(f"s_waitcnt vmcnt({nst * s.dma_cnt}) lgkmcnt(0)")
            A(f"s_branch {l2}")
            A(f"{l1}:")
            A(f"s_waitcnt vmcnt({nst * cnt2}) lgkmcnt(0)")
            A(f"{l2}:")
    def stage(s, issue, nst_after, last):
        A = s.A
        A("s_waitcnt lgkmcnt(0)")
        s.interleave(s.mfmas(0), [[r] for r in s.reads(1, 1)])
        if last:
            A("s_waitcnt lgkmcnt(0)")
            s.interleave(s.mfmas(1), [])
            return
        s.wait_vm(nst_after)
        A("s_barrier")
        s.advance()
        extra = [[r] for r in s.reads(0, 0)]
        if issue:
            extra += s.dma_issue()
        s.interleave(s.mfmas(1), extra)
    def run(s):
        A = s.A
        s.set_addr()
        for r in s.reads(0, 0): A(r)
        nloop = s.nstages - s.NS
        A(f"s_mov_b32 s{s.s_cnt}, {nloop}")
        L = A.label(s.name + "_loop")
        A(f"{L}:")
        s.stage(True, s.NS - 2, False)
        A(f"s_sub_u32 s{s.s_cnt}, s{s.s_cnt}, 1")
        A(f"s_cmp_lg_u32 s{s.s_cnt}, 0")
        A(f"s_cbranch_scc1 {L}")
        for j in range(nloop, s.nstages):
            rem = s.nstages - 1 - (j + 1)
            s.stage(False, max(rem, 0), j == s.nstages - 1)

def poll_counter(A, sbase, voff_reg, vtmp, stmp, scount, target, off=0):
    L = A.label("poll"); Lx = A.label("pollx")
    A(f"s_mov_b32 s{scount}, 200000")
    A(f"{L}:")
    A(f"global_load_dword {vr(vtmp)}, {vr(voff_reg)}, {sr(sbase,2)} offset:{off} sc1")
    A("s_waitcnt vmcnt(0)")
    A(f"v_readfirstlane_b32 s{stmp}, {vr(vtmp)}")
    A(f"s_cmp_eq_u32 s{stmp}, {target}")
    A(f"s_cbranch_scc1 {Lx}")
    A("s_sleep 1")
    A(f"s_sub_u32 s{scount}, s{scount}, 1")
    A(f"s_cmp_lg_u32 s{scount}, 0")
    A(f"s_cbranch_scc1 {L}")
    A(f"{Lx}:")

K1F_STAGE = 28672 + 16384
K1Y_STAGE = 20480 + 16384
K1F_STATS = 0
K1F_WS = 1024
K1F_RED = 2048
K1F_BUF = 9216
K1Y_STATS = 0
K1Y_WS = 1024
K1Y_T = 2048
K1Y_BUF = 25088
K1_LDS = 147456

def kernel1(A):
    A("k1_kernel:")
    A("s_cmp_ge_u32 s2, 256")
    A("s_cbranch_scc1 k1_end")
    A("s_load_dwordx16 s[4:19], s[0:1], 0")
    A("s_load_dwordx8 s[20:27], s[0:1], 64")
    A("s_load_dwordx4 s[28:31], s[0:1], 96")
    A("s_load_dwordx2 s[32:33], s[0:1], 112")
    A("v_mov_b32 v1, v0")
    A("v_lshrrev_b32 v2, 6, v0")
    A("v_and_b32 v0, 63, v0")
    A("v_readfirstlane_b32 s48, v2")
    A("s_and_b32 s57, s2, 7")
    A("s_lshr_b32 s58, s2, 3")
    A("s_lshr_b32 s49, s57, 2")
    A("s_and_b32 s57, s57, 3")
    A("s_lshl_b32 s57, s57, 2")
    A("s_lshr_b32 s50, s58, 3")
    A("s_add_u32 s50, s50, s57")
    A("s_and_b32 s51, s58, 7")
    A("s_lshr_b32 s52, s48, 1")
    A("s_and_b32 s53, s48, 1")
    A("s_waitcnt lgkmcnt(0)")
    srd(A, 36, 4, T * D * 2)
    srd(A, 44, 32, WS_SIZE)
    A("s_lshl_b32 s57, s49, 3")
    A("s_add_u32 s57, s57, s51")
    A("s_lshl_b32 s57, s57, 3")
    A("s_lshl_b32 s58, s50, 7")
    A("s_add_u32 s57, s57, s58")
    A("s_lshl_b32 s58, s48, 1")
    A("s_add_u32 s63, s57, s58")
    A("s_mul_i32 s57, s63, 1280")
    A("s_add_u32 s58, s57, 1280")
    A("v_lshlrev_b32 v2, 2, v0")
    for i in range(5):
        A(f"buffer_load_dword v{20+i}, v2, s[36:39], s57 offen offset:{256*i}")
    for i in range(5):
        A(f"buffer_load_dword v{25+i}, v2, s[36:39], s58 offen offset:{256*i}")
    A("v_lshrrev_b32 v3, 3, v0")
    A("v_and_b32 v4, 7, v0")
    A("v_lshrrev_b32 v5, 4, v0")
    A("v_and_b32 v6, 15, v0")
    A("s_cmp_lg_u32 s49, 0")
    A("s_cbranch_scc1 k1_F")
    k1_Y(A)
    A("s_branch k1_end")
    A("k1_F:")
    k1_F(A)
    A("k1_end:")
    A("s_endpgm")

def stats_compute(A):
    for r in range(2):
        for i in range(5):
            A(f"v_lshlrev_b32 v{40+10*r+2*i}, 16, v{20+5*r+i}")
            A(f"v_and_b32 v{41+10*r+2*i}, 0xffff0000, v{20+5*r+i}")
    for r in range(2):
        b = 40 + 10 * r
        A(f"v_add_f32 v{60+r}, v{b}, v{b+1}")
        for i in range(2, 10):
            A(f"v_add_f32 v{60+r}, v{60+r}, v{b+i}")
    wave_sum(A, [60, 61])
    A("v_readlane_b32 s57, v60, 63")
    A("v_readlane_b32 s58, v61, 63")
    A(f"v_mov_b32 v62, {hexf(1.0/640)}")
    A("v_mul_f32 v60, s57, v62")
    A("v_mul_f32 v61, s58, v62")
    for r in range(2):
        b = 40 + 10 * r
        for i in range(10):
            A(f"v_sub_f32 v{b+i}, v{b+i}, v{60+r}")
    for r in range(2):
        b = 40 + 10 * r
        A(f"v_mul_f32 v{64+r}, v{b}, v{b}")
        for i in range(1, 10):
            A(f"v_fmac_f32 v{64+r}, v{b+i}, v{b+i}")
    wave_sum(A, [64, 65])
    A("v_readlane_b32 s57, v64, 63")
    A("v_readlane_b32 s58, v65, 63")
    A("v_mul_f32 v64, s57, v62")
    A("v_mul_f32 v65, s58, v62")
    A("v_and_b32 v66, 1, v0")
    A("v_cmp_eq_u32 vcc, 1, v66")
    A("v_cndmask_b32 v68, v60, v61, vcc")
    A("v_cndmask_b32 v70, v64, v65, vcc")
    bf16r(A, 68)
    bf16r(A, 70)
    A(f"v_add_f32 v70, {hexf(1e-5)}, v70")
    bf16r(A, 70)
    A("v_sqrt_f32 v70, v70")
    bf16r(A, 70)
    A("v_rcp_f32 v69, v70")
    A("v_fma_f32 v71, -v70, v69, 1.0")
    A("v_fma_f32 v69, v71, v69, v69")
    A("v_mov_b32 v71, 0")
    A("v_lshlrev_b32 v66, 4, v66")
    A("s_lshl_b32 s57, s63, 4")
    A(f"s_add_u32 s57, s57, {WS_STATS}")
    A("s_mov_b64 exec, 3")
    A("buffer_store_dwordx4 v[68:71], v66, s[44:47], s57 offen sc1")
    A("s_mov_b64 exec, -1")

def gather_tables(A, nws, ws_idx_base_sreg, lds_stats, lds_ws):
    A("v_mov_b32 v32, 0")
    poll_counter(A, 30, 32, 33, 57, 58, 256)
    A("v_lshlrev_b32 v34, 4, v1")
    A("s_lshl_b32 s57, s50, 11")
    A(f"s_add_u32 s57, s57, {WS_STATS}")
    A("buffer_load_dwordx2 v[36:37], v34, s[44:47], s57 offen sc1")
    A("v_lshlrev_b32 v35, 2, v1")
    A(f"s_lshl_b32 s57, s{ws_idx_base_sreg}, 2")
    A(f"s_add_u32 s57, s57, {WS_WSP}")
    for sl in range(16):
        A(f"buffer_load_dword v{40+sl}, v35, s[44:47], s57 offen sc1")
        A(f"s_add_u32 s57, s57, {3072*4}")
    A("s_waitcnt vmcnt(16)")
    A("v_lshlrev_b32 v34, 3, v1")
    A("v_cmp_gt_u32 vcc, 128, v1")
    A("s_and_saveexec_b64 s[66:67], vcc")
    A(f"ds_write_b64 v34, v[36:37] offset:{lds_stats}")
    A("s_mov_b64 exec, s[66:67]")
    A("s_waitcnt vmcnt(0)")
    for sl in range(1, 16):
        A(f"v_add_f32 v40, v40, v{40+sl}")
    A(f"v_cmp_gt_u32 vcc, {nws}, v1")
    A("s_and_saveexec_b64 s[66:67], vcc")
    A(f"ds_write_b32 v35, v40 offset:{lds_ws}")
    A("s_mov_b64 exec, s[66:67]")
    A("s_waitcnt lgkmcnt(0)")
    A("s_barrier")

def k1_publish_and_start(A):
    A("s_waitcnt vmcnt(0) lgkmcnt(0)")
    A("s_barrier")
    L = A.label("noatom")
    A("s_cmp_lg_u32 s48, 0")
    A(f"s_cbranch_scc1 {L}")
    A("v_mov_b32 v18, 0")
    A("v_mov_b32 v19, 1")
    A("s_mov_b64 exec, 1")
    A("global_atomic_add v18, v19, s[30:31]")
    A("s_mov_b64 exec, -1")
    A(f"{L}:")

def k1_F(A):
    ACC = 128; FRAG = 32
    srd(A, 40, 24, D * DFF * 2)
    divc(A, 7, 1, 28, 256)
    A("v_mul_u32_u24 v8, 28, v7")
    A("v_sub_u32 v8, v1, v8")
    A("s_mov_b32 s57, 17280")
    A("v_mul_lo_u32 v9, v7, s57")
    A("v_lshl_add_u32 v9, v8, 4, v9")
    A("s_mul_i32 s57, s50, 138240")
    A("s_mul_i32 s58, s51, 432")
    A("s_add_u32 s57, s57, s58")
    for r in range(5):
        A(f"buffer_load_dwordx4 v[{72+4*r}:{75+4*r}], v9, s[40:43], s57 offen")
        A("s_add_u32 s57, s57, 3456")
    A("s_lshl_b32 s57, s50, 3")
    A("s_add_u32 s57, s57, s51")
    A("s_mul_i32 s64, s57, 5")
    A("v_add_u32 v11, 256, v1")
    divc(A, 10, 1, 80, 512)
    divc(A, 12, 11, 80, 512)
    A("v_mul_u32_u24 v13, 80, v10")
    A("v_sub_u32 v13, v1, v13")
    A("v_mul_u32_u24 v14, 80, v12")
    A("v_sub_u32 v14, v11, v14")
    A("v_add_u32 v10, s64, v10")
    A("v_add_u32 v12, s64, v12")
    A("v_mul_u32_u24 v15, 1280, v10")
    A("v_lshl_add_u32 v15, v13, 4, v15")
    A("v_mul_u32_u24 v16, 1280, v12")
    A("v_lshl_add_u32 v16, v14, 4, v16")
    A("global_load_dwordx4 v[92:95], v15, s[14:15]")
    A("global_load_dwordx4 v[96:99], v15, s[16:17]")
    A("v_cmp_gt_u32 vcc, 400, v11")
    A("s_and_saveexec_b64 s[66:67], vcc")
    A("s_mov_b64 s[68:69], exec")
    Ls = A.label("skipc")
    A(f"s_cbranch_execz {Ls}")
    A("global_load_dwordx4 v[100:103], v16, s[14:15]")
    A("global_load_dwordx4 v[104:107], v16, s[16:17]")
    A(f"{Ls}:")
    A("s_mov_b64 exec, s[66:67]")
    A("v_lshlrev_b32 v15, 1, v15")
    A("v_lshlrev_b32 v16, 1, v16")
    for q in range(7):
        A(f"v_add_u32 v17, {64*q}, v0")
        divc(A, 18, 17, 28, 448)
        A("v_mul_u32_u24 v19, 28, v18")
        A("v_sub_u32 v19, v17, v19")
        A("v_lshrrev_b32 v17, 2, v18")
        A("v_and_b32 v17, 2, v17")
        A("v_xor_b32 v19, v19, v17")
        A("v_mul_u32_u24 v18, 3456, v18")
        A(f"v_lshl_add_u32 v{240+q}, v19, 4, v18")
    A("v_xor_b32 v17, v4, v3")
    A("v_mul_u32_u24 v18, 1280, v3")
    A("v_lshl_add_u32 v247, v17, 4, v18")
    A("s_mul_i32 s59, s48, 55296")
    A("s_mul_i32 s57, s51, 432")
    A("s_add_u32 s59, s59, s57")
    A("s_lshl_b32 s60, s50, 7")
    A("s_lshl_b32 s57, s48, 5")
    A("s_add_u32 s60, s60, s57")
    A("s_mul_i32 s60, s60, 1280")
    A("s_mul_i32 s61, s48, 7168")
    A(f"s_add_u32 s61, s61, {K1F_BUF}")
    A("s_lshl_b32 s62, s48, 12")
    A(f"s_add_u32 s62, s62, {28672+K1F_BUF}")
    A("s_mov_b32 s55, 0")
    def dma_issue():
        g = []
        first = [f"s_add_u32 s57, s61, s55"]
        for q in range(7):
            grp = (first if q == 0 else []) + [f"s_add_u32 m0, s57, {1024*q}", "s_nop 0",
                   f"buffer_load_dwordx4 v{240+q}, s[40:43], s59 offen lds"]
            g.append(grp)
        for q in range(4):
            grp = ([f"s_add_u32 s57, s62, s55"] if q == 0 else []) + [f"s_add_u32 m0, s57, {1024*q}",
                   f"s_add_u32 s58, s60, {q*8*1280}",
                   f"buffer_load_dwordx4 v247, s[36:39], s58 offen lds"]
            g.append(grp)
        g[-1] += [f"s_add_u32 s59, s59, {64*3456}", "s_add_u32 s60, s60, 128",
                  f"s_add_u32 s55, s55, {K1F_STAGE}", f"s_cmp_ge_u32 s55, {3*K1F_STAGE}", "s_cselect_b32 s55, 0, s55"]
        return g
    for st in range(3):
        for grp in dma_issue():
            for x in grp: A(x)
    A("s_waitcnt vmcnt(33)")
    stats_compute(A)
    for c in range(4):
        A(f"v_lshlrev_b32 v{108+2*c}, 16, v{72+c}")
        A(f"v_and_b32 v{109+2*c}, 0xffff0000, v{72+c}")
    for r in range(1, 5):
        for c in range(4):
            A(f"v_lshlrev_b32 v116, 16, v{72+4*r+c}")
            A(f"v_and_b32 v117, 0xffff0000, v{72+4*r+c}")
            A(f"v_add_f32 v{108+2*c}, v{108+2*c}, v116")
            A(f"v_add_f32 v{109+2*c}, v{109+2*c}, v117")
    A("v_mul_u32_u24 v9, 896, v7")
    A("v_lshl_add_u32 v9, v8, 5, v9")
    A("v_cmp_gt_u32 vcc, 224, v1")
    A("s_and_saveexec_b64 s[66:67], vcc")
    A(f"ds_write_b128 v9, v[108:111] offset:{K1F_RED}")
    A(f"ds_write_b128 v9, v[112:115] offset:{K1F_RED+16}")
    A("s_mov_b64 exec, s[66:67]")
    A("s_mov_b32 s57, 0x05040100")
    A("s_mov_b32 s58, 0x07060302")
    for it in range(2):
        re = 92 + 8 * it; im = 96 + 8 * it; o = 108 + 8 * it if it == 1 else 72
        for c in range(4):
            A(f"v_xor_b32 v{im+c}, 0x80008000, v{im+c}")
        for c in range(4):
            A(f"v_perm_b32 v{o+2*c}, v{im+c}, v{re+c}, s57")
            A(f"v_perm_b32 v{o+2*c+1}, v{im+c}, v{re+c}, s58")
    A(f"s_mov_b32 s57, {WS_CP}")
    A("buffer_store_dwordx4 v[72:75], v15, s[44:47], s57 offen")
    A("buffer_store_dwordx4 v[76:79], v15, s[44:47], s57 offen offset:16")
    A("s_mov_b64 exec, s[68:69]")
    Ls = A.label("skipc")
    A(f"s_cbranch_execz {Ls}")
    A("buffer_store_dwordx4 v[116:119], v16, s[44:47], s57 offen")
    A("buffer_store_dwordx4 v[120:123], v16, s[44:47], s57 offen offset:16")
    A(f"{Ls}:")
    A("s_mov_b64 exec, -1")
    A("s_lshl_b32 s57, s50, 3")
    A("s_add_u32 s57, s57, s51")
    A("s_lshl_b32 s57, s57, 7")
    A(f"s_add_u32 s57, s57, {WS_FLAG}")
    A("v_mov_b32 v18, 0")
    A("s_mov_b64 exec, 1")
    A("buffer_store_dword v18, v18, s[44:47], s57 offen")
    A("s_mov_b64 exec, -1")
    A("s_waitcnt lgkmcnt(0)")
    A("s_barrier")
    A("v_lshlrev_b32 v9, 2, v1")
    for r in range(8):
        A(f"ds_read_b32 v{108+r}, v9 offset:{K1F_RED+896*r}")
    A("s_waitcnt lgkmcnt(0)")
    for r in range(1, 8):
        A(f"v_add_f32 v108, v108, v{108+r}")
    A("s_mul_i32 s65, s51, 224")
    A("s_add_u32 s65, s65, 1280")
    A("s_mul_i32 s57, s50, 3072")
    A("s_add_u32 s57, s57, s65")
    A("s_lshl_b32 s57, s57, 2")
    A(f"s_add_u32 s57, s57, {WS_WSP}")
    A("v_cmp_gt_u32 vcc, 224, v1")
    A("s_and_saveexec_b64 s[66:67], vcc")
    A("buffer_store_dword v108, v9, s[44:47], s57 offen sc1")
    A("s_mov_b64 exec, s[66:67]")
    A("v_lshrrev_b32 v17, 2, v6")
    A("v_lshl_add_u32 v17, v5, 3, v17")
    A("v_mul_u32_u24 v17, 448, v17")
    A("v_and_b32 v18, 3, v6")
    A("v_lshl_add_u32 v17, v18, 3, v17")
    A("s_mul_i32 s57, s52, 224")
    A(f"s_add_u32 s57, s57, {K1F_BUF}")
    A("v_add_u32 v17, s57, v17")
    A("v_and_b32 v18, 1, v5")
    A("v_lshlrev_b32 v18, 5, v18")
    A("v_add_u32 v19, v17, v18")
    A("v_sub_u32 v17, v17, v18")
    A("s_cmp_eq_u32 s52, 0")
    A("s_cselect_b64 vcc, -1, 0")
    A("v_cndmask_b32 v248, v17, v19, vcc")
    A("v_cndmask_b32 v249, v19, v17, vcc")
    A("v_and_b32 v18, 7, v0")
    A("v_xor_b32 v18, v18, v5")
    A("v_lshlrev_b32 v17, 7, v6")
    A("s_lshl_b32 s57, s53, 13")
    A(f"s_add_u32 s57, s57, {28672+K1F_BUF}")
    A("v_add_u32 v17, s57, v17")
    A("v_lshl_add_u32 v250, v18, 4, v17")
    A("v_xor_b32 v251, 64, v250")
    for r in range(112):
        A(f"v_mov_b32 v{ACC+r}, 0")
    A("s_mov_b32 s54, 0")
    k1_publish_and_start(A)
    g = Gemm(A, "k1f", 7, 4, "tr", ACC, FRAG, [2, 7], [8, 9], [248, 249], [250, 251],
             lambda m, kk, h: (m & 1, (32 * kk + 4 * h) * 448 + m * 32), lambda n, kk: n * 2048,
             10, 3, K1F_STAGE, dma_issue, 11, 54, 56)
    g.run()
    gather_tables(A, 224, 65, K1F_STATS, K1F_WS)
    A("s_lshl_b32 s57, s53, 9")
    A("v_lshlrev_b32 v17, 3, v6")
    A("v_add_u32 v17, s57, v17")
    for n in range(4):
        A(f"ds_read_b64 v[{32+2*n}:{33+2*n}], v17 offset:{K1F_STATS+128*n}")
    A("s_mul_i32 s57, s52, 448")
    A("v_lshlrev_b32 v18, 4, v5")
    A("v_add_u32 v18, s57, v18")
    for m in range(7):
        A(f"ds_read_b128 v[{40+4*m}:{43+4*m}], v18 offset:{K1F_WS+64*m}")
    A("s_lshl_b32 s57, s50, 7")
    A("s_lshl_b32 s58, s53, 6")
    A("s_add_u32 s57, s57, s58")
    A("v_add_u32 v17, s57, v6")
    A("v_mul_u32_u24 v17, 3456, v17")
    A("v_lshrrev_b32 v18, 1, v5")
    A("v_lshl_add_u32 v17, v18, 4, v17")
    A("v_xor_b32 v18, v18, v5")
    A("v_xor_b32 v18, s51, v18")
    A("v_and_b32 v18, 1, v18")
    A("v_lshl_add_u32 v17, v18, 3, v17")
    A("s_mul_i32 s57, s51, 432")
    A("s_mul_i32 s58, s52, 224")
    A("s_add_u32 s57, s57, s58")
    A(f"s_add_u32 s57, s57, {WS_HF}")
    A("v_add_u32 v17, s57, v17")
    A("s_lshl_b32 s58, s52, 5")
    A("s_sub_u32 s58, 64, s58")
    A("v_cmp_gt_u32 vcc, s58, v0")
    A("v_mov_b32 v18, 0x7ffffff0")
    A("v_cndmask_b32 v19, v18, v17, vcc")
    A("s_waitcnt lgkmcnt(0)")
    for n in range(4):
        A(f"s_mov_b32 s57, {n*16*3456}")
        for m in range(7):
            a = ACC + (m * 4 + n) * 4
            w = 40 + 4 * m; st = 32 + 2 * n
            t = 72 + ((m * 4 + n) % 4) * 2
            for hh in range(2):
                A(f"v_pk_fma_f32 {vr(a+2*hh,2)}, {vr(w+2*hh,2)}, {vr(st,2)}, {vr(a+2*hh,2)} op_sel:[0,0,0] op_sel_hi:[1,0,1] neg_lo:[1,0,0] neg_hi:[1,0,0]")
            for hh in range(2):
                A(f"v_pk_mul_f32 {vr(a+2*hh,2)}, {vr(a+2*hh,2)}, {vr(st,2)} op_sel:[0,1] op_sel_hi:[1,1]")
            for hh in range(2):
                A(f"v_cvt_pk_bf16_f32 v{t+hh}, v{a+2*hh}, v{a+2*hh+1}")
            for hh in range(2):
                A(f"v_pk_max_i16 v{t+hh}, v{t+hh}, 0")
            vo = 19 if m == 6 else 17
            A(f"buffer_store_dwordx2 {vr(t,2)}, v{vo}, s[44:47], s57 offen offset:{32*m}")

def k1_Y(A):
    ACC = 128; FRAG = 32
    A("s_cmp_lt_u32 s48, 2")
    A("s_cselect_b32 s64, s10, s12")
    A("s_cselect_b32 s65, s11, s13")
    srd(A, 40, 64, D * D * 2)
    A("s_lshl_b32 s57, s53, 6")
    A("v_add_u32 v7, s57, v0")
    A("s_mul_i32 s57, s51, 80")
    A("v_add_u32 v8, s57, v7")
    A("v_mul_u32_u24 v8, 1280, v8")
    A("s_mul_i32 s57, s50, 80")
    for r in range(5):
        A(f"buffer_load_dwordx4 v[{72+4*r}:{75+4*r}], v8, s[40:43], s57 offen offset:{16*r}")
    divc(A, 9, 1, 80, 256)
    A("v_mul_u32_u24 v10, 80, v9")
    A("v_sub_u32 v10, v1, v10")
    A("s_mul_i32 s57, s51, 80")
    A("v_add_u32 v11, s57, v10")
    A("v_lshlrev_b32 v11, 1, v11")
    A("global_load_ushort v92, v11, s[6:7]")
    A("global_load_ushort v93, v11, s[8:9]")
    A("global_load_ushort v94, v11, s[18:19]")
    A("v_xor_b32 v17, v4, v3")
    A("v_xor_b32 v18, s52, v17")
    A("v_mul_u32_u24 v19, 1280, v3")
    A("v_lshl_add_u32 v240, v18, 4, v19")
    A("v_mul_u32_u24 v19, 5120, v3")
    A("v_lshl_add_u32 v247, v17, 4, v19")
    A("s_mul_i32 s59, s51, 80")
    A("s_mul_i32 s57, s53, 40")
    A("s_add_u32 s59, s59, s57")
    A("s_mul_i32 s59, s59, 1280")
    A("s_lshl_b32 s60, s50, 7")
    A("s_lshl_b32 s57, s52, 6")
    A("s_add_u32 s60, s60, s57")
    A("s_lshl_b32 s57, s53, 1")
    A("s_add_u32 s60, s60, s57")
    A("s_mul_i32 s60, s60, 1280")
    A("s_mul_i32 s61, s53, 10240")
    A("s_lshl_b32 s57, s52, 10")
    A("s_add_u32 s61, s61, s57")
    A(f"s_add_u32 s61, s61, {K1Y_BUF}")
    A("s_lshl_b32 s62, s48, 12")
    A(f"s_add_u32 s62, s62, {20480+K1Y_BUF}")
    A("s_mov_b32 s55, 0")
    def dma_issue():
        g = []
        for q in range(5):
            grp = ([f"s_add_u32 s57, s61, s55"] if q == 0 else []) + [f"s_add_u32 m0, s57, {2048*q}",
                   f"s_add_u32 s58, s59, {q*8*1280}",
                   f"buffer_load_dwordx4 v240, s[40:43], s58 offen lds"]
            g.append(grp)
        for q in range(4):
            grp = ([f"s_add_u32 s57, s62, s55"] if q == 0 else []) + [f"s_add_u32 m0, s57, {1024*q}",
                   f"s_add_u32 s58, s60, {(32*(q&1) + (q>>1))*1280}",
                   f"buffer_load_dwordx4 v247, s[36:39], s58 offen lds"]
            g.append(grp)
        g[-1] += ["s_add_u32 s59, s59, 128", "s_add_u32 s60, s60, 128",
                  f"s_add_u32 s55, s55, {K1Y_STAGE}", f"s_cmp_ge_u32 s55, {3*K1Y_STAGE}", "s_cselect_b32 s55, 0, s55"]
        return g
    for st in range(3):
        for grp in dma_issue():
            for x in grp: A(x)
    A("s_waitcnt vmcnt(27)")
    stats_compute(A)
    A("s_mov_b32 s57, 0x3f803f80")
    A("v_mov_b32 v108, 0")
    A("v_mov_b32 v109, 0")
    for r in range(20):
        A(f"v_dot2_f32_bf16 v{108+(r&1)}, v{72+r}, s57, v{108+(r&1)}")
    A("s_nop 2")
    A("v_add_f32 v108, v108, v109")
    A("s_mul_i32 s65, s51, 160")
    A("s_mul_i32 s57, s50, 3072")
    A("s_add_u32 s57, s57, s65")
    A("s_add_u32 s57, s57, s52")
    A("s_lshl_b32 s57, s57, 2")
    A(f"s_add_u32 s57, s57, {WS_WSP}")
    A("v_lshlrev_b32 v8, 3, v7")
    A("v_cmp_gt_u32 vcc, 80, v7")
    A("s_and_saveexec_b64 s[66:67], vcc")
    A("buffer_store_dword v108, v8, s[44:47], s57 offen sc1")
    A("s_mov_b64 exec, s[66:67]")
    divc(A, 12, 1, 40, 256)
    A("v_mul_u32_u24 v13, 40, v12")
    A("v_sub_u32 v13, v1, v13")
    A("v_mul_u32_u24 v12, 5120, v12")
    A("v_lshl_add_u32 v12, v13, 4, v12")
    A("s_mul_i32 s57, s50, 10240")
    A("s_mul_i32 s58, s51, 640")
    A("s_add_u32 s57, s57, s58")
    A(f"s_add_u32 s57, s57, {WS_E}")
    for r in range(4): A(f"v_mov_b32 v{112+r}, -1")
    A("v_cmp_gt_u32 vcc, 80, v1")
    A("s_and_saveexec_b64 s[66:67], vcc")
    Ls = A.label("skips")
    A(f"s_cbranch_execz {Ls}")
    A("buffer_store_dwordx4 v[112:115], v12, s[44:47], s57 offen sc1")
    A(f"{Ls}:")
    A("s_mov_b64 exec, s[66:67]")
    for r in (92, 93, 94): A(f"v_lshlrev_b32 v{r}, 16, v{r}")
    A(f"v_mul_f32 v94, {hexf(LOG2E)}, v94")
    A("v_exp_f32 v94, v94")
    bf16r(A, 94)
    A("v_mul_f32 v95, v94, v92")
    A("v_mul_f32 v96, v94, v93")
    A(f"v_mul_f32 v95, {hexf(LOG2E)}, v95")
    A(f"v_mul_f32 v96, {hexf(INV2PI)}, v96")
    A("v_mul_u32_u24 v97, 288, v10")
    A("v_lshl_add_u32 v97, v9, 3, v97")
    A("v_cmp_gt_u32 vcc, 240, v1")
    A("s_and_saveexec_b64 s[66:67], vcc")
    for r in range(11):
        A(f"v_add_u32 v98, {3*r}, v9")
        A("v_lshlrev_b32 v99, 2, v98")
        A("v_lshlrev_b32 v100, 6, v98")
        A("v_subrev_u32 v100, 1024, v100")
        A("v_cmp_gt_u32 vcc, 16, v98")
        A("v_cndmask_b32 v99, v100, v99, vcc")
        A("v_cvt_f32_u32 v99, v99")
        A("v_mul_f32 v100, v99, v95")
        A("v_mul_f32 v101, v99, v96")
        A("v_exp_f32 v100, v100")
        A("v_fract_f32 v101, v101")
        A("v_cos_f32 v102, v101")
        A("v_sin_f32 v103, v101")
        A("v_mul_f32 v102, v100, v102")
        A("v_mul_f32 v103, v100, v103")
        A(f"ds_write_b64 v97, v[102:103] offset:{K1Y_T+24*r}")
    A("s_mov_b64 exec, s[66:67]")
    A("v_exp_f32 v100, v95")
    A("v_fract_f32 v101, v96")
    A("v_cos_f32 v102, v101")
    A("v_sin_f32 v103, v101")
    A("v_mul_f32 v102, v100, v102")
    A("v_mul_f32 v103, v100, v103")
    A("v_add_f32 v98, -1.0, v102")
    A("v_mul_f32 v99, v92, v92")
    A("v_fmac_f32 v99, v93, v93")
    A("v_rcp_f32 v100, v99")
    A("v_fma_f32 v101, -v99, v100, 1.0")
    A("v_fma_f32 v100, v101, v100, v100")
    A("v_add_f32 v100, v100, v100")
    A("v_mul_f32 v104, v98, v92")
    A("v_fmac_f32 v104, v103, v93")
    A("v_mul_f32 v105, v103, v92")
    A("v_fma_f32 v105, -v98, v93, v105")
    A("v_mul_f32 v104, v104, v100")
    A("v_mul_f32 v105, v105, v100")
    A("v_cmp_gt_u32 vcc, 80, v1")
    A("s_and_saveexec_b64 s[66:67], vcc")
    A(f"ds_write_b128 v97, v[102:105] offset:{K1Y_T+272}")
    A("s_mov_b64 exec, s[66:67]")
    A("v_and_b32 v17, 1, v6")
    A("v_lshrrev_b32 v18, 1, v6")
    A("v_lshl_add_u32 v19, v17, 3, v18")
    A("v_xor_b32 v17, v17, v18")
    A("v_xor_b32 v17, v17, v5")
    A("v_lshlrev_b32 v19, 7, v19")
    A("v_lshl_add_u32 v19, v17, 4, v19")
    A("s_mul_i32 s57, s52, 10240")
    A(f"s_add_u32 s57, s57, {K1Y_BUF}")
    A("v_add_u32 v248, s57, v19")
    A("v_xor_b32 v249, 64, v248")
    A("v_and_b32 v18, 7, v0")
    A("v_xor_b32 v18, v18, v5")
    A("v_lshlrev_b32 v17, 7, v6")
    A("s_lshl_b32 s57, s53, 13")
    A(f"s_add_u32 s57, s57, {20480+K1Y_BUF}")
    A("v_add_u32 v17, s57, v17")
    A("v_lshl_add_u32 v250, v18, 4, v17")
    A("v_xor_b32 v251, 64, v250")
    for r in range(80):
        A(f"v_mov_b32 v{ACC+r}, 0")
    A("s_mov_b32 s54, 0")
    k1_publish_and_start(A)
    g = Gemm(A, "k1y", 5, 4, "direct", ACC, FRAG, [2, 7], [8, 9], [248, 249], [250, 251],
             lambda m, kk, h: m * 2048, lambda n, kk: n * 2048,
             10, 3, K1Y_STAGE, dma_issue, 9, 54, 56)
    g.run()
    gather_tables(A, 160, 65, K1Y_STATS, K1Y_WS)
    ST = 32
    WSR = 40
    P = 208
    TB = 60
    A("s_lshl_b32 s57, s53, 9")
    A("v_lshlrev_b32 v17, 5, v6")
    A("v_add_u32 v17, s57, v17")
    A(f"ds_read_b128 v[{ST}:{ST+3}], v17 offset:{K1Y_STATS}")
    A(f"ds_read_b128 v[{ST+4}:{ST+7}], v17 offset:{K1Y_STATS+16}")
    A("s_mul_i32 s57, s52, 320")
    A("v_lshlrev_b32 v18, 4, v5")
    A("v_add_u32 v18, s57, v18")
    for m in range(5):
        A(f"ds_read_b128 v[{WSR+4*m}:{WSR+4*m+3}], v18 offset:{K1Y_WS+64*m}")
    A("s_mul_i32 s57, s52, 11520")
    A("v_mul_u32_u24 v19, 576, v5")
    A("v_add_u32 v19, s57, v19")
    A("v_lshl_add_u32 v20, v6, 3, v19")
    A("s_lshl_b32 s57, s50, 1")
    A("s_add_u32 s64, s57, s53")
    A("s_mul_i32 s57, s51, 80")
    A("s_mul_i32 s58, s52, 40")
    A("s_add_u32 s57, s57, s58")
    A("s_lshl_b32 s68, s57, 3")
    A("v_lshlrev_b32 v21, 4, v5")
    A("v_add_u32 v21, s68, v21")
    A("v_cmp_eq_u32 vcc, 15, v6")
    A("v_mov_b32 v18, 0x7ffffff0")
    A("v_cndmask_b32 v22, v18, v21, vcc")
    A("s_mul_i32 s69, s64, 5120")
    A(f"s_add_u32 s69, s69, {WS_E}")
    def load_tab1(m, base):
        for q in range(2):
            o = K1Y_T + (8 * m + q) * 288
            b = base + 12 * q
            A(f"ds_read_b128 v[{b}:{b+3}], v19 offset:{o+272}")
            A(f"ds_read_b64 v[{b+4}:{b+5}], v19 offset:{o+8}")
            A(f"ds_read_b64 v[{b+6}:{b+7}], v19 offset:{o+16}")
            A(f"ds_read_b64 v[{b+8}:{b+9}], v19 offset:{o+32}")
            A(f"ds_read_b64 v[{b+10}:{b+11}], v19 offset:{o+64}")
    load_tab1(0, TB)
    TMP = 108
    for m in range(5):
        base = TB + 24 * (m & 1)
        A("s_waitcnt lgkmcnt(0)")
        if m < 4: load_tab1(m + 1, TB + 24 * ((m + 1) & 1))
        for n in range(4):
            for q in range(2):
                u = ACC + (m * 4 + n) * 4 + 2 * q
                w = WSR + 4 * m + 2 * q
                st = ST + 2 * n
                cf = base + 12 * q + 2
                t0 = TMP + 4 * q
                A(f"v_pk_fma_f32 {vr(t0,2)}, {vr(w,2)}, {vr(st,2)}, {vr(u,2)} op_sel:[0,0,0] op_sel_hi:[1,0,1] neg_lo:[1,0,0] neg_hi:[1,0,0]")
                A(f"v_pk_mul_f32 {vr(t0+2,2)}, {vr(cf,2)}, {vr(st,2)} op_sel:[0,1] op_sel_hi:[1,1]")
                cmul(A, u, t0 + 2, t0)
        for n in range(1, 4):
            for q in range(2):
                a = base + 12 * q
                e = P + 4 * m + 2 * q
                t0 = TMP + 4 * q
                prev = (ACC + (m * 4) * 4 + 2 * q) if n == 1 else (t0 if n == 3 else t0 + 2)
                dst = e if n == 3 else (t0 + 2 if n == 1 else t0)
                u = ACC + (m * 4 + n) * 4 + 2 * q
                cmul_add(A, dst, a, prev, u)
        for ki, k in enumerate((1, 2, 4, 8)):
            for q in range(2):
                e = P + 4 * m + 2 * q
                t0 = TMP + 4 * q
                A(f"v_mov_b32_dpp v{t0}, v{e} row_shr:{k} row_mask:0xf bank_mask:0xf bound_ctrl:0")
                A(f"v_mov_b32_dpp v{t0+1}, v{e+1} row_shr:{k} row_mask:0xf bank_mask:0xf bound_ctrl:0")
            for q in range(2):
                e = P + 4 * m + 2 * q
                t0 = TMP + 4 * q
                cmul_add(A, e, base + 12 * q + 4 + 2 * ki, t0, e)
        pb = TMP + 8 + 4 * (m & 1)
        for r in range(4):
            A(f"v_min_u32 v{pb+r}, -2, v{P+4*m+r}")
        A(f"buffer_store_dwordx4 v[{pb}:{pb+3}], v22, s[44:47], s69 offen offset:{64*m} sc1")
    A("v_sub_u32 v23, s64, v6")
    A("v_subrev_u32 v24, 1, v23")
    A("v_subrev_u32 v25, 17, v23")
    A("v_cmp_le_i32 vcc, 0, v24")
    A("v_mul_u32_u24 v24, 5120, v24")
    A("v_add_u32 v24, v24, v21")
    A("v_cndmask_b32 v24, v18, v24, vcc")
    A("v_cmp_le_i32 vcc, 0, v25")
    A("v_mul_u32_u24 v25, 5120, v25")
    A("v_add_u32 v25, v25, v21")
    A("v_cndmask_b32 v25, v18, v25, vcc")
    A(f"s_mov_b32 s69, {WS_E}")
    EN = 32; EF = 52
    TB2 = 72
    Lp = A.label("lb"); Lx = A.label("lbx")
    A("s_mov_b32 s58, 100000")
    A(f"{Lp}:")
    for m in range(5):
        A(f"buffer_load_dwordx4 v[{EN+4*m}:{EN+4*m+3}], v24, s[44:47], s69 offen offset:{64*m} sc1")
        A(f"buffer_load_dwordx4 v[{EF+4*m}:{EF+4*m+3}], v25, s[44:47], s69 offen offset:{64*m} sc1")
    A("s_waitcnt vmcnt(0)")
    A(f"v_max3_u32 v26, v{EN}, v{EN+1}, v{EN+2}")
    for r in range(3, 39, 2):
        A(f"v_max3_u32 v26, v26, v{EN+r}, v{EN+r+1}")
    A(f"v_max_u32 v26, v26, v{EN+39}")
    A("v_cmp_eq_u32 vcc, -1, v26")
    A("s_cmp_eq_u64 vcc, 0")
    A(f"s_cbranch_scc1 {Lx}")
    A("s_sleep 1")
    A("s_sub_u32 s58, s58, 1")
    A("s_cmp_lg_u32 s58, 0")
    A(f"s_cbranch_scc1 {Lp}")
    A(f"{Lx}:")
    def load_tab2(m, base):
        for q in range(2):
            o = K1Y_T + (8 * m + q) * 288
            b = base + 8 * q
            A(f"ds_read_b64 v[{b}:{b+1}], v20 offset:{o+128}")
            A(f"ds_read_b64 v[{b+2}:{b+3}], v19 offset:{o+256}")
            A(f"ds_read_b64 v[{b+4}:{b+5}], v20 offset:{o}")
            A(f"ds_read_b64 v[{b+6}:{b+7}], v19 offset:{o+272}")
    load_tab2(0, TB2)
    A("s_lshl_b32 s57, s50, 7")
    A("s_lshl_b32 s58, s53, 6")
    A("s_add_u32 s57, s57, s58")
    A("v_lshl_add_u32 v27, v6, 2, s57")
    A("v_mul_u32_u24 v27, 2560, v27")
    A("v_lshrrev_b32 v28, 1, v21")
    A("v_add_u32 v27, v27, v28")
    A("v_add_u32 v29, 5120, v27")
    A(f"s_mov_b32 s69, {WS_H1}")
    for m in range(5):
        base = TB2 + 16 * (m & 1)
        A("s_waitcnt lgkmcnt(0)")
        if m < 4: load_tab2(m + 1, TB2 + 16 * ((m + 1) & 1))
        for q in range(2):
            cmul_add(A, EN + 4 * m + 2 * q, base + 8 * q + 2, EF + 4 * m + 2 * q, EN + 4 * m + 2 * q)
        for q in range(2):
            cmul(A, EF + 4 * m + 2 * q, base + 8 * q, EN + 4 * m + 2 * q)
        for k in (8, 4, 2, 1):
            for r in range(4):
                x = EF + 4 * m + r
                A(f"v_add_f32_dpp v{x}, v{x}, v{x} row_ror:{k} row_mask:0xf bank_mask:0xf")
        for q in range(2):
            e = P + 4 * m + 2 * q
            t0 = TMP + 4 * q
            A(f"v_mov_b32_dpp v{t0}, v{e} row_shr:1 row_mask:0xf bank_mask:0xf bound_ctrl:0")
            A(f"v_mov_b32_dpp v{t0+1}, v{e+1} row_shr:1 row_mask:0xf bank_mask:0xf bound_ctrl:0")
        for q in range(2):
            t0 = TMP + 4 * q
            cmul_add(A, t0, base + 8 * q + 4, EF + 4 * m + 2 * q, t0)
        for n in range(4):
            for q in range(2):
                u = ACC + (m * 4 + n) * 4 + 2 * q
                prev = (TMP + 4 * q) if n == 0 else u - 4
                cmul_add(A, u, base + 8 * q + 6, prev, u)
        for n in range(4):
            u = ACC + (m * 4 + n) * 4
            pk = TMP + 8 + 2 * n
            A(f"v_cvt_pk_bf16_f32 v{pk}, v{u}, v{u+1}")
            A(f"v_cvt_pk_bf16_f32 v{pk+1}, v{u+2}, v{u+3}")
            A(f"buffer_store_dwordx2 v[{pk}:{pk+1}], v27, s[44:47], s69 offen offset:{2560*(n&1) + 32*m}" if n < 2 else
              f"buffer_store_dwordx2 v[{pk}:{pk+1}], v29, s[44:47], s69 offen offset:{2560*(n&1) + 32*m}")


K2_STAGE = 10240 + 16384
K2_NS = 5
K2_LDS = K2_STAGE * K2_NS

def kernel2(A):
    A("k2_kernel:")
    A("s_cmp_ge_u32 s2, 256")
    A("s_cbranch_scc1 k2_end")
    A("s_load_dwordx2 s[4:5], s[0:1], 0")
    A("s_load_dwordx8 s[20:27], s[0:1], 64")
    A("s_load_dwordx4 s[28:31], s[0:1], 96")
    A("s_load_dwordx2 s[32:33], s[0:1], 112")
    A("v_mov_b32 v1, v0")
    A("v_lshrrev_b32 v2, 6, v0")
    A("v_and_b32 v0, 63, v0")
    A("v_readfirstlane_b32 s48, v2")
    A("s_and_b32 s57, s2, 7")
    A("s_lshr_b32 s58, s2, 3")
    A("s_lshr_b32 s49, s57, 2")
    A("s_and_b32 s57, s57, 3")
    A("s_lshl_b32 s57, s57, 2")
    A("s_lshr_b32 s50, s58, 3")
    A("s_add_u32 s50, s50, s57")
    A("s_and_b32 s51, s58, 7")
    A("s_lshr_b32 s52, s48, 1")
    A("s_and_b32 s53, s48, 1")
    A("v_lshrrev_b32 v3, 3, v0")
    A("v_and_b32 v4, 7, v0")
    A("v_lshrrev_b32 v5, 4, v0")
    A("v_and_b32 v6, 15, v0")
    A("v_xor_b32 v10, v4, v3")
    A("v_lshlrev_b32 v10, 4, v10")
    A("s_waitcnt lgkmcnt(0)")
    srd(A, 44, 32, WS_SIZE)
    srd(A, 72, 4, T * D * 2)
    srd(A, 76, 28, T * D * 4)
    A("s_cmp_lg_u32 s49, 0")
    A("s_cbranch_scc1 k2_F")
    k2_body(A, False)
    A("s_branch k2_end")
    A("k2_F:")
    k2_body(A, True)
    A("k2_end:")
    A("s_endpgm")

def k2_body(A, isF):
    ACC = 128; FRAG = 32
    pitch = 3456 if isF else 2560
    boff = WS_HF if isF else WS_H1
    nst = 27 if isF else 20
    srd(A, 40, 32, WS_SIZE)
    if isF:
        A(f"s_mov_b32 s57, {WS_SIZE}")
        A("s_cmp_eq_u32 s52, 0")
        A("s_cselect_b32 s36, s26, s32")
        A("s_cselect_b32 s37, s27, s33")
        A(f"s_cselect_b32 s38, {D*DFF*2}, s57")
        A("s_and_b32 s37, s37, 0xffff")
        A("s_mov_b32 s39, 0x20000")
    else:
        srd(A, 36, 32, WS_SIZE)
    La = A.label("k2hi"); Lb = A.label("k2j")
    A("s_cmp_lg_u32 s52, 0")
    A(f"s_cbranch_scc1 {La}")
    if isF:
        for s_ in range(5):
            A(f"v_add_u32 v17, {64*s_}, v0")
            divc(A, 18, 17, 10, 320)
            A("v_mul_u32_u24 v19, 10, v18")
            A("v_sub_u32 v19, v17, v19")
            A("v_mul_u32_u24 v18, 1280, v18")
            A(f"v_lshl_add_u32 v{240+s_}, v19, 4, v18")
        A("s_mul_i32 s59, s53, 40960")
        A("s_mul_i32 s57, s51, 160")
        A("s_add_u32 s59, s59, s57")
        A(f"s_mov_b32 s64, {64*1280}")
    else:
        for s_ in range(5):
            A(f"v_add_u32 v17, {8*s_}, v3")
            A("v_mul_u32_u24 v17, 2560, v17")
            A(f"v_add_u32 v{240+s_}, v17, v10")
        A("s_mul_i32 s59, s51, 80")
        A("s_mul_i32 s57, s53, 40")
        A("s_add_u32 s59, s59, s57")
        A("s_mul_i32 s59, s59, 2560")
        A(f"s_add_u32 s59, s59, {WS_CP}")
        A("s_mov_b32 s64, 128")
    for s_ in range(2):
        A(f"v_add_u32 v17, {8*s_}, v3")
        A(f"v_mul_u32_u24 v17, {pitch}, v17")
        A(f"v_add_u32 v{245+s_}, v17, v10")
    A("s_lshl_b32 s60, s50, 7")
    A("s_lshl_b32 s57, s53, 4")
    A("s_add_u32 s60, s60, s57")
    A(f"s_mul_i32 s60, s60, {pitch}")
    A(f"s_add_u32 s60, s60, {boff}")
    A("s_mul_i32 s61, s53, 5120")
    A("s_lshl_b32 s62, s53, 11")
    A("s_add_u32 s62, s62, 10240")
    A(f"s_branch {Lb}")
    A(f"{La}:")
    for s_ in range(6):
        A(f"v_add_u32 v17, {8*s_}, v3")
        A(f"v_mul_u32_u24 v17, {pitch}, v17")
        A(f"v_add_u32 v{240+s_}, v17, v10")
    A("v_mov_b32 v246, v245")
    A("s_lshl_b32 s59, s50, 7")
    A("s_mul_i32 s57, s53, 48")
    A("s_add_u32 s59, s59, s57")
    A("s_add_u32 s59, s59, 32")
    A(f"s_mul_i32 s59, s59, {pitch}")
    A(f"s_add_u32 s59, s59, {boff}")
    A("s_mov_b32 s60, s59")
    A("s_mov_b32 s64, 128")
    A("s_mul_i32 s61, s53, 6144")
    A("s_add_u32 s61, s61, 14336")
    A("s_add_u32 s62, s61, 5120")
    A(f"{Lb}:")
    A("s_mov_b32 s55, 0")
    def dma_issue():
        g = []
        for q in range(5):
            grp = ([f"s_add_u32 s57, s61, s55"] if q == 0 else []) + [f"s_add_u32 m0, s57, {1024*q}", "s_nop 0",
                   f"buffer_load_dwordx4 v{240+q}, s[36:39], s59 offen lds"]
            g.append(grp)
        g.append([f"s_add_u32 m0, s62, s55", "s_nop 0", "buffer_load_dwordx4 v245, s[40:43], s60 offen lds"])
        L = A.label("sk6")
        g.append(["s_cmp_lg_u32 s52, 0", f"s_cbranch_scc1 {L}", "s_add_u32 m0, m0, 1024", "s_nop 0",
                  "buffer_load_dwordx4 v246, s[40:43], s60 offen lds", f"{L}:",
                  "s_add_u32 s59, s59, s64", "s_add_u32 s60, s60, 128",
                  f"s_add_u32 s55, s55, {K2_STAGE}", f"s_cmp_ge_u32 s55, {K2_NS*K2_STAGE}", "s_cselect_b32 s55, 0, s55"])
        return g
    for st in range(K2_NS):
        for grp in dma_issue():
            for x in grp: A(x)
    A("v_and_b32 v18, 7, v0")
    A("v_xor_b32 v18, v18, v5")
    A("v_lshlrev_b32 v17, 7, v6")
    A("v_lshl_add_u32 v17, v18, 4, v17")
    A("s_lshl_b32 s57, s48, 12")
    A("s_add_u32 s57, s57, 10240")
    A("v_add_u32 v250, s57, v17")
    A("v_xor_b32 v251, 64, v250")
    if isF:
        A("v_lshrrev_b32 v17, 2, v6")
        A("v_lshl_add_u32 v17, v5, 3, v17")
        A("v_and_b32 v18, 1, v5")
        A("v_lshl_add_u32 v19, v18, 2, v17")
        A("v_xor_b32 v18, 1, v18")
        A("v_lshl_add_u32 v17, v18, 2, v17")
        A("v_and_b32 v18, 3, v6")
        A("v_lshlrev_b32 v18, 3, v18")
        A("v_mad_u32_u24 v248, v19, 160, v18") if False else None
        A("v_mul_u32_u24 v19, 160, v19")
        A("v_mul_u32_u24 v17, 160, v17")
        A("v_add_u32 v248, v19, v18")
        A("v_add_u32 v249, v17, v18")
        a_imm = lambda m, kk, h: (h, kk * 5120 + m * 32)
    else:
        A("v_mov_b32 v248, v17")
        A("v_xor_b32 v249, 64, v248")
        a_imm = lambda m, kk, h: m * 2048
    for r in range(40):
        A(f"v_mov_b32 v{ACC+r}, 0")
    A("s_mov_b32 s54, 0")
    g = Gemm(A, "k2f" if isF else "k2y", 5, 2, "tr" if isF else "direct", ACC, FRAG, [2, 7], [8, 9], [248, 249], [250, 251],
             a_imm, lambda n, kk: n * 2048, nst, K2_NS, K2_STAGE, dma_issue, 7, 54, 56, wait_alt=(52, 6))
    g.wait_vm(K2_NS - 1)
    A("s_barrier")
    g.run()
    A("s_lshl_b32 s57, s50, 7")
    A("s_lshl_b32 s58, s48, 5")
    A("s_add_u32 s57, s57, s58")
    A("v_add_u32 v17, s57, v6")
    A("v_mul_u32_u24 v18, 1280, v17")
    A("v_lshl_add_u32 v18, v5, 3, v18")
    A("s_mul_i32 s58, s51, 160")
    A(f"s_add_u32 s59, s58, {16*1280}")
    XR = 32
    for n in range(2):
        for m in range(5):
            A(f"buffer_load_dwordx2 v[{XR+2*(n*5+m)}:{XR+2*(n*5+m)+1}], v18, s[72:75], s{58+n} offen offset:{32*m}")
    A("s_lshl_b32 s60, s50, 3")
    A("s_add_u32 s60, s60, s51")
    A("s_mul_i32 s61, s60, 40")
    A("s_mul_i32 s62, s48, 10")
    A("s_add_u32 s61, s61, s62")
    A("s_lshl_b32 s61, s61, 10")
    A(f"s_add_u32 s61, s61, {WS_S}")
    A("v_lshlrev_b32 v19, 4, v0")
    A("s_lshl_b32 s60, s60, 7")
    A(f"s_add_u32 s60, s60, {WS_FLAG}")
    if not isF:
        SR = 52; DR = 60
        A("v_lshlrev_b32 v20, 4, v17")
        A(f"s_mov_b32 s62, {WS_STATS}")
        for n in range(2):
            A(f"buffer_load_dwordx4 v[{SR+4*n}:{SR+4*n+3}], v20, s[44:47], s62 offen offset:{256*n}")
        A("v_lshlrev_b32 v21, 3, v5")
        A("v_add_u32 v21, s58, v21")
        for m in range(5):
            A(f"global_load_dwordx2 v[{DR+2*m}:{DR+2*m+1}], v21, s[20:21] offset:{32*m}")
        A("s_waitcnt vmcnt(0)")
        DU = 72
        for m in range(5):
            for hh in range(2):
                A(f"v_lshlrev_b32 v{DU+4*m+2*hh}, 16, v{DR+2*m+hh}")
                A(f"v_and_b32 v{DU+4*m+2*hh+1}, 0xffff0000, v{DR+2*m+hh}")
        for n in range(2):
            for m in range(5):
                a = ACC + (m * 2 + n) * 4
                x = XR + 2 * (n * 5 + m)
                t = 92 + 8 * ((n * 5 + m) & 1)
                mm, rs, sd = SR + 4 * n, SR + 4 * n + 1, SR + 4 * n + 2
                for hh in range(2):
                    A(f"v_lshlrev_b32 v{t+2*hh}, 16, v{x+hh}")
                    A(f"v_and_b32 v{t+2*hh+1}, 0xffff0000, v{x+hh}")
                for r in range(4): A(f"v_sub_f32 v{t+r}, v{t+r}, v{mm}")
                for hh in range(2):
                    A(f"v_cvt_pk_bf16_f32 v{t+4+hh}, v{t+2*hh}, v{t+2*hh+1}")
                for hh in range(2):
                    A(f"v_lshlrev_b32 v{t+2*hh}, 16, v{t+4+hh}")
                    A(f"v_and_b32 v{t+2*hh+1}, 0xffff0000, v{t+4+hh}")
                for r in range(4): A(f"v_mul_f32 v{t+4+r}, v{t+r}, v{rs}")
                for r in range(4): A(f"v_fma_f32 v{t+r}, -v{t+4+r}, v{sd}, v{t+r}")
                for r in range(4): A(f"v_fma_f32 v{t+4+r}, v{t+r}, v{rs}, v{t+4+r}")
                for hh in range(2):
                    A(f"v_cvt_pk_bf16_f32 v{t+hh}, v{t+4+2*hh}, v{t+4+2*hh+1}")
                for hh in range(2):
                    A(f"v_lshlrev_b32 v{t+4+2*hh}, 16, v{t+hh}")
                    A(f"v_and_b32 v{t+4+2*hh+1}, 0xffff0000, v{t+hh}")
                for r in range(4): A(f"v_mul_f32 v{t+4+r}, v{t+4+r}, v{DU+4*m+r}")
                for hh in range(2):
                    A(f"v_cvt_pk_bf16_f32 v{t+hh}, v{t+4+2*hh}, v{t+4+2*hh+1}")
                for hh in range(2):
                    A(f"v_lshlrev_b32 v{t+4+2*hh}, 16, v{t+hh}")
                    A(f"v_and_b32 v{t+4+2*hh+1}, 0xffff0000, v{t+hh}")
                for r in range(4): A(f"v_add_f32 v{a+r}, v{a+r}, v{t+4+r}")
                A(f"s_add_u32 s62, s61, {(n*5+m)*1024}")
                A(f"buffer_store_dwordx4 v[{a}:{a+3}], v19, s[44:47], s62 offen sc1")
        A("s_waitcnt vmcnt(0)")
        A("s_barrier")
        L = A.label("noflag")
        A("s_cmp_lg_u32 s48, 0")
        A(f"s_cbranch_scc1 {L}")
        A("v_mov_b32 v20, 0")
        A("v_mov_b32 v21, 1")
        A("s_mov_b64 exec, 1")
        A("buffer_store_dword v21, v20, s[44:47], s60 offen sc1")
        A("s_mov_b64 exec, -1")
        A(f"{L}:")
    else:
        for n in range(2):
            for m in range(5):
                a = ACC + (m * 2 + n) * 4
                t = 92 + 8 * ((n * 5 + m) & 1)
                for hh in range(2):
                    A(f"v_cvt_pk_bf16_f32 v{t+hh}, v{a+2*hh}, v{a+2*hh+1}")
                for hh in range(2):
                    A(f"v_lshlrev_b32 v{a+2*hh}, 16, v{t+hh}")
                    A(f"v_and_b32 v{a+2*hh+1}, 0xffff0000, v{t+hh}")
                for r in range(4): A(f"v_mul_f32 v{t+r}, {hexf(-LOG2E)}, v{a+r}")
                for r in range(4): A(f"v_exp_f32 v{t+r}, v{t+r}")
                for r in range(4): A(f"v_add_f32 v{t+r}, 1.0, v{t+r}")
                for r in range(4): A(f"v_rcp_f32 v{t+r}, v{t+r}")
                for r in range(4): A(f"v_mul_f32 v{t+r}, v{t+r}, v{a+r}")
                for hh in range(2):
                    A(f"v_cvt_pk_bf16_f32 v{t+4+hh}, v{t+2*hh}, v{t+2*hh+1}")
                for hh in range(2):
                    A(f"v_lshlrev_b32 v{a+2*hh}, 16, v{t+4+hh}")
                    A(f"v_and_b32 v{a+2*hh+1}, 0xffff0000, v{t+4+hh}")
        Lp = A.label("fp"); Lx = A.label("fpx")
        A("v_mov_b32 v20, 0")
        A("s_mov_b32 s62, 200000")
        A(f"{Lp}:")
        A("buffer_load_dword v21, v20, s[44:47], s60 offen sc1")
        A("s_waitcnt vmcnt(0)")
        A("v_readfirstlane_b32 s63, v21")
        A("s_cmp_eq_u32 s63, 1")
        A(f"s_cbranch_scc1 {Lx}")
        A("s_sleep 1")
        A("s_sub_u32 s62, s62, 1")
        A("s_cmp_lg_u32 s62, 0")
        A(f"s_cbranch_scc1 {Lp}")
        A(f"{Lx}:")
        SR = 52
        for n in range(2):
            for m in range(5):
                A(f"s_add_u32 s62, s61, {(n*5+m)*1024}")
                A(f"buffer_load_dwordx4 v[{SR+4*(n*5+m)}:{SR+4*(n*5+m)+3}], v19, s[44:47], s62 offen sc1")
        A("v_lshlrev_b32 v18, 1, v18")
        A("s_lshl_b32 s58, s58, 1")
        A("s_lshl_b32 s59, s59, 1")
        for n in range(2):
            for m in range(5):
                a = ACC + (m * 2 + n) * 4
                x = XR + 2 * (n * 5 + m)
                sreg = SR + 4 * (n * 5 + m)
                t = 92 + 4 * ((n * 5 + m) & 3)
                A(f"s_waitcnt vmcnt({9 - (n*5+m) + (n*5+m)})" if False else f"s_waitcnt vmcnt(9)")
                for hh in range(2):
                    A(f"v_lshlrev_b32 v{t+2*hh}, 16, v{x+hh}")
                    A(f"v_and_b32 v{t+2*hh+1}, 0xffff0000, v{x+hh}")
                for r in range(4): A(f"v_mul_f32 v{a+r}, v{sreg+r}, v{a+r}")
                for r in range(4): A(f"v_add_f32 v{t+r}, v{t+r}, v{a+r}")
                A(f"buffer_store_dwordx4 v[{t}:{t+3}], v18, s[76:79], s{58+n} offen offset:{64*m}")

HEADER = open("recurrent_scan__ssm_conv_s5__dense_activation_relu__prompt.s.ref").read().split("; @launch")[0]

def kd(name, vgpr=256):
    return f""".p2align 6
.amdhsa_kernel {name}
  .amdhsa_next_free_vgpr {vgpr}
  .amdhsa_next_free_sgpr 102
  .amdhsa_accum_offset {vgpr}
  .amdhsa_group_segment_fixed_size 0
  .amdhsa_kernarg_size 120
  .amdhsa_user_sgpr_count 2
  .amdhsa_user_sgpr_kernarg_segment_ptr 1
  .amdhsa_system_sgpr_workgroup_id_x 1
.end_amdhsa_kernel
"""

def build():
    out = HEADER
    out += f"; @launch kernel=k1_kernel grid=(256,1,1) block=(256,1,1) lds={K1_LDS}\n"
    out += f"; @launch kernel=k2_kernel grid=(256,1,1) block=(256,1,1) lds={K2_LDS}\n"
    out += '.amdgcn_target "amdgcn-amd-amdhsa--gfx950"\n.text\n'
    for name, fn in (("k1_kernel", kernel1), ("k2_kernel", kernel2)):
        A = Asm(); A.nlabel = 0 if name == "k1_kernel" else 1000
        fn(A)
        lines = fix_hazards(A.lines, verbose=True)
        out += f".globl {name}\n.p2align 8\n.type {name},@function\n"
        out += "\n".join(("    " + l if not l.endswith(":") else l) for l in lines) + "\n"
    out += '.section .rodata,"a"\n' + kd("k1_kernel") + kd("k2_kernel")
    return out

if __name__ == "__main__":
    dst = sys.argv[1] if len(sys.argv) > 1 else "recurrent_scan__ssm_conv_s5__dense_activation_relu__prompt.s"
    open(dst, "w").write(build())
    print("wrote", dst)
```

```python
import sys, struct
from asmlib import *

T, D, DFF = 2048, 640, 1728
WS_STATS = 0x000000
WS_WSP   = 0x010000
WS_E     = 0x050000
WS_FLAG  = 0x080000
WS_CP    = 0x100000
WS_W2P   = 0x300000
WS_H1    = 0x600000
WS_HF    = 0xC00000
WS_S     = 0x1400000
WS_TS    = 0x1A00000
WS_SIZE  = 0x1B00000
OOB = 0x7ffffff0

STAMPS = False
DBG = "nopf"
def stamp(A, i):
    if STAMPS:
        A(f"s_memtime s[{80+2*i}:{81+2*i}]")
def stamps_flush(A, n, kidx):
    if not STAMPS: return
    A("s_waitcnt lgkmcnt(0) vmcnt(0)")
    A("s_memtime s[98:99]")
    A("s_waitcnt lgkmcnt(0)")
    A("s_lshl_b32 s57, s2, 3")
    A("s_add_u32 s57, s57, s34")
    A("s_lshl_b32 s57, s57, 6")
    A(f"s_add_u32 s57, s57, {WS_TS + kidx*131072}")
    A("v_mov_b32 v2, 0")
    for i in range(n):
        A(f"v_mov_b32 v3, s{80+2*i}")
        A(f"buffer_store_dword v3, v2, s[44:47], s57 offen offset:{4*i}")
    A(f"v_mov_b32 v3, s98")
    A(f"buffer_store_dword v3, v2, s[44:47], s57 offen offset:{4*n}")

def f2u(x): return struct.unpack("<I", struct.pack("<f", x))[0]
def hexf(x): return f"0x{f2u(x):08x}"
LOG2E = 1.4426950408889634
INV2PI = 0.15915494309189535

def divc(A, vq, vsrc, d, maxv):
    for sh in (16, 17, 18, 19, 20):
        mul = ((1 << sh) + d - 1) // d
        if all((c * mul) >> sh == c // d for c in range(maxv)) and maxv * mul < (1 << 32) and mul < (1 << 24):
            A(f"v_mul_u32_u24 {vr(vq)}, {mul}, {vr(vsrc)}")
            A(f"v_lshrrev_b32 {vr(vq)}, {sh}, {vr(vq)}")
            return
    raise Exception("no magic")

def srd(A, s, base, size):
    A(f"s_mov_b32 s{s}, s{base}")
    A(f"s_and_b32 s{s+1}, s{base+1}, 0xffff")
    A(f"s_mov_b32 s{s+2}, {size}")
    A(f"s_mov_b32 s{s+3}, 0x20000")

def cmul_add(A, dst, w, h, u):
    A(f"v_pk_fma_f32 {vr(dst,2)}, {vr(w,2)}, {vr(h,2)}, {vr(u,2)} op_sel:[0,0,0] op_sel_hi:[0,1,1]")
    A(f"v_pk_fma_f32 {vr(dst,2)}, {vr(w,2)}, {vr(h,2)}, {vr(dst,2)} op_sel:[1,1,0] op_sel_hi:[1,0,1] neg_lo:[1,0,0]")
def cmul(A, dst, w, h):
    A(f"v_pk_mul_f32 {vr(dst,2)}, {vr(w,2)}, {vr(h,2)} op_sel:[0,0] op_sel_hi:[0,1]")
    A(f"v_pk_fma_f32 {vr(dst,2)}, {vr(w,2)}, {vr(h,2)}, {vr(dst,2)} op_sel:[1,1,0] op_sel_hi:[1,0,1] neg_lo:[1,0,0]")

def wave_sum(A, regs):
    for mod in ("row_shr:1 row_mask:0xf bank_mask:0xf bound_ctrl:0", "row_shr:2 row_mask:0xf bank_mask:0xf bound_ctrl:0",
                "row_shr:4 row_mask:0xf bank_mask:0xf bound_ctrl:0", "row_shr:8 row_mask:0xf bank_mask:0xf bound_ctrl:0",
                "row_bcast:15 row_mask:0xa bank_mask:0xf", "row_bcast:31 row_mask:0xc bank_mask:0xf"):
        for r in regs:
            A(f"v_add_f32_dpp {vr(r)}, {vr(r)}, {vr(r)} {mod}")

def bf16r(A, r):
    A(f"v_cvt_pk_bf16_f32 {vr(r)}, {vr(r)}, {vr(r)}")
    A(f"v_lshlrev_b32 {vr(r)}, 16, {vr(r)}")

class VM:
    def __init__(s, A): s.A = A; s.ops = []
    def __call__(s, text, tag): s.A(text); s.ops.append(tag)
    def wait(s, tag, extra=""):
        idx = max([i for i, t in enumerate(s.ops) if t == tag], default=None)
        if idx is None:
            if extra: s.A(f"s_waitcnt {extra}")
            return
        n = len(s.ops) - 1 - idx
        assert n <= 63, n
        s.A(f"s_waitcnt vmcnt({n}) {extra}".strip())
        s.ops = s.ops[idx + 1:]
    def waitall(s, extra=""):
        s.A(f"s_waitcnt vmcnt(0) {extra}".strip()); s.ops = []

def common_ids(A):
    A("v_lshrrev_b32 v2, 6, v0")
    A("v_and_b32 v1, 255, v0")
    A("v_and_b32 v0, 63, v0")
    A("v_readfirstlane_b32 s34, v2")
    A("s_and_b32 s57, s2, 7")
    A("s_lshr_b32 s35, s2, 3")
    A("s_lshr_b32 s49, s57, 2")
    A("s_and_b32 s57, s57, 3")
    A("s_lshl_b32 s57, s57, 2")
    A("s_lshr_b32 s50, s35, 3")
    A("s_add_u32 s50, s50, s57")
    A("s_and_b32 s51, s35, 7")
    A("s_and_b32 s48, s34, 3")
    A("s_lshr_b32 s52, s48, 1")
    A("s_and_b32 s53, s48, 1")
    A("v_lshrrev_b32 v3, 3, v0")
    A("v_and_b32 v4, 7, v0")
    A("v_lshrrev_b32 v5, 4, v0")
    A("v_and_b32 v6, 15, v0")

def poll(A, load, stmp, scount, vtmp, target, iters=200000):
    L = A.label("poll"); Lx = A.label("pollx")
    A(f"s_mov_b32 s{scount}, {iters}")
    A(f"{L}:")
    A(load)
    A("s_waitcnt vmcnt(0)")
    A(f"v_readfirstlane_b32 s{stmp}, {vr(vtmp)}")
    A(f"s_cmp_eq_u32 s{stmp}, {target}")
    A(f"s_cbranch_scc1 {Lx}")
    A("s_sleep 1")
    A(f"s_sub_u32 s{scount}, s{scount}, 1")
    A(f"s_cmp_lg_u32 s{scount}, 0")
    A(f"s_cbranch_scc1 {L}")
    A(f"{Lx}:")

K1F_STAGE = 28672 + 16384
K1Y_STAGE = 20480 + 16384
K1_STATS = 0
K1_WS = 1024
K1F_RED = 2048
K1F_BUF = 9216
K1Y_T = 2048
K1Y_BUF = 25088
K1Y_SCR = K1Y_BUF + 3 * K1Y_STAGE
K1_LDS = 156160

def kernel1(A):
    A("k1_kernel:")
    A("s_cmp_ge_u32 s2, 256")
    A("s_cbranch_scc1 k1_end")
    stamp(A, 0)
    A("s_load_dwordx16 s[4:19], s[0:1], 0")
    A("s_load_dwordx8 s[20:27], s[0:1], 64")
    A("s_load_dwordx4 s[28:31], s[0:1], 96")
    A("s_load_dwordx2 s[32:33], s[0:1], 112")
    common_ids(A)
    A("s_lshr_b32 s57, s51, 1")
    A("s_mul_i32 s54, s57, 27")
    A("s_and_b32 s57, s51, 1")
    A("s_mul_i32 s57, s57, 14")
    A("s_add_u32 s54, s54, s57")
    A("s_waitcnt lgkmcnt(0)")
    srd(A, 36, 4, T * D * 2)
    srd(A, 44, 32, WS_SIZE)
    A("s_cmp_ge_u32 s34, 4")
    A("s_cbranch_scc1 k1_ld")
    A("s_cmp_lg_u32 s49, 0")
    A("s_cbranch_scc1 k1_cF")
    k1_compute(A, False)
    stamps_flush(A, 8, 0)
    A("s_branch k1_end")
    A("k1_cF:")
    k1_compute(A, True)
    stamps_flush(A, 8, 0)
    A("s_branch k1_end")
    A("k1_ld:")
    A("s_cmp_lg_u32 s49, 0")
    A("s_cbranch_scc1 k1_lF")
    k1_loader(A, False)
    stamps_flush(A, 8, 0)
    A("s_branch k1_end")
    A("k1_lF:")
    k1_loader(A, True)
    stamps_flush(A, 8, 0)
    A("k1_end:")
    A("s_endpgm")

def stats_compute(A, vm):
    for r in range(2):
        for i in range(5):
            A(f"v_lshlrev_b32 v{40+10*r+2*i}, 16, v{20+5*r+i}")
            A(f"v_and_b32 v{41+10*r+2*i}, 0xffff0000, v{20+5*r+i}")
    for r in range(2):
        b = 40 + 10 * r
        A(f"v_add_f32 v{60+r}, v{b}, v{b+1}")
        for i in range(2, 10):
            A(f"v_add_f32 v{60+r}, v{60+r}, v{b+i}")
    wave_sum(A, [60, 61])
    A("v_readlane_b32 s57, v60, 63")
    A("v_readlane_b32 s58, v61, 63")
    A(f"v_mov_b32 v62, {hexf(1.0/640)}")
    A("v_mul_f32 v60, s57, v62")
    A("v_mul_f32 v61, s58, v62")
    for r in range(2):
        b = 40 + 10 * r
        for i in range(10):
            A(f"v_sub_f32 v{b+i}, v{b+i}, v{60+r}")
    for r in range(2):
        b = 40 + 10 * r
        A(f"v_mul_f32 v{64+r}, v{b}, v{b}")
        for i in range(1, 10):
            A(f"v_fmac_f32 v{64+r}, v{b+i}, v{b+i}")
    wave_sum(A, [64, 65])
    A("v_readlane_b32 s57, v64, 63")
    A("v_readlane_b32 s58, v65, 63")
    A("v_mul_f32 v64, s57, v62")
    A("v_mul_f32 v65, s58, v62")
    A("v_and_b32 v66, 1, v0")
    A("v_cmp_eq_u32 vcc, 1, v66")
    A("v_cndmask_b32 v68, v60, v61, vcc")
    A("v_cndmask_b32 v70, v64, v65, vcc")
    bf16r(A, 68)
    bf16r(A, 70)
    A(f"v_add_f32 v70, {hexf(1e-5)}, v70")
    bf16r(A, 70)
    A("v_sqrt_f32 v70, v70")
    bf16r(A, 70)
    A("v_rcp_f32 v69, v70")
    A("v_fma_f32 v71, -v70, v69, 1.0")
    A("v_fma_f32 v69, v71, v69, v69")
    A("v_mov_b32 v71, 0")
    A("v_lshlrev_b32 v66, 4, v0")
    A(f"v_mov_b32 v67, {OOB}")
    A("v_cmp_gt_u32 vcc, 2, v0")
    A("v_cndmask_b32 v66, v67, v66, vcc")
    A("s_lshl_b32 s57, s63, 4")
    A(f"s_add_u32 s57, s57, {WS_STATS}")
    vm("buffer_store_dwordx4 v[68:71], v66, s[44:47], s57 offen sc1", "st")

def k1_loader(A, isF):
    vm = VM(A)
    STG = K1F_STAGE if isF else K1Y_STAGE
    BUF = K1F_BUF if isF else K1Y_BUF
    ASZ = 28672 if isF else 20480
    A("s_lshl_b32 s57, s49, 3")
    A("s_add_u32 s57, s57, s51")
    A("s_lshl_b32 s57, s57, 3")
    A("s_lshl_b32 s58, s50, 7")
    A("s_add_u32 s57, s57, s58")
    A("s_lshl_b32 s58, s48, 1")
    A("s_add_u32 s63, s57, s58")
    A("s_mul_i32 s57, s63, 1280")
    A("s_add_u32 s58, s57, 1280")
    A("v_lshlrev_b32 v2, 2, v0")
    A("v_xor_b32 v17, v4, v3")
    A("v_mul_u32_u24 v19, 5120, v3")
    A("v_lshl_add_u32 v247, v17, 4, v19")
    A("s_lshl_b32 s60, s50, 7")
    A("s_lshl_b32 s59, s52, 6")
    A("s_add_u32 s60, s60, s59")
    A("s_lshl_b32 s59, s53, 1")
    A("s_add_u32 s60, s60, s59")
    A("s_mul_i32 s60, s60, 1280")
    A("s_lshl_b32 s62, s48, 12")
    A(f"s_add_u32 s62, s62, {ASZ+BUF}")
    if isF:
        srd(A, 40, 24, D * DFF * 2)
        for q in range(7):
            A(f"v_add_u32 v17, {64*q}, v0")
            divc(A, 18, 17, 28, 448)
            A("v_mul_u32_u24 v19, 28, v18")
            A("v_sub_u32 v19, v17, v19")
            A("v_lshrrev_b32 v17, 2, v18")
            A("v_and_b32 v17, 2, v17")
            A("v_xor_b32 v19, v19, v17")
            A("v_mul_u32_u24 v18, 3456, v18")
            A(f"v_lshl_add_u32 v{240+q}, v19, 4, v18")
        A("s_mul_i32 s59, s48, 55296")
        A("s_lshl_b32 s64, s54, 5")
        A("s_add_u32 s59, s59, s64")
        A("s_mul_i32 s61, s48, 7168")
        A(f"s_add_u32 s61, s61, {BUF}")
    else:
        A("s_cmp_lt_u32 s48, 2")
        A("s_cselect_b32 s64, s10, s12")
        A("s_cselect_b32 s65, s11, s13")
        srd(A, 40, 64, D * D * 2)
        A("v_xor_b32 v18, s52, v17")
        A("v_mul_u32_u24 v19, 1280, v3")
        A("v_lshl_add_u32 v240, v18, 4, v19")
        A("s_mul_i32 s59, s51, 80")
        A("s_mul_i32 s64, s53, 40")
        A("s_add_u32 s59, s59, s64")
        A("s_mul_i32 s59, s59, 1280")
        A("s_mul_i32 s61, s53, 10240")
        A("s_lshl_b32 s64, s52, 10")
        A("s_add_u32 s61, s61, s64")
        A(f"s_add_u32 s61, s61, {BUF}")
    def dma(st):
        bo = (st % 3) * STG
        tag = f"d{st}"
        if isF:
            A(f"s_add_u32 s65, s59, {st*64*3456}")
            for q in range(7):
                A(f"s_add_u32 m0, s61, {bo + 1024*q}")
                A("s_nop 0")
                vm(f"buffer_load_dwordx4 v{240+q}, s[40:43], s65 offen lds", tag)
        else:
            for q in range(5):
                A(f"s_add_u32 m0, s61, {bo + 2048*q}")
                A(f"s_add_u32 s65, s59, {st*128 + q*8*1280}")
                vm(f"buffer_load_dwordx4 v240, s[40:43], s65 offen lds", tag)
        for q in range(4):
            A(f"s_add_u32 m0, s62, {bo + 1024*q}")
            A(f"s_add_u32 s65, s60, {st*128 + (32*(q&1) + (q>>1))*1280}")
            vm(f"buffer_load_dwordx4 v247, s[36:39], s65 offen lds", tag)
    dma(0)
    for i in range(5):
        vm(f"buffer_load_dword v{20+i}, v2, s[36:39], s57 offen offset:{256*i}", "sm")
    for i in range(5):
        vm(f"buffer_load_dword v{25+i}, v2, s[36:39], s58 offen offset:{256*i}", "sm")
    chunks = {}
    if isF:
        divc(A, 7, 1, 28, 256)
        A("v_mul_u32_u24 v8, 28, v7")
        A("v_sub_u32 v8, v1, v8")
        A("s_mov_b32 s57, 17280")
        A("v_mul_lo_u32 v9, v7, s57")
        A("v_lshl_add_u32 v9, v8, 4, v9")
        A("s_mul_i32 s57, s50, 138240")
        A("s_add_u32 s57, s57, s64")
        for r in range(5):
            vm(f"buffer_load_dwordx4 v[{72+4*r}:{75+4*r}], v9, s[40:43], s57 offen", "sm2")
            A("s_add_u32 s57, s57, 3456")
        srd(A, 68, 14, D * D * 2)
        srd(A, 72, 16, D * D * 2)
        A("s_lshl_b32 s57, s50, 3")
        A("s_add_u32 s57, s57, s51")
        A("s_lshl_b32 s57, s57, 4")
        A("v_lshrrev_b32 v10, 4, v1")
        A("v_add_u32 v10, s57, v10")
        divc(A, 11, 10, 40, 2048)
        A("v_mul_u32_u24 v12, 40, v11")
        A("v_sub_u32 v12, v10, v12")
        A("v_lshl_add_u32 v13, v11, 4, v6")
        A("v_mul_u32_u24 v13, 1280, v13")
        A("v_lshl_add_u32 v13, v12, 5, v13")
        vm("buffer_load_dwordx4 v[92:95], v13, s[68:71], 0 offen", "sm2")
        vm("buffer_load_dwordx4 v[96:99], v13, s[68:71], 0 offen offset:16", "sm2")
        vm("buffer_load_dwordx4 v[100:103], v13, s[72:75], 0 offen", "sm2")
        vm("buffer_load_dwordx4 v[104:107], v13, s[72:75], 0 offen offset:16", "sm2")
        divc(A, 14, 11, 5, 64)
        A("v_mul_u32_u24 v15, 5, v14")
        A("v_sub_u32 v15, v11, v15")
        A("v_mul_u32_u24 v14, 40, v14")
        A("v_add_u32 v14, v14, v12")
        A("v_mul_u32_u24 v14, 5120, v14")
        A("v_lshl_add_u32 v14, v15, 10, v14")
        A("v_lshl_add_u32 v14, v6, 4, v14")
        A(f"v_mov_b32 v15, {OOB}")
        A("v_cmp_gt_u32 vcc, 1600, v10")
        A("v_cndmask_b32 v14, v15, v14, vcc")
        def c1():
            vm.wait("sm2")
            for c in range(4):
                A(f"v_lshlrev_b32 v{108+2*c}, 16, v{72+c}")
                A(f"v_and_b32 v{109+2*c}, 0xffff0000, v{72+c}")
            for r in range(1, 5):
                for c in range(4):
                    A(f"v_lshlrev_b32 v116, 16, v{72+4*r+c}")
                    A(f"v_and_b32 v117, 0xffff0000, v{72+4*r+c}")
                    A(f"v_add_f32 v{108+2*c}, v{108+2*c}, v116")
                    A(f"v_add_f32 v{109+2*c}, v{109+2*c}, v117")
            A("v_mul_u32_u24 v9, 896, v7")
            A("v_lshl_add_u32 v9, v8, 5, v9")
            A("v_cmp_gt_u32 vcc, 224, v1")
            A("s_and_saveexec_b64 s[66:67], vcc")
            A(f"ds_write_b128 v9, v[108:111] offset:{K1F_RED}")
            A(f"ds_write_b128 v9, v[112:115] offset:{K1F_RED+16}")
            A("s_mov_b64 exec, s[66:67]")
            A("s_mov_b32 s57, 0x05040100")
            A("s_mov_b32 s58, 0x07060302")
            for c in range(8):
                A(f"v_xor_b32 v{100+c}, 0x80008000, v{100+c}")
            A(f"s_mov_b32 s65, {WS_CP}")
            for g in range(4):
                o = 120 + 4 * g
                A(f"v_perm_b32 v{o}, v{100+g}, v{92+g}, s57")
                A(f"v_perm_b32 v{o+1}, v{100+g}, v{92+g}, s58")
                A(f"v_perm_b32 v{o+2}, v{104+g}, v{96+g}, s57")
                A(f"v_perm_b32 v{o+3}, v{104+g}, v{96+g}, s58")
                vm(f"buffer_store_dwordx4 v[{o}:{o+3}], v14, s[44:47], s65 offen offset:{256*g}", "st")
            A("s_waitcnt lgkmcnt(0)")
        def c2():
            A("v_lshlrev_b32 v9, 2, v1")
            for r in range(8):
                A(f"ds_read_b32 v{108+r}, v9 offset:{K1F_RED+896*r}")
            A("s_waitcnt lgkmcnt(0)")
            for r in range(1, 8):
                A(f"v_add_f32 v108, v108, v{108+r}")
            A("s_mul_i32 s57, s50, 3072")
            A("s_add_u32 s57, s57, s76")
            A("s_lshl_b32 s57, s57, 2")
            A(f"s_add_u32 s57, s57, {WS_WSP}")
            A(f"v_mov_b32 v15, {OOB}")
            A("v_cmp_gt_u32 vcc, 224, v1")
            A("v_cndmask_b32 v9, v15, v9, vcc")
            vm("buffer_store_dword v108, v9, s[44:47], s57 offen sc1", "st")
            A("s_lshl_b32 s57, s50, 3")
            A("s_add_u32 s57, s57, s51")
            A("s_lshl_b32 s57, s57, 7")
            A(f"s_add_u32 s57, s57, {WS_FLAG}")
            A("v_mov_b32 v18, 0")
            A("v_cmp_eq_u32 vcc, 0, v1")
            A("v_cndmask_b32 v19, v15, v18, vcc")
            vm("buffer_store_dword v18, v19, s[44:47], s57 offen", "st")
        A("s_mul_i32 s76, s51, 224")
        A("s_add_u32 s76, s76, 1280")
        chunks = {0: [lambda: (vm.wait("sm"), stats_compute(A, vm))], 1: [c1], 2: [c2], 3: [lambda: vm.wait("st")]}
        nws = 224
    else:
        A("s_lshl_b32 s57, s53, 6")
        A("v_add_u32 v7, s57, v0")
        A("s_mul_i32 s57, s51, 80")
        A("v_add_u32 v8, s57, v7")
        A("v_mul_u32_u24 v8, 1280, v8")
        A("s_mul_i32 s57, s50, 80")
        for r in range(5):
            vm(f"buffer_load_dwordx4 v[{72+4*r}:{75+4*r}], v8, s[40:43], s57 offen offset:{16*r}", "sm2")
        divc(A, 9, 1, 80, 256)
        A("v_mul_u32_u24 v10, 80, v9")
        A("v_sub_u32 v10, v1, v10")
        A("s_mul_i32 s57, s51, 80")
        A("v_add_u32 v11, s57, v10")
        A("v_lshlrev_b32 v11, 1, v11")
        vm("global_load_ushort v92, v11, s[6:7]", "sm2")
        vm("global_load_ushort v93, v11, s[8:9]", "sm2")
        vm("global_load_ushort v94, v11, s[18:19]", "sm2")
        A("s_mul_i32 s76, s51, 160")
        def c1():
            vm.wait("sm2")
            A("s_mov_b32 s57, 0x3f803f80")
            A("v_mov_b32 v108, 0")
            A("v_mov_b32 v109, 0")
            for r in range(20):
                A(f"v_dot2_f32_bf16 v{108+(r&1)}, v{72+r}, s57, v{108+(r&1)}")
            A("s_nop 2")
            A("v_add_f32 v108, v108, v109")
            A("s_mul_i32 s57, s50, 3072")
            A("s_add_u32 s57, s57, s76")
            A("s_add_u32 s57, s57, s52")
            A("s_lshl_b32 s57, s57, 2")
            A(f"s_add_u32 s57, s57, {WS_WSP}")
            A("v_lshlrev_b32 v8, 3, v7")
            A(f"v_mov_b32 v15, {OOB}")
            A("v_cmp_gt_u32 vcc, 80, v7")
            A("v_cndmask_b32 v8, v15, v8, vcc")
            vm("buffer_store_dword v108, v8, s[44:47], s57 offen sc1", "st")
            divc(A, 12, 1, 40, 256)
            A("v_mul_u32_u24 v13, 40, v12")
            A("v_sub_u32 v13, v1, v13")
            A("v_mul_u32_u24 v12, 5120, v12")
            A("v_lshl_add_u32 v12, v13, 4, v12")
            A("v_cmp_gt_u32 vcc, 80, v1")
            A("v_cndmask_b32 v12, v15, v12, vcc")
            A("s_mul_i32 s57, s50, 10240")
            A("s_mul_i32 s58, s51, 640")
            A("s_add_u32 s57, s57, s58")
            A(f"s_add_u32 s57, s57, {WS_E}")
            for r in range(4): A(f"v_mov_b32 v{112+r}, -1")
            vm("buffer_store_dwordx4 v[112:115], v12, s[44:47], s57 offen sc1", "st")
            for r in (92, 93, 94): A(f"v_lshlrev_b32 v{r}, 16, v{r}")
            A(f"v_mul_f32 v94, {hexf(LOG2E)}, v94")
            A("v_exp_f32 v94, v94")
            bf16r(A, 94)
            A("v_mul_f32 v95, v94, v92")
            A("v_mul_f32 v96, v94, v93")
            A(f"v_mul_f32 v95, {hexf(LOG2E)}, v95")
            A(f"v_mul_f32 v96, {hexf(INV2PI)}, v96")
            A("v_mul_u32_u24 v97, 288, v10")
            A("v_lshl_add_u32 v97, v9, 3, v97")
        def tab(r0, r1):
            def f():
                A("v_cmp_gt_u32 vcc, 240, v1")
                A("s_and_saveexec_b64 s[66:67], vcc")
                for r in range(r0, r1):
                    A(f"v_add_u32 v98, {3*r}, v9")
                    A("v_lshlrev_b32 v99, 2, v98")
                    A("v_lshlrev_b32 v100, 6, v98")
                    A("v_subrev_u32 v100, 1024, v100")
                    A("v_cmp_gt_u32 vcc, 16, v98")
                    A("v_cndmask_b32 v99, v100, v99, vcc")
                    A("v_cvt_f32_u32 v99, v99")
                    A("v_mul_f32 v100, v99, v95")
                    A("v_mul_f32 v101, v99, v96")
                    A("v_exp_f32 v100, v100")
                    A("v_fract_f32 v101, v101")
                    A("v_cos_f32 v102, v101")
                    A("v_sin_f32 v103, v101")
                    A("v_mul_f32 v102, v100, v102")
                    A("v_mul_f32 v103, v100, v103")
                    A(f"ds_write_b64 v97, v[102:103] offset:{K1Y_T+24*r}")
                A("s_mov_b64 exec, s[66:67]")
            return f
        def tabfin():
            A("v_exp_f32 v100, v95")
            A("v_fract_f32 v101, v96")
            A("v_cos_f32 v102, v101")
            A("v_sin_f32 v103, v101")
            A("v_mul_f32 v102, v100, v102")
            A("v_mul_f32 v103, v100, v103")
            A("v_add_f32 v98, -1.0, v102")
            A("v_mul_f32 v99, v92, v92")
            A("v_fmac_f32 v99, v93, v93")
            A("v_rcp_f32 v100, v99")
            A("v_fma_f32 v101, -v99, v100, 1.0")
            A("v_fma_f32 v100, v101, v100, v100")
            A("v_add_f32 v100, v100, v100")
            A("v_mul_f32 v104, v98, v92")
            A("v_fmac_f32 v104, v103, v93")
            A("v_mul_f32 v105, v103, v92")
            A("v_fma_f32 v105, -v98, v93, v105")
            A("v_mul_f32 v104, v104, v100")
            A("v_mul_f32 v105, v105, v100")
            A("v_cmp_gt_u32 vcc, 80, v1")
            A("s_and_saveexec_b64 s[66:67], vcc")
            A(f"ds_write_b128 v97, v[102:105] offset:{K1Y_T+272}")
            A("s_mov_b64 exec, s[66:67]")
        def w2a():
            srd(A, 68, 26, D * DFF * 2)
            A("s_lshl_b32 s57, s50, 3")
            A("s_add_u32 s57, s57, s51")
            A("s_lshl_b32 s57, s57, 2")
            A("s_add_u32 s57, s57, s48")
            A("s_lshr_b32 s72, s57, 3")
            A("s_and_b32 s73, s57, 7")
            A("s_mul_i32 s58, s72, 40960")
            A("s_mul_i32 s57, s73, 160")
            A("s_add_u32 s58, s58, s57")
            A("s_mul_i32 s74, s48, 5120")
            A(f"s_add_u32 s74, s74, {K1Y_SCR}")
            for q in range(5):
                A(f"v_add_u32 v17, {64*q}, v0")
                divc(A, 18, 17, 10, 320)
                A("v_mul_u32_u24 v19, 10, v18")
                A("v_sub_u32 v19, v17, v19")
                A("v_mul_u32_u24 v18, 1280, v18")
                A("v_lshl_add_u32 v16, v19, 4, v18")
                A(f"s_add_u32 m0, s74, {1024*q}")
                A("s_nop 0")
                vm("buffer_load_dwordx4 v16, s[68:71], s58 offen lds", "w2")
        def w2b():
            A("v_lshrrev_b32 v17, 2, v6")
            A("v_lshl_add_u32 v17, v5, 2, v17")
            A("v_mul_u32_u24 v17, 160, v17")
            A("v_and_b32 v18, 3, v6")
            A("v_lshl_add_u32 v17, v18, 3, v17")
            A("v_add_u32 v17, s74, v17")
            vm.wait("w2")
            for m in range(5):
                for h in range(2):
                    A(f"ds_read_b64_tr_b16 v[{120+4*m+2*h}:{121+4*m+2*h}], v17 offset:{h*2560 + m*32}")
            A("s_mul_i32 s57, s73, 54")
            A("s_add_u32 s57, s57, s72")
            A("s_mul_i32 s57, s57, 5120")
            A(f"s_add_u32 s57, s57, {WS_W2P}")
            A("s_cmp_lt_u32 s72, 54")
            A(f"s_cselect_b32 s57, s57, {OOB}")
            A("v_lshlrev_b32 v18, 4, v0")
            A("s_waitcnt lgkmcnt(0)")
            for m in range(5):
                vm(f"buffer_store_dwordx4 v[{120+4*m}:{123+4*m}], v18, s[44:47], s57 offen offset:{1024*m if m < 4 else 0}" if m < 4 else
                   f"buffer_store_dwordx4 v[{120+4*m}:{123+4*m}], v19, s[44:47], s57 offen", "st2")
                if m == 0: A("v_add_u32 v19, 4096, v18")
        chunks = {0: [lambda: (vm.wait("sm"), stats_compute(A, vm))], 1: [c1], 2: [tab(0, 4)], 3: [tab(4, 8), lambda: vm.wait("st")],
                  4: [tab(8, 11), tabfin], 5: [w2a], 6: [w2b]}
        nws = 160
    dma(1)
    vm.wait("d0")
    stamp(A, 1)
    A("s_barrier")
    for j in range(9):
        if j + 2 <= 9: dma(j + 2)
        if j == 4:
            L = A.label("noatom")
            A("v_mov_b32 v18, 0")
            A("v_mov_b32 v19, 1")
            A("s_cmp_lg_u32 s48, 0")
            A(f"s_cbranch_scc1 {L}")
            A("s_mov_b64 exec, 1")
            A("global_atomic_add v18, v19, s[30:31]")
            A("s_mov_b64 exec, -1")
            A(f"{L}:")
        for f in chunks.get(j, []): f()
        vm.wait(f"d{j+1}", "lgkmcnt(0)")
        A("s_barrier")
    stamp(A, 2)
    A("v_mov_b32 v32, 0")
    poll(A, "global_load_dword v33, v32, s[30:31] sc1", 57, 58, 33, 256)
    stamp(A, 3)
    A("v_lshlrev_b32 v34, 4, v1")
    A("s_lshl_b32 s57, s50, 11")
    A(f"s_add_u32 s57, s57, {WS_STATS}")
    A("buffer_load_dwordx2 v[36:37], v34, s[44:47], s57 offen sc1")
    A("v_lshlrev_b32 v35, 2, v1")
    A("s_lshl_b32 s57, s76, 2")
    A(f"s_add_u32 s57, s57, {WS_WSP}")
    for sl in range(16):
        A(f"buffer_load_dword v{40+sl}, v35, s[44:47], s57 offen sc1")
        A(f"s_add_u32 s57, s57, {3072*4}")
    A("s_waitcnt vmcnt(16)")
    A("v_lshlrev_b32 v34, 3, v1")
    A("v_cmp_gt_u32 vcc, 128, v1")
    A("s_and_saveexec_b64 s[66:67], vcc")
    A(f"ds_write_b64 v34, v[36:37] offset:{K1_STATS}")
    A("s_mov_b64 exec, s[66:67]")
    A("s_waitcnt vmcnt(0)")
    for sl in range(1, 16):
        A(f"v_add_f32 v40, v40, v{40+sl}")
    A(f"v_cmp_gt_u32 vcc, {nws}, v1")
    A("s_and_saveexec_b64 s[66:67], vcc")
    A(f"ds_write_b32 v35, v40 offset:{K1_WS}")
    A("s_mov_b64 exec, s[66:67]")
    A("s_waitcnt lgkmcnt(0)")
    stamp(A, 4)
    A("s_barrier")
    for i in (5, 6, 7): stamp(A, i)

def k1_prefetch_setup(A, isF):
    A("s_and_b32 s57, s2, 3")
    A("s_lshl_b32 s57, s57, 9")
    A("s_lshl_b32 s59, s35, 4")
    A("s_add_u32 s57, s57, s59")
    A("s_mul_i32 s57, s57, 1280")
    A("v_lshrrev_b32 v10, 2, v0")
    A("v_and_b32 v11, 3, v0")
    A("v_mul_u32_u24 v10, 1280, v10")
    A("v_lshl_add_u32 v10, v11, 7, v10")
    A("s_mul_i32 s58, s53, 384")
    A("s_add_u32 s66, s57, s58")
    A("s_add_u32 s66, s66, 384")
    if isF:
        srd(A, 40, 24, D * DFF * 2)
        A("v_min_u32 v11, 53, v0")
        A("v_lshlrev_b32 v11, 7, v11")
        A("s_mul_i32 s67, s35, 6912")
        A("s_add_u32 s58, s48, 3")
        A(f"s_mul_i32 s58, s58, {64*3456}")
        A("s_add_u32 s67, s67, s58")
        A(f"s_add_u32 s68, s67, {4*64*3456}")
    else:
        A("s_cmp_lt_u32 s48, 2")
        A("s_cselect_b32 s64, s10, s12")
        A("s_cselect_b32 s65, s11, s13")
        srd(A, 40, 64, D * D * 2)
        divc(A, 12, 0, 20, 64)
        A("v_mul_u32_u24 v13, 20, v12")
        A("v_sub_u32 v13, v0, v13")
        A("v_min_u32 v12, 2, v12")
        A("v_mul_u32_u24 v13, 1280, v13")
        A("v_lshl_add_u32 v11, v12, 7, v13")
        A("s_mul_i32 s67, s35, 25600")
        A("s_mul_i32 s58, s53, 384")
        A("s_add_u32 s68, s67, 896")
        A("s_add_u32 s67, s67, s58")
        A("s_add_u32 s67, s67, 384")
def k1_prefetch(A, isF, batch):
    if "nopf" in DBG: return
    if batch == 0:
        A("buffer_load_dword v12, v11, s[40:43], s67 offen")
        A("buffer_load_dword v13, v10, s[36:39], s66 offen")
    else:
        A("buffer_load_dword v12, v11, s[40:43], s68 offen")

def k1_compute(A, isF):
    ACC = 128; FRAG = 32
    MT = 7 if isF else 5; NT = 4
    STG = K1F_STAGE if isF else K1Y_STAGE
    BUF = K1F_BUF if isF else K1Y_BUF
    ASZ = 28672 if isF else 20480
    k1_prefetch_setup(A, isF)
    AB = 232; BB = 244
    if isF:
        A("v_lshrrev_b32 v17, 2, v6")
        A("v_lshl_add_u32 v17, v5, 3, v17")
        A("v_mul_u32_u24 v17, 448, v17")
        A("v_and_b32 v18, 3, v6")
        A("v_lshl_add_u32 v17, v18, 3, v17")
        A("s_mul_i32 s57, s52, 224")
        A(f"s_add_u32 s57, s57, {BUF}")
        A("v_add_u32 v17, s57, v17")
        A("v_and_b32 v18, 1, v5")
        A("v_lshlrev_b32 v18, 5, v18")
        A("v_add_u32 v19, v17, v18")
        A("v_sub_u32 v17, v17, v18")
        A("s_cmp_eq_u32 s52, 0")
        A("s_cselect_b64 vcc, -1, 0")
        AB = 240; BB = 246
        A(f"v_cndmask_b32 v{AB}, v17, v19, vcc")
        A(f"v_cndmask_b32 v{AB+1}, v19, v17, vcc")
    else:
        A("v_and_b32 v17, 1, v6")
        A("v_lshrrev_b32 v18, 1, v6")
        A("v_lshl_add_u32 v19, v17, 3, v18")
        A("v_xor_b32 v17, v17, v18")
        A("v_xor_b32 v17, v17, v5")
        A("v_lshlrev_b32 v19, 7, v19")
        A("v_lshl_add_u32 v19, v17, 4, v19")
        A("s_mul_i32 s57, s52, 10240")
        A(f"s_add_u32 s57, s57, {BUF}")
        AB = 240; BB = 246
        A(f"v_add_u32 v{AB}, s57, v19")
        A(f"v_xor_b32 v{AB+1}, 64, v{AB}")
    A("v_and_b32 v18, 7, v0")
    A("v_xor_b32 v18, v18, v5")
    A("v_lshlrev_b32 v17, 7, v6")
    A("s_lshl_b32 s57, s53, 13")
    A(f"s_add_u32 s57, s57, {ASZ+BUF}")
    A("v_add_u32 v17, s57, v17")
    A(f"v_lshl_add_u32 v{BB}, v18, 4, v17")
    A(f"v_xor_b32 v{BB+1}, 64, v{BB}")
    for b in (1, 2):
        for i in range(2):
            A(f"v_add_u32 v{AB+2*b+i}, {b*STG}, v{AB+i}")
            A(f"v_add_u32 v{BB+2*b+i}, {b*STG}, v{BB+i}")
    for r in range(MT * NT * 4):
        A(f"v_mov_b32 v{ACC+r}, 0")
    fA = lambda st, m: FRAG + st * (MT + NT) * 4 + m * 4
    fB = lambda st, n: FRAG + st * (MT + NT) * 4 + MT * 4 + n * 4
    accr = lambda m, n: ACC + (m * NT + n) * 4
    def reads(stage, kk):
        b = stage % 3; st = kk
        out = []
        for n in range(NT):
            out.append(f"ds_read_b128 {vr(fB(st,n),4)}, v{BB+2*b+kk} offset:{n*2048}")
        for m in range(MT):
            if isF:
                for h in range(2):
                    out.append(f"ds_read_b64_tr_b16 {vr(fA(st,m)+2*h,2)}, v{AB+2*b+(m&1)} offset:{(32*kk+4*h)*448 + m*32}")
            else:
                out.append(f"ds_read_b128 {vr(fA(st,m),4)}, v{AB+2*b+kk} offset:{m*2048}")
        return out
    def mfmas(st):
        return [f"v_mfma_f32_16x16x32_bf16 {vr(accr(m,n),4)}, {vr(fA(st,m),4)}, {vr(fB(st,n),4)}, {vr(accr(m,n),4)}"
                for m in range(MT) for n in range(NT)]
    stamp(A, 1)
    A("s_barrier")
    stamp(A, 2)
    for r in reads(0, 0): A(r)
    k1_prefetch(A, isF, 0)
    PRE = 3
    for j in range(10):
        A("s_waitcnt lgkmcnt(0)")
        mf = mfmas(0); rd = reads(j, 1)
        for i, m in enumerate(mf):
            A(m)
            if i < len(rd): A(rd[i])
        A("s_waitcnt lgkmcnt(0)")
        mf = mfmas(1)
        if j < 9:
            rd = reads(j + 1, 0)
            for m in mf[:PRE]: A(m)
            if j == 1: k1_prefetch(A, isF, 1)
            A("s_barrier")
            for i, m in enumerate(mf[PRE:]):
                if i < len(rd): A(rd[i])
                A(m)
        else:
            for m in mf: A(m)
    stamp(A, 3)
    A("s_barrier")
    stamp(A, 4)
    if isF: k1F_epilogue(A, ACC)
    else: k1Y_epilogue(A, ACC)

def frag_store_plan(ntiles, parity):
    plan = []
    t = 0
    if parity == 1:
        plan.append(("single", [0], 0, 1)); t = 1
    while t + 1 < ntiles:
        plan.append(("pair", [t, t + 1], (t + parity) // 2, 0)); t += 2
    if t < ntiles:
        plan.append(("single", [t], (t + parity) // 2, 0))
    return plan

def k1F_epilogue(A, ACC):
    A("s_lshl_b32 s57, s53, 9")
    A("v_lshlrev_b32 v17, 5, v6")
    A("v_add_u32 v17, s57, v17")
    A(f"ds_read_b128 v[32:35], v17 offset:{K1_STATS}")
    A(f"ds_read_b128 v[36:39], v17 offset:{K1_STATS+16}")
    A("s_mul_i32 s57, s52, 448")
    A("v_lshlrev_b32 v18, 4, v5")
    A("v_add_u32 v18, s57, v18")
    for m in range(7):
        A(f"ds_read_b128 v[{40+4*m}:{43+4*m}], v18 offset:{K1_WS+64*m}")
    A("s_mul_i32 s57, s52, 7")
    A("s_add_u32 s57, s57, s54")
    A("s_and_b32 s64, s57, 1")
    A("s_lshr_b32 s57, s57, 1")
    A("s_mul_i32 s58, s50, 54")
    A("s_add_u32 s57, s57, s58")
    A("s_lshl_b32 s57, s57, 3")
    A("s_lshl_b32 s58, s53, 2")
    A("s_add_u32 s57, s57, s58")
    A("s_lshl_b32 s57, s57, 10")
    A(f"s_add_u32 s65, s57, {WS_HF}")
    A("v_lshlrev_b32 v17, 4, v0")
    A("s_and_b32 s57, s51, s52")
    A("s_and_b32 s57, s57, 1")
    A("s_cmp_eq_u32 s57, 0")
    A(f"s_cselect_b32 s57, 0, {OOB}")
    A("v_add_u32 v19, s57, v17")
    A("s_waitcnt lgkmcnt(0)")
    def conv(m, n, dst):
        a = ACC + (m * 4 + n) * 4
        w = 40 + 4 * m; st = 32 + 2 * n
        for hh in range(2):
            A(f"v_pk_fma_f32 {vr(a+2*hh,2)}, {vr(w+2*hh,2)}, {vr(st,2)}, {vr(a+2*hh,2)} op_sel:[0,0,0] op_sel_hi:[1,0,1] neg_lo:[1,0,0] neg_hi:[1,0,0]")
        for hh in range(2):
            A(f"v_pk_mul_f32 {vr(a+2*hh,2)}, {vr(a+2*hh,2)}, {vr(st,2)} op_sel:[0,1] op_sel_hi:[1,1]")
        for hh in range(2):
            A(f"v_cvt_pk_bf16_f32 v{dst+hh}, v{a+2*hh}, v{a+2*hh+1}")
        for hh in range(2):
            A(f"v_pk_max_i16 v{dst+hh}, v{dst+hh}, 0")
    L1 = A.label("ep1"); L2 = A.label("epx")
    A("s_cmp_lg_u32 s64, 0")
    A(f"s_cbranch_scc1 {L1}")
    for parity in (0, 1):
        if parity == 1: A(f"{L1}:")
        plan = frag_store_plan(7, parity)
        if parity == 1:
            k, tl, ks, _ = plan.pop()
            plan += [("single", [tl[0]], ks, 0), ("single", [tl[1]], ks, 1)]
        cnt = 0
        for kind, tl, ks, half in plan:
            A(f"s_add_u32 s57, s65, {ks*8192}")
            for n in range(4):
                t = 72 + 4 * (cnt % 4); cnt += 1
                if kind == "pair":
                    conv(tl[0], n, t); conv(tl[1], n, t + 2)
                    A(f"buffer_store_dwordx4 v[{t}:{t+3}], v17, s[44:47], s57 offen offset:{1024*n}")
                else:
                    conv(tl[0], n, t)
                    vo = 19 if tl[0] == 6 else 17
                    A(f"buffer_store_dwordx2 v[{t}:{t+1}], v{vo}, s[44:47], s57 offen offset:{1024*n + 8*half}")
        if parity == 0: A(f"s_branch {L2}")
    A(f"{L2}:")
    for i in (5, 6, 7): stamp(A, i)

def k1Y_epilogue(A, ACC):
    ST = 32; WSR = 40; P = 208; TB = 60
    A("s_lshl_b32 s57, s53, 9")
    A("v_lshlrev_b32 v17, 5, v6")
    A("v_add_u32 v17, s57, v17")
    A(f"ds_read_b128 v[{ST}:{ST+3}], v17 offset:{K1_STATS}")
    A(f"ds_read_b128 v[{ST+4}:{ST+7}], v17 offset:{K1_STATS+16}")
    A("s_mul_i32 s57, s52, 320")
    A("v_lshlrev_b32 v18, 4, v5")
    A("v_add_u32 v18, s57, v18")
    for m in range(5):
        A(f"ds_read_b128 v[{WSR+4*m}:{WSR+4*m+3}], v18 offset:{K1_WS+64*m}")
    A("s_mul_i32 s57, s52, 11520")
    A("v_mul_u32_u24 v19, 576, v5")
    A("v_add_u32 v19, s57, v19")
    A("v_lshl_add_u32 v20, v6, 3, v19")
    A("s_lshl_b32 s57, s50, 1")
    A("s_add_u32 s64, s57, s53")
    A("s_mul_i32 s57, s51, 80")
    A("s_mul_i32 s58, s52, 40")
    A("s_add_u32 s57, s57, s58")
    A("s_lshl_b32 s68, s57, 3")
    A("v_lshlrev_b32 v21, 4, v5")
    A("v_add_u32 v21, s68, v21")
    A("v_cmp_eq_u32 vcc, 15, v6")
    A(f"v_mov_b32 v18, {OOB}")
    A("v_cndmask_b32 v22, v18, v21, vcc")
    A("s_mul_i32 s69, s64, 5120")
    A(f"s_add_u32 s69, s69, {WS_E}")
    def load_tab1(m, base):
        for q in range(2):
            o = K1Y_T + (8 * m + q) * 288
            b = base + 12 * q
            A(f"ds_read_b128 v[{b}:{b+3}], v19 offset:{o+272}")
            A(f"ds_read_b64 v[{b+4}:{b+5}], v19 offset:{o+8}")
            A(f"ds_read_b64 v[{b+6}:{b+7}], v19 offset:{o+16}")
            A(f"ds_read_b64 v[{b+8}:{b+9}], v19 offset:{o+32}")
            A(f"ds_read_b64 v[{b+10}:{b+11}], v19 offset:{o+64}")
    load_tab1(0, TB)
    TMP = 108
    for m in range(5):
        base = TB + 24 * (m & 1)
        A("s_waitcnt lgkmcnt(0)")
        if m < 4: load_tab1(m + 1, TB + 24 * ((m + 1) & 1))
        for n in range(4):
            for q in range(2):
                u = ACC + (m * 4 + n) * 4 + 2 * q
                w = WSR + 4 * m + 2 * q
                st = ST + 2 * n
                cf = base + 12 * q + 2
                t0 = TMP + 4 * q
                A(f"v_pk_fma_f32 {vr(t0,2)}, {vr(w,2)}, {vr(st,2)}, {vr(u,2)} op_sel:[0,0,0] op_sel_hi:[1,0,1] neg_lo:[1,0,0] neg_hi:[1,0,0]")
                A(f"v_pk_mul_f32 {vr(t0+2,2)}, {vr(cf,2)}, {vr(st,2)} op_sel:[0,1] op_sel_hi:[1,1]")
                cmul(A, u, t0 + 2, t0)
        for n in range(1, 4):
            for q in range(2):
                a = base + 12 * q
                e = P + 4 * m + 2 * q
                t0 = TMP + 4 * q
                prev = (ACC + (m * 4) * 4 + 2 * q) if n == 1 else (t0 if n == 3 else t0 + 2)
                dst = e if n == 3 else (t0 + 2 if n == 1 else t0)
                u = ACC + (m * 4 + n) * 4 + 2 * q
                cmul_add(A, dst, a, prev, u)
        for ki, k in enumerate((1, 2, 4, 8)):
            for q in range(2):
                e = P + 4 * m + 2 * q
                t0 = TMP + 4 * q
                A(f"v_mov_b32_dpp v{t0}, v{e} row_shr:{k} row_mask:0xf bank_mask:0xf bound_ctrl:0")
                A(f"v_mov_b32_dpp v{t0+1}, v{e+1} row_shr:{k} row_mask:0xf bank_mask:0xf bound_ctrl:0")
            for q in range(2):
                e = P + 4 * m + 2 * q
                t0 = TMP + 4 * q
                cmul_add(A, e, base + 12 * q + 4 + 2 * ki, t0, e)
        pb = TMP + 8 + 4 * (m & 1)
        for r in range(4):
            A(f"v_min_u32 v{pb+r}, -2, v{P+4*m+r}")
        A(f"buffer_store_dwordx4 v[{pb}:{pb+3}], v22, s[44:47], s69 offen offset:{64*m} sc1")
    stamp(A, 5)
    A("v_sub_u32 v23, s64, v6")
    A("v_subrev_u32 v24, 1, v23")
    A("v_subrev_u32 v25, 17, v23")
    A("v_cmp_le_i32 vcc, 0, v24")
    A("v_mul_u32_u24 v24, 5120, v24")
    A("v_add_u32 v24, v24, v21")
    A("v_cndmask_b32 v24, v18, v24, vcc")
    A("v_cmp_le_i32 vcc, 0, v25")
    A("v_mul_u32_u24 v25, 5120, v25")
    A("v_add_u32 v25, v25, v21")
    A("v_cndmask_b32 v25, v18, v25, vcc")
    A(f"s_mov_b32 s69, {WS_E}")
    EN = 32; EF = 52; TB2 = 72
    def load_tab2(m, base):
        for q in range(2):
            o = K1Y_T + (8 * m + q) * 288
            b = base + 8 * q
            A(f"ds_read_b64 v[{b}:{b+1}], v20 offset:{o+128}")
            A(f"ds_read_b64 v[{b+2}:{b+3}], v19 offset:{o+256}")
            A(f"ds_read_b64 v[{b+4}:{b+5}], v20 offset:{o}")
            A(f"ds_read_b64 v[{b+6}:{b+7}], v19 offset:{o+272}")
    load_tab2(0, TB2)
    A("s_mul_i32 s57, s51, 5")
    A("s_lshl_b32 s58, s52, 1")
    A("s_add_u32 s57, s57, s58")
    A("s_mul_i32 s58, s50, 40")
    A("s_add_u32 s57, s57, s58")
    A("s_lshl_b32 s57, s57, 3")
    A("s_lshl_b32 s58, s53, 2")
    A("s_add_u32 s57, s57, s58")
    A("s_lshl_b32 s57, s57, 10")
    A(f"s_add_u32 s65, s57, {WS_H1}")
    A("v_lshlrev_b32 v27, 4, v0")
    Lp = A.label("lb"); Lx = A.label("lbx")
    A("s_mov_b32 s58, 100000")
    A(f"{Lp}:")
    for m in range(5):
        A(f"buffer_load_dwordx4 v[{EN+4*m}:{EN+4*m+3}], v24, s[44:47], s69 offen offset:{64*m} sc1")
        A(f"buffer_load_dwordx4 v[{EF+4*m}:{EF+4*m+3}], v25, s[44:47], s69 offen offset:{64*m} sc1")
    A("s_waitcnt vmcnt(0)")
    A(f"v_max3_u32 v26, v{EN}, v{EN+1}, v{EN+2}")
    for r in range(3, 39, 2):
        A(f"v_max3_u32 v26, v26, v{EN+r}, v{EN+r+1}")
    A(f"v_max_u32 v26, v26, v{EN+39}")
    A("v_cmp_eq_u32 vcc, -1, v26")
    A("s_cmp_eq_u64 vcc, 0")
    A(f"s_cbranch_scc1 {Lx}")
    A("s_sleep 1")
    A("s_sub_u32 s58, s58, 1")
    A("s_cmp_lg_u32 s58, 0")
    A(f"s_cbranch_scc1 {Lp}")
    A(f"{Lx}:")
    stamp(A, 6)
    PK = 228
    for m in range(5):
        base = TB2 + 16 * (m & 1)
        A("s_waitcnt lgkmcnt(0)")
        if m < 4: load_tab2(m + 1, TB2 + 16 * ((m + 1) & 1))
        for q in range(2):
            cmul_add(A, EN + 4 * m + 2 * q, base + 8 * q + 2, EF + 4 * m + 2 * q, EN + 4 * m + 2 * q)
        for q in range(2):
            cmul(A, EF + 4 * m + 2 * q, base + 8 * q, EN + 4 * m + 2 * q)
        for k in (8, 4, 2, 1):
            for r in range(4):
                x = EF + 4 * m + r
                A(f"v_add_f32_dpp v{x}, v{x}, v{x} row_ror:{k} row_mask:0xf bank_mask:0xf")
        for q in range(2):
            e = P + 4 * m + 2 * q
            t0 = TMP + 4 * q
            A(f"v_mov_b32_dpp v{t0}, v{e} row_shr:1 row_mask:0xf bank_mask:0xf bound_ctrl:0")
            A(f"v_mov_b32_dpp v{t0+1}, v{e+1} row_shr:1 row_mask:0xf bank_mask:0xf bound_ctrl:0")
        for q in range(2):
            t0 = TMP + 4 * q
            cmul_add(A, t0, base + 8 * q + 4, EF + 4 * m + 2 * q, t0)
        for n in range(4):
            for q in range(2):
                u = ACC + (m * 4 + n) * 4 + 2 * q
                prev = (TMP + 4 * q) if n == 0 else u - 4
                cmul_add(A, u, base + 8 * q + 6, prev, u)
    stamp(A, 7)
    L1 = A.label("ey1"); L2 = A.label("eyx")
    A("s_cmp_lg_u32 s52, 0")
    A(f"s_cbranch_scc1 {L1}")
    for parity in (0, 1):
        if parity == 1: A(f"{L1}:")
        cnt = 0
        for kind, tl, ks, half in frag_store_plan(5, parity):
            A(f"s_add_u32 s57, s65, {ks*8192}")
            for n in range(4):
                t = 32 + 4 * (cnt % 8); cnt += 1
                for x, m in enumerate(tl):
                    u = ACC + (m * 4 + n) * 4
                    A(f"v_cvt_pk_bf16_f32 v{t+2*x}, v{u}, v{u+1}")
                    A(f"v_cvt_pk_bf16_f32 v{t+2*x+1}, v{u+2}, v{u+3}")
                if kind == "pair":
                    A(f"buffer_store_dwordx4 v[{t}:{t+3}], v27, s[44:47], s57 offen offset:{1024*n}")
                else:
                    A(f"buffer_store_dwordx2 v[{t}:{t+1}], v27, s[44:47], s57 offen offset:{1024*n + 8*half}")
        if parity == 0: A(f"s_branch {L2}")
    A(f"{L2}:")

K2_STAGE = 10240 + 16384
K2_NS = 5
K2_LDS = K2_STAGE * K2_NS

def kernel2(A):
    A("k2_kernel:")
    A("s_cmp_ge_u32 s2, 256")
    A("s_cbranch_scc1 k2_end")
    stamp(A, 0)
    A("s_load_dwordx2 s[4:5], s[0:1], 0")
    A("s_load_dwordx8 s[20:27], s[0:1], 64")
    A("s_load_dwordx4 s[28:31], s[0:1], 96")
    A("s_load_dwordx2 s[32:33], s[0:1], 112")
    common_ids(A)
    A("s_lshl_b32 s60, s50, 3")
    A("s_add_u32 s60, s60, s51")
    A("s_mul_i32 s61, s60, 40960")
    A(f"s_add_u32 s61, s61, {WS_S}")
    A("s_lshl_b32 s60, s60, 7")
    A(f"s_add_u32 s60, s60, {WS_FLAG}")
    A("s_waitcnt lgkmcnt(0)")
    srd(A, 44, 32, WS_SIZE)
    A("s_cmp_ge_u32 s34, 4")
    A("s_cbranch_scc1 k2_ld")
    srd(A, 72, 4, T * D * 2)
    srd(A, 76, 28, T * D * 4)
    A("s_cmp_lg_u32 s49, 0")
    A("s_cbranch_scc1 k2_cF")
    k2_compute(A, False)
    stamps_flush(A, 6, 1)
    A("s_branch k2_end")
    A("k2_cF:")
    k2_compute(A, True)
    stamps_flush(A, 6, 1)
    A("s_branch k2_end")
    A("k2_ld:")
    A("s_cmp_lg_u32 s49, 0")
    A("s_cbranch_scc1 k2_lF")
    k2_loader(A, False)
    stamps_flush(A, 6, 1)
    A("s_branch k2_end")
    A("k2_lF:")
    k2_loader(A, True)
    stamps_flush(A, 6, 1)
    A("k2_end:")
    A("s_endpgm")

def k2_loader(A, isF):
    vm = VM(A)
    nst = 27 if isF else 20
    A("v_lshlrev_b32 v10, 4, v0")
    A(f"s_mul_i32 s58, s51, {nst*10240}")
    A("s_mul_i32 s57, s48, 2560")
    A("s_add_u32 s58, s58, s57")
    A(f"s_add_u32 s58, s58, {WS_W2P if isF else WS_CP}")
    A(f"s_mul_i32 s59, s50, {nst*16384}")
    A("s_lshl_b32 s57, s48, 12")
    A("s_add_u32 s59, s59, s57")
    A(f"s_add_u32 s59, s59, {WS_HF if isF else WS_H1}")
    A("s_mul_i32 s62, s48, 2560")
    A("s_lshl_b32 s63, s48, 12")
    A("s_add_u32 s63, s63, 10240")
    def dma(st):
        bo = (st % K2_NS) * K2_STAGE; tag = f"d{st}"
        for q in range(4):
            A(f"s_add_u32 m0, s63, {bo + 1024*q}")
            A(f"s_add_u32 s65, s59, {st*16384 + 1024*q}")
            vm("buffer_load_dwordx4 v10, s[44:47], s65 offen lds", tag)
        for q in range(3):
            A(f"s_add_u32 m0, s62, {bo + 1024*q}")
            A(f"s_add_u32 s65, s58, {st*10240 + 1024*q}")
            if q == 2: A("s_mov_b64 exec, 0xffffffff")
            vm("buffer_load_dwordx4 v10, s[44:47], s65 offen lds", tag)
            if q == 2: A("s_mov_b64 exec, -1")
    dma(0); dma(1)
    vm.wait("d0")
    stamp(A, 1)
    A("s_barrier")
    for st in range(2, K2_NS): dma(st)
    for j in range(nst - 1):
        vm.wait(f"d{j+1}")
        A("s_barrier")
        if j + K2_NS < nst: dma(j + K2_NS)
    stamp(A, 2)
    if isF:
        A("v_mov_b32 v20, 0")
        poll(A, "buffer_load_dword v21, v20, s[44:47], s60 offen sc1", 57, 58, 21, 1)
        stamp(A, 3)
        sb = (nst % K2_NS) * K2_STAGE
        assert (nst % K2_NS) + 1 < K2_NS
        A("s_mul_i32 s57, s48, 10240")
        A("s_add_u32 s58, s61, s57")
        for q in range(10):
            A(f"s_add_u32 m0, s57, {sb + 1024*q}")
            A(f"s_add_u32 s65, s58, {1024*q}")
            A("buffer_load_dwordx4 v10, s[44:47], s65 offen sc1 lds")
        A("s_waitcnt vmcnt(0)")
        stamp(A, 4)
        A("s_barrier")
        stamp(A, 5)
    else:
        for i in (3, 4, 5): stamp(A, i)

def k2_compute(A, isF):
    ACC = 160; FRAG = 32
    nst = 27 if isF else 20
    XR = 144
    ACC = 208; XR = 144; PR = 164
    A("v_lshlrev_b32 v11, 7, v0")
    A(f"s_mul_i32 s66, s51, {nst*10240}")
    A("s_lshr_b32 s58, s35, 3")
    A("s_lshl_b32 s58, s58, 2")
    A("s_add_u32 s58, s58, s48")
    A("s_lshl_b32 s58, s58, 13")
    A("s_add_u32 s66, s66, s58")
    A(f"s_add_u32 s66, s66, {(WS_W2P if isF else WS_CP) + K2_NS*10240}")
    A(f"s_add_u32 s67, s66, {16*8192}")
    A("s_lshl_b32 s57, s50, 7")
    A("s_lshl_b32 s58, s52, 6")
    A("s_add_u32 s57, s57, s58")
    A("s_lshl_b32 s58, s53, 1")
    A("s_add_u32 s57, s57, s58")
    A("v_lshl_add_u32 v17, v6, 2, s57")
    A("v_mul_u32_u24 v18, 1280, v17")
    A("v_lshl_add_u32 v18, v5, 3, v18")
    A("s_mul_i32 s58, s51, 160")
    for n in range(2):
        for m in range(5):
            A(f"buffer_load_dwordx2 v[{XR+2*(n*5+m)}:{XR+2*(n*5+m)+1}], v18, s[72:75], s58 offen offset:{1280*n + 32*m}")
    A("v_lshlrev_b32 v19, 4, v0")
    A("s_lshl_b32 s57, s48, 11")
    A("s_add_u32 s57, s57, 10240")
    A("v_add_u32 v20, s57, v19")
    A(f"v_add_u32 v21, {2*K2_STAGE}, v19")
    A(f"v_add_u32 v22, {2*K2_STAGE}, v20")
    A(f"v_add_u32 v23, {4*K2_STAGE}, v19")
    A(f"v_add_u32 v24, {4*K2_STAGE}, v20")
    for r in range(40):
        A(f"v_mov_b32 v{ACC+r}, 0")
    if not isF:
        SR = 52; DR = 60; DU = 72
        A("v_lshlrev_b32 v25, 4, v17")
        A(f"s_mov_b32 s62, {WS_STATS}")
        for n in range(2):
            A(f"buffer_load_dwordx4 v[{SR+4*n}:{SR+4*n+3}], v25, s[44:47], s62 offen offset:{16*n}")
        A("v_lshlrev_b32 v26, 3, v5")
        A("v_add_u32 v26, s58, v26")
        for m in range(5):
            A(f"global_load_dwordx2 v[{DR+2*m}:{DR+2*m+1}], v26, s[20:21] offset:{32*m}")
        A("s_waitcnt vmcnt(0)")
        for m in range(5):
            for hh in range(2):
                A(f"v_lshlrev_b32 v{DU+4*m+2*hh}, 16, v{DR+2*m+hh}")
                A(f"v_and_b32 v{DU+4*m+2*hh+1}, 0xffff0000, v{DR+2*m+hh}")
        for n in range(2):
            for m in range(5):
                x = XR + 2 * (n * 5 + m)
                t = 92 + 8 * ((n * 5 + m) & 1)
                p = PR + (m * 2 + n) * 4
                mm, rs, sd = SR + 4 * n, SR + 4 * n + 1, SR + 4 * n + 2
                for hh in range(2):
                    A(f"v_lshlrev_b32 v{t+2*hh}, 16, v{x+hh}")
                    A(f"v_and_b32 v{t+2*hh+1}, 0xffff0000, v{x+hh}")
                for r in range(4): A(f"v_sub_f32 v{t+r}, v{t+r}, v{mm}")
                for hh in range(2):
                    A(f"v_cvt_pk_bf16_f32 v{t+4+hh}, v{t+2*hh}, v{t+2*hh+1}")
                for hh in range(2):
                    A(f"v_lshlrev_b32 v{t+2*hh}, 16, v{t+4+hh}")
                    A(f"v_and_b32 v{t+2*hh+1}, 0xffff0000, v{t+4+hh}")
                for r in range(4): A(f"v_mul_f32 v{t+4+r}, v{t+r}, v{rs}")
                for r in range(4): A(f"v_fma_f32 v{t+r}, -v{t+4+r}, v{sd}, v{t+r}")
                for r in range(4): A(f"v_fma_f32 v{t+4+r}, v{t+r}, v{rs}, v{t+4+r}")
                for hh in range(2):
                    A(f"v_cvt_pk_bf16_f32 v{t+hh}, v{t+4+2*hh}, v{t+4+2*hh+1}")
                for hh in range(2):
                    A(f"v_lshlrev_b32 v{t+4+2*hh}, 16, v{t+hh}")
                    A(f"v_and_b32 v{t+4+2*hh+1}, 0xffff0000, v{t+hh}")
                for r in range(4): A(f"v_mul_f32 v{t+4+r}, v{t+4+r}, v{DU+4*m+r}")
                for hh in range(2):
                    A(f"v_cvt_pk_bf16_f32 v{t+hh}, v{t+4+2*hh}, v{t+4+2*hh+1}")
                for hh in range(2):
                    A(f"v_lshlrev_b32 v{p+2*hh}, 16, v{t+hh}")
                    A(f"v_and_b32 v{p+2*hh+1}, 0xffff0000, v{t+hh}")
    fset = lambda stage, kk: FRAG + ((stage & 1) * 2 + kk) * 28
    accr = lambda m, n: ACC + (m * 2 + n) * 4
    def reads(stage, kk):
        b = stage % K2_NS
        ra = 19 + 2 * (b >> 1) if b >= 2 else 19
        rb = 20 + 2 * (b >> 1) if b >= 2 else 20
        o = (b & 1) * K2_STAGE
        f = fset(stage, kk)
        out = [f"ds_read_b128 {vr(f+20+4*n,4)}, v{rb} offset:{o + kk*8192 + n*1024}" for n in range(2)]
        out += [f"ds_read_b128 {vr(f+4*m,4)}, v{ra} offset:{o + kk*5120 + m*1024}" for m in range(5)]
        return out
    def mfmas(stage, kk):
        f = fset(stage, kk)
        return [f"v_mfma_f32_16x16x32_bf16 {vr(accr(m,n),4)}, {vr(f+4*m,4)}, {vr(f+20+4*n,4)}, {vr(accr(m,n),4)}"
                for m in range(5) for n in range(2)]
    stamp(A, 1)
    A("s_barrier")
    stamp(A, 2)
    for kk in range(2):
        for r in reads(0, kk): A(r)
    if "nopf" not in DBG: A("buffer_load_dword v12, v11, s[44:47], s66 offen")
    for j in range(nst):
        if j == 4 and "nopf" not in DBG and (nst - K2_NS) * 80 > 1024: A("buffer_load_dword v12, v11, s[44:47], s67 offen")
        A("s_waitcnt lgkmcnt(0)")
        mf = mfmas(j, 0) + mfmas(j, 1)
        if j < nst - 1:
            for m in mf[:2]: A(m)
            A("s_barrier")
            rd = reads(j + 1, 0) + reads(j + 1, 1)
            for i, m in enumerate(mf[2:]):
                if i < len(rd): A(rd[i])
                A(m)
        else:
            for m in mf: A(m)
    stamp(A, 3)
    if not isF:
        A("s_mul_i32 s57, s48, 10240")
        A("s_add_u32 s61, s61, s57")
        for n in range(2):
            for m in range(5):
                a = accr(m, n); p = PR + (m * 2 + n) * 4
                for hh in range(2):
                    A(f"v_pk_add_f32 {vr(a+2*hh,2)}, {vr(a+2*hh,2)}, {vr(p+2*hh,2)}")
                A(f"s_add_u32 s62, s61, {(n*5+m)*1024}")
                A(f"buffer_store_dwordx4 v[{a}:{a+3}], v19, s[44:47], s62 offen sc1")
        A("s_waitcnt vmcnt(0)")
        stamp(A, 4)
        A("s_barrier")
        L = A.label("noflag")
        A("s_cmp_lg_u32 s48, 0")
        A(f"s_cbranch_scc1 {L}")
        A("v_mov_b32 v25, 0")
        A("v_mov_b32 v26, 1")
        A("s_mov_b64 exec, 1")
        A("buffer_store_dword v26, v25, s[44:47], s60 offen sc1")
        A("s_mov_b64 exec, -1")
        A(f"{L}:")
        stamp(A, 5)
    else:
        for n in range(2):
            for m in range(5):
                a = accr(m, n)
                t = 92 + 8 * ((n * 5 + m) & 1)
                for hh in range(2):
                    A(f"v_cvt_pk_bf16_f32 v{t+hh}, v{a+2*hh}, v{a+2*hh+1}")
                for hh in range(2):
                    A(f"v_lshlrev_b32 v{a+2*hh}, 16, v{t+hh}")
                    A(f"v_and_b32 v{a+2*hh+1}, 0xffff0000, v{t+hh}")
                for r in range(4): A(f"v_mul_f32 v{t+r}, {hexf(-LOG2E)}, v{a+r}")
                for r in range(4): A(f"v_exp_f32 v{t+r}, v{t+r}")
                for r in range(4): A(f"v_add_f32 v{t+r}, 1.0, v{t+r}")
                for r in range(4): A(f"v_rcp_f32 v{t+r}, v{t+r}")
                for r in range(4): A(f"v_mul_f32 v{t+r}, v{t+r}, v{a+r}")
                for hh in range(2):
                    A(f"v_cvt_pk_bf16_f32 v{t+4+hh}, v{t+2*hh}, v{t+2*hh+1}")
                for hh in range(2):
                    A(f"v_lshlrev_b32 v{a+2*hh}, 16, v{t+4+hh}")
                    A(f"v_and_b32 v{a+2*hh+1}, 0xffff0000, v{t+4+hh}")
        stamp(A, 4)
        A("s_barrier")
        stamp(A, 5)
        sb = (nst % K2_NS) * K2_STAGE
        A("s_mul_i32 s57, s48, 10240")
        A(f"s_add_u32 s57, s57, {sb}")
        A("v_add_u32 v25, s57, v19")
        SR = 32
        for q in range(10):
            A(f"ds_read_b128 v[{SR+4*q}:{SR+4*q+3}], v25 offset:{1024*q}")
        A("v_lshlrev_b32 v18, 1, v18")
        A("s_lshl_b32 s58, s58, 1")
        A("s_waitcnt vmcnt(0)")
        for n in range(2):
            for m in range(5):
                q = n * 5 + m
                a = accr(m, n); x = XR + 2 * q; sreg = SR + 4 * q
                t = 92 + 4 * (q & 3)
                A(f"s_waitcnt lgkmcnt({9-q})")
                for hh in range(2):
                    A(f"v_lshlrev_b32 v{t+2*hh}, 16, v{x+hh}")
                    A(f"v_and_b32 v{t+2*hh+1}, 0xffff0000, v{x+hh}")
                for r in range(4): A(f"v_mul_f32 v{a+r}, v{sreg+r}, v{a+r}")
                for r in range(4): A(f"v_add_f32 v{t+r}, v{t+r}, v{a+r}")
                A(f"buffer_store_dwordx4 v[{t}:{t+3}], v18, s[76:79], s58 offen offset:{2560*n + 64*m}")

HEADER = open("recurrent_scan__ssm_conv_s5__dense_activation_relu__prompt.s.ref").read().split("; @launch")[0]

def kd(name, vgpr=256):
    return f""".p2align 6
.amdhsa_kernel {name}
  .amdhsa_next_free_vgpr {vgpr}
  .amdhsa_next_free_sgpr 102
  .amdhsa_accum_offset {vgpr}
  .amdhsa_group_segment_fixed_size 0
  .amdhsa_kernarg_size 120
  .amdhsa_user_sgpr_count 2
  .amdhsa_user_sgpr_kernarg_segment_ptr 1
  .amdhsa_system_sgpr_workgroup_id_x 1
.end_amdhsa_kernel
"""

def build():
    out = HEADER
    out += f"; @launch kernel=k1_kernel grid=(256,1,1) block=(512,1,1) lds={K1_LDS}\n"
    out += f"; @launch kernel=k2_kernel grid=(256,1,1) block=(512,1,1) lds={K2_LDS}\n"
    out += '.amdgcn_target "amdgcn-amd-amdhsa--gfx950"\n.text\n'
    for name, fn in (("k1_kernel", kernel1), ("k2_kernel", kernel2)):
        A = Asm(); A.nlabel = 0 if name == "k1_kernel" else 1000
        fn(A)
        lines = fix_hazards(A.lines, verbose=True)
        out += f".globl {name}\n.p2align 8\n.type {name},@function\n"
        out += "\n".join(("    " + l if not l.endswith(":") else l) for l in lines) + "\n"
    out += '.section .rodata,"a"\n' + kd("k1_kernel") + kd("k2_kernel")
    return out

if __name__ == "__main__":
    if len(sys.argv) > 2: STAMPS = True; DBG = sys.argv[2]
    dst = sys.argv[1] if len(sys.argv) > 1 else "recurrent_scan__ssm_conv_s5__dense_activation_relu__prompt.s"
    open(dst, "w").write(build())
    print("wrote", dst)
```

```python
import sys, struct
from asmlib import *

T, D, DFF = 2048, 640, 1728
WS_STATS = 0x000000
WS_WSP   = 0x010000
WS_E     = 0x050000
WS_FLAG  = 0x080000
WS_F1    = 0x090000
WS_CP    = 0x100000
WS_W2P   = 0x300000
WS_H1    = 0x600000
WS_HF    = 0xC00000
WS_S     = 0x1400000
WS_TS    = 0x1A00000
WS_SIZE  = 0x1B00000
OOB = 0x7ffffff0

import os
FST = os.environ.get("FST", ""); YST = os.environ.get("YST", ""); OST = os.environ.get("OST", "")
STAMPS = False
DBG = "nopf"
def stamp(A, i):
    if STAMPS and i == 0:
        A("s_memrealtime s[96:97]")
    if STAMPS:
        A(f"s_memtime s[{80+2*i}:{81+2*i}]")
def stamps_flush(A, n, kidx):
    if not STAMPS: return
    A("s_waitcnt lgkmcnt(0) vmcnt(0)")
    A("s_memtime s[98:99]")
    A("s_memrealtime s[100:101]")
    A("s_waitcnt lgkmcnt(0)")
    A("s_lshl_b32 s57, s2, 3")
    A("s_add_u32 s57, s57, s34")
    A("s_lshl_b32 s57, s57, 6")
    A(f"s_add_u32 s57, s57, {WS_TS + kidx*131072}")
    A("v_mov_b32 v2, 0")
    for i in range(n):
        A(f"v_mov_b32 v3, s{80+2*i}")
        A(f"buffer_store_dword v3, v2, s[44:47], s57 offen offset:{4*i}")
    A(f"v_mov_b32 v3, s98")
    A(f"buffer_store_dword v3, v2, s[44:47], s57 offen offset:{4*n}")
    A(f"v_mov_b32 v3, s96")
    A(f"buffer_store_dword v3, v2, s[44:47], s57 offen offset:56")
    A(f"v_mov_b32 v3, s100")
    A(f"buffer_store_dword v3, v2, s[44:47], s57 offen offset:60")

def f2u(x): return struct.unpack("<I", struct.pack("<f", x))[0]
def hexf(x): return f"0x{f2u(x):08x}"
LOG2E = 1.4426950408889634
INV2PI = 0.15915494309189535

def divc(A, vq, vsrc, d, maxv):
    for sh in (16, 17, 18, 19, 20):
        mul = ((1 << sh) + d - 1) // d
        if all((c * mul) >> sh == c // d for c in range(maxv)) and maxv * mul < (1 << 32) and mul < (1 << 24):
            A(f"v_mul_u32_u24 {vr(vq)}, {mul}, {vr(vsrc)}")
            A(f"v_lshrrev_b32 {vr(vq)}, {sh}, {vr(vq)}")
            return
    raise Exception("no magic")

def srd(A, s, base, size):
    A(f"s_mov_b32 s{s}, s{base}")
    A(f"s_and_b32 s{s+1}, s{base+1}, 0xffff")
    A(f"s_mov_b32 s{s+2}, {size}")
    A(f"s_mov_b32 s{s+3}, 0x20000")

def cmul_add(A, dst, w, h, u):
    A(f"v_pk_fma_f32 {vr(dst,2)}, {vr(w,2)}, {vr(h,2)}, {vr(u,2)} op_sel:[0,0,0] op_sel_hi:[0,1,1]")
    A(f"v_pk_fma_f32 {vr(dst,2)}, {vr(w,2)}, {vr(h,2)}, {vr(dst,2)} op_sel:[1,1,0] op_sel_hi:[1,0,1] neg_lo:[1,0,0]")
def cmul(A, dst, w, h):
    A(f"v_pk_mul_f32 {vr(dst,2)}, {vr(w,2)}, {vr(h,2)} op_sel:[0,0] op_sel_hi:[0,1]")
    A(f"v_pk_fma_f32 {vr(dst,2)}, {vr(w,2)}, {vr(h,2)}, {vr(dst,2)} op_sel:[1,1,0] op_sel_hi:[1,0,1] neg_lo:[1,0,0]")

def wave_sum(A, regs):
    for mod in ("row_shr:1 row_mask:0xf bank_mask:0xf bound_ctrl:0", "row_shr:2 row_mask:0xf bank_mask:0xf bound_ctrl:0",
                "row_shr:4 row_mask:0xf bank_mask:0xf bound_ctrl:0", "row_shr:8 row_mask:0xf bank_mask:0xf bound_ctrl:0",
                "row_bcast:15 row_mask:0xa bank_mask:0xf", "row_bcast:31 row_mask:0xc bank_mask:0xf"):
        for r in regs:
            A(f"v_add_f32_dpp {vr(r)}, {vr(r)}, {vr(r)} {mod}")

def bf16r(A, r):
    A(f"v_cvt_pk_bf16_f32 {vr(r)}, {vr(r)}, {vr(r)}")
    A(f"v_lshlrev_b32 {vr(r)}, 16, {vr(r)}")

class VM:
    def __init__(s, A): s.A = A; s.ops = []
    def __call__(s, text, tag): s.A(text); s.ops.append(tag)
    def wait(s, tag, extra=""):
        idx = max([i for i, t in enumerate(s.ops) if t == tag], default=None)
        if idx is None:
            if extra: s.A(f"s_waitcnt {extra}")
            return
        n = len(s.ops) - 1 - idx
        assert n <= 63, n
        s.A(f"s_waitcnt vmcnt({n}) {extra}".strip())
        s.ops = s.ops[idx + 1:]
    def waitall(s, extra=""):
        s.A(f"s_waitcnt vmcnt(0) {extra}".strip()); s.ops = []

def common_ids(A):
    A("v_lshrrev_b32 v2, 6, v0")
    A("v_and_b32 v1, 255, v0")
    A("v_and_b32 v0, 63, v0")
    A("v_readfirstlane_b32 s34, v2")
    A("s_and_b32 s57, s2, 7")
    A("s_lshr_b32 s35, s2, 3")
    A("s_lshr_b32 s49, s57, 2")
    A("s_and_b32 s57, s57, 3")
    A("s_lshl_b32 s57, s57, 2")
    A("s_lshr_b32 s50, s35, 3")
    A("s_add_u32 s50, s50, s57")
    A("s_and_b32 s51, s35, 7")
    A("s_and_b32 s48, s34, 3")
    A("s_lshr_b32 s52, s48, 1")
    A("s_and_b32 s53, s48, 1")
    A("v_lshrrev_b32 v3, 3, v0")
    A("v_and_b32 v4, 7, v0")
    A("v_lshrrev_b32 v5, 4, v0")
    A("v_and_b32 v6, 15, v0")

def poll(A, load, stmp, scount, vtmp, target, iters=200000):
    L = A.label("poll"); Lx = A.label("pollx")
    A(f"s_mov_b32 s{scount}, {iters}")
    A(f"{L}:")
    A(load)
    A("s_waitcnt vmcnt(0)")
    A(f"v_readfirstlane_b32 s{stmp}, {vr(vtmp)}")
    A(f"s_cmp_eq_u32 s{stmp}, {target}")
    A(f"s_cbranch_scc1 {Lx}")
    A("s_sleep 1")
    A(f"s_sub_u32 s{scount}, s{scount}, 1")
    A(f"s_cmp_lg_u32 s{scount}, 0")
    A(f"s_cbranch_scc1 {L}")
    A(f"{Lx}:")

K1F_STAGE = 28672 + 16384
K1Y_STAGE = 20480 + 16384
K1_STATS = 0
K1_WS = 1024
K1F_RED = 2048
K1F_BUF = 9216
K1Y_T = 2048
K1Y_BUF = 25088
K1Y_SCR = K1Y_BUF + 3 * K1Y_STAGE
K1_LDS = 156160

def kernel1(A):
    A("k1_kernel:")
    A("s_cmp_ge_u32 s2, 256")
    A("s_cbranch_scc1 k1_end")
    stamp(A, 0)
    A("s_load_dwordx16 s[4:19], s[0:1], 0")
    A("s_load_dwordx8 s[20:27], s[0:1], 64")
    A("s_load_dwordx4 s[28:31], s[0:1], 96")
    A("s_load_dwordx2 s[32:33], s[0:1], 112")
    common_ids(A)
    A("s_lshr_b32 s57, s51, 1")
    A("s_mul_i32 s54, s57, 27")
    A("s_and_b32 s57, s51, 1")
    A("s_mul_i32 s57, s57, 14")
    A("s_add_u32 s54, s54, s57")
    A("s_waitcnt lgkmcnt(0)")
    srd(A, 36, 4, T * D * 2)
    srd(A, 44, 32, WS_SIZE)
    A("s_cmp_ge_u32 s34, 4")
    A("s_cbranch_scc1 k1_ld")
    A("s_cmp_lg_u32 s49, 0")
    A("s_cbranch_scc1 k1_cF")
    k1_compute(A, False)
    stamps_flush(A, 8, 0)
    A("s_branch k1_end")
    A("k1_cF:")
    k1_compute(A, True)
    stamps_flush(A, 8, 0)
    A("s_branch k1_end")
    A("k1_ld:")
    A("s_cmp_lg_u32 s49, 0")
    A("s_cbranch_scc1 k1_lF")
    k1_loader(A, False)
    stamps_flush(A, 8, 0)
    A("s_branch k1_end")
    A("k1_lF:")
    k1_loader(A, True)
    stamps_flush(A, 8, 0)
    A("k1_end:")
    A("s_endpgm")

def stats_compute(A, vm):
    for r in range(2):
        for i in range(5):
            A(f"v_lshlrev_b32 v{40+10*r+2*i}, 16, v{20+5*r+i}")
            A(f"v_and_b32 v{41+10*r+2*i}, 0xffff0000, v{20+5*r+i}")
    for r in range(2):
        b = 40 + 10 * r
        A(f"v_add_f32 v{60+r}, v{b}, v{b+1}")
        for i in range(2, 10):
            A(f"v_add_f32 v{60+r}, v{60+r}, v{b+i}")
    wave_sum(A, [60, 61])
    A("v_readlane_b32 s57, v60, 63")
    A("v_readlane_b32 s58, v61, 63")
    A(f"v_mov_b32 v62, {hexf(1.0/640)}")
    A("v_mul_f32 v60, s57, v62")
    A("v_mul_f32 v61, s58, v62")
    for r in range(2):
        b = 40 + 10 * r
        for i in range(10):
            A(f"v_sub_f32 v{b+i}, v{b+i}, v{60+r}")
    for r in range(2):
        b = 40 + 10 * r
        A(f"v_mul_f32 v{64+r}, v{b}, v{b}")
        for i in range(1, 10):
            A(f"v_fmac_f32 v{64+r}, v{b+i}, v{b+i}")
    wave_sum(A, [64, 65])
    A("v_readlane_b32 s57, v64, 63")
    A("v_readlane_b32 s58, v65, 63")
    A("v_mul_f32 v64, s57, v62")
    A("v_mul_f32 v65, s58, v62")
    A("v_and_b32 v66, 1, v0")
    A("v_cmp_eq_u32 vcc, 1, v66")
    A("v_cndmask_b32 v68, v60, v61, vcc")
    A("v_cndmask_b32 v70, v64, v65, vcc")
    bf16r(A, 68)
    bf16r(A, 70)
    A(f"v_add_f32 v70, {hexf(1e-5)}, v70")
    bf16r(A, 70)
    A("v_sqrt_f32 v70, v70")
    bf16r(A, 70)
    A("v_rcp_f32 v69, v70")
    A("v_fma_f32 v71, -v70, v69, 1.0")
    A("v_fma_f32 v69, v71, v69, v69")
    A("v_mov_b32 v71, 0")
    A("v_lshlrev_b32 v66, 4, v0")
    A(f"v_mov_b32 v67, {OOB}")
    A("v_cmp_gt_u32 vcc, 2, v0")
    A("v_cndmask_b32 v66, v67, v66, vcc")
    A("s_lshl_b32 s57, s63, 4")
    A(f"s_add_u32 s57, s57, {WS_STATS}")
    vm("buffer_store_dwordx4 v[68:71], v66, s[44:47], s57 offen sc1", "st")

def k1_loader(A, isF):
    vm = VM(A)
    STG = K1F_STAGE if isF else K1Y_STAGE
    BUF = K1F_BUF if isF else K1Y_BUF
    ASZ = 28672 if isF else 20480
    if not isF:
        L = A.label("nononce")
        A("s_or_b32 s57, s2, s48")
        A("s_cmp_lg_u32 s57, 0")
        A(f"s_cbranch_scc1 {L}")
        A("s_memrealtime s[70:71]")
        A("v_mov_b32 v18, 0")
        A("s_waitcnt lgkmcnt(0)")
        A("s_or_b32 s70, s70, 1")
        A("v_mov_b32 v20, s70")
        A("v_mov_b32 v21, s71")
        A("s_mov_b64 exec, 1")
        A("global_store_dwordx2 v18, v[20:21], s[30:31] sc1")
        A("s_mov_b64 exec, -1")
        A(f"{L}:")
    A("v_xor_b32 v17, v4, v3")
    A("v_mul_u32_u24 v19, 5120, v3")
    A("v_lshl_add_u32 v247, v17, 4, v19")
    A("s_lshl_b32 s60, s50, 7")
    A("s_lshl_b32 s59, s52, 6")
    A("s_add_u32 s60, s60, s59")
    A("s_lshl_b32 s59, s53, 1")
    A("s_add_u32 s60, s60, s59")
    A("s_mul_i32 s60, s60, 1280")
    A("s_lshl_b32 s62, s48, 12")
    A(f"s_add_u32 s62, s62, {ASZ+BUF}")
    def dmaX(st):
        bo = (st % 3) * STG
        for q in range(4):
            A(f"s_add_u32 m0, s62, {bo + 1024*q}")
            A(f"s_add_u32 s65, s60, {st*128 + (32*(q&1) + (q>>1))*1280}")
            vm(f"buffer_load_dwordx4 v247, s[36:39], s65 offen lds", f"d{st}")
    dmaX(0)
    if isF:
        srd(A, 40, 24, D * DFF * 2)
        A("s_mul_i32 s59, s48, 55296")
        A("s_lshl_b32 s64, s54, 5")
        A("s_add_u32 s59, s59, s64")
        A("s_mul_i32 s61, s48, 7168")
        A(f"s_add_u32 s61, s61, {BUF}")
        for q in range(7):
            A(f"v_add_u32 v17, {64*q}, v0")
            divc(A, 18, 17, 28, 448)
            A("v_mul_u32_u24 v19, 28, v18")
            A("v_sub_u32 v19, v17, v19")
            A("v_lshrrev_b32 v17, 2, v18")
            A("v_and_b32 v17, 2, v17")
            A("v_xor_b32 v19, v19, v17")
            A("v_mul_u32_u24 v18, 3456, v18")
            A(f"v_lshl_add_u32 v{240+q}, v19, 4, v18")
            A(f"s_add_u32 m0, s61, {1024*q}")
            A("s_nop 0")
            vm(f"buffer_load_dwordx4 v{240+q}, s[40:43], s59 offen lds", "d0")
    else:
        A("s_cmp_lt_u32 s48, 2")
        A("s_cselect_b32 s64, s10, s12")
        A("s_cselect_b32 s65, s11, s13")
        srd(A, 40, 64, D * D * 2)
        A("v_xor_b32 v18, s52, v17")
        A("v_mul_u32_u24 v19, 1280, v3")
        A("v_lshl_add_u32 v240, v18, 4, v19")
        A("s_mul_i32 s59, s51, 80")
        A("s_mul_i32 s64, s53, 40")
        A("s_add_u32 s59, s59, s64")
        A("s_mul_i32 s59, s59, 1280")
        A("s_mul_i32 s61, s53, 10240")
        A("s_lshl_b32 s64, s52, 10")
        A("s_add_u32 s61, s61, s64")
        A(f"s_add_u32 s61, s61, {BUF}")
    def dmaA(st):
        bo = (st % 3) * STG
        tag = f"d{st}"
        if isF:
            A(f"s_add_u32 s65, s59, {st*64*3456}")
            for q in range(7):
                A(f"s_add_u32 m0, s61, {bo + 1024*q}")
                A("s_nop 0")
                vm(f"buffer_load_dwordx4 v{240+q}, s[40:43], s65 offen lds", tag)
        else:
            for q in range(5):
                A(f"s_add_u32 m0, s61, {bo + 2048*q}")
                A(f"s_add_u32 s65, s59, {st*128 + q*8*1280}")
                vm(f"buffer_load_dwordx4 v240, s[40:43], s65 offen lds", tag)
    def dma(st):
        dmaA(st); dmaX(st)
    if not isF: dmaA(0)
    dma(1)
    A(f"v_mov_b32 v15, {OOB}")
    if isF:
        A("s_mul_i32 s76, s51, 224")
        A("s_add_u32 s76, s76, 1280")
        def c2():
            A("v_lshlrev_b32 v9, 2, v1")
            for r in range(8):
                A(f"ds_read_b32 v{108+r}, v9 offset:{K1F_RED+896*r}")
            A("s_waitcnt lgkmcnt(0)")
            for r in range(1, 8):
                A(f"v_add_f32 v108, v108, v{108+r}")
            A("s_mul_i32 s57, s50, 3072")
            A("s_add_u32 s57, s57, s76")
            A("s_lshl_b32 s57, s57, 2")
            A(f"s_add_u32 s57, s57, {WS_WSP}")
            A("v_cmp_gt_u32 vcc, 224, v1")
            A("v_cndmask_b32 v9, v15, v9, vcc")
            vm("buffer_store_dword v108, v9, s[44:47], s57 offen sc1", "st")
        pre = {0: [c2]}
        chunks = {1: [lambda: vm.wait("st")]}
        nws = 224
    else:
        A("s_mul_i32 s76, s51, 160")
        def w2a():
            srd(A, 68, 26, D * DFF * 2)
            A("s_lshl_b32 s57, s50, 3")
            A("s_add_u32 s57, s57, s51")
            A("s_lshl_b32 s57, s57, 2")
            A("s_add_u32 s57, s57, s48")
            A("s_lshr_b32 s72, s57, 3")
            A("s_and_b32 s73, s57, 7")
            A("s_mul_i32 s58, s72, 40960")
            A("s_mul_i32 s57, s73, 160")
            A("s_add_u32 s58, s58, s57")
            A("s_mul_i32 s74, s48, 5120")
            A(f"s_add_u32 s74, s74, {K1Y_SCR}")
            for q in range(5):
                A(f"v_add_u32 v17, {64*q}, v0")
                divc(A, 18, 17, 10, 320)
                A("v_mul_u32_u24 v19, 10, v18")
                A("v_sub_u32 v19, v17, v19")
                A("v_mul_u32_u24 v18, 1280, v18")
                A("v_lshl_add_u32 v16, v19, 4, v18")
                A(f"s_add_u32 m0, s74, {1024*q}")
                A("s_nop 0")
                vm("buffer_load_dwordx4 v16, s[68:71], s58 offen lds", "w2")
        def w2b():
            A("v_lshrrev_b32 v17, 2, v6")
            A("v_lshl_add_u32 v17, v5, 2, v17")
            A("v_mul_u32_u24 v17, 160, v17")
            A("v_and_b32 v18, 3, v6")
            A("v_lshl_add_u32 v17, v18, 3, v17")
            A("v_add_u32 v17, s74, v17")
            vm.wait("w2")
            for m in range(5):
                for h in range(2):
                    A(f"ds_read_b64_tr_b16 v[{120+4*m+2*h}:{121+4*m+2*h}], v17 offset:{h*2560 + m*32}")
            A("s_mul_i32 s57, s73, 54")
            A("s_add_u32 s57, s57, s72")
            A("s_mul_i32 s57, s57, 5120")
            A(f"s_add_u32 s57, s57, {WS_W2P}")
            A("s_cmp_lt_u32 s72, 54")
            A(f"s_cselect_b32 s57, s57, {OOB}")
            A("v_lshlrev_b32 v18, 4, v0")
            A("v_add_u32 v19, 4096, v18")
            A("s_waitcnt lgkmcnt(0)")
            for m in range(5):
                vm(f"buffer_store_dwordx4 v[{120+4*m}:{123+4*m}], v18, s[44:47], s57 offen offset:{1024*m}" if m < 4 else
                   f"buffer_store_dwordx4 v[{120+4*m}:{123+4*m}], v19, s[44:47], s57 offen", "st2")
        pre = {}
        chunks = {}
        nws = 160
    A("v_and_b32 v20, 15, v0")
    A("v_lshrrev_b32 v21, 3, v20")
    A("v_and_b32 v22, 7, v20")
    A("v_lshlrev_b32 v21, 7, v21")
    A("v_add_u32 v21, v21, v22")
    A("s_lshl_b32 s57, s50, 3")
    A("v_add_u32 v21, s57, v21")
    A("s_lshl_b32 s57, s49, 7")
    A("s_add_u32 s57, s57, s51")
    A("v_lshl_add_u32 v22, v20, 3, s57")
    A("v_and_b32 v23, 16, v0")
    A("v_cmp_eq_u32 vcc, 0, v23")
    A("v_cndmask_b32 v25, v22, v21, vcc")
    A("v_lshlrev_b32 v25, 7, v25")
    A(f"v_add_u32 v25, {WS_F1}, v25")
    A("v_mov_b32 v26, 0")
    def n1():
        vm("global_load_dwordx2 v[28:29], v26, s[30:31] sc1", "nn")
    def n2():
        Lp = A.label("np"); Lx = A.label("npx"); Lc = A.label("npc")
        A("s_mov_b32 s58, 200000")
        vm.wait("nn")
        A(f"s_branch {Lc}")
        A(f"{Lp}:")
        A("s_sleep 1")
        A("global_load_dwordx2 v[28:29], v26, s[30:31] sc1")
        A("s_waitcnt vmcnt(0)")
        A(f"{Lc}:")
        A("v_readfirstlane_b32 s57, v28")
        A("s_cmp_lg_u32 s57, 0")
        A(f"s_cbranch_scc1 {Lx}")
        A("s_sub_u32 s58, s58, 1")
        A("s_cmp_lg_u32 s58, 0")
        A(f"s_cbranch_scc1 {Lp}")
        A(f"{Lx}:")
        A("s_lshl_b32 s57, s49, 7")
        A("s_lshl_b32 s58, s50, 3")
        A("s_add_u32 s57, s57, s58")
        A("s_add_u32 s57, s57, s51")
        A("s_lshl_b32 s57, s57, 7")
        A(f"s_add_u32 s57, s57, {WS_F1}")
        A("v_cmp_eq_u32 vcc, 0, v1")
        A("v_cndmask_b32 v27, v15, v26, vcc")
        vm("buffer_store_dwordx2 v[28:29], v27, s[44:47], s57 offen sc1", "fs")
    chunks.setdefault(1, []).insert(0, n1)
    chunks.setdefault(2, []).append(n2)
    def g1():
        vm("buffer_load_dwordx2 v[32:33], v25, s[44:47], 0 offen sc1", "fl")
    def g2():
        Lp = A.label("poll"); Lx = A.label("pollx"); Lc = A.label("pollc")
        A("s_mov_b32 s58, 200000")
        vm.wait("fl")
        A(f"s_branch {Lc}")
        A(f"{Lp}:")
        A("s_sleep 1")
        A("buffer_load_dwordx2 v[32:33], v25, s[44:47], 0 offen sc1")
        A("s_waitcnt vmcnt(0)")
        A(f"{Lc}:")
        A("v_cmp_ne_u64 vcc, v[32:33], v[28:29]")
        A("s_cmp_eq_u64 vcc, 0")
        A(f"s_cbranch_scc1 {Lx}")
        A("s_sub_u32 s58, s58, 1")
        A("s_cmp_lg_u32 s58, 0")
        A(f"s_cbranch_scc1 {Lp}")
        A(f"{Lx}:")
        A("v_lshlrev_b32 v34, 4, v1")
        A("s_lshl_b32 s57, s50, 11")
        A(f"s_add_u32 s57, s57, {WS_STATS}")
        vm("buffer_load_dwordx2 v[36:37], v34, s[44:47], s57 offen sc1", "ga")
        A("v_lshlrev_b32 v35, 2, v1")
        A("s_lshl_b32 s57, s76, 2")
        A(f"s_add_u32 s57, s57, {WS_WSP}")
        for sl in range(16):
            vm(f"buffer_load_dword v{40+sl}, v35, s[44:47], s57 offen sc1", "ga")
            A(f"s_add_u32 s57, s57, {3072*4}")
    def g3():
        vm.wait("ga")
        A("v_lshlrev_b32 v34, 3, v1")
        A("v_cmp_gt_u32 vcc, 128, v1")
        A("s_and_saveexec_b64 s[66:67], vcc")
        A(f"ds_write_b64 v34, v[36:37] offset:{K1_STATS}")
        A("s_mov_b64 exec, s[66:67]")
        for sl in range(1, 16):
            A(f"v_add_f32 v40, v40, v{40+sl}")
        A(f"v_cmp_gt_u32 vcc, {nws}, v1")
        A("s_and_saveexec_b64 s[66:67], vcc")
        A(f"ds_write_b32 v35, v40 offset:{K1_WS}")
        A("s_mov_b64 exec, s[66:67]")
        A("s_waitcnt lgkmcnt(0)")
    chunks.setdefault(6, []).append(g1)
    chunks.setdefault(7, []).append(g2)
    vm.wait("d0")
    stamp(A, 1)
    A("s_barrier")
    for j in range(9):
        for f in pre.get(j, []): f()
        if j + 2 <= 9: dma(j + 2)
        for f in chunks.get(j, []): f()
        vm.wait(f"d{j+1}", "lgkmcnt(0)")
        A("s_barrier")
    stamp(A, 2)
    g3()
    stamp(A, 3)
    stamp(A, 4)
    A("s_barrier")
    if not isF: w2a(); w2b()
    for i in (5, 6, 7): stamp(A, i)

def k1_side(A, isF):
    vm = VM(A)
    A("s_lshl_b32 s57, s49, 3")
    A("s_add_u32 s57, s57, s51")
    A("s_lshl_b32 s57, s57, 3")
    A("s_lshl_b32 s58, s50, 7")
    A("s_add_u32 s57, s57, s58")
    A("s_lshl_b32 s58, s48, 1")
    A("s_add_u32 s63, s57, s58")
    A("s_mul_i32 s57, s63, 1280")
    A("s_add_u32 s58, s57, 1280")
    A("v_lshlrev_b32 v2, 2, v0")
    for i in range(5):
        vm(f"buffer_load_dword v{20+i}, v2, s[36:39], s57 offen offset:{256*i}", "sm")
    for i in range(5):
        vm(f"buffer_load_dword v{25+i}, v2, s[36:39], s58 offen offset:{256*i}", "sm")
    A(f"v_mov_b32 v15, {OOB}")
    if isF:
        srd(A, 40, 24, D * DFF * 2)
        divc(A, 7, 1, 28, 256)
        A("v_mul_u32_u24 v8, 28, v7")
        A("v_sub_u32 v8, v1, v8")
        A("s_mov_b32 s57, 17280")
        A("v_mul_lo_u32 v9, v7, s57")
        A("v_lshl_add_u32 v9, v8, 4, v9")
        A("s_mul_i32 s57, s50, 138240")
        A("s_lshl_b32 s64, s54, 5")
        A("s_add_u32 s57, s57, s64")
        for r in range(5):
            vm(f"buffer_load_dwordx4 v[{72+4*r}:{75+4*r}], v9, s[40:43], s57 offen", "sm2")
            A("s_add_u32 s57, s57, 3456")
        srd(A, 68, 14, D * D * 2)
        srd(A, 72, 16, D * D * 2)
        A("s_lshl_b32 s57, s50, 3")
        A("s_add_u32 s57, s57, s51")
        A("s_lshl_b32 s57, s57, 4")
        A("v_lshrrev_b32 v10, 4, v1")
        A("v_add_u32 v10, s57, v10")
        divc(A, 11, 10, 40, 2048)
        A("v_mul_u32_u24 v12, 40, v11")
        A("v_sub_u32 v12, v10, v12")
        A("v_lshl_add_u32 v13, v11, 4, v6")
        A("v_mul_u32_u24 v13, 1280, v13")
        A("v_lshl_add_u32 v13, v12, 5, v13")
        vm("buffer_load_dwordx4 v[92:95], v13, s[68:71], 0 offen", "sm3")
        vm("buffer_load_dwordx4 v[96:99], v13, s[68:71], 0 offen offset:16", "sm3")
        vm("buffer_load_dwordx4 v[100:103], v13, s[72:75], 0 offen", "sm3")
        vm("buffer_load_dwordx4 v[104:107], v13, s[72:75], 0 offen offset:16", "sm3")
        divc(A, 14, 11, 5, 64)
        A("v_mul_u32_u24 v16, 5, v14")
        A("v_sub_u32 v16, v11, v16")
        A("v_mul_u32_u24 v14, 40, v14")
        A("v_add_u32 v14, v14, v12")
        A("v_mul_u32_u24 v14, 5120, v14")
        A("v_lshl_add_u32 v14, v16, 10, v14")
        A("v_lshl_add_u32 v14, v6, 4, v14")
        A("v_cmp_gt_u32 vcc, 1600, v10")
        A("v_cndmask_b32 v14, v15, v14, vcc")
        A("s_lshl_b32 s57, s50, 3")
        A("s_add_u32 s57, s57, s51")
        A("s_lshl_b32 s57, s57, 7")
        A(f"s_add_u32 s57, s57, {WS_FLAG}")
        A("v_mov_b32 v18, 0")
        A("v_lshlrev_b32 v19, 2, v1")
        A("v_cmp_gt_u32 vcc, 32, v1")
        A("v_cndmask_b32 v19, v15, v19, vcc")
        vm("buffer_store_dword v18, v19, s[44:47], s57 offen", "st")
        yield
        vm.wait("sm")
        stats_compute(A, vm)
        vm.wait("sm2")
        for c in range(4):
            A(f"v_lshlrev_b32 v{108+2*c}, 16, v{72+c}")
            A(f"v_and_b32 v{109+2*c}, 0xffff0000, v{72+c}")
        for r in range(1, 5):
            for c in range(4):
                A(f"v_lshlrev_b32 v116, 16, v{72+4*r+c}")
                A(f"v_and_b32 v117, 0xffff0000, v{72+4*r+c}")
                A(f"v_add_f32 v{108+2*c}, v{108+2*c}, v116")
                A(f"v_add_f32 v{109+2*c}, v{109+2*c}, v117")
        A("v_mul_u32_u24 v9, 896, v7")
        A("v_lshl_add_u32 v9, v8, 5, v9")
        A("v_cmp_gt_u32 vcc, 224, v1")
        A("s_and_saveexec_b64 s[66:67], vcc")
        A(f"ds_write_b128 v9, v[108:111] offset:{K1F_RED}")
        A(f"ds_write_b128 v9, v[112:115] offset:{K1F_RED+16}")
        A("s_mov_b64 exec, s[66:67]")
        vm.wait("sm3")
        A("s_mov_b32 s57, 0x05040100")
        A("s_mov_b32 s58, 0x07060302")
        for c in range(8):
            A(f"v_xor_b32 v{100+c}, 0x80008000, v{100+c}")
        A(f"s_mov_b32 s65, {WS_CP}")
        for g in range(4):
            o = 40 + 4 * g
            A(f"v_perm_b32 v{o}, v{100+g}, v{92+g}, s57")
            A(f"v_perm_b32 v{o+1}, v{100+g}, v{92+g}, s58")
            A(f"v_perm_b32 v{o+2}, v{104+g}, v{96+g}, s57")
            A(f"v_perm_b32 v{o+3}, v{104+g}, v{96+g}, s58")
            vm(f"buffer_store_dwordx4 v[{o}:{o+3}], v14, s[44:47], s65 offen offset:{256*g}", "st")
    else:
        A("s_cmp_lt_u32 s48, 2")
        A("s_cselect_b32 s64, s10, s12")
        A("s_cselect_b32 s65, s11, s13")
        srd(A, 40, 64, D * D * 2)
        divc(A, 9, 1, 80, 256)
        A("v_mul_u32_u24 v10, 80, v9")
        A("v_sub_u32 v10, v1, v10")
        A("s_mul_i32 s57, s51, 80")
        A("v_add_u32 v11, s57, v10")
        A("v_lshlrev_b32 v11, 1, v11")
        vm("global_load_ushort v92, v11, s[6:7]", "sm3")
        vm("global_load_ushort v93, v11, s[8:9]", "sm3")
        vm("global_load_ushort v94, v11, s[18:19]", "sm3")
        A("s_lshl_b32 s57, s53, 6")
        A("v_add_u32 v7, s57, v0")
        A("s_mul_i32 s57, s51, 80")
        A("v_add_u32 v8, s57, v7")
        A("v_mul_u32_u24 v8, 1280, v8")
        A("s_mul_i32 s57, s50, 80")
        for r in range(5):
            vm(f"buffer_load_dwordx4 v[{72+4*r}:{75+4*r}], v8, s[40:43], s57 offen offset:{16*r}", "sm2")
        divc(A, 12, 1, 40, 256)
        A("v_mul_u32_u24 v13, 40, v12")
        A("v_sub_u32 v13, v1, v13")
        A("v_mul_u32_u24 v12, 5120, v12")
        A("v_lshl_add_u32 v12, v13, 4, v12")
        A("v_cmp_gt_u32 vcc, 80, v1")
        A("v_cndmask_b32 v12, v15, v12, vcc")
        A("s_mul_i32 s57, s50, 10240")
        A("s_mul_i32 s58, s51, 640")
        A("s_add_u32 s57, s57, s58")
        A(f"s_add_u32 s57, s57, {WS_E}")
        for r in range(4): A(f"v_mov_b32 v{112+r}, -1")
        vm("buffer_store_dwordx4 v[112:115], v12, s[44:47], s57 offen sc1", "st")
        yield
        vm.wait("sm")
        stats_compute(A, vm)
        vm.wait("sm2")
        A("s_mov_b32 s57, 0x3f803f80")
        A("v_mov_b32 v108, 0")
        A("v_mov_b32 v109, 0")
        for r in range(20):
            A(f"v_dot2_f32_bf16 v{108+(r&1)}, v{72+r}, s57, v{108+(r&1)}")
        A("s_nop 2")
        A("v_add_f32 v108, v108, v109")
        A("s_mul_i32 s57, s50, 3072")
        A("s_mul_i32 s58, s51, 160")
        A("s_add_u32 s57, s57, s58")
        A("s_add_u32 s57, s57, s52")
        A("s_lshl_b32 s57, s57, 2")
        A(f"s_add_u32 s57, s57, {WS_WSP}")
        A("v_lshlrev_b32 v8, 3, v7")
        A("v_cmp_gt_u32 vcc, 80, v7")
        A("v_cndmask_b32 v8, v15, v8, vcc")
        vm("buffer_store_dword v108, v8, s[44:47], s57 offen sc1", "st")
        for r in (92, 93, 94): A(f"v_lshlrev_b32 v{r}, 16, v{r}")
        A(f"v_mul_f32 v94, {hexf(LOG2E)}, v94")
        A("v_exp_f32 v94, v94")
        bf16r(A, 94)
        A("v_mul_f32 v95, v94, v92")
        A("v_mul_f32 v96, v94, v93")
        A(f"v_mul_f32 v95, {hexf(LOG2E)}, v95")
        A(f"v_mul_f32 v96, {hexf(INV2PI)}, v96")
        A("v_mul_u32_u24 v97, 288, v10")
        A("v_lshl_add_u32 v97, v9, 3, v97")
        A("v_cmp_gt_u32 vcc, 240, v1")
        A("s_and_saveexec_b64 s[66:67], vcc")
        for r in range(11):
            A(f"v_add_u32 v98, {3*r}, v9")
            A("v_lshlrev_b32 v99, 2, v98")
            A("v_lshlrev_b32 v100, 6, v98")
            A("v_subrev_u32 v100, 1024, v100")
            A("v_cmp_gt_u32 vcc, 16, v98")
            A("v_cndmask_b32 v99, v100, v99, vcc")
            A("v_cvt_f32_u32 v99, v99")
            A("v_mul_f32 v100, v99, v95")
            A("v_mul_f32 v101, v99, v96")
            A("v_exp_f32 v100, v100")
            A("v_fract_f32 v101, v101")
            A("v_cos_f32 v102, v101")
            A("v_sin_f32 v103, v101")
            A("v_mul_f32 v102, v100, v102")
            A("v_mul_f32 v103, v100, v103")
            A(f"ds_write_b64 v97, v[102:103] offset:{K1Y_T+24*r}")
        A("s_mov_b64 exec, s[66:67]")
        A("v_exp_f32 v100, v95")
        A("v_fract_f32 v101, v96")
        A("v_cos_f32 v102, v101")
        A("v_sin_f32 v103, v101")
        A("v_mul_f32 v102, v100, v102")
        A("v_mul_f32 v103, v100, v103")
        A("v_add_f32 v98, -1.0, v102")
        A("v_mul_f32 v99, v92, v92")
        A("v_fmac_f32 v99, v93, v93")
        A("v_rcp_f32 v100, v99")
        A("v_fma_f32 v101, -v99, v100, 1.0")
        A("v_fma_f32 v100, v101, v100, v100")
        A("v_add_f32 v100, v100, v100")
        A("v_mul_f32 v104, v98, v92")
        A("v_fmac_f32 v104, v103, v93")
        A("v_mul_f32 v105, v103, v92")
        A("v_fma_f32 v105, -v98, v93, v105")
        A("v_mul_f32 v104, v104, v100")
        A("v_mul_f32 v105, v105, v100")
        A("v_cmp_gt_u32 vcc, 80, v1")
        A("s_and_saveexec_b64 s[66:67], vcc")
        A(f"ds_write_b128 v97, v[102:105] offset:{K1Y_T+272}")
        A("s_mov_b64 exec, s[66:67]")
    A("s_waitcnt lgkmcnt(0)")
    yield

def k1_prefetch_setup(A, isF):
    A("s_and_b32 s57, s2, 3")
    A("s_lshl_b32 s57, s57, 9")
    A("s_lshl_b32 s59, s35, 4")
    A("s_add_u32 s57, s57, s59")
    A("s_mul_i32 s57, s57, 1280")
    A("v_lshrrev_b32 v10, 2, v0")
    A("v_and_b32 v11, 3, v0")
    A("v_mul_u32_u24 v10, 1280, v10")
    A("v_lshl_add_u32 v10, v11, 7, v10")
    A("s_mul_i32 s58, s53, 384")
    A("s_add_u32 s66, s57, s58")
    A("s_add_u32 s66, s66, 384")
    if isF:
        srd(A, 40, 24, D * DFF * 2)
        A("v_min_u32 v11, 53, v0")
        A("v_lshlrev_b32 v11, 7, v11")
        A("s_mul_i32 s67, s35, 6912")
        A("s_add_u32 s58, s48, 3")
        A(f"s_mul_i32 s58, s58, {64*3456}")
        A("s_add_u32 s67, s67, s58")
        A(f"s_add_u32 s68, s67, {4*64*3456}")
    else:
        A("s_cmp_lt_u32 s48, 2")
        A("s_cselect_b32 s64, s10, s12")
        A("s_cselect_b32 s65, s11, s13")
        srd(A, 40, 64, D * D * 2)
        divc(A, 12, 0, 20, 64)
        A("v_mul_u32_u24 v13, 20, v12")
        A("v_sub_u32 v13, v0, v13")
        A("v_min_u32 v12, 2, v12")
        A("v_mul_u32_u24 v13, 1280, v13")
        A("v_lshl_add_u32 v11, v12, 7, v13")
        A("s_mul_i32 s67, s35, 25600")
        A("s_mul_i32 s58, s53, 384")
        A("s_add_u32 s68, s67, 896")
        A("s_add_u32 s67, s67, s58")
        A("s_add_u32 s67, s67, 384")
def k1_prefetch(A, isF, batch):
    if "nopf" in DBG: return
    if batch == 0:
        A("buffer_load_dword v12, v11, s[40:43], s67 offen")
        A("buffer_load_dword v13, v10, s[36:39], s66 offen")
    else:
        A("buffer_load_dword v12, v11, s[40:43], s68 offen")

def k1_compute(A, isF):
    ACC = 128; FRAG = 32
    MT = 7 if isF else 5; NT = 4
    STG = K1F_STAGE if isF else K1Y_STAGE
    BUF = K1F_BUF if isF else K1Y_BUF
    ASZ = 28672 if isF else 20480
    side = k1_side(A, isF)
    next(side)
    AB = 232; BB = 244
    if isF:
        A("v_lshrrev_b32 v17, 2, v6")
        A("v_lshl_add_u32 v17, v5, 3, v17")
        A("v_mul_u32_u24 v17, 448, v17")
        A("v_and_b32 v18, 3, v6")
        A("v_lshl_add_u32 v17, v18, 3, v17")
        A("s_mul_i32 s57, s52, 224")
        A(f"s_add_u32 s57, s57, {BUF}")
        A("v_add_u32 v17, s57, v17")
        A("v_and_b32 v18, 1, v5")
        A("v_lshlrev_b32 v18, 5, v18")
        A("v_add_u32 v19, v17, v18")
        A("v_sub_u32 v17, v17, v18")
        A("s_cmp_eq_u32 s52, 0")
        A("s_cselect_b64 vcc, -1, 0")
        AB = 240; BB = 246
        A(f"v_cndmask_b32 v{AB}, v17, v19, vcc")
        A(f"v_cndmask_b32 v{AB+1}, v19, v17, vcc")
    else:
        A("v_and_b32 v17, 1, v6")
        A("v_lshrrev_b32 v18, 1, v6")
        A("v_lshl_add_u32 v19, v17, 3, v18")
        A("v_xor_b32 v17, v17, v18")
        A("v_xor_b32 v17, v17, v5")
        A("v_lshlrev_b32 v19, 7, v19")
        A("v_lshl_add_u32 v19, v17, 4, v19")
        A("s_mul_i32 s57, s52, 10240")
        A(f"s_add_u32 s57, s57, {BUF}")
        AB = 240; BB = 246
        A(f"v_add_u32 v{AB}, s57, v19")
        A(f"v_xor_b32 v{AB+1}, 64, v{AB}")
    A("v_and_b32 v18, 7, v0")
    A("v_xor_b32 v18, v18, v5")
    A("v_lshlrev_b32 v17, 7, v6")
    A("s_lshl_b32 s57, s53, 13")
    A(f"s_add_u32 s57, s57, {ASZ+BUF}")
    A("v_add_u32 v17, s57, v17")
    A(f"v_lshl_add_u32 v{BB}, v18, 4, v17")
    A(f"v_xor_b32 v{BB+1}, 64, v{BB}")
    for b in (1, 2):
        for i in range(2):
            A(f"v_add_u32 v{AB+2*b+i}, {b*STG}, v{AB+i}")
            A(f"v_add_u32 v{BB+2*b+i}, {b*STG}, v{BB+i}")
    for r in range(MT * NT * 4):
        A(f"v_mov_b32 v{ACC+r}, 0")
    fA = lambda st, m: FRAG + st * (MT + NT) * 4 + m * 4
    fB = lambda st, n: FRAG + st * (MT + NT) * 4 + MT * 4 + n * 4
    accr = lambda m, n: ACC + (m * NT + n) * 4
    def reads(stage, kk):
        b = stage % 3; st = kk
        out = []
        for n in range(NT):
            out.append(f"ds_read_b128 {vr(fB(st,n),4)}, v{BB+2*b+kk} offset:{n*2048}")
        for m in range(MT):
            if isF:
                for h in range(2):
                    out.append(f"ds_read_b64_tr_b16 {vr(fA(st,m)+2*h,2)}, v{AB+2*b+(m&1)} offset:{(32*kk+4*h)*448 + m*32}")
            else:
                out.append(f"ds_read_b128 {vr(fA(st,m),4)}, v{AB+2*b+kk} offset:{m*2048}")
        return out
    def mfmas(st):
        return [f"v_mfma_f32_16x16x32_bf16 {vr(accr(m,n),4)}, {vr(fA(st,m),4)}, {vr(fB(st,n),4)}, {vr(accr(m,n),4)}"
                for m in range(MT) for n in range(NT)]
    next(side)
    stamp(A, 1)
    A("s_barrier")
    stamp(A, 2)
    for r in reads(0, 0): A(r)
    PRE = 3
    for j in range(10):
        A("s_waitcnt lgkmcnt(0)")
        mf = mfmas(0); rd = reads(j, 1)
        for i, m in enumerate(mf):
            A(m)
            if i < len(rd): A(rd[i])
        A("s_waitcnt lgkmcnt(0)")
        mf = mfmas(1)
        if j < 9:
            rd = reads(j + 1, 0)
            for m in mf[:PRE]: A(m)
            if j == 1: A("s_waitcnt vmcnt(0)")
            A("s_barrier")
            for i, m in enumerate(mf[PRE:]):
                if i < len(rd): A(rd[i])
                A(m)
        else:
            for m in mf: A(m)
    stamp(A, 3)
    A("s_barrier")
    stamp(A, 4)
    if isF: k1F_epilogue(A, ACC)
    else: k1Y_epilogue(A, ACC)

def frag_store_plan(ntiles, parity):
    plan = []
    t = 0
    if parity == 1:
        plan.append(("single", [0], 0, 1)); t = 1
    while t + 1 < ntiles:
        plan.append(("pair", [t, t + 1], (t + parity) // 2, 0)); t += 2
    if t < ntiles:
        plan.append(("single", [t], (t + parity) // 2, 0))
    return plan

def k1F_epilogue(A, ACC):
    A("s_lshl_b32 s57, s53, 9")
    A("v_lshlrev_b32 v17, 5, v6")
    A("v_add_u32 v17, s57, v17")
    A(f"ds_read_b128 v[32:35], v17 offset:{K1_STATS}")
    A(f"ds_read_b128 v[36:39], v17 offset:{K1_STATS+16}")
    A("s_mul_i32 s57, s52, 448")
    A("v_lshlrev_b32 v18, 4, v5")
    A("v_add_u32 v18, s57, v18")
    for m in range(7):
        A(f"ds_read_b128 v[{40+4*m}:{43+4*m}], v18 offset:{K1_WS+64*m}")
    A("s_mul_i32 s57, s52, 7")
    A("s_add_u32 s57, s57, s54")
    A("s_and_b32 s64, s57, 1")
    A("s_lshr_b32 s57, s57, 1")
    A("s_mul_i32 s58, s50, 54")
    A("s_add_u32 s57, s57, s58")
    A("s_lshl_b32 s57, s57, 3")
    A("s_lshl_b32 s58, s53, 2")
    A("s_add_u32 s57, s57, s58")
    A("s_lshl_b32 s57, s57, 10")
    A(f"s_add_u32 s65, s57, {WS_HF}")
    A("v_lshlrev_b32 v17, 4, v0")
    A("s_and_b32 s57, s51, s52")
    A("s_and_b32 s57, s57, 1")
    A("s_cmp_eq_u32 s57, 0")
    A(f"s_cselect_b32 s57, 0, {OOB}")
    A("v_add_u32 v19, s57, v17")
    A("s_waitcnt lgkmcnt(0)")
    def conv(m, n, dst):
        a = ACC + (m * 4 + n) * 4
        w = 40 + 4 * m; st = 32 + 2 * n
        for hh in range(2):
            A(f"v_pk_fma_f32 {vr(a+2*hh,2)}, {vr(w+2*hh,2)}, {vr(st,2)}, {vr(a+2*hh,2)} op_sel:[0,0,0] op_sel_hi:[1,0,1] neg_lo:[1,0,0] neg_hi:[1,0,0]")
        for hh in range(2):
            A(f"v_pk_mul_f32 {vr(a+2*hh,2)}, {vr(a+2*hh,2)}, {vr(st,2)} op_sel:[0,1] op_sel_hi:[1,1]")
        for hh in range(2):
            A(f"v_cvt_pk_bf16_f32 v{dst+hh}, v{a+2*hh}, v{a+2*hh+1}")
        for hh in range(2):
            A(f"v_pk_max_i16 v{dst+hh}, v{dst+hh}, 0")
    L1 = A.label("ep1"); L2 = A.label("epx")
    A("s_cmp_lg_u32 s64, 0")
    A(f"s_cbranch_scc1 {L1}")
    for parity in (0, 1):
        if parity == 1: A(f"{L1}:")
        plan = frag_store_plan(7, parity)
        if parity == 1:
            k, tl, ks, _ = plan.pop()
            plan += [("single", [tl[0]], ks, 0), ("single", [tl[1]], ks, 1)]
        cnt = 0
        for kind, tl, ks, half in plan:
            A(f"s_add_u32 s57, s65, {ks*8192}")
            for n in range(4):
                t = 72 + 4 * (cnt % 4); cnt += 1
                if kind == "pair":
                    conv(tl[0], n, t); conv(tl[1], n, t + 2)
                    A(f"buffer_store_dwordx4 v[{t}:{t+3}], v17, s[44:47], s57 offen offset:{1024*n} {FST}")
                else:
                    conv(tl[0], n, t)
                    vo = 19 if tl[0] == 6 else 17
                    A(f"buffer_store_dwordx2 v[{t}:{t+1}], v{vo}, s[44:47], s57 offen offset:{1024*n + 8*half} {FST}")
        if parity == 0: A(f"s_branch {L2}")
    A(f"{L2}:")
    for i in (5, 6, 7): stamp(A, i)

def k1Y_epilogue(A, ACC):
    ST = 32; WSR = 40; P = 208; TB = 60
    A("s_lshl_b32 s57, s53, 9")
    A("v_lshlrev_b32 v17, 5, v6")
    A("v_add_u32 v17, s57, v17")
    A(f"ds_read_b128 v[{ST}:{ST+3}], v17 offset:{K1_STATS}")
    A(f"ds_read_b128 v[{ST+4}:{ST+7}], v17 offset:{K1_STATS+16}")
    A("s_mul_i32 s57, s52, 320")
    A("v_lshlrev_b32 v18, 4, v5")
    A("v_add_u32 v18, s57, v18")
    for m in range(5):
        A(f"ds_read_b128 v[{WSR+4*m}:{WSR+4*m+3}], v18 offset:{K1_WS+64*m}")
    A("s_mul_i32 s57, s52, 11520")
    A("v_mul_u32_u24 v19, 576, v5")
    A("v_add_u32 v19, s57, v19")
    A("v_lshl_add_u32 v20, v6, 3, v19")
    A("s_lshl_b32 s57, s50, 1")
    A("s_add_u32 s64, s57, s53")
    A("s_mul_i32 s57, s51, 80")
    A("s_mul_i32 s58, s52, 40")
    A("s_add_u32 s57, s57, s58")
    A("s_lshl_b32 s68, s57, 3")
    A("v_lshlrev_b32 v21, 4, v5")
    A("v_add_u32 v21, s68, v21")
    A("v_cmp_eq_u32 vcc, 15, v6")
    A(f"v_mov_b32 v18, {OOB}")
    A("v_cndmask_b32 v22, v18, v21, vcc")
    A("s_mul_i32 s69, s64, 5120")
    A(f"s_add_u32 s69, s69, {WS_E}")
    def load_tab1(m, base):
        for q in range(2):
            o = K1Y_T + (8 * m + q) * 288
            b = base + 12 * q
            A(f"ds_read_b128 v[{b}:{b+3}], v19 offset:{o+272}")
            A(f"ds_read_b64 v[{b+4}:{b+5}], v19 offset:{o+8}")
            A(f"ds_read_b64 v[{b+6}:{b+7}], v19 offset:{o+16}")
            A(f"ds_read_b64 v[{b+8}:{b+9}], v19 offset:{o+32}")
            A(f"ds_read_b64 v[{b+10}:{b+11}], v19 offset:{o+64}")
    load_tab1(0, TB)
    TMP = 108
    for m in range(5):
        base = TB + 24 * (m & 1)
        A("s_waitcnt lgkmcnt(0)")
        if m < 4: load_tab1(m + 1, TB + 24 * ((m + 1) & 1))
        for n in range(4):
            for q in range(2):
                u = ACC + (m * 4 + n) * 4 + 2 * q
                w = WSR + 4 * m + 2 * q
                st = ST + 2 * n
                cf = base + 12 * q + 2
                t0 = TMP + 4 * q
                A(f"v_pk_fma_f32 {vr(t0,2)}, {vr(w,2)}, {vr(st,2)}, {vr(u,2)} op_sel:[0,0,0] op_sel_hi:[1,0,1] neg_lo:[1,0,0] neg_hi:[1,0,0]")
                A(f"v_pk_mul_f32 {vr(t0+2,2)}, {vr(cf,2)}, {vr(st,2)} op_sel:[0,1] op_sel_hi:[1,1]")
                cmul(A, u, t0 + 2, t0)
        for n in range(1, 4):
            for q in range(2):
                a = base + 12 * q
                e = P + 4 * m + 2 * q
                t0 = TMP + 4 * q
                prev = (ACC + (m * 4) * 4 + 2 * q) if n == 1 else (t0 if n == 3 else t0 + 2)
                dst = e if n == 3 else (t0 + 2 if n == 1 else t0)
                u = ACC + (m * 4 + n) * 4 + 2 * q
                cmul_add(A, dst, a, prev, u)
        for ki, k in enumerate((1, 2, 4, 8)):
            for q in range(2):
                e = P + 4 * m + 2 * q
                t0 = TMP + 4 * q
                A(f"v_mov_b32_dpp v{t0}, v{e} row_shr:{k} row_mask:0xf bank_mask:0xf bound_ctrl:0")
                A(f"v_mov_b32_dpp v{t0+1}, v{e+1} row_shr:{k} row_mask:0xf bank_mask:0xf bound_ctrl:0")
            for q in range(2):
                e = P + 4 * m + 2 * q
                t0 = TMP + 4 * q
                cmul_add(A, e, base + 12 * q + 4 + 2 * ki, t0, e)
        pb = TMP + 8 + 4 * (m & 1)
        for r in range(4):
            A(f"v_min_u32 v{pb+r}, -2, v{P+4*m+r}")
        A(f"buffer_store_dwordx4 v[{pb}:{pb+3}], v22, s[44:47], s69 offen offset:{64*m} sc1")
    stamp(A, 5)
    A("v_sub_u32 v23, s64, v6")
    A("v_subrev_u32 v24, 1, v23")
    A("v_subrev_u32 v25, 17, v23")
    A("v_cmp_le_i32 vcc, 0, v24")
    A("v_mul_u32_u24 v24, 5120, v24")
    A("v_add_u32 v24, v24, v21")
    A("v_cndmask_b32 v24, v18, v24, vcc")
    A("v_cmp_le_i32 vcc, 0, v25")
    A("v_mul_u32_u24 v25, 5120, v25")
    A("v_add_u32 v25, v25, v21")
    A("v_cndmask_b32 v25, v18, v25, vcc")
    A(f"s_mov_b32 s69, {WS_E}")
    EN = 32; EF = 52; TB2 = 72
    def load_tab2(m, base):
        for q in range(2):
            o = K1Y_T + (8 * m + q) * 288
            b = base + 8 * q
            A(f"ds_read_b64 v[{b}:{b+1}], v20 offset:{o+128}")
            A(f"ds_read_b64 v[{b+2}:{b+3}], v19 offset:{o+256}")
            A(f"ds_read_b64 v[{b+4}:{b+5}], v20 offset:{o}")
            A(f"ds_read_b64 v[{b+6}:{b+7}], v19 offset:{o+272}")
    load_tab2(0, TB2)
    A("s_mul_i32 s57, s51, 5")
    A("s_lshl_b32 s58, s52, 1")
    A("s_add_u32 s57, s57, s58")
    A("s_mul_i32 s58, s50, 40")
    A("s_add_u32 s57, s57, s58")
    A("s_lshl_b32 s57, s57, 3")
    A("s_lshl_b32 s58, s53, 2")
    A("s_add_u32 s57, s57, s58")
    A("s_lshl_b32 s57, s57, 10")
    A(f"s_add_u32 s65, s57, {WS_H1}")
    A("v_lshlrev_b32 v27, 4, v0")
    Lp = A.label("lb"); Lx = A.label("lbx")
    A("s_mov_b32 s58, 100000")
    A(f"{Lp}:")
    for m in range(5):
        A(f"buffer_load_dwordx4 v[{EN+4*m}:{EN+4*m+3}], v24, s[44:47], s69 offen offset:{64*m} sc1")
        A(f"buffer_load_dwordx4 v[{EF+4*m}:{EF+4*m+3}], v25, s[44:47], s69 offen offset:{64*m} sc1")
    A("s_waitcnt vmcnt(0)")
    A(f"v_max3_u32 v26, v{EN}, v{EN+1}, v{EN+2}")
    for r in range(3, 39, 2):
        A(f"v_max3_u32 v26, v26, v{EN+r}, v{EN+r+1}")
    A(f"v_max_u32 v26, v26, v{EN+39}")
    A("v_cmp_eq_u32 vcc, -1, v26")
    A("s_cmp_eq_u64 vcc, 0")
    A(f"s_cbranch_scc1 {Lx}")
    A("s_sleep 1")
    A("s_sub_u32 s58, s58, 1")
    A("s_cmp_lg_u32 s58, 0")
    A(f"s_cbranch_scc1 {Lp}")
    A(f"{Lx}:")
    stamp(A, 6)
    PK = 228
    for m in range(5):
        base = TB2 + 16 * (m & 1)
        A("s_waitcnt lgkmcnt(0)")
        if m < 4: load_tab2(m + 1, TB2 + 16 * ((m + 1) & 1))
        for q in range(2):
            cmul_add(A, EN + 4 * m + 2 * q, base + 8 * q + 2, EF + 4 * m + 2 * q, EN + 4 * m + 2 * q)
        for q in range(2):
            cmul(A, EF + 4 * m + 2 * q, base + 8 * q, EN + 4 * m + 2 * q)
        for k in (8, 4, 2, 1):
            for r in range(4):
                x = EF + 4 * m + r
                A(f"v_add_f32_dpp v{x}, v{x}, v{x} row_ror:{k} row_mask:0xf bank_mask:0xf")
        for q in range(2):
            e = P + 4 * m + 2 * q
            t0 = TMP + 4 * q
            A(f"v_mov_b32_dpp v{t0}, v{e} row_shr:1 row_mask:0xf bank_mask:0xf bound_ctrl:0")
            A(f"v_mov_b32_dpp v{t0+1}, v{e+1} row_shr:1 row_mask:0xf bank_mask:0xf bound_ctrl:0")
        for q in range(2):
            t0 = TMP + 4 * q
            cmul_add(A, t0, base + 8 * q + 4, EF + 4 * m + 2 * q, t0)
        for n in range(4):
            for q in range(2):
                u = ACC + (m * 4 + n) * 4 + 2 * q
                prev = (TMP + 4 * q) if n == 0 else u - 4
                cmul_add(A, u, base + 8 * q + 6, prev, u)
    stamp(A, 7)
    L1 = A.label("ey1"); L2 = A.label("eyx")
    A("s_cmp_lg_u32 s52, 0")
    A(f"s_cbranch_scc1 {L1}")
    for parity in (0, 1):
        if parity == 1: A(f"{L1}:")
        cnt = 0
        for kind, tl, ks, half in frag_store_plan(5, parity):
            A(f"s_add_u32 s57, s65, {ks*8192}")
            for n in range(4):
                t = 32 + 4 * (cnt % 8); cnt += 1
                for x, m in enumerate(tl):
                    u = ACC + (m * 4 + n) * 4
                    A(f"v_cvt_pk_bf16_f32 v{t+2*x}, v{u}, v{u+1}")
                    A(f"v_cvt_pk_bf16_f32 v{t+2*x+1}, v{u+2}, v{u+3}")
                if kind == "pair":
                    A(f"buffer_store_dwordx4 v[{t}:{t+3}], v27, s[44:47], s57 offen offset:{1024*n} {YST}")
                else:
                    A(f"buffer_store_dwordx2 v[{t}:{t+1}], v27, s[44:47], s57 offen offset:{1024*n + 8*half} {YST}")
        if parity == 0: A(f"s_branch {L2}")
    A(f"{L2}:")

K2_NR = 8
K2_BOFF = K2_NR * 10240
K2_LDS = K2_BOFF + K2_NR * 8192
K2_NST = 47

def kernel2(A):
    A("k2_kernel:")
    A("s_cmp_ge_u32 s2, 256")
    A("s_cbranch_scc1 k2_end")
    stamp(A, 0)
    A("s_load_dwordx2 s[32:33], s[0:1], 112")
    A("s_load_dwordx2 s[4:5], s[0:1], 0")
    A("s_load_dwordx2 s[20:21], s[0:1], 64")
    A("s_load_dwordx2 s[28:29], s[0:1], 96")
    A("v_lshrrev_b32 v2, 6, v0")
    A("v_and_b32 v0, 63, v0")
    A("v_readfirstlane_b32 s34, v2")
    A("s_lshr_b32 s35, s2, 3")
    A("s_and_b32 s57, s2, 3")
    A("s_bfe_u32 s58, s2, 0x10002")
    A("s_lshr_b32 s59, s35, 2")
    A("s_lshl_b32 s50, s57, 2")
    A("s_lshr_b32 s57, s59, 1")
    A("s_add_u32 s50, s50, s57")
    A("s_and_b32 s49, s59, 1")
    A("s_lshl_b32 s51, s58, 2")
    A("s_and_b32 s57, s35, 3")
    A("s_add_u32 s51, s51, s57")
    A("s_and_b32 s48, s34, 3")
    A("s_lshr_b32 s52, s48, 1")
    A("s_and_b32 s53, s48, 1")
    A("v_lshlrev_b32 v10, 4, v0")
    A("s_cmp_lt_u32 s34, 4")
    A("s_cbranch_scc1 k2_comp")
    A("s_mul_i32 s57, s53, 5120")
    A(f"s_mul_i32 s62, s51, {20*10240}")
    A("s_add_u32 s62, s62, s57")
    A(f"s_add_u32 s62, s62, {WS_CP}")
    A(f"s_mul_i32 s63, s51, {27*10240}")
    A("s_add_u32 s63, s63, s57")
    A(f"s_add_u32 s63, s63, {WS_W2P}")
    A("s_lshl_b32 s58, s53, 13")
    A("s_lshl_b32 s59, s49, 12")
    A("s_add_u32 s58, s58, s59")
    A(f"s_mul_i32 s64, s50, {40*8192}")
    A("s_add_u32 s64, s64, s58")
    A(f"s_add_u32 s64, s64, {WS_H1}")
    A(f"s_mul_i32 s66, s50, {54*8192}")
    A("s_add_u32 s66, s66, s58")
    A(f"s_add_u32 s66, s66, {WS_HF}")
    A("s_lshl_b32 s59, s53, 12")
    A(f"s_add_u32 s59, s59, {K2_BOFF}")
    A("s_cmp_lg_u32 s52, 0")
    A("s_cselect_b32 s62, s64, s62")
    A("s_cselect_b32 s63, s66, s63")
    A("s_cselect_b32 s58, s59, s57")
    A("s_mov_b32 s57, 10240")
    A("s_cselect_b32 s59, 16384, s57")
    A("s_cselect_b32 s60, 8192, s57")
    A("s_waitcnt lgkmcnt(0)")
    srd(A, 44, 32, WS_SIZE)
    for st in range(2):
        if st == 1:
            A("s_add_u32 s64, s62, s59")
            A("s_add_u32 s66, s58, s60")
        src = 62 if st == 0 else 64; lds = 58 if st == 0 else 66
        for q in range(4):
            A(f"s_add_u32 m0, s{lds}, {1024*q}")
            A(f"s_add_u32 s65, s{src}, {1024*q}")
            A("buffer_load_dwordx4 v10, s[44:47], s65 offen lds")
        L = A.label("sk3")
        A("s_cmp_lg_u32 s52, 0")
        A(f"s_cbranch_scc1 {L}")
        A(f"s_add_u32 m0, s{lds}, 4096")
        A(f"s_add_u32 s65, s{src}, 4096")
        A("buffer_load_dwordx4 v10, s[44:47], s65 offen lds")
        A(f"{L}:")
    A("s_cmp_eq_u32 s52, 0")
    A("s_cbranch_scc1 k2_lA")
    k2_loader(A, True)
    stamps_flush(A, 6, 1)
    A("s_branch k2_end")
    A("k2_lA:")
    k2_loader(A, False)
    stamps_flush(A, 6, 1)
    A("s_branch k2_end")
    A("k2_comp:")
    A("v_lshrrev_b32 v5, 4, v0")
    A("v_and_b32 v6, 15, v0")
    A("s_waitcnt lgkmcnt(0)")
    srd(A, 44, 32, WS_SIZE)
    srd(A, 72, 4, T * D * 2)
    srd(A, 76, 28, T * D * 4)
    k2_compute(A)
    stamps_flush(A, 6, 1)
    A("k2_end:")
    A("s_endpgm")

def k2_loader(A, isB):
    vm = VM(A)
    nst = K2_NST
    nI = 4 if isB else 5
    sstr = 16384 if isB else 10240
    lstr = 8192 if isB else 10240
    vm.ops = ["d0"] * nI + ["d1"] * nI
    def dma(st):
        bo = (st % K2_NR) * lstr
        src, so = (62, st * sstr) if st < 20 else (63, (st - 20) * sstr)
        for q in range(nI):
            A(f"s_add_u32 m0, s58, {bo + 1024*q}")
            A(f"s_add_u32 s65, s{src}, {so + 1024*q}")
            vm("buffer_load_dwordx4 v10, s[44:47], s65 offen lds", f"d{st}")
    vm.wait("d0")
    stamp(A, 1)
    A("s_barrier")
    dma(2)
    vm.wait("d1")
    A("s_barrier")
    for st in range(3, K2_NR): dma(st)
    for j in range(nst - 2):
        vm.wait(f"d{j+2}")
        A("s_barrier")
        if j + K2_NR < nst: dma(j + K2_NR)
    for i in (2, 3, 4, 5): stamp(A, i)

def k2_compute(A):
    FRAG = 112
    ACCY = 28; ACCF = 48; XR = 68; SR = 78; DR = 82; PR = 92
    nst = K2_NST
    A("s_lshl_b32 s57, s50, 7")
    A("s_lshl_b32 s58, s49, 6")
    A("s_add_u32 s57, s57, s58")
    A("s_add_u32 s57, s57, s48")
    A("v_lshl_add_u32 v17, v6, 2, s57")
    A("v_mul_u32_u24 v18, 1280, v17")
    A("v_lshl_add_u32 v18, v5, 3, v18")
    A("s_mul_i32 s58, s51, 160")
    for m in range(5):
        A(f"buffer_load_dwordx2 v[{XR+2*m}:{XR+2*m+1}], v18, s[72:75], s58 offen offset:{32*m}")
    A("v_lshlrev_b32 v25, 4, v17")
    A(f"s_mov_b32 s62, {WS_STATS}")
    A(f"buffer_load_dwordx4 v[{SR}:{SR+3}], v25, s[44:47], s62 offen")
    A("v_lshlrev_b32 v26, 3, v5")
    A("v_add_u32 v26, s58, v26")
    for m in range(5):
        A(f"global_load_dwordx2 v[{DR+2*m}:{DR+2*m+1}], v26, s[20:21] offset:{32*m}")
    A("s_lshl_b32 s57, s48, 10")
    A(f"s_add_u32 s57, s57, {K2_BOFF}")
    A("v_add_u32 v20, s57, v10")
    A(f"v_add_u32 v21, {6*10240}, v10")
    for r in range(40):
        A(f"v_mov_b32 v{ACCY+r}, 0")
    plist = []
    P = plist.append
    mm, rs, sd = SR, SR + 1, SR + 2
    for m in range(5):
        x = XR + 2 * m; t = 2; du = 12; p = PR + 4 * m
        for hh in range(2):
            P(f"v_lshlrev_b32 v{t+2*hh}, 16, v{x+hh}")
            P(f"v_and_b32 v{t+2*hh+1}, 0xffff0000, v{x+hh}")
        for r in range(4): P(f"v_sub_f32 v{t+r}, v{t+r}, v{mm}")
        for hh in range(2):
            P(f"v_cvt_pk_bf16_f32 v{t+4+hh}, v{t+2*hh}, v{t+2*hh+1}")
        for hh in range(2):
            P(f"v_lshlrev_b32 v{t+2*hh}, 16, v{t+4+hh}")
            P(f"v_and_b32 v{t+2*hh+1}, 0xffff0000, v{t+4+hh}")
        for r in range(4): P(f"v_mul_f32 v{t+4+r}, v{t+r}, v{rs}")
        for r in range(4): P(f"v_fma_f32 v{t+r}, -v{t+4+r}, v{sd}, v{t+r}")
        for r in range(4): P(f"v_fma_f32 v{t+4+r}, v{t+r}, v{rs}, v{t+4+r}")
        for hh in range(2):
            P(f"v_cvt_pk_bf16_f32 v{t+hh}, v{t+4+2*hh}, v{t+4+2*hh+1}")
        for hh in range(2):
            P(f"v_lshlrev_b32 v{t+4+2*hh}, 16, v{t+hh}")
            P(f"v_and_b32 v{t+4+2*hh+1}, 0xffff0000, v{t+hh}")
        for hh in range(2):
            P(f"v_lshlrev_b32 v{du+2*hh}, 16, v{DR+2*m+hh}")
            P(f"v_and_b32 v{du+2*hh+1}, 0xffff0000, v{DR+2*m+hh}")
        for r in range(4): P(f"v_mul_f32 v{t+4+r}, v{t+4+r}, v{du+r}")
        for hh in range(2):
            P(f"v_cvt_pk_bf16_f32 v{t+hh}, v{t+4+2*hh}, v{t+4+2*hh+1}")
        for hh in range(2):
            P(f"v_lshlrev_b32 v{p+2*hh}, 16, v{t+hh}")
            P(f"v_and_b32 v{p+2*hh+1}, 0xffff0000, v{t+hh}")
    XU = ACCY
    qlist = []
    Q = qlist.append
    for m in range(5):
        for hh in range(2):
            Q(f"v_pk_add_f32 {vr(PR+4*m+2*hh,2)}, {vr(ACCY+4*m+2*hh,2)}, {vr(PR+4*m+2*hh,2)}")
        for hh in range(2):
            Q(f"v_lshlrev_b32 v{XU+4*m+2*hh}, 16, v{XR+2*m+hh}")
            Q(f"v_and_b32 v{XU+4*m+2*hh+1}, 0xffff0000, v{XR+2*m+hh}")
    fset = lambda stage, kk: FRAG + ((stage % 3) * 2 + kk) * 24
    def reads(stage, kk):
        sl = stage % K2_NR
        ra = 21 if sl >= 6 else 10
        oa = (sl % 6) * 10240
        f = fset(stage, kk)
        out = [f"ds_read_b128 {vr(f+20,4)}, v20 offset:{sl*8192 + kk*4096}"]
        out += [f"ds_read_b128 {vr(f+4*m,4)}, v{ra} offset:{oa + kk*5120 + m*1024}" for m in range(5)]
        return out
    def mfmas(stage, kk):
        f = fset(stage, kk); acc = ACCY if stage < 20 else ACCF
        return [f"v_mfma_f32_16x16x32_bf16 {vr(acc+4*m,4)}, {vr(f+4*m,4)}, {vr(f+20,4)}, {vr(acc+4*m,4)}" for m in range(5)]
    stamp(A, 1)
    A("s_barrier")
    stamp(A, 2)
    for kk in range(2):
        for r in reads(0, kk): A(r)
    A("s_barrier")
    for kk in range(2):
        for r in reads(1, kk): A(r)
    for j in range(nst):
        A(f"s_waitcnt lgkmcnt({12 if j < nst - 1 else 0})")
        mf = mfmas(j, 0) + mfmas(j, 1)
        if j < nst - 2:
            for m in mf[:2]: A(m)
            if j == 4: A("s_waitcnt vmcnt(0)")
            A("s_barrier")
            rd = reads(j + 2, 0) + reads(j + 2, 1)
            rest = mf[2:]
            for i, m in enumerate(rest):
                for r in rd[(i * 12) // 8: ((i + 1) * 12) // 8]: A(r)
                A(m)
                if j >= 4:
                    for _ in range(2):
                        if plist: A(plist.pop(0))
                        elif j >= 22 and qlist: A(qlist.pop(0))
        else:
            for m in mf: A(m)
    assert not plist and not qlist
    stamp(A, 3)
    A("v_lshlrev_b32 v18, 1, v18")
    A("s_lshl_b32 s58, s58, 1")
    for m in range(5):
        a = ACCF + 4 * m
        t = 112 + 8 * m
        for hh in range(2):
            A(f"v_cvt_pk_bf16_f32 v{t+hh}, v{a+2*hh}, v{a+2*hh+1}")
        for hh in range(2):
            A(f"v_lshlrev_b32 v{a+2*hh}, 16, v{t+hh}")
            A(f"v_and_b32 v{a+2*hh+1}, 0xffff0000, v{t+hh}")
        for r in range(4): A(f"v_mul_f32 v{t+r}, {hexf(-LOG2E)}, v{a+r}")
        for r in range(4): A(f"v_exp_f32 v{t+r}, v{t+r}")
        for r in range(4): A(f"v_add_f32 v{t+r}, 1.0, v{t+r}")
        for r in range(4): A(f"v_rcp_f32 v{t+r}, v{t+r}")
        for r in range(4): A(f"v_mul_f32 v{t+r}, v{t+r}, v{a+r}")
        for hh in range(2):
            A(f"v_cvt_pk_bf16_f32 v{t+4+hh}, v{t+2*hh}, v{t+2*hh+1}")
        for hh in range(2):
            A(f"v_lshlrev_b32 v{a+2*hh}, 16, v{t+4+hh}")
            A(f"v_and_b32 v{a+2*hh+1}, 0xffff0000, v{t+4+hh}")
        for r in range(4): A(f"v_mul_f32 v{a+r}, v{PR+4*m+r}, v{a+r}")
        for r in range(4): A(f"v_add_f32 v{t+r}, v{XU+4*m+r}, v{a+r}")
        A(f"buffer_store_dwordx4 v[{t}:{t+3}], v18, s[76:79], s58 offen offset:{64*m} {OST}")
    stamp(A, 4); stamp(A, 5)

HEADER = open("recurrent_scan__ssm_conv_s5__dense_activation_relu__prompt.s.ref").read().split("; @launch")[0]

def kd(name, vgpr=256):
    return f""".p2align 6
.amdhsa_kernel {name}
  .amdhsa_next_free_vgpr {vgpr}
  .amdhsa_next_free_sgpr 102
  .amdhsa_accum_offset {vgpr}
  .amdhsa_group_segment_fixed_size 0
  .amdhsa_kernarg_size 120
  .amdhsa_user_sgpr_count 2
  .amdhsa_user_sgpr_kernarg_segment_ptr 1
  .amdhsa_system_sgpr_workgroup_id_x 1
.end_amdhsa_kernel
"""

def build():
    out = HEADER
    out += f"; @launch kernel=k1_kernel grid=(256,1,1) block=(512,1,1) lds={K1_LDS}\n"
    out += f"; @launch kernel=k2_kernel grid=(256,1,1) block=(512,1,1) lds={K2_LDS}\n"
    out += '.amdgcn_target "amdgcn-amd-amdhsa--gfx950"\n.text\n'
    for name, fn in (("k1_kernel", kernel1), ("k2_kernel", kernel2)):
        A = Asm(); A.nlabel = 0 if name == "k1_kernel" else 1000
        fn(A)
        lines = fix_hazards(A.lines, verbose=True)
        out += f".globl {name}\n.p2align 8\n.type {name},@function\n"
        out += "\n".join(("    " + l if not l.endswith(":") else l) for l in lines) + "\n"
    out += '.section .rodata,"a"\n' + kd("k1_kernel") + kd("k2_kernel")
    return out

if __name__ == "__main__":
    if len(sys.argv) > 2: STAMPS = True; DBG = sys.argv[2]
    dst = sys.argv[1] if len(sys.argv) > 1 else "recurrent_scan__ssm_conv_s5__dense_activation_relu__prompt.s"
    open(dst, "w").write(build())
    print("wrote", dst)
```

```python
import sys, struct
from asmlib import *

T, D, DFF = 2048, 640, 1728
WS_STATS = 0x000000
WS_WSP   = 0x010000
WS_E     = 0x050000
WS_F2    = 0x080000
WS_F1    = 0x090000
WS_CP    = 0x100000
WS_W2P   = 0x300000
WS_H1    = 0x600000
WS_HF    = 0xC00000
WS_S     = 0x1400000
WS_TS    = 0x1A00000
WS_SIZE  = 0x1B00000
OOB = 0x7ffffff0

STAMPS = False
DBG = "nopf"
def stamp(A, i):
    if STAMPS and i == 0:
        A("s_memrealtime s[96:97]")
    if STAMPS:
        A(f"s_memtime s[{80+2*i}:{81+2*i}]")
def stamps_flush(A, n, kidx, waitvm=True):
    if not STAMPS: return
    A("s_waitcnt lgkmcnt(0) vmcnt(0)" if waitvm else "s_waitcnt lgkmcnt(0)")
    A("s_memtime s[98:99]")
    A("s_memrealtime s[100:101]")
    A("s_waitcnt lgkmcnt(0)")
    A("s_lshl_b32 s57, s2, 3")
    A("s_add_u32 s57, s57, s34")
    A("s_lshl_b32 s57, s57, 6")
    A(f"s_add_u32 s57, s57, {WS_TS + kidx*131072}")
    A("v_mov_b32 v2, 0")
    for i in range(n):
        A(f"v_mov_b32 v3, s{80+2*i}")
        A(f"buffer_store_dword v3, v2, s[44:47], s57 offen offset:{4*i}")
    A(f"v_mov_b32 v3, s98")
    A(f"buffer_store_dword v3, v2, s[44:47], s57 offen offset:{4*n}")
    A(f"v_mov_b32 v3, s96")
    A(f"buffer_store_dword v3, v2, s[44:47], s57 offen offset:56")
    A(f"v_mov_b32 v3, s100")
    A(f"buffer_store_dword v3, v2, s[44:47], s57 offen offset:60")

def f2u(x): return struct.unpack("<I", struct.pack("<f", x))[0]
def hexf(x): return f"0x{f2u(x):08x}"
LOG2E = 1.4426950408889634
INV2PI = 0.15915494309189535

def divc(A, vq, vsrc, d, maxv):
    for sh in (16, 17, 18, 19, 20):
        mul = ((1 << sh) + d - 1) // d
        if all((c * mul) >> sh == c // d for c in range(maxv)) and maxv * mul < (1 << 32) and mul < (1 << 24):
            A(f"v_mul_u32_u24 {vr(vq)}, {mul}, {vr(vsrc)}")
            A(f"v_lshrrev_b32 {vr(vq)}, {sh}, {vr(vq)}")
            return
    raise Exception("no magic")

def srd(A, s, base, size):
    A(f"s_mov_b32 s{s}, s{base}")
    A(f"s_and_b32 s{s+1}, s{base+1}, 0xffff")
    A(f"s_mov_b32 s{s+2}, {size}")
    A(f"s_mov_b32 s{s+3}, 0x20000")

def cmul_add(A, dst, w, h, u):
    A(f"v_pk_fma_f32 {vr(dst,2)}, {vr(w,2)}, {vr(h,2)}, {vr(u,2)} op_sel:[0,0,0] op_sel_hi:[0,1,1]")
    A(f"v_pk_fma_f32 {vr(dst,2)}, {vr(w,2)}, {vr(h,2)}, {vr(dst,2)} op_sel:[1,1,0] op_sel_hi:[1,0,1] neg_lo:[1,0,0]")
def cmul(A, dst, w, h):
    A(f"v_pk_mul_f32 {vr(dst,2)}, {vr(w,2)}, {vr(h,2)} op_sel:[0,0] op_sel_hi:[0,1]")
    A(f"v_pk_fma_f32 {vr(dst,2)}, {vr(w,2)}, {vr(h,2)}, {vr(dst,2)} op_sel:[1,1,0] op_sel_hi:[1,0,1] neg_lo:[1,0,0]")

def wave_sum(A, regs):
    for mod in ("row_shr:1 row_mask:0xf bank_mask:0xf bound_ctrl:0", "row_shr:2 row_mask:0xf bank_mask:0xf bound_ctrl:0",
                "row_shr:4 row_mask:0xf bank_mask:0xf bound_ctrl:0", "row_shr:8 row_mask:0xf bank_mask:0xf bound_ctrl:0",
                "row_bcast:15 row_mask:0xa bank_mask:0xf", "row_bcast:31 row_mask:0xc bank_mask:0xf"):
        for r in regs:
            A(f"v_add_f32_dpp {vr(r)}, {vr(r)}, {vr(r)} {mod}")

def bf16r(A, r):
    A(f"v_cvt_pk_bf16_f32 {vr(r)}, {vr(r)}, {vr(r)}")
    A(f"v_lshlrev_b32 {vr(r)}, 16, {vr(r)}")

class VM:
    def __init__(s, A): s.A = A; s.ops = []
    def __call__(s, text, tag): s.A(text); s.ops.append(tag)
    def wait(s, tag, extra=""):
        idx = max([i for i, t in enumerate(s.ops) if t == tag], default=None)
        if idx is None:
            if extra: s.A(f"s_waitcnt {extra}")
            return
        n = len(s.ops) - 1 - idx
        assert n <= 63, n
        s.A(f"s_waitcnt vmcnt({n}) {extra}".strip())
        s.ops = s.ops[idx + 1:]
    def waitall(s, extra=""):
        s.A(f"s_waitcnt vmcnt(0) {extra}".strip()); s.ops = []

def common_ids(A):
    A("v_lshrrev_b32 v2, 6, v0")
    A("v_and_b32 v1, 255, v0")
    A("v_and_b32 v0, 63, v0")
    A("v_readfirstlane_b32 s34, v2")
    A("s_lshr_b32 s35, s2, 3")
    A("s_and_b32 s49, s35, 1")
    A("s_and_b32 s57, s2, 3")
    A("s_lshl_b32 s57, s57, 2")
    A("s_lshr_b32 s50, s35, 3")
    A("s_add_u32 s50, s50, s57")
    A("s_bfe_u32 s51, s35, 0x20001")
    A("s_and_b32 s57, s2, 4")
    A("s_add_u32 s51, s51, s57")
    A("s_and_b32 s48, s34, 3")
    A("s_lshr_b32 s52, s48, 1")
    A("s_and_b32 s53, s48, 1")
    A("v_lshrrev_b32 v3, 3, v0")
    A("v_and_b32 v4, 7, v0")
    A("v_lshrrev_b32 v5, 4, v0")
    A("v_and_b32 v6, 15, v0")

def poll(A, load, stmp, scount, vtmp, target, iters=200000):
    L = A.label("poll"); Lx = A.label("pollx")
    A(f"s_mov_b32 s{scount}, {iters}")
    A(f"{L}:")
    A(load)
    A("s_waitcnt vmcnt(0)")
    A(f"v_readfirstlane_b32 s{stmp}, {vr(vtmp)}")
    A(f"s_cmp_eq_u32 s{stmp}, {target}")
    A(f"s_cbranch_scc1 {Lx}")
    A("s_sleep 1")
    A(f"s_sub_u32 s{scount}, s{scount}, 1")
    A(f"s_cmp_lg_u32 s{scount}, 0")
    A(f"s_cbranch_scc1 {L}")
    A(f"{Lx}:")

K1F_STAGE = 28672 + 16384
K1Y_STAGE = 20480 + 16384
K1_STATS = 0
K1_WS = 1024
K1_NONCE = 1984
K1F_RED = 2048
K1F_BUF = 9216
K1Y_T = 2048
K1Y_BUF = 25088
K1Y_SCR = K1Y_BUF + 3 * K1Y_STAGE
K1_LDS = 156160

def kernel1(A):
    A("k1_kernel:")
    A("s_cmp_ge_u32 s2, 256")
    A("s_cbranch_scc1 k1_end")
    stamp(A, 0)
    A("s_load_dwordx16 s[4:19], s[0:1], 0")
    A("s_load_dwordx8 s[20:27], s[0:1], 64")
    A("s_load_dwordx4 s[28:31], s[0:1], 96")
    A("s_load_dwordx2 s[32:33], s[0:1], 112")
    common_ids(A)
    A("s_lshr_b32 s57, s51, 1")
    A("s_mul_i32 s54, s57, 27")
    A("s_and_b32 s57, s51, 1")
    A("s_mul_i32 s57, s57, 14")
    A("s_add_u32 s54, s54, s57")
    A("s_waitcnt lgkmcnt(0)")
    srd(A, 36, 4, T * D * 2)
    srd(A, 44, 32, WS_SIZE)
    A("s_cmp_ge_u32 s34, 4")
    A("s_cbranch_scc1 k1_ld")
    A("s_cmp_lg_u32 s49, 0")
    A("s_cbranch_scc1 k1_cF")
    k1_compute(A, False)
    A("s_branch p2_comp")
    A("k1_cF:")
    k1_compute(A, True)
    A("p2_comp:")
    stamps_flush(A, 8, 0, False)
    p2_compute(A)
    stamps_flush(A, 6, 1)
    A("s_branch k1_end")
    A("k1_ld:")
    A("s_cmp_lg_u32 s49, 0")
    A("s_cbranch_scc1 k1_lF")
    k1_loader(A, False)
    A("s_branch p2_ld")
    A("k1_lF:")
    k1_loader(A, True)
    A("p2_ld:")
    stamps_flush(A, 8, 0, False)
    p2_loaders(A)
    A("k1_end:")
    A("s_endpgm")

def stats_compute(A, vm):
    for r in range(2):
        for i in range(5):
            A(f"v_lshlrev_b32 v{40+10*r+2*i}, 16, v{20+5*r+i}")
            A(f"v_and_b32 v{41+10*r+2*i}, 0xffff0000, v{20+5*r+i}")
    for r in range(2):
        b = 40 + 10 * r
        A(f"v_add_f32 v{60+r}, v{b}, v{b+1}")
        for i in range(2, 10):
            A(f"v_add_f32 v{60+r}, v{60+r}, v{b+i}")
    wave_sum(A, [60, 61])
    A("v_readlane_b32 s57, v60, 63")
    A("v_readlane_b32 s58, v61, 63")
    A(f"v_mov_b32 v62, {hexf(1.0/640)}")
    A("v_mul_f32 v60, s57, v62")
    A("v_mul_f32 v61, s58, v62")
    for r in range(2):
        b = 40 + 10 * r
        for i in range(10):
            A(f"v_sub_f32 v{b+i}, v{b+i}, v{60+r}")
    for r in range(2):
        b = 40 + 10 * r
        A(f"v_mul_f32 v{64+r}, v{b}, v{b}")
        for i in range(1, 10):
            A(f"v_fmac_f32 v{64+r}, v{b+i}, v{b+i}")
    wave_sum(A, [64, 65])
    A("v_readlane_b32 s57, v64, 63")
    A("v_readlane_b32 s58, v65, 63")
    A("v_mul_f32 v64, s57, v62")
    A("v_mul_f32 v65, s58, v62")
    A("v_and_b32 v66, 1, v0")
    A("v_cmp_eq_u32 vcc, 1, v66")
    A("v_cndmask_b32 v68, v60, v61, vcc")
    A("v_cndmask_b32 v70, v64, v65, vcc")
    bf16r(A, 68)
    bf16r(A, 70)
    A(f"v_add_f32 v70, {hexf(1e-5)}, v70")
    bf16r(A, 70)
    A("v_sqrt_f32 v70, v70")
    bf16r(A, 70)
    A("v_rcp_f32 v69, v70")
    A("v_fma_f32 v71, -v70, v69, 1.0")
    A("v_fma_f32 v69, v71, v69, v69")
    A("v_mov_b32 v71, 0")
    A("v_lshlrev_b32 v66, 4, v0")
    A(f"v_mov_b32 v67, {OOB}")
    A("v_cmp_gt_u32 vcc, 2, v0")
    A("v_cndmask_b32 v66, v67, v66, vcc")
    A("s_lshl_b32 s57, s63, 4")
    A(f"s_add_u32 s57, s57, {WS_STATS}")
    vm("buffer_store_dwordx4 v[68:71], v66, s[44:47], s57 offen sc1", "st")

def k1_loader(A, isF):
    vm = VM(A)
    STG = K1F_STAGE if isF else K1Y_STAGE
    BUF = K1F_BUF if isF else K1Y_BUF
    ASZ = 28672 if isF else 20480
    if not isF:
        L = A.label("nononce")
        A("s_or_b32 s57, s2, s48")
        A("s_cmp_lg_u32 s57, 0")
        A(f"s_cbranch_scc1 {L}")
        A("s_memrealtime s[70:71]")
        A("v_mov_b32 v18, 0")
        A("s_waitcnt lgkmcnt(0)")
        A("s_or_b32 s70, s70, 1")
        A("v_mov_b32 v20, s70")
        A("v_mov_b32 v21, s71")
        A("s_mov_b64 exec, 1")
        A("global_store_dwordx2 v18, v[20:21], s[30:31] sc1")
        A("s_mov_b64 exec, -1")
        A(f"{L}:")
    A("v_xor_b32 v17, v4, v3")
    A("v_mul_u32_u24 v19, 5120, v3")
    A("v_lshl_add_u32 v247, v17, 4, v19")
    A("s_lshl_b32 s60, s50, 7")
    A("s_lshl_b32 s59, s52, 6")
    A("s_add_u32 s60, s60, s59")
    A("s_lshl_b32 s59, s53, 1")
    A("s_add_u32 s60, s60, s59")
    A("s_mul_i32 s60, s60, 1280")
    A("s_lshl_b32 s62, s48, 12")
    A(f"s_add_u32 s62, s62, {ASZ+BUF}")
    def dmaX(st):
        bo = (st % 3) * STG
        for q in range(4):
            A(f"s_add_u32 m0, s62, {bo + 1024*q}")
            A(f"s_add_u32 s65, s60, {st*128 + (32*(q&1) + (q>>1))*1280}")
            vm(f"buffer_load_dwordx4 v247, s[36:39], s65 offen lds", f"d{st}")
    dmaX(0)
    if isF:
        srd(A, 40, 24, D * DFF * 2)
        A("s_mul_i32 s59, s48, 55296")
        A("s_lshl_b32 s64, s54, 5")
        A("s_add_u32 s59, s59, s64")
        A("s_mul_i32 s61, s48, 7168")
        A(f"s_add_u32 s61, s61, {BUF}")
        for q in range(7):
            A(f"v_add_u32 v17, {64*q}, v0")
            divc(A, 18, 17, 28, 448)
            A("v_mul_u32_u24 v19, 28, v18")
            A("v_sub_u32 v19, v17, v19")
            A("v_lshrrev_b32 v17, 2, v18")
            A("v_and_b32 v17, 2, v17")
            A("v_xor_b32 v19, v19, v17")
            A("v_mul_u32_u24 v18, 3456, v18")
            A(f"v_lshl_add_u32 v{240+q}, v19, 4, v18")
            A(f"s_add_u32 m0, s61, {1024*q}")
            A("s_nop 0")
            vm(f"buffer_load_dwordx4 v{240+q}, s[40:43], s59 offen lds", "d0")
    else:
        A("s_cmp_lt_u32 s48, 2")
        A("s_cselect_b32 s64, s10, s12")
        A("s_cselect_b32 s65, s11, s13")
        srd(A, 40, 64, D * D * 2)
        A("v_xor_b32 v18, s52, v17")
        A("v_mul_u32_u24 v19, 1280, v3")
        A("v_lshl_add_u32 v240, v18, 4, v19")
        A("s_mul_i32 s59, s51, 80")
        A("s_mul_i32 s64, s53, 40")
        A("s_add_u32 s59, s59, s64")
        A("s_mul_i32 s59, s59, 1280")
        A("s_mul_i32 s61, s53, 10240")
        A("s_lshl_b32 s64, s52, 10")
        A("s_add_u32 s61, s61, s64")
        A(f"s_add_u32 s61, s61, {BUF}")
    def dmaA(st):
        bo = (st % 3) * STG
        tag = f"d{st}"
        if isF:
            A(f"s_add_u32 s65, s59, {st*64*3456}")
            for q in range(7):
                A(f"s_add_u32 m0, s61, {bo + 1024*q}")
                A("s_nop 0")
                vm(f"buffer_load_dwordx4 v{240+q}, s[40:43], s65 offen lds", tag)
        else:
            for q in range(5):
                A(f"s_add_u32 m0, s61, {bo + 2048*q}")
                A(f"s_add_u32 s65, s59, {st*128 + q*8*1280}")
                vm(f"buffer_load_dwordx4 v240, s[40:43], s65 offen lds", tag)
    def dma(st):
        dmaA(st); dmaX(st)
    if not isF: dmaA(0)
    dma(1)
    A(f"v_mov_b32 v15, {OOB}")
    if isF:
        A("s_mul_i32 s76, s51, 224")
        A("s_add_u32 s76, s76, 1280")
        def c2():
            A("v_lshlrev_b32 v9, 2, v1")
            for r in range(8):
                A(f"ds_read_b32 v{108+r}, v9 offset:{K1F_RED+896*r}")
            A("s_waitcnt lgkmcnt(0)")
            for r in range(1, 8):
                A(f"v_add_f32 v108, v108, v{108+r}")
            A("s_mul_i32 s57, s50, 3072")
            A("s_add_u32 s57, s57, s76")
            A("s_lshl_b32 s57, s57, 2")
            A(f"s_add_u32 s57, s57, {WS_WSP}")
            A("v_cmp_gt_u32 vcc, 224, v1")
            A("v_cndmask_b32 v9, v15, v9, vcc")
            vm("buffer_store_dword v108, v9, s[44:47], s57 offen sc1", "st")
        pre = {0: [c2]}
        chunks = {1: [lambda: vm.wait("st")]}
        nws = 224
    else:
        A("s_mul_i32 s76, s51, 160")
        def w2a():
            srd(A, 68, 26, D * DFF * 2)
            A("s_lshl_b32 s57, s50, 3")
            A("s_add_u32 s57, s57, s51")
            A("s_lshl_b32 s57, s57, 2")
            A("s_add_u32 s57, s57, s48")
            A("s_lshr_b32 s72, s57, 3")
            A("s_and_b32 s73, s57, 7")
            A("s_mul_i32 s58, s72, 40960")
            A("s_mul_i32 s57, s73, 160")
            A("s_add_u32 s58, s58, s57")
            A("s_mul_i32 s74, s48, 5120")
            A(f"s_add_u32 s74, s74, {K1Y_SCR}")
            for q in range(5):
                A(f"v_add_u32 v17, {64*q}, v0")
                divc(A, 18, 17, 10, 320)
                A("v_mul_u32_u24 v19, 10, v18")
                A("v_sub_u32 v19, v17, v19")
                A("v_mul_u32_u24 v18, 1280, v18")
                A("v_lshl_add_u32 v16, v19, 4, v18")
                A(f"s_add_u32 m0, s74, {1024*q}")
                A("s_nop 0")
                vm("buffer_load_dwordx4 v16, s[68:71], s58 offen lds", "w2")
        def w2b():
            A("v_lshrrev_b32 v17, 2, v6")
            A("v_lshl_add_u32 v17, v5, 2, v17")
            A("v_mul_u32_u24 v17, 160, v17")
            A("v_and_b32 v18, 3, v6")
            A("v_lshl_add_u32 v17, v18, 3, v17")
            A("v_add_u32 v17, s74, v17")
            vm.wait("w2")
            for m in range(5):
                for h in range(2):
                    A(f"ds_read_b64_tr_b16 v[{120+4*m+2*h}:{121+4*m+2*h}], v17 offset:{h*2560 + m*32}")
            A("s_mul_i32 s57, s73, 54")
            A("s_add_u32 s57, s57, s72")
            A("s_mul_i32 s57, s57, 5120")
            A(f"s_add_u32 s57, s57, {WS_W2P}")
            A("s_cmp_lt_u32 s72, 54")
            A(f"s_cselect_b32 s57, s57, {OOB}")
            A("v_lshlrev_b32 v18, 4, v0")
            A("v_add_u32 v19, 4096, v18")
            A("s_waitcnt lgkmcnt(0)")
            for m in range(5):
                vm(f"buffer_store_dwordx4 v[{120+4*m}:{123+4*m}], v18, s[44:47], s57 offen offset:{1024*m} sc1" if m < 4 else
                   f"buffer_store_dwordx4 v[{120+4*m}:{123+4*m}], v19, s[44:47], s57 offen sc1", "st2")
        pre = {}
        chunks = {3: [w2a], 5: [w2b], 7: [lambda: vm.wait('st2')]}
        nws = 160
    A("v_and_b32 v20, 15, v0")
    A("v_lshrrev_b32 v21, 3, v20")
    A("v_and_b32 v22, 7, v20")
    A("v_lshlrev_b32 v21, 7, v21")
    A("v_add_u32 v21, v21, v22")
    A("s_lshl_b32 s57, s50, 3")
    A("v_add_u32 v21, s57, v21")
    A("s_lshl_b32 s57, s49, 7")
    A("s_add_u32 s57, s57, s51")
    A("v_lshl_add_u32 v22, v20, 3, s57")
    A("v_and_b32 v23, 16, v0")
    A("v_cmp_eq_u32 vcc, 0, v23")
    A("v_cndmask_b32 v25, v22, v21, vcc")
    A("v_lshlrev_b32 v25, 7, v25")
    A(f"v_add_u32 v25, {WS_F1}, v25")
    A("v_mov_b32 v26, 0")
    def n1():
        vm("global_load_dwordx2 v[28:29], v26, s[30:31] sc1", "nn")
    def n2():
        Lp = A.label("np"); Lx = A.label("npx"); Lc = A.label("npc")
        A("s_mov_b32 s58, 200000")
        vm.wait("nn")
        A(f"s_branch {Lc}")
        A(f"{Lp}:")
        A("s_sleep 1")
        A("global_load_dwordx2 v[28:29], v26, s[30:31] sc1")
        A("s_waitcnt vmcnt(0)")
        A(f"{Lc}:")
        A("v_readfirstlane_b32 s57, v28")
        A("s_cmp_lg_u32 s57, 0")
        A(f"s_cbranch_scc1 {Lx}")
        A("s_sub_u32 s58, s58, 1")
        A("s_cmp_lg_u32 s58, 0")
        A(f"s_cbranch_scc1 {Lp}")
        A(f"{Lx}:")
        A("s_lshl_b32 s57, s49, 7")
        A("s_lshl_b32 s58, s50, 3")
        A("s_add_u32 s57, s57, s58")
        A("s_add_u32 s57, s57, s51")
        A("s_lshl_b32 s57, s57, 7")
        A(f"s_add_u32 s79, s57, {WS_F1}")
        A("v_cmp_eq_u32 vcc, 0, v1")
        A("v_cndmask_b32 v27, v15, v26, vcc")
        vm("buffer_store_dwordx2 v[28:29], v27, s[44:47], s79 offen sc1", "fs")
    def n3():
        vm("buffer_store_dwordx2 v[28:29], v27, s[44:47], s79 offen offset:8 sc1", "fs")
    chunks.setdefault(1, []).insert(0, n1)
    chunks.setdefault(2, []).append(n2)
    chunks.setdefault(8, []).insert(0, n3)
    def g1():
        vm("buffer_load_dwordx2 v[32:33], v25, s[44:47], 0 offen sc1", "fl")
    def g2():
        Lp = A.label("poll"); Lx = A.label("pollx"); Lc = A.label("pollc")
        A("s_mov_b32 s58, 200000")
        vm.wait("fl")
        A(f"s_branch {Lc}")
        A(f"{Lp}:")
        A("s_sleep 1")
        A("buffer_load_dwordx2 v[32:33], v25, s[44:47], 0 offen sc1")
        A("s_waitcnt vmcnt(0)")
        A(f"{Lc}:")
        A("v_cmp_ne_u64 vcc, v[32:33], v[28:29]")
        A("s_cmp_eq_u64 vcc, 0")
        A(f"s_cbranch_scc1 {Lx}")
        A("s_sub_u32 s58, s58, 1")
        A("s_cmp_lg_u32 s58, 0")
        A(f"s_cbranch_scc1 {Lp}")
        A(f"{Lx}:")
        A("v_lshlrev_b32 v34, 4, v1")
        A("s_lshl_b32 s57, s50, 11")
        A(f"s_add_u32 s57, s57, {WS_STATS}")
        vm("buffer_load_dwordx2 v[36:37], v34, s[44:47], s57 offen sc1", "ga")
        A("v_lshlrev_b32 v35, 2, v1")
        A("s_lshl_b32 s57, s76, 2")
        A(f"s_add_u32 s57, s57, {WS_WSP}")
        for sl in range(16):
            vm(f"buffer_load_dword v{40+sl}, v35, s[44:47], s57 offen sc1", "ga")
            A(f"s_add_u32 s57, s57, {3072*4}")
    def g3():
        vm.wait("ga")
        A("v_lshlrev_b32 v34, 3, v1")
        A("v_cmp_gt_u32 vcc, 128, v1")
        A("s_and_saveexec_b64 s[66:67], vcc")
        A(f"ds_write_b64 v34, v[36:37] offset:{K1_STATS}")
        A("s_mov_b64 exec, s[66:67]")
        for sl in range(1, 16):
            A(f"v_add_f32 v40, v40, v{40+sl}")
        A(f"v_cmp_gt_u32 vcc, {nws}, v1")
        A("s_and_saveexec_b64 s[66:67], vcc")
        A(f"ds_write_b32 v35, v40 offset:{K1_WS}")
        A("s_mov_b64 exec, s[66:67]")
        A(f"ds_write_b64 v26, v[28:29] offset:{K1_NONCE}")
        A("s_waitcnt lgkmcnt(0)")
    chunks.setdefault(6, []).append(g1)
    chunks.setdefault(7, []).insert(0, g2)
    vm.wait("d0")
    stamp(A, 1)
    A("s_barrier")
    for j in range(9):
        for f in pre.get(j, []): f()
        if j + 2 <= 9: dma(j + 2)
        for f in chunks.get(j, []): f()
        vm.wait(f"d{j+1}", "lgkmcnt(0)")
        A("s_barrier")
    stamp(A, 2)
    g3()
    stamp(A, 3)
    stamp(A, 4)
    A("s_barrier")
    for i in (5, 6, 7): stamp(A, i)

def k1_side(A, isF):
    vm = VM(A)
    A("s_lshl_b32 s57, s49, 3")
    A("s_add_u32 s57, s57, s51")
    A("s_lshl_b32 s57, s57, 3")
    A("s_lshl_b32 s58, s50, 7")
    A("s_add_u32 s57, s57, s58")
    A("s_lshl_b32 s58, s48, 1")
    A("s_add_u32 s63, s57, s58")
    A("s_mul_i32 s57, s63, 1280")
    A("s_add_u32 s58, s57, 1280")
    A("v_lshlrev_b32 v2, 2, v0")
    for i in range(5):
        vm(f"buffer_load_dword v{20+i}, v2, s[36:39], s57 offen offset:{256*i}", "sm")
    for i in range(5):
        vm(f"buffer_load_dword v{25+i}, v2, s[36:39], s58 offen offset:{256*i}", "sm")
    A(f"v_mov_b32 v15, {OOB}")
    if isF:
        srd(A, 40, 24, D * DFF * 2)
        divc(A, 7, 1, 28, 256)
        A("v_mul_u32_u24 v8, 28, v7")
        A("v_sub_u32 v8, v1, v8")
        A("s_mov_b32 s57, 17280")
        A("v_mul_lo_u32 v9, v7, s57")
        A("v_lshl_add_u32 v9, v8, 4, v9")
        A("s_mul_i32 s57, s50, 138240")
        A("s_lshl_b32 s64, s54, 5")
        A("s_add_u32 s57, s57, s64")
        for r in range(5):
            vm(f"buffer_load_dwordx4 v[{72+4*r}:{75+4*r}], v9, s[40:43], s57 offen", "sm2")
            A("s_add_u32 s57, s57, 3456")
        srd(A, 68, 14, D * D * 2)
        srd(A, 72, 16, D * D * 2)
        A("s_lshl_b32 s57, s50, 3")
        A("s_add_u32 s57, s57, s51")
        A("s_lshl_b32 s57, s57, 4")
        A("v_lshrrev_b32 v10, 4, v1")
        A("v_add_u32 v10, s57, v10")
        divc(A, 11, 10, 40, 2048)
        A("v_mul_u32_u24 v12, 40, v11")
        A("v_sub_u32 v12, v10, v12")
        A("v_lshl_add_u32 v13, v11, 4, v6")
        A("v_mul_u32_u24 v13, 1280, v13")
        A("v_lshl_add_u32 v13, v12, 5, v13")
        vm("buffer_load_dwordx4 v[92:95], v13, s[68:71], 0 offen", "sm3")
        vm("buffer_load_dwordx4 v[96:99], v13, s[68:71], 0 offen offset:16", "sm3")
        vm("buffer_load_dwordx4 v[100:103], v13, s[72:75], 0 offen", "sm3")
        vm("buffer_load_dwordx4 v[104:107], v13, s[72:75], 0 offen offset:16", "sm3")
        divc(A, 14, 11, 5, 64)
        A("v_mul_u32_u24 v16, 5, v14")
        A("v_sub_u32 v16, v11, v16")
        A("v_mul_u32_u24 v14, 40, v14")
        A("v_add_u32 v14, v14, v12")
        A("v_mul_u32_u24 v14, 5120, v14")
        A("v_lshl_add_u32 v14, v16, 10, v14")
        A("v_lshl_add_u32 v14, v6, 4, v14")
        A("v_cmp_gt_u32 vcc, 1600, v10")
        A("v_cndmask_b32 v14, v15, v14, vcc")
        yield
        vm.wait("sm")
        stats_compute(A, vm)
        vm.wait("sm2")
        for c in range(4):
            A(f"v_lshlrev_b32 v{108+2*c}, 16, v{72+c}")
            A(f"v_and_b32 v{109+2*c}, 0xffff0000, v{72+c}")
        for r in range(1, 5):
            for c in range(4):
                A(f"v_lshlrev_b32 v116, 16, v{72+4*r+c}")
                A(f"v_and_b32 v117, 0xffff0000, v{72+4*r+c}")
                A(f"v_add_f32 v{108+2*c}, v{108+2*c}, v116")
                A(f"v_add_f32 v{109+2*c}, v{109+2*c}, v117")
        A("v_mul_u32_u24 v9, 896, v7")
        A("v_lshl_add_u32 v9, v8, 5, v9")
        A("v_cmp_gt_u32 vcc, 224, v1")
        A("s_and_saveexec_b64 s[66:67], vcc")
        A(f"ds_write_b128 v9, v[108:111] offset:{K1F_RED}")
        A(f"ds_write_b128 v9, v[112:115] offset:{K1F_RED+16}")
        A("s_mov_b64 exec, s[66:67]")
        vm.wait("sm3")
        A("s_mov_b32 s57, 0x05040100")
        A("s_mov_b32 s58, 0x07060302")
        for c in range(8):
            A(f"v_xor_b32 v{100+c}, 0x80008000, v{100+c}")
        A(f"s_mov_b32 s65, {WS_CP}")
        for g in range(4):
            o = 40 + 4 * g
            A(f"v_perm_b32 v{o}, v{100+g}, v{92+g}, s57")
            A(f"v_perm_b32 v{o+1}, v{100+g}, v{92+g}, s58")
            A(f"v_perm_b32 v{o+2}, v{104+g}, v{96+g}, s57")
            A(f"v_perm_b32 v{o+3}, v{104+g}, v{96+g}, s58")
            vm(f"buffer_store_dwordx4 v[{o}:{o+3}], v14, s[44:47], s65 offen offset:{256*g} sc1", "st")
    else:
        A("s_cmp_lt_u32 s48, 2")
        A("s_cselect_b32 s64, s10, s12")
        A("s_cselect_b32 s65, s11, s13")
        srd(A, 40, 64, D * D * 2)
        divc(A, 9, 1, 80, 256)
        A("v_mul_u32_u24 v10, 80, v9")
        A("v_sub_u32 v10, v1, v10")
        A("s_mul_i32 s57, s51, 80")
        A("v_add_u32 v11, s57, v10")
        A("v_lshlrev_b32 v11, 1, v11")
        vm("global_load_ushort v92, v11, s[6:7]", "sm3")
        vm("global_load_ushort v93, v11, s[8:9]", "sm3")
        vm("global_load_ushort v94, v11, s[18:19]", "sm3")
        A("s_lshl_b32 s57, s53, 6")
        A("v_add_u32 v7, s57, v0")
        A("s_mul_i32 s57, s51, 80")
        A("v_add_u32 v8, s57, v7")
        A("v_mul_u32_u24 v8, 1280, v8")
        A("s_mul_i32 s57, s50, 80")
        for r in range(5):
            vm(f"buffer_load_dwordx4 v[{72+4*r}:{75+4*r}], v8, s[40:43], s57 offen offset:{16*r}", "sm2")
        divc(A, 12, 1, 40, 256)
        A("v_mul_u32_u24 v13, 40, v12")
        A("v_sub_u32 v13, v1, v13")
        A("v_mul_u32_u24 v12, 5120, v12")
        A("v_lshl_add_u32 v12, v13, 4, v12")
        A("v_cmp_gt_u32 vcc, 80, v1")
        A("v_cndmask_b32 v12, v15, v12, vcc")
        A("s_mul_i32 s57, s50, 10240")
        A("s_mul_i32 s58, s51, 640")
        A("s_add_u32 s57, s57, s58")
        A(f"s_add_u32 s57, s57, {WS_E}")
        for r in range(4): A(f"v_mov_b32 v{112+r}, -1")
        vm("buffer_store_dwordx4 v[112:115], v12, s[44:47], s57 offen sc1", "st")
        yield
        vm.wait("sm")
        stats_compute(A, vm)
        vm.wait("sm2")
        A("s_mov_b32 s57, 0x3f803f80")
        A("v_mov_b32 v108, 0")
        A("v_mov_b32 v109, 0")
        for r in range(20):
            A(f"v_dot2_f32_bf16 v{108+(r&1)}, v{72+r}, s57, v{108+(r&1)}")
        A("s_nop 2")
        A("v_add_f32 v108, v108, v109")
        A("s_mul_i32 s57, s50, 3072")
        A("s_mul_i32 s58, s51, 160")
        A("s_add_u32 s57, s57, s58")
        A("s_add_u32 s57, s57, s52")
        A("s_lshl_b32 s57, s57, 2")
        A(f"s_add_u32 s57, s57, {WS_WSP}")
        A("v_lshlrev_b32 v8, 3, v7")
        A("v_cmp_gt_u32 vcc, 80, v7")
        A("v_cndmask_b32 v8, v15, v8, vcc")
        vm("buffer_store_dword v108, v8, s[44:47], s57 offen sc1", "st")
        for r in (92, 93, 94): A(f"v_lshlrev_b32 v{r}, 16, v{r}")
        A(f"v_mul_f32 v94, {hexf(LOG2E)}, v94")
        A("v_exp_f32 v94, v94")
        bf16r(A, 94)
        A("v_mul_f32 v95, v94, v92")
        A("v_mul_f32 v96, v94, v93")
        A(f"v_mul_f32 v95, {hexf(LOG2E)}, v95")
        A(f"v_mul_f32 v96, {hexf(INV2PI)}, v96")
        A("v_mul_u32_u24 v97, 288, v10")
        A("v_lshl_add_u32 v97, v9, 3, v97")
        A("v_cmp_gt_u32 vcc, 240, v1")
        A("s_and_saveexec_b64 s[66:67], vcc")
        for r in range(11):
            A(f"v_add_u32 v98, {3*r}, v9")
            A("v_lshlrev_b32 v99, 2, v98")
            A("v_lshlrev_b32 v100, 6, v98")
            A("v_subrev_u32 v100, 1024, v100")
            A("v_cmp_gt_u32 vcc, 16, v98")
            A("v_cndmask_b32 v99, v100, v99, vcc")
            A("v_cvt_f32_u32 v99, v99")
            A("v_mul_f32 v100, v99, v95")
            A("v_mul_f32 v101, v99, v96")
            A("v_exp_f32 v100, v100")
            A("v_fract_f32 v101, v101")
            A("v_cos_f32 v102, v101")
            A("v_sin_f32 v103, v101")
            A("v_mul_f32 v102, v100, v102")
            A("v_mul_f32 v103, v100, v103")
            A(f"ds_write_b64 v97, v[102:103] offset:{K1Y_T+24*r}")
        A("s_mov_b64 exec, s[66:67]")
        A("v_exp_f32 v100, v95")
        A("v_fract_f32 v101, v96")
        A("v_cos_f32 v102, v101")
        A("v_sin_f32 v103, v101")
        A("v_mul_f32 v102, v100, v102")
        A("v_mul_f32 v103, v100, v103")
        A("v_add_f32 v98, -1.0, v102")
        A("v_mul_f32 v99, v92, v92")
        A("v_fmac_f32 v99, v93, v93")
        A("v_rcp_f32 v100, v99")
        A("v_fma_f32 v101, -v99, v100, 1.0")
        A("v_fma_f32 v100, v101, v100, v100")
        A("v_add_f32 v100, v100, v100")
        A("v_mul_f32 v104, v98, v92")
        A("v_fmac_f32 v104, v103, v93")
        A("v_mul_f32 v105, v103, v92")
        A("v_fma_f32 v105, -v98, v93, v105")
        A("v_mul_f32 v104, v104, v100")
        A("v_mul_f32 v105, v105, v100")
        A("v_cmp_gt_u32 vcc, 80, v1")
        A("s_and_saveexec_b64 s[66:67], vcc")
        A(f"ds_write_b128 v97, v[102:105] offset:{K1Y_T+272}")
        A("s_mov_b64 exec, s[66:67]")
    A("s_waitcnt lgkmcnt(0)")
    yield

def k1_prefetch_setup(A, isF):
    A("s_and_b32 s57, s2, 3")
    A("s_lshl_b32 s57, s57, 9")
    A("s_lshl_b32 s59, s35, 4")
    A("s_add_u32 s57, s57, s59")
    A("s_mul_i32 s57, s57, 1280")
    A("v_lshrrev_b32 v10, 2, v0")
    A("v_and_b32 v11, 3, v0")
    A("v_mul_u32_u24 v10, 1280, v10")
    A("v_lshl_add_u32 v10, v11, 7, v10")
    A("s_mul_i32 s58, s53, 384")
    A("s_add_u32 s66, s57, s58")
    A("s_add_u32 s66, s66, 384")
    if isF:
        srd(A, 40, 24, D * DFF * 2)
        A("v_min_u32 v11, 53, v0")
        A("v_lshlrev_b32 v11, 7, v11")
        A("s_mul_i32 s67, s35, 6912")
        A("s_add_u32 s58, s48, 3")
        A(f"s_mul_i32 s58, s58, {64*3456}")
        A("s_add_u32 s67, s67, s58")
        A(f"s_add_u32 s68, s67, {4*64*3456}")
    else:
        A("s_cmp_lt_u32 s48, 2")
        A("s_cselect_b32 s64, s10, s12")
        A("s_cselect_b32 s65, s11, s13")
        srd(A, 40, 64, D * D * 2)
        divc(A, 12, 0, 20, 64)
        A("v_mul_u32_u24 v13, 20, v12")
        A("v_sub_u32 v13, v0, v13")
        A("v_min_u32 v12, 2, v12")
        A("v_mul_u32_u24 v13, 1280, v13")
        A("v_lshl_add_u32 v11, v12, 7, v13")
        A("s_mul_i32 s67, s35, 25600")
        A("s_mul_i32 s58, s53, 384")
        A("s_add_u32 s68, s67, 896")
        A("s_add_u32 s67, s67, s58")
        A("s_add_u32 s67, s67, 384")
def k1_prefetch(A, isF, batch):
    if "nopf" in DBG: return
    if batch == 0:
        A("buffer_load_dword v12, v11, s[40:43], s67 offen")
        A("buffer_load_dword v13, v10, s[36:39], s66 offen")
    else:
        A("buffer_load_dword v12, v11, s[40:43], s68 offen")

def k1_compute(A, isF):
    ACC = 128; FRAG = 32
    MT = 7 if isF else 5; NT = 4
    STG = K1F_STAGE if isF else K1Y_STAGE
    BUF = K1F_BUF if isF else K1Y_BUF
    ASZ = 28672 if isF else 20480
    side = k1_side(A, isF)
    next(side)
    AB = 232; BB = 244
    if isF:
        A("v_lshrrev_b32 v17, 2, v6")
        A("v_lshl_add_u32 v17, v5, 3, v17")
        A("v_mul_u32_u24 v17, 448, v17")
        A("v_and_b32 v18, 3, v6")
        A("v_lshl_add_u32 v17, v18, 3, v17")
        A("s_mul_i32 s57, s52, 224")
        A(f"s_add_u32 s57, s57, {BUF}")
        A("v_add_u32 v17, s57, v17")
        A("v_and_b32 v18, 1, v5")
        A("v_lshlrev_b32 v18, 5, v18")
        A("v_add_u32 v19, v17, v18")
        A("v_sub_u32 v17, v17, v18")
        A("s_cmp_eq_u32 s52, 0")
        A("s_cselect_b64 vcc, -1, 0")
        AB = 240; BB = 246
        A(f"v_cndmask_b32 v{AB}, v17, v19, vcc")
        A(f"v_cndmask_b32 v{AB+1}, v19, v17, vcc")
    else:
        A("v_and_b32 v17, 1, v6")
        A("v_lshrrev_b32 v18, 1, v6")
        A("v_lshl_add_u32 v19, v17, 3, v18")
        A("v_xor_b32 v17, v17, v18")
        A("v_xor_b32 v17, v17, v5")
        A("v_lshlrev_b32 v19, 7, v19")
        A("v_lshl_add_u32 v19, v17, 4, v19")
        A("s_mul_i32 s57, s52, 10240")
        A(f"s_add_u32 s57, s57, {BUF}")
        AB = 240; BB = 246
        A(f"v_add_u32 v{AB}, s57, v19")
        A(f"v_xor_b32 v{AB+1}, 64, v{AB}")
    A("v_and_b32 v18, 7, v0")
    A("v_xor_b32 v18, v18, v5")
    A("v_lshlrev_b32 v17, 7, v6")
    A("s_lshl_b32 s57, s53, 13")
    A(f"s_add_u32 s57, s57, {ASZ+BUF}")
    A("v_add_u32 v17, s57, v17")
    A(f"v_lshl_add_u32 v{BB}, v18, 4, v17")
    A(f"v_xor_b32 v{BB+1}, 64, v{BB}")
    for b in (1, 2):
        for i in range(2):
            A(f"v_add_u32 v{AB+2*b+i}, {b*STG}, v{AB+i}")
            A(f"v_add_u32 v{BB+2*b+i}, {b*STG}, v{BB+i}")
    for r in range(MT * NT * 4):
        A(f"v_mov_b32 v{ACC+r}, 0")
    fA = lambda st, m: FRAG + st * (MT + NT) * 4 + m * 4
    fB = lambda st, n: FRAG + st * (MT + NT) * 4 + MT * 4 + n * 4
    accr = lambda m, n: ACC + (m * NT + n) * 4
    def reads(stage, kk):
        b = stage % 3; st = kk
        out = []
        for n in range(NT):
            out.append(f"ds_read_b128 {vr(fB(st,n),4)}, v{BB+2*b+kk} offset:{n*2048}")
        for m in range(MT):
            if isF:
                for h in range(2):
                    out.append(f"ds_read_b64_tr_b16 {vr(fA(st,m)+2*h,2)}, v{AB+2*b+(m&1)} offset:{(32*kk+4*h)*448 + m*32}")
            else:
                out.append(f"ds_read_b128 {vr(fA(st,m),4)}, v{AB+2*b+kk} offset:{m*2048}")
        return out
    def mfmas(st):
        return [f"v_mfma_f32_16x16x32_bf16 {vr(accr(m,n),4)}, {vr(fA(st,m),4)}, {vr(fB(st,n),4)}, {vr(accr(m,n),4)}"
                for m in range(MT) for n in range(NT)]
    next(side)
    stamp(A, 1)
    A("s_barrier")
    stamp(A, 2)
    for r in reads(0, 0): A(r)
    PRE = 3
    for j in range(10):
        A("s_waitcnt lgkmcnt(0)")
        mf = mfmas(0); rd = reads(j, 1)
        for i, m in enumerate(mf):
            A(m)
            if i < len(rd): A(rd[i])
        A("s_waitcnt lgkmcnt(0)")
        mf = mfmas(1)
        if j < 9:
            rd = reads(j + 1, 0)
            for m in mf[:PRE]: A(m)
            if j == 1: A("s_waitcnt vmcnt(0)")
            A("s_barrier")
            for i, m in enumerate(mf[PRE:]):
                if i < len(rd): A(rd[i])
                A(m)
        else:
            for m in mf: A(m)
    stamp(A, 3)
    A("s_barrier")
    stamp(A, 4)
    if isF: k1F_epilogue(A, ACC)
    else: k1Y_epilogue(A, ACC)

def frag_store_plan(ntiles, parity):
    plan = []
    t = 0
    if parity == 1:
        plan.append(("single", [0], 0, 1)); t = 1
    while t + 1 < ntiles:
        plan.append(("pair", [t, t + 1], (t + parity) // 2, 0)); t += 2
    if t < ntiles:
        plan.append(("single", [t], (t + parity) // 2, 0))
    return plan

def k1F_epilogue(A, ACC):
    A("s_lshl_b32 s57, s53, 9")
    A("v_lshlrev_b32 v17, 5, v6")
    A("v_add_u32 v17, s57, v17")
    A(f"ds_read_b128 v[32:35], v17 offset:{K1_STATS}")
    A(f"ds_read_b128 v[36:39], v17 offset:{K1_STATS+16}")
    A("s_mul_i32 s57, s52, 448")
    A("v_lshlrev_b32 v18, 4, v5")
    A("v_add_u32 v18, s57, v18")
    for m in range(7):
        A(f"ds_read_b128 v[{40+4*m}:{43+4*m}], v18 offset:{K1_WS+64*m}")
    A("s_mul_i32 s57, s52, 7")
    A("s_add_u32 s57, s57, s54")
    A("s_and_b32 s64, s57, 1")
    A("s_lshr_b32 s57, s57, 1")
    A("s_mul_i32 s58, s50, 54")
    A("s_add_u32 s57, s57, s58")
    A("s_lshl_b32 s57, s57, 3")
    A("s_lshl_b32 s58, s53, 2")
    A("s_add_u32 s57, s57, s58")
    A("s_lshl_b32 s57, s57, 10")
    A(f"s_add_u32 s65, s57, {WS_HF}")
    A("v_lshlrev_b32 v17, 4, v0")
    A("s_and_b32 s57, s51, s52")
    A("s_and_b32 s57, s57, 1")
    A("s_cmp_eq_u32 s57, 0")
    A(f"s_cselect_b32 s57, 0, {OOB}")
    A("v_add_u32 v19, s57, v17")
    A("s_waitcnt lgkmcnt(0)")
    def conv(m, n, dst):
        a = ACC + (m * 4 + n) * 4
        w = 40 + 4 * m; st = 32 + 2 * n
        for hh in range(2):
            A(f"v_pk_fma_f32 {vr(a+2*hh,2)}, {vr(w+2*hh,2)}, {vr(st,2)}, {vr(a+2*hh,2)} op_sel:[0,0,0] op_sel_hi:[1,0,1] neg_lo:[1,0,0] neg_hi:[1,0,0]")
        for hh in range(2):
            A(f"v_pk_mul_f32 {vr(a+2*hh,2)}, {vr(a+2*hh,2)}, {vr(st,2)} op_sel:[0,1] op_sel_hi:[1,1]")
        for hh in range(2):
            A(f"v_cvt_pk_bf16_f32 v{dst+hh}, v{a+2*hh}, v{a+2*hh+1}")
        for hh in range(2):
            A(f"v_pk_max_i16 v{dst+hh}, v{dst+hh}, 0")
    L1 = A.label("ep1"); L2 = A.label("epx")
    A("s_cmp_lg_u32 s64, 0")
    A(f"s_cbranch_scc1 {L1}")
    for parity in (0, 1):
        if parity == 1: A(f"{L1}:")
        plan = frag_store_plan(7, parity)
        if parity == 1:
            k, tl, ks, _ = plan.pop()
            plan += [("single", [tl[0]], ks, 0), ("single", [tl[1]], ks, 1)]
        cnt = 0
        for kind, tl, ks, half in plan:
            A(f"s_add_u32 s57, s65, {ks*8192}")
            for n in range(4):
                t = 72 + 4 * (cnt % 4); cnt += 1
                if kind == "pair":
                    conv(tl[0], n, t); conv(tl[1], n, t + 2)
                    A(f"buffer_store_dwordx4 v[{t}:{t+3}], v17, s[44:47], s57 offen offset:{1024*n} sc1")
                else:
                    conv(tl[0], n, t)
                    vo = 19 if tl[0] == 6 else 17
                    A(f"buffer_store_dwordx2 v[{t}:{t+1}], v{vo}, s[44:47], s57 offen offset:{1024*n + 8*half} sc1")
        if parity == 0: A(f"s_branch {L2}")
    A(f"{L2}:")
    for i in (5, 6, 7): stamp(A, i)

def k1Y_epilogue(A, ACC):
    ST = 32; WSR = 40; P = 208; TB = 60
    A("s_lshl_b32 s57, s53, 9")
    A("v_lshlrev_b32 v17, 5, v6")
    A("v_add_u32 v17, s57, v17")
    A(f"ds_read_b128 v[{ST}:{ST+3}], v17 offset:{K1_STATS}")
    A(f"ds_read_b128 v[{ST+4}:{ST+7}], v17 offset:{K1_STATS+16}")
    A("s_mul_i32 s57, s52, 320")
    A("v_lshlrev_b32 v18, 4, v5")
    A("v_add_u32 v18, s57, v18")
    for m in range(5):
        A(f"ds_read_b128 v[{WSR+4*m}:{WSR+4*m+3}], v18 offset:{K1_WS+64*m}")
    A("s_mul_i32 s57, s52, 11520")
    A("v_mul_u32_u24 v19, 576, v5")
    A("v_add_u32 v19, s57, v19")
    A("v_lshl_add_u32 v20, v6, 3, v19")
    A("s_lshl_b32 s57, s50, 1")
    A("s_add_u32 s64, s57, s53")
    A("s_mul_i32 s57, s51, 80")
    A("s_mul_i32 s58, s52, 40")
    A("s_add_u32 s57, s57, s58")
    A("s_lshl_b32 s68, s57, 3")
    A("v_lshlrev_b32 v21, 4, v5")
    A("v_add_u32 v21, s68, v21")
    A("v_cmp_eq_u32 vcc, 15, v6")
    A(f"v_mov_b32 v18, {OOB}")
    A("v_cndmask_b32 v22, v18, v21, vcc")
    A("s_mul_i32 s69, s64, 5120")
    A(f"s_add_u32 s69, s69, {WS_E}")
    def load_tab1(m, base):
        for q in range(2):
            o = K1Y_T + (8 * m + q) * 288
            b = base + 12 * q
            A(f"ds_read_b128 v[{b}:{b+3}], v19 offset:{o+272}")
            A(f"ds_read_b64 v[{b+4}:{b+5}], v19 offset:{o+8}")
            A(f"ds_read_b64 v[{b+6}:{b+7}], v19 offset:{o+16}")
            A(f"ds_read_b64 v[{b+8}:{b+9}], v19 offset:{o+32}")
            A(f"ds_read_b64 v[{b+10}:{b+11}], v19 offset:{o+64}")
    load_tab1(0, TB)
    TMP = 108
    for m in range(5):
        base = TB + 24 * (m & 1)
        A("s_waitcnt lgkmcnt(0)")
        if m < 4: load_tab1(m + 1, TB + 24 * ((m + 1) & 1))
        for n in range(4):
            for q in range(2):
                u = ACC + (m * 4 + n) * 4 + 2 * q
                w = WSR + 4 * m + 2 * q
                st = ST + 2 * n
                cf = base + 12 * q + 2
                t0 = TMP + 4 * q
                A(f"v_pk_fma_f32 {vr(t0,2)}, {vr(w,2)}, {vr(st,2)}, {vr(u,2)} op_sel:[0,0,0] op_sel_hi:[1,0,1] neg_lo:[1,0,0] neg_hi:[1,0,0]")
                A(f"v_pk_mul_f32 {vr(t0+2,2)}, {vr(cf,2)}, {vr(st,2)} op_sel:[0,1] op_sel_hi:[1,1]")
                cmul(A, u, t0 + 2, t0)
        for n in range(1, 4):
            for q in range(2):
                a = base + 12 * q
                e = P + 4 * m + 2 * q
                t0 = TMP + 4 * q
                prev = (ACC + (m * 4) * 4 + 2 * q) if n == 1 else (t0 if n == 3 else t0 + 2)
                dst = e if n == 3 else (t0 + 2 if n == 1 else t0)
                u = ACC + (m * 4 + n) * 4 + 2 * q
                cmul_add(A, dst, a, prev, u)
        for ki, k in enumerate((1, 2, 4, 8)):
            for q in range(2):
                e = P + 4 * m + 2 * q
                t0 = TMP + 4 * q
                A(f"v_mov_b32_dpp v{t0}, v{e} row_shr:{k} row_mask:0xf bank_mask:0xf bound_ctrl:0")
                A(f"v_mov_b32_dpp v{t0+1}, v{e+1} row_shr:{k} row_mask:0xf bank_mask:0xf bound_ctrl:0")
            for q in range(2):
                e = P + 4 * m + 2 * q
                t0 = TMP + 4 * q
                cmul_add(A, e, base + 12 * q + 4 + 2 * ki, t0, e)
        pb = TMP + 8 + 4 * (m & 1)
        for r in range(4):
            A(f"v_min_u32 v{pb+r}, -2, v{P+4*m+r}")
        A(f"buffer_store_dwordx4 v[{pb}:{pb+3}], v22, s[44:47], s69 offen offset:{64*m} sc1")
    stamp(A, 5)
    A("v_sub_u32 v23, s64, v6")
    A("v_subrev_u32 v24, 1, v23")
    A("v_subrev_u32 v25, 17, v23")
    A("v_cmp_le_i32 vcc, 0, v24")
    A("v_mul_u32_u24 v24, 5120, v24")
    A("v_add_u32 v24, v24, v21")
    A("v_cndmask_b32 v24, v18, v24, vcc")
    A("v_cmp_le_i32 vcc, 0, v25")
    A("v_mul_u32_u24 v25, 5120, v25")
    A("v_add_u32 v25, v25, v21")
    A("v_cndmask_b32 v25, v18, v25, vcc")
    A(f"s_mov_b32 s69, {WS_E}")
    EN = 32; EF = 52; TB2 = 72
    def load_tab2(m, base):
        for q in range(2):
            o = K1Y_T + (8 * m + q) * 288
            b = base + 8 * q
            A(f"ds_read_b64 v[{b}:{b+1}], v20 offset:{o+128}")
            A(f"ds_read_b64 v[{b+2}:{b+3}], v19 offset:{o+256}")
            A(f"ds_read_b64 v[{b+4}:{b+5}], v20 offset:{o}")
            A(f"ds_read_b64 v[{b+6}:{b+7}], v19 offset:{o+272}")
    load_tab2(0, TB2)
    A("s_mul_i32 s57, s51, 5")
    A("s_lshl_b32 s58, s52, 1")
    A("s_add_u32 s57, s57, s58")
    A("s_mul_i32 s58, s50, 40")
    A("s_add_u32 s57, s57, s58")
    A("s_lshl_b32 s57, s57, 3")
    A("s_lshl_b32 s58, s53, 2")
    A("s_add_u32 s57, s57, s58")
    A("s_lshl_b32 s57, s57, 10")
    A(f"s_add_u32 s65, s57, {WS_H1}")
    A("v_lshlrev_b32 v27, 4, v0")
    Lp = A.label("lb"); Lx = A.label("lbx")
    A("s_mov_b32 s58, 100000")
    A(f"{Lp}:")
    for m in range(5):
        A(f"buffer_load_dwordx4 v[{EN+4*m}:{EN+4*m+3}], v24, s[44:47], s69 offen offset:{64*m} sc1")
        A(f"buffer_load_dwordx4 v[{EF+4*m}:{EF+4*m+3}], v25, s[44:47], s69 offen offset:{64*m} sc1")
    A("s_waitcnt vmcnt(0)")
    A(f"v_max3_u32 v26, v{EN}, v{EN+1}, v{EN+2}")
    for r in range(3, 39, 2):
        A(f"v_max3_u32 v26, v26, v{EN+r}, v{EN+r+1}")
    A(f"v_max_u32 v26, v26, v{EN+39}")
    A("v_cmp_eq_u32 vcc, -1, v26")
    A("s_cmp_eq_u64 vcc, 0")
    A(f"s_cbranch_scc1 {Lx}")
    A("s_sleep 1")
    A("s_sub_u32 s58, s58, 1")
    A("s_cmp_lg_u32 s58, 0")
    A(f"s_cbranch_scc1 {Lp}")
    A(f"{Lx}:")
    stamp(A, 6)
    PK = 228
    for m in range(5):
        base = TB2 + 16 * (m & 1)
        A("s_waitcnt lgkmcnt(0)")
        if m < 4: load_tab2(m + 1, TB2 + 16 * ((m + 1) & 1))
        for q in range(2):
            cmul_add(A, EN + 4 * m + 2 * q, base + 8 * q + 2, EF + 4 * m + 2 * q, EN + 4 * m + 2 * q)
        for q in range(2):
            cmul(A, EF + 4 * m + 2 * q, base + 8 * q, EN + 4 * m + 2 * q)
        for k in (8, 4, 2, 1):
            for r in range(4):
                x = EF + 4 * m + r
                A(f"v_add_f32_dpp v{x}, v{x}, v{x} row_ror:{k} row_mask:0xf bank_mask:0xf")
        for q in range(2):
            e = P + 4 * m + 2 * q
            t0 = TMP + 4 * q
            A(f"v_mov_b32_dpp v{t0}, v{e} row_shr:1 row_mask:0xf bank_mask:0xf bound_ctrl:0")
            A(f"v_mov_b32_dpp v{t0+1}, v{e+1} row_shr:1 row_mask:0xf bank_mask:0xf bound_ctrl:0")
        for q in range(2):
            t0 = TMP + 4 * q
            cmul_add(A, t0, base + 8 * q + 4, EF + 4 * m + 2 * q, t0)
        for n in range(4):
            for q in range(2):
                u = ACC + (m * 4 + n) * 4 + 2 * q
                prev = (TMP + 4 * q) if n == 0 else u - 4
                cmul_add(A, u, base + 8 * q + 6, prev, u)
    stamp(A, 7)
    L1 = A.label("ey1"); L2 = A.label("eyx")
    A("s_cmp_lg_u32 s52, 0")
    A(f"s_cbranch_scc1 {L1}")
    for parity in (0, 1):
        if parity == 1: A(f"{L1}:")
        cnt = 0
        for kind, tl, ks, half in frag_store_plan(5, parity):
            A(f"s_add_u32 s57, s65, {ks*8192}")
            for n in range(4):
                t = 32 + 4 * (cnt % 8); cnt += 1
                for x, m in enumerate(tl):
                    u = ACC + (m * 4 + n) * 4
                    A(f"v_cvt_pk_bf16_f32 v{t+2*x}, v{u}, v{u+1}")
                    A(f"v_cvt_pk_bf16_f32 v{t+2*x+1}, v{u+2}, v{u+3}")
                if kind == "pair":
                    A(f"buffer_store_dwordx4 v[{t}:{t+3}], v27, s[44:47], s57 offen offset:{1024*n} sc1")
                else:
                    A(f"buffer_store_dwordx2 v[{t}:{t+1}], v27, s[44:47], s57 offen offset:{1024*n + 8*half} sc1")
        if parity == 0: A(f"s_branch {L2}")
    A(f"{L2}:")

K2_NR = 7
K2_R0 = 25088
K2_BOFF = K2_R0 + K2_NR * 10240
K2_NST = 47
NSF = 27

def p2_ids(A):
    A("s_lshl_b32 s57, s49, 7")
    A("s_lshl_b32 s58, s50, 3")
    A("s_add_u32 s57, s57, s58")
    A("s_add_u32 s57, s57, s51")
    A("s_lshl_b32 s57, s57, 7")
    A("s_lshl_b32 s58, s48, 3")
    A("s_add_u32 s57, s57, s58")
    A(f"s_add_u32 s77, s57, {WS_F2}")
    A("s_mov_b32 s78, s49")
    A("s_and_b32 s57, s2, 3")
    A("s_bfe_u32 s58, s2, 0x10002")
    A("s_lshr_b32 s59, s35, 2")
    A("s_lshl_b32 s50, s57, 2")
    A("s_lshr_b32 s57, s59, 1")
    A("s_add_u32 s50, s50, s57")
    A("s_and_b32 s49, s59, 1")
    A("s_lshl_b32 s51, s58, 2")
    A("s_and_b32 s57, s35, 3")
    A("s_add_u32 s51, s51, s57")
    A("v_lshlrev_b32 v10, 4, v0")

def spin_flags(A, loads, regs, vm=None):
    Lp = A.label("sp"); Lx = A.label("spx")
    A("s_mov_b32 s70, 400000")
    A(f"{Lp}:")
    for l in loads: A(l)
    A("s_waitcnt vmcnt(0)")
    for i, r in enumerate(regs):
        A(f"v_cmp_ne_u64 {'vcc' if i == 0 else 's[72:73]'}, v[{r}:{r+1}], v[28:29]")
        if i: A("s_or_b64 vcc, vcc, s[72:73]")
    A("s_cmp_eq_u64 vcc, 0")
    A(f"s_cbranch_scc1 {Lx}")
    A("s_sleep 1")
    A("s_sub_u32 s70, s70, 1")
    A("s_cmp_lg_u32 s70, 0")
    A(f"s_cbranch_scc1 {Lp}")
    A(f"{Lx}:")
    if vm: vm.ops = []

def p2_loaders(A):
    stamp(A, 0)
    p2_ids(A)
    A("s_mul_i32 s57, s53, 5120")
    A(f"s_mul_i32 s62, s51, {20*10240}")
    A("s_add_u32 s62, s62, s57")
    A(f"s_add_u32 s62, s62, {WS_CP}")
    A(f"s_mul_i32 s63, s51, {27*10240}")
    A("s_add_u32 s63, s63, s57")
    A(f"s_add_u32 s63, s63, {WS_W2P}")
    A(f"s_add_u32 s57, s57, {K2_R0}")
    A("s_lshl_b32 s58, s53, 13")
    A("s_lshl_b32 s59, s49, 12")
    A("s_add_u32 s58, s58, s59")
    A(f"s_mul_i32 s64, s50, {40*8192}")
    A("s_add_u32 s64, s64, s58")
    A(f"s_add_u32 s64, s64, {WS_H1}")
    A(f"s_mul_i32 s66, s50, {54*8192}")
    A("s_add_u32 s66, s66, s58")
    A(f"s_add_u32 s66, s66, {WS_HF}")
    A("s_lshl_b32 s59, s53, 12")
    A(f"s_add_u32 s59, s59, {K2_BOFF}")
    A("s_cmp_lg_u32 s52, 0")
    A("s_cselect_b32 s62, s64, s62")
    A("s_cselect_b32 s63, s66, s63")
    A("s_cselect_b32 s58, s59, s57")
    A("s_cbranch_scc0 p2_lA")
    p2_loader(A, True)
    stamps_flush(A, 6, 1)
    A("s_branch k1_end")
    A("p2_lA:")
    p2_loader(A, False)
    stamps_flush(A, 6, 1)

def p2_loader(A, isB):
    vm = VM(A)
    nst = K2_NST
    nI = 4 if isB else 5
    sstr = 16384 if isB else 10240
    lstr = 8192 if isB else 10240
    if not isB:
        A("v_lshlrev_b32 v30, 7, v0")
        A(f"v_add_u32 v30, {WS_F1+8}, v30")
        A("s_mov_b32 s64, 8192")
        A("s_mov_b32 s65, 16384")
        A("s_mov_b32 s66, 24576")
        spin_flags(A, ["buffer_load_dwordx2 v[32:33], v30, s[44:47], 0 offen sc1", "buffer_load_dwordx2 v[34:35], v30, s[44:47], s64 offen sc1",
                       "buffer_load_dwordx2 v[36:37], v30, s[44:47], s65 offen sc1", "buffer_load_dwordx2 v[38:39], v30, s[44:47], s66 offen sc1"], [32, 34, 36, 38])
    else:
        A("v_bfe_u32 v30, v0, 2, 3")
        A("v_and_b32 v31, 3, v0")
        A("v_lshlrev_b32 v30, 7, v30")
        A("v_lshl_add_u32 v30, v31, 3, v30")
        A("s_lshl_b32 s64, s50, 10")
        A(f"s_add_u32 s64, s64, {WS_F2}")
        A(f"s_add_u32 s66, s64, {128*128}")
        spin_flags(A, ["buffer_load_dwordx2 v[32:33], v30, s[44:47], s66 offen sc1"], [32])
    def dma(st):
        if isB and st == NSF:
            spin_flags(A, ["buffer_load_dwordx2 v[32:33], v30, s[44:47], s64 offen sc1"], [32], vm)
        bo = (st % K2_NR) * lstr
        src, so = (63, st * sstr) if st < NSF else (62, (st - NSF) * sstr)
        for q in range(nI):
            A(f"s_add_u32 m0, s58, {bo + 1024*q}")
            A(f"s_add_u32 s65, s{src}, {so + 1024*q}")
            vm("buffer_load_dwordx4 v10, s[44:47], s65 offen sc1 lds", f"d{st}")
    stamp(A, 1)
    n0 = 3 if isB else K2_NR
    for st in range(n0): dma(st)
    vm.wait("d0")
    stamp(A, 2)
    A("s_barrier")
    vm.wait("d1")
    A("s_barrier")
    for st in range(n0, K2_NR): dma(st)
    for j in range(nst - 2):
        vm.wait(f"d{j+2}")
        A("s_barrier")
        if j + K2_NR < nst: dma(j + K2_NR)
    for i in (3, 4, 5): stamp(A, i)

def p2_compute(A):
    stamp(A, 0)
    A("v_mov_b32 v26, 0")
    A(f"ds_read_b64 v[22:23], v26 offset:{K1_NONCE}")
    p2_ids(A)
    srd(A, 72, 4, T * D * 2)
    srd(A, 84 if not STAMPS else 68, 28, T * D * 4)
    A("v_cmp_eq_u32 vcc, 0, v0")
    A(f"v_mov_b32 v24, {OOB}")
    A("v_cndmask_b32 v24, v24, v26, vcc")
    L = A.label("nof")
    A("s_cmp_eq_u32 s78, 0")
    A(f"s_cbranch_scc1 {L}")
    A("s_waitcnt vmcnt(0) lgkmcnt(0)")
    A("buffer_store_dwordx2 v[22:23], v24, s[44:47], s77 offen sc1")
    A(f"{L}:")
    FRAG = 112
    ACCY = 28; ACCF = 48; XR = 68; SR = 78; DR = 82; PR = 92
    nst = K2_NST
    A("s_lshl_b32 s57, s50, 7")
    A("s_lshl_b32 s58, s49, 6")
    A("s_add_u32 s57, s57, s58")
    A("s_add_u32 s57, s57, s48")
    A("v_lshl_add_u32 v17, v6, 2, s57")
    A("v_mul_u32_u24 v18, 1280, v17")
    A("v_lshl_add_u32 v18, v5, 3, v18")
    A("s_mul_i32 s58, s51, 160")
    for m in range(5):
        A(f"buffer_load_dwordx2 v[{XR+2*m}:{XR+2*m+1}], v18, s[72:75], s58 offen offset:{32*m}")
    A("v_lshlrev_b32 v25, 4, v17")
    A(f"s_mov_b32 s62, {WS_STATS}")
    A("v_lshlrev_b32 v26, 3, v5")
    A("v_add_u32 v26, s58, v26")
    for m in range(5):
        A(f"global_load_dwordx2 v[{DR+2*m}:{DR+2*m+1}], v26, s[20:21] offset:{32*m}")
    A("s_lshl_b32 s57, s48, 10")
    A(f"s_add_u32 s57, s57, {K2_BOFF}")
    A("v_add_u32 v20, s57, v10")
    A(f"v_add_u32 v21, {K2_R0 + 3*10240}, v10")
    A(f"v_add_u32 v19, {K2_R0}, v10")
    for r in range(40):
        A(f"v_mov_b32 v{ACCY+r}, 0")
    plist = []
    P = plist.append
    mm, rs, sd = SR, SR + 1, SR + 2
    for m in range(5):
        x = XR + 2 * m; t = 2; du = 12; p = PR + 4 * m
        for hh in range(2):
            P(f"v_lshlrev_b32 v{t+2*hh}, 16, v{x+hh}")
            P(f"v_and_b32 v{t+2*hh+1}, 0xffff0000, v{x+hh}")
        for r in range(4): P(f"v_sub_f32 v{t+r}, v{t+r}, v{mm}")
        for hh in range(2):
            P(f"v_cvt_pk_bf16_f32 v{t+4+hh}, v{t+2*hh}, v{t+2*hh+1}")
        for hh in range(2):
            P(f"v_lshlrev_b32 v{t+2*hh}, 16, v{t+4+hh}")
            P(f"v_and_b32 v{t+2*hh+1}, 0xffff0000, v{t+4+hh}")
        for r in range(4): P(f"v_mul_f32 v{t+4+r}, v{t+r}, v{rs}")
        for r in range(4): P(f"v_fma_f32 v{t+r}, -v{t+4+r}, v{sd}, v{t+r}")
        for r in range(4): P(f"v_fma_f32 v{t+4+r}, v{t+r}, v{rs}, v{t+4+r}")
        for hh in range(2):
            P(f"v_cvt_pk_bf16_f32 v{t+hh}, v{t+4+2*hh}, v{t+4+2*hh+1}")
        for hh in range(2):
            P(f"v_lshlrev_b32 v{t+4+2*hh}, 16, v{t+hh}")
            P(f"v_and_b32 v{t+4+2*hh+1}, 0xffff0000, v{t+hh}")
        for hh in range(2):
            P(f"v_lshlrev_b32 v{du+2*hh}, 16, v{DR+2*m+hh}")
            P(f"v_and_b32 v{du+2*hh+1}, 0xffff0000, v{DR+2*m+hh}")
        for r in range(4): P(f"v_mul_f32 v{t+4+r}, v{t+4+r}, v{du+r}")
        for hh in range(2):
            P(f"v_cvt_pk_bf16_f32 v{t+hh}, v{t+4+2*hh}, v{t+4+2*hh+1}")
        for hh in range(2):
            P(f"v_lshlrev_b32 v{p+2*hh}, 16, v{t+hh}")
            P(f"v_and_b32 v{p+2*hh+1}, 0xffff0000, v{t+hh}")
    glist = []
    G = glist.append
    for m in range(5):
        a = ACCF + 4 * m; t = 2
        for hh in range(2):
            G(f"v_cvt_pk_bf16_f32 v{t+hh}, v{a+2*hh}, v{a+2*hh+1}")
        for hh in range(2):
            G(f"v_lshlrev_b32 v{a+2*hh}, 16, v{t+hh}")
            G(f"v_and_b32 v{a+2*hh+1}, 0xffff0000, v{t+hh}")
        for r in range(4): G(f"v_mul_f32 v{t+r}, {hexf(-LOG2E)}, v{a+r}")
        for r in range(4): G(f"v_exp_f32 v{t+r}, v{t+r}")
        for r in range(4): G(f"v_add_f32 v{t+r}, 1.0, v{t+r}")
        for r in range(4): G(f"v_rcp_f32 v{t+r}, v{t+r}")
        for r in range(4): G(f"v_mul_f32 v{t+r}, v{t+r}, v{a+r}")
        for hh in range(2):
            G(f"v_cvt_pk_bf16_f32 v{t+4+hh}, v{t+2*hh}, v{t+2*hh+1}")
        for hh in range(2):
            G(f"v_lshlrev_b32 v{a+2*hh}, 16, v{t+4+hh}")
            G(f"v_and_b32 v{a+2*hh+1}, 0xffff0000, v{t+4+hh}")
    fset = lambda stage, kk: FRAG + ((stage % 3) * 2 + kk) * 24
    def reads(stage, kk):
        sl = stage % K2_NR
        ra = 21 if sl >= 3 else 19
        oa = (sl - 3 if sl >= 3 else sl) * 10240
        f = fset(stage, kk)
        out = [f"ds_read_b128 {vr(f+20,4)}, v20 offset:{sl*8192 + kk*4096}"]
        out += [f"ds_read_b128 {vr(f+4*m,4)}, v{ra} offset:{oa + kk*5120 + m*1024}" for m in range(5)]
        return out
    def mfmas(stage, kk):
        f = fset(stage, kk); acc = ACCF if stage < NSF else ACCY
        return [f"v_mfma_f32_16x16x32_bf16 {vr(acc+4*m,4)}, {vr(f+4*m,4)}, {vr(f+20,4)}, {vr(acc+4*m,4)}" for m in range(5)]
    stamp(A, 1)
    A("s_barrier")
    stamp(A, 2)
    A(f"buffer_load_dwordx4 v[{SR}:{SR+3}], v25, s[44:47], s62 offen sc1")
    for kk in range(2):
        for r in reads(0, kk): A(r)
    A("s_barrier")
    for kk in range(2):
        for r in reads(1, kk): A(r)
    for j in range(nst):
        A(f"s_waitcnt lgkmcnt({12 if j < nst - 1 else 0})")
        mf = mfmas(j, 0) + mfmas(j, 1)
        if j < nst - 2:
            for m in mf[:2]: A(m)
            if j == 8:
                A("s_waitcnt vmcnt(0)")
                L = A.label("noy")
                A("s_cmp_lg_u32 s78, 0")
                A(f"s_cbranch_scc1 {L}")
                A("buffer_store_dwordx2 v[22:23], v24, s[44:47], s77 offen sc1")
                A(f"{L}:")
            A("s_barrier")
            rd = reads(j + 2, 0) + reads(j + 2, 1)
            rest = mf[2:]
            for i, m in enumerate(rest):
                for r in rd[(i * 12) // 8: ((i + 1) * 12) // 8]: A(r)
                A(m)
                if j >= 8:
                    for _ in range(2):
                        if plist: A(plist.pop(0))
                        elif j >= NSF + 2 and glist: A(glist.pop(0))
        else:
            for m in mf: A(m)
    assert not plist and not glist
    stamp(A, 3)
    A("v_lshlrev_b32 v18, 1, v18")
    A("s_lshl_b32 s58, s58, 1")
    so = 84 if not STAMPS else 68
    for m in range(5):
        t = 112 + 4 * m
        for hh in range(2):
            A(f"v_pk_add_f32 {vr(PR+4*m+2*hh,2)}, {vr(ACCY+4*m+2*hh,2)}, {vr(PR+4*m+2*hh,2)}")
        for hh in range(2):
            A(f"v_lshlrev_b32 v{t+2*hh}, 16, v{XR+2*m+hh}")
            A(f"v_and_b32 v{t+2*hh+1}, 0xffff0000, v{XR+2*m+hh}")
        for hh in range(2):
            A(f"v_pk_mul_f32 {vr(PR+4*m+2*hh,2)}, {vr(PR+4*m+2*hh,2)}, {vr(ACCF+4*m+2*hh,2)}")
        for hh in range(2):
            A(f"v_pk_add_f32 {vr(t+2*hh,2)}, {vr(t+2*hh,2)}, {vr(PR+4*m+2*hh,2)}")
        A(f"buffer_store_dwordx4 v[{t}:{t+3}], v18, s[{so}:{so+3}], s58 offen offset:{64*m}")
    stamp(A, 4); stamp(A, 5)

HEADER = open("recurrent_scan__ssm_conv_s5__dense_activation_relu__prompt.s.ref").read().split("; @launch")[0]

def kd(name, vgpr=256):
    return f""".p2align 6
.amdhsa_kernel {name}
  .amdhsa_next_free_vgpr {vgpr}
  .amdhsa_next_free_sgpr 102
  .amdhsa_accum_offset {vgpr}
  .amdhsa_group_segment_fixed_size 0
  .amdhsa_kernarg_size 120
  .amdhsa_user_sgpr_count 2
  .amdhsa_user_sgpr_kernarg_segment_ptr 1
  .amdhsa_system_sgpr_workgroup_id_x 1
.end_amdhsa_kernel
"""

def build():
    out = HEADER
    out += f"; @launch kernel=k1_kernel grid=(256,1,1) block=(512,1,1) lds={K1_LDS}\n"
    out += '.amdgcn_target "amdgcn-amd-amdhsa--gfx950"\n.text\n'
    for name, fn in (("k1_kernel", kernel1),):
        A = Asm(); A.nlabel = 0 if name == "k1_kernel" else 1000
        fn(A)
        lines = fix_hazards(A.lines, verbose=True)
        out += f".globl {name}\n.p2align 8\n.type {name},@function\n"
        out += "\n".join(("    " + l if not l.endswith(":") else l) for l in lines) + "\n"
    out += '.section .rodata,"a"\n' + kd("k1_kernel")
    return out

if __name__ == "__main__":
    if len(sys.argv) > 2: STAMPS = True; DBG = sys.argv[2]
    dst = sys.argv[1] if len(sys.argv) > 1 else "recurrent_scan__ssm_conv_s5__dense_activation_relu__prompt.s"
    open(dst, "w").write(build())
    print("wrote", dst)
```

```python
import sys, struct
from asmlib import *

T, D, DFF = 2048, 640, 1728
WS_STATS = 0x000000
WS_WSP   = 0x010000
WS_E     = 0x050000
WS_F2    = 0x080000
WS_F1    = 0x090000
WS_CP    = 0x100000
WS_W2P   = 0x300000
WS_H1    = 0x600000
WS_HF    = 0xC00000
WS_S     = 0x1400000
WS_TS    = 0x1A00000
WS_SIZE  = 0x1B00000
OOB = 0x7ffffff0

import os
MAP = os.environ.get("MAP", "bp")
STAMPS = False
DBG = "nopf"
def stamp(A, i):
    if STAMPS and i == 0:
        A("s_memrealtime s[96:97]")
    if STAMPS:
        A(f"s_memtime s[{80+2*i}:{81+2*i}]")
def stamps_flush(A, n, kidx, waitvm=True):
    if not STAMPS: return
    A("s_waitcnt lgkmcnt(0) vmcnt(0)" if waitvm else "s_waitcnt lgkmcnt(0)")
    A("s_memtime s[98:99]")
    A("s_memrealtime s[100:101]")
    A("s_waitcnt lgkmcnt(0)")
    A("s_lshl_b32 s57, s2, 3")
    A("s_add_u32 s57, s57, s34")
    A("s_lshl_b32 s57, s57, 6")
    A(f"s_add_u32 s57, s57, {WS_TS + kidx*131072}")
    A("v_mov_b32 v2, 0")
    for i in range(n):
        A(f"v_mov_b32 v3, s{80+2*i}")
        A(f"buffer_store_dword v3, v2, s[44:47], s57 offen offset:{4*i}")
    A(f"v_mov_b32 v3, s98")
    A(f"buffer_store_dword v3, v2, s[44:47], s57 offen offset:{4*n}")
    A(f"v_mov_b32 v3, s96")
    A(f"buffer_store_dword v3, v2, s[44:47], s57 offen offset:56")
    A(f"v_mov_b32 v3, s100")
    A(f"buffer_store_dword v3, v2, s[44:47], s57 offen offset:60")

def f2u(x): return struct.unpack("<I", struct.pack("<f", x))[0]
def hexf(x): return f"0x{f2u(x):08x}"
LOG2E = 1.4426950408889634
INV2PI = 0.15915494309189535

def divc(A, vq, vsrc, d, maxv):
    for sh in (16, 17, 18, 19, 20):
        mul = ((1 << sh) + d - 1) // d
        if all((c * mul) >> sh == c // d for c in range(maxv)) and maxv * mul < (1 << 32) and mul < (1 << 24):
            A(f"v_mul_u32_u24 {vr(vq)}, {mul}, {vr(vsrc)}")
            A(f"v_lshrrev_b32 {vr(vq)}, {sh}, {vr(vq)}")
            return
    raise Exception("no magic")

def srd(A, s, base, size):
    A(f"s_mov_b32 s{s}, s{base}")
    A(f"s_and_b32 s{s+1}, s{base+1}, 0xffff")
    A(f"s_mov_b32 s{s+2}, {size}")
    A(f"s_mov_b32 s{s+3}, 0x20000")

def cmul_add(A, dst, w, h, u):
    A(f"v_pk_fma_f32 {vr(dst,2)}, {vr(w,2)}, {vr(h,2)}, {vr(u,2)} op_sel:[0,0,0] op_sel_hi:[0,1,1]")
    A(f"v_pk_fma_f32 {vr(dst,2)}, {vr(w,2)}, {vr(h,2)}, {vr(dst,2)} op_sel:[1,1,0] op_sel_hi:[1,0,1] neg_lo:[1,0,0]")
def cmul(A, dst, w, h):
    A(f"v_pk_mul_f32 {vr(dst,2)}, {vr(w,2)}, {vr(h,2)} op_sel:[0,0] op_sel_hi:[0,1]")
    A(f"v_pk_fma_f32 {vr(dst,2)}, {vr(w,2)}, {vr(h,2)}, {vr(dst,2)} op_sel:[1,1,0] op_sel_hi:[1,0,1] neg_lo:[1,0,0]")

def wave_sum(A, regs):
    for mod in ("row_shr:1 row_mask:0xf bank_mask:0xf bound_ctrl:0", "row_shr:2 row_mask:0xf bank_mask:0xf bound_ctrl:0",
                "row_shr:4 row_mask:0xf bank_mask:0xf bound_ctrl:0", "row_shr:8 row_mask:0xf bank_mask:0xf bound_ctrl:0",
                "row_bcast:15 row_mask:0xa bank_mask:0xf", "row_bcast:31 row_mask:0xc bank_mask:0xf"):
        for r in regs:
            A(f"v_add_f32_dpp {vr(r)}, {vr(r)}, {vr(r)} {mod}")

def bf16r(A, r):
    A(f"v_cvt_pk_bf16_f32 {vr(r)}, {vr(r)}, {vr(r)}")
    A(f"v_lshlrev_b32 {vr(r)}, 16, {vr(r)}")

class VM:
    def __init__(s, A): s.A = A; s.ops = []
    def __call__(s, text, tag): s.A(text); s.ops.append(tag)
    def wait(s, tag, extra=""):
        idx = max([i for i, t in enumerate(s.ops) if t == tag], default=None)
        if idx is None:
            if extra: s.A(f"s_waitcnt {extra}")
            return
        n = len(s.ops) - 1 - idx
        assert n <= 63, n
        s.A(f"s_waitcnt vmcnt({n}) {extra}".strip())
        s.ops = s.ops[idx + 1:]
    def waitall(s, extra=""):
        s.A(f"s_waitcnt vmcnt(0) {extra}".strip()); s.ops = []

def common_ids(A):
    A("v_lshrrev_b32 v2, 6, v0")
    A("v_and_b32 v1, 255, v0")
    A("v_and_b32 v0, 63, v0")
    A("v_readfirstlane_b32 s34, v2")
    A("s_lshr_b32 s35, s2, 3")
    A("s_and_b32 s57, s2, 3")
    A("s_lshl_b32 s57, s57, 2")
    A("s_lshr_b32 s50, s35, 3")
    A("s_add_u32 s50, s50, s57")
    if MAP == "mixed":
        A("s_and_b32 s49, s35, 1")
        A("s_bfe_u32 s51, s35, 0x20001")
        A("s_and_b32 s57, s2, 4")
        A("s_add_u32 s51, s51, s57")
    else:
        A("s_bfe_u32 s49, s2, 0x10002")
        A("s_and_b32 s51, s35, 7")
    A("s_and_b32 s48, s34, 3")
    A("s_lshr_b32 s52, s48, 1")
    A("s_and_b32 s53, s48, 1")
    A("v_lshrrev_b32 v3, 3, v0")
    A("v_and_b32 v4, 7, v0")
    A("v_lshrrev_b32 v5, 4, v0")
    A("v_and_b32 v6, 15, v0")

def poll(A, load, stmp, scount, vtmp, target, iters=200000):
    L = A.label("poll"); Lx = A.label("pollx")
    A(f"s_mov_b32 s{scount}, {iters}")
    A(f"{L}:")
    A(load)
    A("s_waitcnt vmcnt(0)")
    A(f"v_readfirstlane_b32 s{stmp}, {vr(vtmp)}")
    A(f"s_cmp_eq_u32 s{stmp}, {target}")
    A(f"s_cbranch_scc1 {Lx}")
    A("s_sleep 1")
    A(f"s_sub_u32 s{scount}, s{scount}, 1")
    A(f"s_cmp_lg_u32 s{scount}, 0")
    A(f"s_cbranch_scc1 {L}")
    A(f"{Lx}:")

K1F_STAGE = 28672 + 16384
K1Y_STAGE = 20480 + 16384
K1_STATS = 0
K1_WS = 1024
K1_NONCE = 1984
K1F_RED = 2048
K1F_BUF = 9216
K1Y_T = 2048
K1Y_BUF = 25088
K1Y_SCR = K1Y_BUF + 3 * K1Y_STAGE
K1_LDS = 156160

def kernel1(A):
    A("k1_kernel:")
    A("s_cmp_ge_u32 s2, 256")
    A("s_cbranch_scc1 k1_end")
    stamp(A, 0)
    A("s_load_dwordx16 s[4:19], s[0:1], 0")
    A("s_load_dwordx8 s[20:27], s[0:1], 64")
    A("s_load_dwordx4 s[28:31], s[0:1], 96")
    A("s_load_dwordx2 s[32:33], s[0:1], 112")
    common_ids(A)
    A("s_lshr_b32 s57, s51, 1")
    A("s_mul_i32 s54, s57, 27")
    A("s_and_b32 s57, s51, 1")
    A("s_mul_i32 s57, s57, 14")
    A("s_add_u32 s54, s54, s57")
    A("s_waitcnt lgkmcnt(0)")
    srd(A, 36, 4, T * D * 2)
    srd(A, 44, 32, WS_SIZE)
    A("s_cmp_ge_u32 s34, 4")
    A("s_cbranch_scc1 k1_ld")
    A("s_cmp_lg_u32 s49, 0")
    A("s_cbranch_scc1 k1_cF")
    k1_compute(A, False)
    A("s_branch p2_comp")
    A("k1_cF:")
    k1_compute(A, True)
    A("p2_comp:")
    stamps_flush(A, 8, 0, False)
    p2_compute(A)
    stamps_flush(A, 6, 1)
    A("s_branch k1_end")
    A("k1_ld:")
    A("s_cmp_lg_u32 s49, 0")
    A("s_cbranch_scc1 k1_lF")
    k1_loader(A, False)
    A("s_branch p2_ld")
    A("k1_lF:")
    k1_loader(A, True)
    A("p2_ld:")
    stamps_flush(A, 8, 0, False)
    p2_loaders(A)
    A("k1_end:")
    A("s_endpgm")

def stats_compute(A, vm):
    for r in range(2):
        for i in range(5):
            A(f"v_lshlrev_b32 v{40+10*r+2*i}, 16, v{20+5*r+i}")
            A(f"v_and_b32 v{41+10*r+2*i}, 0xffff0000, v{20+5*r+i}")
    for r in range(2):
        b = 40 + 10 * r
        A(f"v_add_f32 v{60+r}, v{b}, v{b+1}")
        for i in range(2, 10):
            A(f"v_add_f32 v{60+r}, v{60+r}, v{b+i}")
    wave_sum(A, [60, 61])
    A("v_readlane_b32 s57, v60, 63")
    A("v_readlane_b32 s58, v61, 63")
    A(f"v_mov_b32 v62, {hexf(1.0/640)}")
    A("v_mul_f32 v60, s57, v62")
    A("v_mul_f32 v61, s58, v62")
    for r in range(2):
        b = 40 + 10 * r
        for i in range(10):
            A(f"v_sub_f32 v{b+i}, v{b+i}, v{60+r}")
    for r in range(2):
        b = 40 + 10 * r
        A(f"v_mul_f32 v{64+r}, v{b}, v{b}")
        for i in range(1, 10):
            A(f"v_fmac_f32 v{64+r}, v{b+i}, v{b+i}")
    wave_sum(A, [64, 65])
    A("v_readlane_b32 s57, v64, 63")
    A("v_readlane_b32 s58, v65, 63")
    A("v_mul_f32 v64, s57, v62")
    A("v_mul_f32 v65, s58, v62")
    A("v_and_b32 v66, 1, v0")
    A("v_cmp_eq_u32 vcc, 1, v66")
    A("v_cndmask_b32 v68, v60, v61, vcc")
    A("v_cndmask_b32 v70, v64, v65, vcc")
    bf16r(A, 68)
    bf16r(A, 70)
    A(f"v_add_f32 v70, {hexf(1e-5)}, v70")
    bf16r(A, 70)
    A("v_sqrt_f32 v70, v70")
    bf16r(A, 70)
    A("v_rcp_f32 v69, v70")
    A("v_fma_f32 v71, -v70, v69, 1.0")
    A("v_fma_f32 v69, v71, v69, v69")
    A("v_mov_b32 v71, 0")
    A("v_lshlrev_b32 v66, 4, v0")
    A(f"v_mov_b32 v67, {OOB}")
    A("v_cmp_gt_u32 vcc, 2, v0")
    A("v_cndmask_b32 v66, v67, v66, vcc")
    A("s_lshl_b32 s57, s63, 4")
    A(f"s_add_u32 s57, s57, {WS_STATS}")
    vm("buffer_store_dwordx4 v[68:71], v66, s[44:47], s57 offen sc1", "st")

def k1_loader(A, isF):
    vm = VM(A)
    STG = K1F_STAGE if isF else K1Y_STAGE
    BUF = K1F_BUF if isF else K1Y_BUF
    ASZ = 28672 if isF else 20480
    if not isF:
        L = A.label("nononce")
        A("s_or_b32 s57, s2, s48")
        A("s_cmp_lg_u32 s57, 0")
        A(f"s_cbranch_scc1 {L}")
        A("s_memrealtime s[70:71]")
        A("v_mov_b32 v18, 0")
        A("s_waitcnt lgkmcnt(0)")
        A("s_or_b32 s70, s70, 1")
        A("v_mov_b32 v20, s70")
        A("v_mov_b32 v21, s71")
        A("s_mov_b64 exec, 1")
        A("global_store_dwordx2 v18, v[20:21], s[30:31] sc1")
        A("s_mov_b64 exec, -1")
        A(f"{L}:")
    A("v_xor_b32 v17, v4, v3")
    A("v_mul_u32_u24 v19, 5120, v3")
    A("v_lshl_add_u32 v247, v17, 4, v19")
    A("s_lshl_b32 s60, s50, 7")
    A("s_lshl_b32 s59, s52, 6")
    A("s_add_u32 s60, s60, s59")
    A("s_lshl_b32 s59, s53, 1")
    A("s_add_u32 s60, s60, s59")
    A("s_mul_i32 s60, s60, 1280")
    A("s_lshl_b32 s62, s48, 12")
    A(f"s_add_u32 s62, s62, {ASZ+BUF}")
    def dmaX(st):
        bo = (st % 3) * STG
        for q in range(4):
            A(f"s_add_u32 m0, s62, {bo + 1024*q}")
            A(f"s_add_u32 s65, s60, {st*128 + (32*(q&1) + (q>>1))*1280}")
            vm(f"buffer_load_dwordx4 v247, s[36:39], s65 offen lds", f"d{st}")
    stamp(A, 5)
    dmaX(0)
    if isF:
        srd(A, 40, 24, D * DFF * 2)
        A("s_mul_i32 s59, s48, 55296")
        A("s_lshl_b32 s64, s54, 5")
        A("s_add_u32 s59, s59, s64")
        A("s_mul_i32 s61, s48, 7168")
        A(f"s_add_u32 s61, s61, {BUF}")
        for q in range(7):
            A(f"v_add_u32 v17, {64*q}, v0")
            divc(A, 18, 17, 28, 448)
            A("v_mul_u32_u24 v19, 28, v18")
            A("v_sub_u32 v19, v17, v19")
            A("v_lshrrev_b32 v17, 2, v18")
            A("v_and_b32 v17, 2, v17")
            A("v_xor_b32 v19, v19, v17")
            A("v_mul_u32_u24 v18, 3456, v18")
            A(f"v_lshl_add_u32 v{240+q}, v19, 4, v18")
            A(f"s_add_u32 m0, s61, {1024*q}")
            A("s_nop 0")
            vm(f"buffer_load_dwordx4 v{240+q}, s[40:43], s59 offen lds", "d0")
    else:
        A("s_cmp_lt_u32 s48, 2")
        A("s_cselect_b32 s64, s10, s12")
        A("s_cselect_b32 s65, s11, s13")
        srd(A, 40, 64, D * D * 2)
        A("v_xor_b32 v18, s52, v17")
        A("v_mul_u32_u24 v19, 1280, v3")
        A("v_lshl_add_u32 v240, v18, 4, v19")
        A("s_mul_i32 s59, s51, 80")
        A("s_mul_i32 s64, s53, 40")
        A("s_add_u32 s59, s59, s64")
        A("s_mul_i32 s59, s59, 1280")
        A("s_mul_i32 s61, s53, 10240")
        A("s_lshl_b32 s64, s52, 10")
        A("s_add_u32 s61, s61, s64")
        A(f"s_add_u32 s61, s61, {BUF}")
    def dmaA(st):
        bo = (st % 3) * STG
        tag = f"d{st}"
        if isF:
            A(f"s_add_u32 s65, s59, {st*64*3456}")
            for q in range(7):
                A(f"s_add_u32 m0, s61, {bo + 1024*q}")
                A("s_nop 0")
                vm(f"buffer_load_dwordx4 v{240+q}, s[40:43], s65 offen lds", tag)
        else:
            for q in range(5):
                A(f"s_add_u32 m0, s61, {bo + 2048*q}")
                A(f"s_add_u32 s65, s59, {st*128 + q*8*1280}")
                vm(f"buffer_load_dwordx4 v240, s[40:43], s65 offen lds", tag)
    def dma(st):
        dmaA(st); dmaX(st)
    if not isF: dmaA(0)
    stamp(A, 6)
    dma(1)
    stamp(A, 7)
    A(f"v_mov_b32 v15, {OOB}")
    if isF:
        A("s_mul_i32 s76, s51, 224")
        A("s_add_u32 s76, s76, 1280")
        def c2():
            A("v_lshlrev_b32 v9, 2, v1")
            for r in range(8):
                A(f"ds_read_b32 v{108+r}, v9 offset:{K1F_RED+896*r}")
            A("s_waitcnt lgkmcnt(0)")
            for r in range(1, 8):
                A(f"v_add_f32 v108, v108, v{108+r}")
            A("s_mul_i32 s57, s50, 3072")
            A("s_add_u32 s57, s57, s76")
            A("s_lshl_b32 s57, s57, 2")
            A(f"s_add_u32 s57, s57, {WS_WSP}")
            A("v_cmp_gt_u32 vcc, 224, v1")
            A("v_cndmask_b32 v9, v15, v9, vcc")
            vm("buffer_store_dword v108, v9, s[44:47], s57 offen sc1", "st")
        pre = {0: [c2]}
        chunks = {1: [lambda: vm.wait("st")]}
        nws = 224
    else:
        A("s_mul_i32 s76, s51, 160")
        def w2a():
            srd(A, 68, 26, D * DFF * 2)
            A("s_lshl_b32 s57, s50, 3")
            A("s_add_u32 s57, s57, s51")
            A("s_lshl_b32 s57, s57, 2")
            A("s_add_u32 s57, s57, s48")
            A("s_lshr_b32 s72, s57, 3")
            A("s_and_b32 s73, s57, 7")
            A("s_mul_i32 s58, s72, 40960")
            A("s_mul_i32 s57, s73, 160")
            A("s_add_u32 s58, s58, s57")
            A("s_mul_i32 s74, s48, 5120")
            A(f"s_add_u32 s74, s74, {K1Y_SCR}")
            for q in range(5):
                A(f"v_add_u32 v17, {64*q}, v0")
                divc(A, 18, 17, 10, 320)
                A("v_mul_u32_u24 v19, 10, v18")
                A("v_sub_u32 v19, v17, v19")
                A("v_mul_u32_u24 v18, 1280, v18")
                A("v_lshl_add_u32 v16, v19, 4, v18")
                A(f"s_add_u32 m0, s74, {1024*q}")
                A("s_nop 0")
                vm("buffer_load_dwordx4 v16, s[68:71], s58 offen lds", "w2")
        def w2b():
            A("v_lshrrev_b32 v17, 2, v6")
            A("v_lshl_add_u32 v17, v5, 2, v17")
            A("v_mul_u32_u24 v17, 160, v17")
            A("v_and_b32 v18, 3, v6")
            A("v_lshl_add_u32 v17, v18, 3, v17")
            A("v_add_u32 v17, s74, v17")
            vm.wait("w2")
            for m in range(5):
                for h in range(2):
                    A(f"ds_read_b64_tr_b16 v[{120+4*m+2*h}:{121+4*m+2*h}], v17 offset:{h*2560 + m*32}")
            A("s_mul_i32 s57, s73, 54")
            A("s_add_u32 s57, s57, s72")
            A("s_mul_i32 s57, s57, 5120")
            A(f"s_add_u32 s57, s57, {WS_W2P}")
            A("s_cmp_lt_u32 s72, 54")
            A(f"s_cselect_b32 s57, s57, {OOB}")
            A("v_lshlrev_b32 v18, 4, v0")
            A("v_add_u32 v19, 4096, v18")
            A("s_waitcnt lgkmcnt(0)")
            for m in range(5):
                vm(f"buffer_store_dwordx4 v[{120+4*m}:{123+4*m}], v18, s[44:47], s57 offen offset:{1024*m} sc1" if m < 4 else
                   f"buffer_store_dwordx4 v[{120+4*m}:{123+4*m}], v19, s[44:47], s57 offen sc1", "st2")
        pre = {}
        chunks = {3: [w2a], 5: [w2b], 7: [lambda: vm.wait('st2')]}
        nws = 160
    A("v_and_b32 v20, 15, v0")
    A("v_lshrrev_b32 v21, 3, v20")
    A("v_and_b32 v22, 7, v20")
    A("v_lshlrev_b32 v21, 7, v21")
    A("v_add_u32 v21, v21, v22")
    A("s_lshl_b32 s57, s50, 3")
    A("v_add_u32 v21, s57, v21")
    A("s_lshl_b32 s57, s49, 7")
    A("s_add_u32 s57, s57, s51")
    A("v_lshl_add_u32 v22, v20, 3, s57")
    A("v_and_b32 v23, 16, v0")
    A("v_cmp_eq_u32 vcc, 0, v23")
    A("v_cndmask_b32 v25, v22, v21, vcc")
    A("v_lshlrev_b32 v25, 7, v25")
    A(f"v_add_u32 v25, {WS_F1}, v25")
    A("v_mov_b32 v26, 0")
    def n1():
        vm("global_load_dwordx2 v[28:29], v26, s[30:31] sc1", "nn")
    def n2():
        Lp = A.label("np"); Lx = A.label("npx"); Lc = A.label("npc")
        A("s_mov_b32 s58, 200000")
        vm.wait("nn")
        A(f"s_branch {Lc}")
        A(f"{Lp}:")
        A("s_sleep 1")
        A("global_load_dwordx2 v[28:29], v26, s[30:31] sc1")
        A("s_waitcnt vmcnt(0)")
        A(f"{Lc}:")
        A("v_readfirstlane_b32 s57, v28")
        A("s_cmp_lg_u32 s57, 0")
        A(f"s_cbranch_scc1 {Lx}")
        A("s_sub_u32 s58, s58, 1")
        A("s_cmp_lg_u32 s58, 0")
        A(f"s_cbranch_scc1 {Lp}")
        A(f"{Lx}:")
        A("s_lshl_b32 s57, s49, 7")
        A("s_lshl_b32 s58, s50, 3")
        A("s_add_u32 s57, s57, s58")
        A("s_add_u32 s57, s57, s51")
        A("s_lshl_b32 s57, s57, 7")
        A(f"s_add_u32 s79, s57, {WS_F1}")
        A("v_cmp_eq_u32 vcc, 0, v1")
        A("v_cndmask_b32 v27, v15, v26, vcc")
        vm("buffer_store_dwordx2 v[28:29], v27, s[44:47], s79 offen sc1", "fs")
    def n3():
        vm("buffer_store_dwordx2 v[28:29], v27, s[44:47], s79 offen offset:8 sc1", "fs")
    chunks.setdefault(1, []).insert(0, n1)
    chunks.setdefault(2, []).append(n2)
    chunks.setdefault(8, []).insert(0, n3)
    def g1():
        vm("buffer_load_dwordx2 v[32:33], v25, s[44:47], 0 offen sc1", "fl")
    def g2():
        Lp = A.label("poll"); Lx = A.label("pollx"); Lc = A.label("pollc")
        A("s_mov_b32 s58, 200000")
        vm.wait("fl")
        A(f"s_branch {Lc}")
        A(f"{Lp}:")
        A("s_sleep 1")
        A("buffer_load_dwordx2 v[32:33], v25, s[44:47], 0 offen sc1")
        A("s_waitcnt vmcnt(0)")
        A(f"{Lc}:")
        A("v_cmp_ne_u64 vcc, v[32:33], v[28:29]")
        A("s_cmp_eq_u64 vcc, 0")
        A(f"s_cbranch_scc1 {Lx}")
        A("s_sub_u32 s58, s58, 1")
        A("s_cmp_lg_u32 s58, 0")
        A(f"s_cbranch_scc1 {Lp}")
        A(f"{Lx}:")
        A("v_lshlrev_b32 v34, 4, v1")
        A("s_lshl_b32 s57, s50, 11")
        A(f"s_add_u32 s57, s57, {WS_STATS}")
        vm("buffer_load_dwordx2 v[36:37], v34, s[44:47], s57 offen sc1", "ga")
        A("v_lshlrev_b32 v35, 2, v1")
        A("s_lshl_b32 s57, s76, 2")
        A(f"s_add_u32 s57, s57, {WS_WSP}")
        for sl in range(16):
            vm(f"buffer_load_dword v{40+sl}, v35, s[44:47], s57 offen sc1", "ga")
            A(f"s_add_u32 s57, s57, {3072*4}")
    def g3():
        vm.wait("ga")
        A("v_lshlrev_b32 v34, 3, v1")
        A("v_cmp_gt_u32 vcc, 128, v1")
        A("s_and_saveexec_b64 s[66:67], vcc")
        A(f"ds_write_b64 v34, v[36:37] offset:{K1_STATS}")
        A("s_mov_b64 exec, s[66:67]")
        for sl in range(1, 16):
            A(f"v_add_f32 v40, v40, v{40+sl}")
        A(f"v_cmp_gt_u32 vcc, {nws}, v1")
        A("s_and_saveexec_b64 s[66:67], vcc")
        A(f"ds_write_b32 v35, v40 offset:{K1_WS}")
        A("s_mov_b64 exec, s[66:67]")
        A(f"ds_write_b64 v26, v[28:29] offset:{K1_NONCE}")
        A("s_waitcnt lgkmcnt(0)")
    chunks.setdefault(6, []).append(g1)
    chunks.setdefault(7, []).insert(0, g2)
    vm.wait("d0")
    stamp(A, 1)
    A("s_barrier")
    for j in range(9):
        for f in pre.get(j, []): f()
        if j + 2 <= 9: dma(j + 2)
        for f in chunks.get(j, []): f()
        vm.wait(f"d{j+1}", "lgkmcnt(0)")
        A("s_barrier")
    stamp(A, 2)
    g3()
    stamp(A, 3)
    stamp(A, 4)
    A("s_barrier")

def k1_side(A, isF):
    vm = VM(A)
    A("s_lshl_b32 s57, s49, 3")
    A("s_add_u32 s57, s57, s51")
    A("s_lshl_b32 s57, s57, 3")
    A("s_lshl_b32 s58, s50, 7")
    A("s_add_u32 s57, s57, s58")
    A("s_lshl_b32 s58, s48, 1")
    A("s_add_u32 s63, s57, s58")
    A("s_mul_i32 s57, s63, 1280")
    A("s_add_u32 s58, s57, 1280")
    A("v_lshlrev_b32 v2, 2, v0")
    for i in range(5):
        vm(f"buffer_load_dword v{20+i}, v2, s[36:39], s57 offen offset:{256*i}", "sm")
    for i in range(5):
        vm(f"buffer_load_dword v{25+i}, v2, s[36:39], s58 offen offset:{256*i}", "sm")
    A(f"v_mov_b32 v15, {OOB}")
    if isF:
        srd(A, 40, 24, D * DFF * 2)
        divc(A, 7, 1, 28, 256)
        A("v_mul_u32_u24 v8, 28, v7")
        A("v_sub_u32 v8, v1, v8")
        A("s_mov_b32 s57, 17280")
        A("v_mul_lo_u32 v9, v7, s57")
        A("v_lshl_add_u32 v9, v8, 4, v9")
        A("s_mul_i32 s57, s50, 138240")
        A("s_lshl_b32 s64, s54, 5")
        A("s_add_u32 s57, s57, s64")
        for r in range(5):
            vm(f"buffer_load_dwordx4 v[{72+4*r}:{75+4*r}], v9, s[40:43], s57 offen", "sm2")
            A("s_add_u32 s57, s57, 3456")
        srd(A, 68, 14, D * D * 2)
        srd(A, 72, 16, D * D * 2)
        A("s_lshl_b32 s57, s50, 3")
        A("s_add_u32 s57, s57, s51")
        A("s_lshl_b32 s57, s57, 4")
        A("v_lshrrev_b32 v10, 4, v1")
        A("v_add_u32 v10, s57, v10")
        divc(A, 11, 10, 40, 2048)
        A("v_mul_u32_u24 v12, 40, v11")
        A("v_sub_u32 v12, v10, v12")
        A("v_lshl_add_u32 v13, v11, 4, v6")
        A("v_mul_u32_u24 v13, 1280, v13")
        A("v_lshl_add_u32 v13, v12, 5, v13")
        vm("buffer_load_dwordx4 v[92:95], v13, s[68:71], 0 offen", "sm3")
        vm("buffer_load_dwordx4 v[96:99], v13, s[68:71], 0 offen offset:16", "sm3")
        vm("buffer_load_dwordx4 v[100:103], v13, s[72:75], 0 offen", "sm3")
        vm("buffer_load_dwordx4 v[104:107], v13, s[72:75], 0 offen offset:16", "sm3")
        divc(A, 14, 11, 5, 64)
        A("v_mul_u32_u24 v16, 5, v14")
        A("v_sub_u32 v16, v11, v16")
        A("v_mul_u32_u24 v14, 40, v14")
        A("v_add_u32 v14, v14, v12")
        A("v_mul_u32_u24 v14, 5120, v14")
        A("v_lshl_add_u32 v14, v16, 10, v14")
        A("v_lshl_add_u32 v14, v6, 4, v14")
        A("v_cmp_gt_u32 vcc, 1600, v10")
        A("v_cndmask_b32 v14, v15, v14, vcc")
        yield
        vm.wait("sm")
        stats_compute(A, vm)
        vm.wait("sm2")
        for c in range(4):
            A(f"v_lshlrev_b32 v{108+2*c}, 16, v{72+c}")
            A(f"v_and_b32 v{109+2*c}, 0xffff0000, v{72+c}")
        for r in range(1, 5):
            for c in range(4):
                A(f"v_lshlrev_b32 v116, 16, v{72+4*r+c}")
                A(f"v_and_b32 v117, 0xffff0000, v{72+4*r+c}")
                A(f"v_add_f32 v{108+2*c}, v{108+2*c}, v116")
                A(f"v_add_f32 v{109+2*c}, v{109+2*c}, v117")
        A("v_mul_u32_u24 v9, 896, v7")
        A("v_lshl_add_u32 v9, v8, 5, v9")
        A("v_cmp_gt_u32 vcc, 224, v1")
        A("s_and_saveexec_b64 s[66:67], vcc")
        A(f"ds_write_b128 v9, v[108:111] offset:{K1F_RED}")
        A(f"ds_write_b128 v9, v[112:115] offset:{K1F_RED+16}")
        A("s_mov_b64 exec, s[66:67]")
        vm.wait("sm3")
        A("s_mov_b32 s57, 0x05040100")
        A("s_mov_b32 s58, 0x07060302")
        for c in range(8):
            A(f"v_xor_b32 v{100+c}, 0x80008000, v{100+c}")
        A(f"s_mov_b32 s65, {WS_CP}")
        for g in range(4):
            o = 40 + 4 * g
            A(f"v_perm_b32 v{o}, v{100+g}, v{92+g}, s57")
            A(f"v_perm_b32 v{o+1}, v{100+g}, v{92+g}, s58")
            A(f"v_perm_b32 v{o+2}, v{104+g}, v{96+g}, s57")
            A(f"v_perm_b32 v{o+3}, v{104+g}, v{96+g}, s58")
            vm(f"buffer_store_dwordx4 v[{o}:{o+3}], v14, s[44:47], s65 offen offset:{256*g} sc1", "st")
    else:
        A("s_cmp_lt_u32 s48, 2")
        A("s_cselect_b32 s64, s10, s12")
        A("s_cselect_b32 s65, s11, s13")
        srd(A, 40, 64, D * D * 2)
        divc(A, 9, 1, 80, 256)
        A("v_mul_u32_u24 v10, 80, v9")
        A("v_sub_u32 v10, v1, v10")
        A("s_mul_i32 s57, s51, 80")
        A("v_add_u32 v11, s57, v10")
        A("v_lshlrev_b32 v11, 1, v11")
        vm("global_load_ushort v92, v11, s[6:7]", "sm3")
        vm("global_load_ushort v93, v11, s[8:9]", "sm3")
        vm("global_load_ushort v94, v11, s[18:19]", "sm3")
        A("s_lshl_b32 s57, s53, 6")
        A("v_add_u32 v7, s57, v0")
        A("s_mul_i32 s57, s51, 80")
        A("v_add_u32 v8, s57, v7")
        A("v_mul_u32_u24 v8, 1280, v8")
        A("s_mul_i32 s57, s50, 80")
        for r in range(5):
            vm(f"buffer_load_dwordx4 v[{72+4*r}:{75+4*r}], v8, s[40:43], s57 offen offset:{16*r}", "sm2")
        divc(A, 12, 1, 40, 256)
        A("v_mul_u32_u24 v13, 40, v12")
        A("v_sub_u32 v13, v1, v13")
        A("v_mul_u32_u24 v12, 5120, v12")
        A("v_lshl_add_u32 v12, v13, 4, v12")
        A("v_cmp_gt_u32 vcc, 80, v1")
        A("v_cndmask_b32 v12, v15, v12, vcc")
        A("s_mul_i32 s57, s50, 10240")
        A("s_mul_i32 s58, s51, 640")
        A("s_add_u32 s57, s57, s58")
        A(f"s_add_u32 s57, s57, {WS_E}")
        for r in range(4): A(f"v_mov_b32 v{112+r}, -1")
        vm("buffer_store_dwordx4 v[112:115], v12, s[44:47], s57 offen sc1", "st")
        yield
        vm.wait("sm")
        stats_compute(A, vm)
        vm.wait("sm2")
        A("s_mov_b32 s57, 0x3f803f80")
        A("v_mov_b32 v108, 0")
        A("v_mov_b32 v109, 0")
        for r in range(20):
            A(f"v_dot2_f32_bf16 v{108+(r&1)}, v{72+r}, s57, v{108+(r&1)}")
        A("s_nop 2")
        A("v_add_f32 v108, v108, v109")
        A("s_mul_i32 s57, s50, 3072")
        A("s_mul_i32 s58, s51, 160")
        A("s_add_u32 s57, s57, s58")
        A("s_add_u32 s57, s57, s52")
        A("s_lshl_b32 s57, s57, 2")
        A(f"s_add_u32 s57, s57, {WS_WSP}")
        A("v_lshlrev_b32 v8, 3, v7")
        A("v_cmp_gt_u32 vcc, 80, v7")
        A("v_cndmask_b32 v8, v15, v8, vcc")
        vm("buffer_store_dword v108, v8, s[44:47], s57 offen sc1", "st")
        for r in (92, 93, 94): A(f"v_lshlrev_b32 v{r}, 16, v{r}")
        A(f"v_mul_f32 v94, {hexf(LOG2E)}, v94")
        A("v_exp_f32 v94, v94")
        bf16r(A, 94)
        A("v_mul_f32 v95, v94, v92")
        A("v_mul_f32 v96, v94, v93")
        A(f"v_mul_f32 v95, {hexf(LOG2E)}, v95")
        A(f"v_mul_f32 v96, {hexf(INV2PI)}, v96")
        A("v_mul_u32_u24 v97, 288, v10")
        A("v_lshl_add_u32 v97, v9, 3, v97")
        A("v_cmp_gt_u32 vcc, 240, v1")
        A("s_and_saveexec_b64 s[66:67], vcc")
        for r in range(11):
            A(f"v_add_u32 v98, {3*r}, v9")
            A("v_lshlrev_b32 v99, 2, v98")
            A("v_lshlrev_b32 v100, 6, v98")
            A("v_subrev_u32 v100, 1024, v100")
            A("v_cmp_gt_u32 vcc, 16, v98")
            A("v_cndmask_b32 v99, v100, v99, vcc")
            A("v_cvt_f32_u32 v99, v99")
            A("v_mul_f32 v100, v99, v95")
            A("v_mul_f32 v101, v99, v96")
            A("v_exp_f32 v100, v100")
            A("v_fract_f32 v101, v101")
            A("v_cos_f32 v102, v101")
            A("v_sin_f32 v103, v101")
            A("v_mul_f32 v102, v100, v102")
            A("v_mul_f32 v103, v100, v103")
            A(f"ds_write_b64 v97, v[102:103] offset:{K1Y_T+24*r}")
        A("s_mov_b64 exec, s[66:67]")
        A("v_exp_f32 v100, v95")
        A("v_fract_f32 v101, v96")
        A("v_cos_f32 v102, v101")
        A("v_sin_f32 v103, v101")
        A("v_mul_f32 v102, v100, v102")
        A("v_mul_f32 v103, v100, v103")
        A("v_add_f32 v98, -1.0, v102")
        A("v_mul_f32 v99, v92, v92")
        A("v_fmac_f32 v99, v93, v93")
        A("v_rcp_f32 v100, v99")
        A("v_fma_f32 v101, -v99, v100, 1.0")
        A("v_fma_f32 v100, v101, v100, v100")
        A("v_add_f32 v100, v100, v100")
        A("v_mul_f32 v104, v98, v92")
        A("v_fmac_f32 v104, v103, v93")
        A("v_mul_f32 v105, v103, v92")
        A("v_fma_f32 v105, -v98, v93, v105")
        A("v_mul_f32 v104, v104, v100")
        A("v_mul_f32 v105, v105, v100")
        A("v_cmp_gt_u32 vcc, 80, v1")
        A("s_and_saveexec_b64 s[66:67], vcc")
        A(f"ds_write_b128 v97, v[102:105] offset:{K1Y_T+272}")
        A("s_mov_b64 exec, s[66:67]")
    A("s_waitcnt lgkmcnt(0)")
    yield

def k1_prefetch_setup(A, isF):
    A("s_and_b32 s57, s2, 3")
    A("s_lshl_b32 s57, s57, 9")
    A("s_lshl_b32 s59, s35, 4")
    A("s_add_u32 s57, s57, s59")
    A("s_mul_i32 s57, s57, 1280")
    A("v_lshrrev_b32 v10, 2, v0")
    A("v_and_b32 v11, 3, v0")
    A("v_mul_u32_u24 v10, 1280, v10")
    A("v_lshl_add_u32 v10, v11, 7, v10")
    A("s_mul_i32 s58, s53, 384")
    A("s_add_u32 s66, s57, s58")
    A("s_add_u32 s66, s66, 384")
    if isF:
        srd(A, 40, 24, D * DFF * 2)
        A("v_min_u32 v11, 53, v0")
        A("v_lshlrev_b32 v11, 7, v11")
        A("s_mul_i32 s67, s35, 6912")
        A("s_add_u32 s58, s48, 3")
        A(f"s_mul_i32 s58, s58, {64*3456}")
        A("s_add_u32 s67, s67, s58")
        A(f"s_add_u32 s68, s67, {4*64*3456}")
    else:
        A("s_cmp_lt_u32 s48, 2")
        A("s_cselect_b32 s64, s10, s12")
        A("s_cselect_b32 s65, s11, s13")
        srd(A, 40, 64, D * D * 2)
        divc(A, 12, 0, 20, 64)
        A("v_mul_u32_u24 v13, 20, v12")
        A("v_sub_u32 v13, v0, v13")
        A("v_min_u32 v12, 2, v12")
        A("v_mul_u32_u24 v13, 1280, v13")
        A("v_lshl_add_u32 v11, v12, 7, v13")
        A("s_mul_i32 s67, s35, 25600")
        A("s_mul_i32 s58, s53, 384")
        A("s_add_u32 s68, s67, 896")
        A("s_add_u32 s67, s67, s58")
        A("s_add_u32 s67, s67, 384")
def k1_prefetch(A, isF, batch):
    if "nopf" in DBG: return
    if batch == 0:
        A("buffer_load_dword v12, v11, s[40:43], s67 offen")
        A("buffer_load_dword v13, v10, s[36:39], s66 offen")
    else:
        A("buffer_load_dword v12, v11, s[40:43], s68 offen")

def k1_compute(A, isF):
    ACC = 128; FRAG = 32
    MT = 7 if isF else 5; NT = 4
    STG = K1F_STAGE if isF else K1Y_STAGE
    BUF = K1F_BUF if isF else K1Y_BUF
    ASZ = 28672 if isF else 20480
    side = k1_side(A, isF) if "noside" not in DBG else iter([0, 0])
    next(side)
    AB = 232; BB = 244
    if isF:
        A("v_lshrrev_b32 v17, 2, v6")
        A("v_lshl_add_u32 v17, v5, 3, v17")
        A("v_mul_u32_u24 v17, 448, v17")
        A("v_and_b32 v18, 3, v6")
        A("v_lshl_add_u32 v17, v18, 3, v17")
        A("s_mul_i32 s57, s52, 224")
        A(f"s_add_u32 s57, s57, {BUF}")
        A("v_add_u32 v17, s57, v17")
        A("v_and_b32 v18, 1, v5")
        A("v_lshlrev_b32 v18, 5, v18")
        A("v_add_u32 v19, v17, v18")
        A("v_sub_u32 v17, v17, v18")
        A("s_cmp_eq_u32 s52, 0")
        A("s_cselect_b64 vcc, -1, 0")
        AB = 240; BB = 246
        A(f"v_cndmask_b32 v{AB}, v17, v19, vcc")
        A(f"v_cndmask_b32 v{AB+1}, v19, v17, vcc")
    else:
        A("v_and_b32 v17, 1, v6")
        A("v_lshrrev_b32 v18, 1, v6")
        A("v_lshl_add_u32 v19, v17, 3, v18")
        A("v_xor_b32 v17, v17, v18")
        A("v_xor_b32 v17, v17, v5")
        A("v_lshlrev_b32 v19, 7, v19")
        A("v_lshl_add_u32 v19, v17, 4, v19")
        A("s_mul_i32 s57, s52, 10240")
        A(f"s_add_u32 s57, s57, {BUF}")
        AB = 240; BB = 246
        A(f"v_add_u32 v{AB}, s57, v19")
        A(f"v_xor_b32 v{AB+1}, 64, v{AB}")
    A("v_and_b32 v18, 7, v0")
    A("v_xor_b32 v18, v18, v5")
    A("v_lshlrev_b32 v17, 7, v6")
    A("s_lshl_b32 s57, s53, 13")
    A(f"s_add_u32 s57, s57, {ASZ+BUF}")
    A("v_add_u32 v17, s57, v17")
    A(f"v_lshl_add_u32 v{BB}, v18, 4, v17")
    A(f"v_xor_b32 v{BB+1}, 64, v{BB}")
    for b in (1, 2):
        for i in range(2):
            A(f"v_add_u32 v{AB+2*b+i}, {b*STG}, v{AB+i}")
            A(f"v_add_u32 v{BB+2*b+i}, {b*STG}, v{BB+i}")
    for r in range(MT * NT * 4):
        A(f"v_mov_b32 v{ACC+r}, 0")
    fA = lambda st, m: FRAG + st * (MT + NT) * 4 + m * 4
    fB = lambda st, n: FRAG + st * (MT + NT) * 4 + MT * 4 + n * 4
    accr = lambda m, n: ACC + (m * NT + n) * 4
    def reads(stage, kk):
        b = stage % 3; st = kk
        out = []
        for n in range(NT):
            out.append(f"ds_read_b128 {vr(fB(st,n),4)}, v{BB+2*b+kk} offset:{n*2048}")
        for m in range(MT):
            if isF:
                for h in range(2):
                    out.append(f"ds_read_b64_tr_b16 {vr(fA(st,m)+2*h,2)}, v{AB+2*b+(m&1)} offset:{(32*kk+4*h)*448 + m*32}")
            else:
                out.append(f"ds_read_b128 {vr(fA(st,m),4)}, v{AB+2*b+kk} offset:{m*2048}")
        return out
    def mfmas(st):
        return [f"v_mfma_f32_16x16x32_bf16 {vr(accr(m,n),4)}, {vr(fA(st,m),4)}, {vr(fB(st,n),4)}, {vr(accr(m,n),4)}"
                for m in range(MT) for n in range(NT)]
    next(side)
    stamp(A, 1)
    A("s_barrier")
    stamp(A, 2)
    for r in reads(0, 0): A(r)
    PRE = 3
    for j in range(10):
        A("s_waitcnt lgkmcnt(0)")
        mf = mfmas(0); rd = reads(j, 1)
        for i, m in enumerate(mf):
            A(m)
            if i < len(rd): A(rd[i])
        A("s_waitcnt lgkmcnt(0)")
        mf = mfmas(1)
        if j < 9:
            rd = reads(j + 1, 0)
            for m in mf[:PRE]: A(m)
            if j == 1: A("s_waitcnt vmcnt(0)")
            A("s_barrier")
            for i, m in enumerate(mf[PRE:]):
                if i < len(rd): A(rd[i])
                A(m)
        else:
            for m in mf: A(m)
    stamp(A, 3)
    A("s_barrier")
    stamp(A, 4)
    if isF: k1F_epilogue(A, ACC)
    else: k1Y_epilogue(A, ACC)

def frag_store_plan(ntiles, parity):
    plan = []
    t = 0
    if parity == 1:
        plan.append(("single", [0], 0, 1)); t = 1
    while t + 1 < ntiles:
        plan.append(("pair", [t, t + 1], (t + parity) // 2, 0)); t += 2
    if t < ntiles:
        plan.append(("single", [t], (t + parity) // 2, 0))
    return plan

def k1F_epilogue(A, ACC):
    A("s_lshl_b32 s57, s53, 9")
    A("v_lshlrev_b32 v17, 5, v6")
    A("v_add_u32 v17, s57, v17")
    A(f"ds_read_b128 v[32:35], v17 offset:{K1_STATS}")
    A(f"ds_read_b128 v[36:39], v17 offset:{K1_STATS+16}")
    A("s_mul_i32 s57, s52, 448")
    A("v_lshlrev_b32 v18, 4, v5")
    A("v_add_u32 v18, s57, v18")
    for m in range(7):
        A(f"ds_read_b128 v[{40+4*m}:{43+4*m}], v18 offset:{K1_WS+64*m}")
    A("s_mul_i32 s57, s52, 7")
    A("s_add_u32 s57, s57, s54")
    A("s_and_b32 s64, s57, 1")
    A("s_lshr_b32 s57, s57, 1")
    A("s_mul_i32 s58, s50, 54")
    A("s_add_u32 s57, s57, s58")
    A("s_lshl_b32 s57, s57, 3")
    A("s_lshl_b32 s58, s53, 2")
    A("s_add_u32 s57, s57, s58")
    A("s_lshl_b32 s57, s57, 10")
    A(f"s_add_u32 s65, s57, {WS_HF}")
    A("v_lshlrev_b32 v17, 4, v0")
    A("s_and_b32 s57, s51, s52")
    A("s_and_b32 s57, s57, 1")
    A("s_cmp_eq_u32 s57, 0")
    A(f"s_cselect_b32 s57, 0, {OOB}")
    A("v_add_u32 v19, s57, v17")
    A("s_waitcnt lgkmcnt(0)")
    def conv(m, n, dst):
        a = ACC + (m * 4 + n) * 4
        w = 40 + 4 * m; st = 32 + 2 * n
        for hh in range(2):
            A(f"v_pk_fma_f32 {vr(a+2*hh,2)}, {vr(w+2*hh,2)}, {vr(st,2)}, {vr(a+2*hh,2)} op_sel:[0,0,0] op_sel_hi:[1,0,1] neg_lo:[1,0,0] neg_hi:[1,0,0]")
        for hh in range(2):
            A(f"v_pk_mul_f32 {vr(a+2*hh,2)}, {vr(a+2*hh,2)}, {vr(st,2)} op_sel:[0,1] op_sel_hi:[1,1]")
        for hh in range(2):
            A(f"v_cvt_pk_bf16_f32 v{dst+hh}, v{a+2*hh}, v{a+2*hh+1}")
        for hh in range(2):
            A(f"v_pk_max_i16 v{dst+hh}, v{dst+hh}, 0")
    L1 = A.label("ep1"); L2 = A.label("epx")
    A("s_cmp_lg_u32 s64, 0")
    A(f"s_cbranch_scc1 {L1}")
    for parity in (0, 1):
        if parity == 1: A(f"{L1}:")
        plan = frag_store_plan(7, parity)
        if parity == 1:
            k, tl, ks, _ = plan.pop()
            plan += [("single", [tl[0]], ks, 0), ("single", [tl[1]], ks, 1)]
        cnt = 0
        for kind, tl, ks, half in plan:
            A(f"s_add_u32 s57, s65, {ks*8192}")
            for n in range(4):
                t = 72 + 4 * (cnt % 4); cnt += 1
                if kind == "pair":
                    conv(tl[0], n, t); conv(tl[1], n, t + 2)
                    A(f"buffer_store_dwordx4 v[{t}:{t+3}], v17, s[44:47], s57 offen offset:{1024*n} sc1")
                else:
                    conv(tl[0], n, t)
                    vo = 19 if tl[0] == 6 else 17
                    if "nosingle" not in DBG: A(f"buffer_store_dwordx2 v[{t}:{t+1}], v{vo}, s[44:47], s57 offen offset:{1024*n + 8*half} sc1")
        if parity == 0: A(f"s_branch {L2}")
    A(f"{L2}:")
    for i in (5, 6, 7): stamp(A, i)

def k1Y_epilogue(A, ACC):
    ST = 32; WSR = 40; P = 208; TB = 60
    A("s_lshl_b32 s57, s53, 9")
    A("v_lshlrev_b32 v17, 5, v6")
    A("v_add_u32 v17, s57, v17")
    A(f"ds_read_b128 v[{ST}:{ST+3}], v17 offset:{K1_STATS}")
    A(f"ds_read_b128 v[{ST+4}:{ST+7}], v17 offset:{K1_STATS+16}")
    A("s_mul_i32 s57, s52, 320")
    A("v_lshlrev_b32 v18, 4, v5")
    A("v_add_u32 v18, s57, v18")
    for m in range(5):
        A(f"ds_read_b128 v[{WSR+4*m}:{WSR+4*m+3}], v18 offset:{K1_WS+64*m}")
    A("s_mul_i32 s57, s52, 11520")
    A("v_mul_u32_u24 v19, 576, v5")
    A("v_add_u32 v19, s57, v19")
    A("v_lshl_add_u32 v20, v6, 3, v19")
    A("s_lshl_b32 s57, s50, 1")
    A("s_add_u32 s64, s57, s53")
    A("s_mul_i32 s57, s51, 80")
    A("s_mul_i32 s58, s52, 40")
    A("s_add_u32 s57, s57, s58")
    A("s_lshl_b32 s68, s57, 3")
    A("v_lshlrev_b32 v21, 4, v5")
    A("v_add_u32 v21, s68, v21")
    A("v_cmp_eq_u32 vcc, 15, v6")
    A(f"v_mov_b32 v18, {OOB}")
    A("v_cndmask_b32 v22, v18, v21, vcc")
    A("s_mul_i32 s69, s64, 5120")
    A(f"s_add_u32 s69, s69, {WS_E}")
    def load_tab1(m, base):
        for q in range(2):
            o = K1Y_T + (8 * m + q) * 288
            b = base + 12 * q
            A(f"ds_read_b128 v[{b}:{b+3}], v19 offset:{o+272}")
            A(f"ds_read_b64 v[{b+4}:{b+5}], v19 offset:{o+8}")
            A(f"ds_read_b64 v[{b+6}:{b+7}], v19 offset:{o+16}")
            A(f"ds_read_b64 v[{b+8}:{b+9}], v19 offset:{o+32}")
            A(f"ds_read_b64 v[{b+10}:{b+11}], v19 offset:{o+64}")
    load_tab1(0, TB)
    TMP = 108
    for m in range(5):
        base = TB + 24 * (m & 1)
        A("s_waitcnt lgkmcnt(0)")
        if m < 4: load_tab1(m + 1, TB + 24 * ((m + 1) & 1))
        for n in range(4):
            for q in range(2):
                u = ACC + (m * 4 + n) * 4 + 2 * q
                w = WSR + 4 * m + 2 * q
                st = ST + 2 * n
                cf = base + 12 * q + 2
                t0 = TMP + 4 * q
                A(f"v_pk_fma_f32 {vr(t0,2)}, {vr(w,2)}, {vr(st,2)}, {vr(u,2)} op_sel:[0,0,0] op_sel_hi:[1,0,1] neg_lo:[1,0,0] neg_hi:[1,0,0]")
                A(f"v_pk_mul_f32 {vr(t0+2,2)}, {vr(cf,2)}, {vr(st,2)} op_sel:[0,1] op_sel_hi:[1,1]")
                cmul(A, u, t0 + 2, t0)
        for n in range(1, 4):
            for q in range(2):
                a = base + 12 * q
                e = P + 4 * m + 2 * q
                t0 = TMP + 4 * q
                prev = (ACC + (m * 4) * 4 + 2 * q) if n == 1 else (t0 if n == 3 else t0 + 2)
                dst = e if n == 3 else (t0 + 2 if n == 1 else t0)
                u = ACC + (m * 4 + n) * 4 + 2 * q
                cmul_add(A, dst, a, prev, u)
        for ki, k in enumerate((1, 2, 4, 8)):
            for q in range(2):
                e = P + 4 * m + 2 * q
                t0 = TMP + 4 * q
                A(f"v_mov_b32_dpp v{t0}, v{e} row_shr:{k} row_mask:0xf bank_mask:0xf bound_ctrl:0")
                A(f"v_mov_b32_dpp v{t0+1}, v{e+1} row_shr:{k} row_mask:0xf bank_mask:0xf bound_ctrl:0")
            for q in range(2):
                e = P + 4 * m + 2 * q
                t0 = TMP + 4 * q
                cmul_add(A, e, base + 12 * q + 4 + 2 * ki, t0, e)
        pb = TMP + 8 + 4 * (m & 1)
        for r in range(4):
            A(f"v_min_u32 v{pb+r}, -2, v{P+4*m+r}")
        A(f"buffer_store_dwordx4 v[{pb}:{pb+3}], v22, s[44:47], s69 offen offset:{64*m} sc1")
    stamp(A, 5)
    A("v_sub_u32 v23, s64, v6")
    A("v_subrev_u32 v24, 1, v23")
    A("v_subrev_u32 v25, 17, v23")
    A("v_cmp_le_i32 vcc, 0, v24")
    A("v_mul_u32_u24 v24, 5120, v24")
    A("v_add_u32 v24, v24, v21")
    A("v_cndmask_b32 v24, v18, v24, vcc")
    A("v_cmp_le_i32 vcc, 0, v25")
    A("v_mul_u32_u24 v25, 5120, v25")
    A("v_add_u32 v25, v25, v21")
    A("v_cndmask_b32 v25, v18, v25, vcc")
    A(f"s_mov_b32 s69, {WS_E}")
    EN = 32; EF = 52; TB2 = 72
    def load_tab2(m, base):
        for q in range(2):
            o = K1Y_T + (8 * m + q) * 288
            b = base + 8 * q
            A(f"ds_read_b64 v[{b}:{b+1}], v20 offset:{o+128}")
            A(f"ds_read_b64 v[{b+2}:{b+3}], v19 offset:{o+256}")
            A(f"ds_read_b64 v[{b+4}:{b+5}], v20 offset:{o}")
            A(f"ds_read_b64 v[{b+6}:{b+7}], v19 offset:{o+272}")
    load_tab2(0, TB2)
    A("s_mul_i32 s57, s51, 5")
    A("s_lshl_b32 s58, s52, 1")
    A("s_add_u32 s57, s57, s58")
    A("s_mul_i32 s58, s50, 40")
    A("s_add_u32 s57, s57, s58")
    A("s_lshl_b32 s57, s57, 3")
    A("s_lshl_b32 s58, s53, 2")
    A("s_add_u32 s57, s57, s58")
    A("s_lshl_b32 s57, s57, 10")
    A(f"s_add_u32 s65, s57, {WS_H1}")
    A("v_lshlrev_b32 v27, 4, v0")
    Lp = A.label("lb"); Lx = A.label("lbx")
    A("s_mov_b32 s58, 100000")
    A(f"{Lp}:")
    for m in range(5):
        A(f"buffer_load_dwordx4 v[{EN+4*m}:{EN+4*m+3}], v24, s[44:47], s69 offen offset:{64*m} sc1")
        A(f"buffer_load_dwordx4 v[{EF+4*m}:{EF+4*m+3}], v25, s[44:47], s69 offen offset:{64*m} sc1")
    A("s_waitcnt vmcnt(0)")
    A(f"v_max3_u32 v26, v{EN}, v{EN+1}, v{EN+2}")
    for r in range(3, 39, 2):
        A(f"v_max3_u32 v26, v26, v{EN+r}, v{EN+r+1}")
    A(f"v_max_u32 v26, v26, v{EN+39}")
    A("v_cmp_eq_u32 vcc, -1, v26")
    A("s_cmp_eq_u64 vcc, 0")
    A(f"s_cbranch_scc1 {Lx}")
    A("s_sleep 1")
    A("s_sub_u32 s58, s58, 1")
    A("s_cmp_lg_u32 s58, 0")
    A(f"s_cbranch_scc1 {Lp}")
    A(f"{Lx}:")
    stamp(A, 6)
    PK = 228
    for m in range(5):
        base = TB2 + 16 * (m & 1)
        A("s_waitcnt lgkmcnt(0)")
        if m < 4: load_tab2(m + 1, TB2 + 16 * ((m + 1) & 1))
        for q in range(2):
            cmul_add(A, EN + 4 * m + 2 * q, base + 8 * q + 2, EF + 4 * m + 2 * q, EN + 4 * m + 2 * q)
        for q in range(2):
            cmul(A, EF + 4 * m + 2 * q, base + 8 * q, EN + 4 * m + 2 * q)
        for k in (8, 4, 2, 1):
            for r in range(4):
                x = EF + 4 * m + r
                A(f"v_add_f32_dpp v{x}, v{x}, v{x} row_ror:{k} row_mask:0xf bank_mask:0xf")
        for q in range(2):
            e = P + 4 * m + 2 * q
            t0 = TMP + 4 * q
            A(f"v_mov_b32_dpp v{t0}, v{e} row_shr:1 row_mask:0xf bank_mask:0xf bound_ctrl:0")
            A(f"v_mov_b32_dpp v{t0+1}, v{e+1} row_shr:1 row_mask:0xf bank_mask:0xf bound_ctrl:0")
        for q in range(2):
            t0 = TMP + 4 * q
            cmul_add(A, t0, base + 8 * q + 4, EF + 4 * m + 2 * q, t0)
        for n in range(4):
            for q in range(2):
                u = ACC + (m * 4 + n) * 4 + 2 * q
                prev = (TMP + 4 * q) if n == 0 else u - 4
                cmul_add(A, u, base + 8 * q + 6, prev, u)
    stamp(A, 7)
    L1 = A.label("ey1"); L2 = A.label("eyx")
    A("s_cmp_lg_u32 s52, 0")
    A(f"s_cbranch_scc1 {L1}")
    for parity in (0, 1):
        if parity == 1: A(f"{L1}:")
        cnt = 0
        for kind, tl, ks, half in frag_store_plan(5, parity):
            A(f"s_add_u32 s57, s65, {ks*8192}")
            for n in range(4):
                t = 32 + 4 * (cnt % 8); cnt += 1
                for x, m in enumerate(tl):
                    u = ACC + (m * 4 + n) * 4
                    A(f"v_cvt_pk_bf16_f32 v{t+2*x}, v{u}, v{u+1}")
                    A(f"v_cvt_pk_bf16_f32 v{t+2*x+1}, v{u+2}, v{u+3}")
                if kind == "pair":
                    A(f"buffer_store_dwordx4 v[{t}:{t+3}], v27, s[44:47], s57 offen offset:{1024*n} sc1")
                else:
                    if "nosingle" not in DBG: A(f"buffer_store_dwordx2 v[{t}:{t+1}], v27, s[44:47], s57 offen offset:{1024*n + 8*half} sc1")
        if parity == 0: A(f"s_branch {L2}")
    A(f"{L2}:")

K2_NR = 7
K2_R0 = 25088
K2_BOFF = K2_R0 + K2_NR * 10240
K2_NST = 47
NSF = 27

def p2_ids(A):
    A("s_lshl_b32 s57, s49, 7")
    A("s_lshl_b32 s58, s50, 3")
    A("s_add_u32 s57, s57, s58")
    A("s_add_u32 s57, s57, s51")
    A("s_lshl_b32 s57, s57, 7")
    A("s_lshl_b32 s58, s48, 3")
    A("s_add_u32 s57, s57, s58")
    A(f"s_add_u32 s77, s57, {WS_F2}")
    A("s_mov_b32 s78, s49")
    A("s_and_b32 s57, s2, 3")
    A("s_bfe_u32 s58, s2, 0x10002")
    A("s_lshr_b32 s59, s35, 2")
    A("s_lshl_b32 s50, s57, 2")
    A("s_lshr_b32 s57, s59, 1")
    A("s_add_u32 s50, s50, s57")
    A("s_and_b32 s49, s59, 1")
    A("s_lshl_b32 s51, s58, 2")
    A("s_and_b32 s57, s35, 3")
    A("s_add_u32 s51, s51, s57")
    A("v_lshlrev_b32 v10, 4, v0")

def spin_flags(A, loads, regs, vm=None):
    Lp = A.label("sp"); Lx = A.label("spx")
    A("s_mov_b32 s70, 400000")
    A(f"{Lp}:")
    for l in loads: A(l)
    A("s_waitcnt vmcnt(0)")
    for i, r in enumerate(regs):
        A(f"v_cmp_ne_u64 {'vcc' if i == 0 else 's[72:73]'}, v[{r}:{r+1}], v[28:29]")
        if i: A("s_or_b64 vcc, vcc, s[72:73]")
    A("s_cmp_eq_u64 vcc, 0")
    A(f"s_cbranch_scc1 {Lx}")
    A("s_sleep 1")
    A("s_sub_u32 s70, s70, 1")
    A("s_cmp_lg_u32 s70, 0")
    A(f"s_cbranch_scc1 {Lp}")
    A(f"{Lx}:")
    if vm: vm.ops = []

def p2_loaders(A):
    stamp(A, 0)
    p2_ids(A)
    A("s_mul_i32 s57, s53, 5120")
    A(f"s_mul_i32 s62, s51, {20*10240}")
    A("s_add_u32 s62, s62, s57")
    A(f"s_add_u32 s62, s62, {WS_CP}")
    A(f"s_mul_i32 s63, s51, {27*10240}")
    A("s_add_u32 s63, s63, s57")
    A(f"s_add_u32 s63, s63, {WS_W2P}")
    A(f"s_add_u32 s57, s57, {K2_R0}")
    A("s_lshl_b32 s58, s53, 13")
    A("s_lshl_b32 s59, s49, 12")
    A("s_add_u32 s58, s58, s59")
    A(f"s_mul_i32 s64, s50, {40*8192}")
    A("s_add_u32 s64, s64, s58")
    A(f"s_add_u32 s64, s64, {WS_H1}")
    A(f"s_mul_i32 s66, s50, {54*8192}")
    A("s_add_u32 s66, s66, s58")
    A(f"s_add_u32 s66, s66, {WS_HF}")
    A("s_lshl_b32 s59, s53, 12")
    A(f"s_add_u32 s59, s59, {K2_BOFF}")
    A("s_cmp_lg_u32 s52, 0")
    A("s_cselect_b32 s62, s64, s62")
    A("s_cselect_b32 s63, s66, s63")
    A("s_cselect_b32 s58, s59, s57")
    A("s_cbranch_scc0 p2_lA")
    p2_loader(A, True)
    stamps_flush(A, 6, 1)
    A("s_branch k1_end")
    A("p2_lA:")
    p2_loader(A, False)
    stamps_flush(A, 6, 1)

def p2_loader(A, isB):
    vm = VM(A)
    nst = K2_NST
    nI = 4 if isB else 5
    sstr = 16384 if isB else 10240
    lstr = 8192 if isB else 10240
    if not isB:
        A("v_lshlrev_b32 v30, 7, v0")
        A(f"v_add_u32 v30, {WS_F1+8}, v30")
        A("s_mov_b32 s64, 8192")
        A("s_mov_b32 s65, 16384")
        A("s_mov_b32 s66, 24576")
        spin_flags(A, ["buffer_load_dwordx2 v[32:33], v30, s[44:47], 0 offen sc1", "buffer_load_dwordx2 v[34:35], v30, s[44:47], s64 offen sc1",
                       "buffer_load_dwordx2 v[36:37], v30, s[44:47], s65 offen sc1", "buffer_load_dwordx2 v[38:39], v30, s[44:47], s66 offen sc1"], [32, 34, 36, 38])
    else:
        A("v_bfe_u32 v30, v0, 2, 3")
        A("v_and_b32 v31, 3, v0")
        A("v_lshlrev_b32 v30, 7, v30")
        A("v_lshl_add_u32 v30, v31, 3, v30")
        A("s_lshl_b32 s64, s50, 10")
        A(f"s_add_u32 s64, s64, {WS_F2}")
        A(f"s_add_u32 s66, s64, {128*128}")
        spin_flags(A, ["buffer_load_dwordx2 v[32:33], v30, s[44:47], s66 offen sc1"], [32])
    def dma(st):
        if isB and st == NSF:
            spin_flags(A, ["buffer_load_dwordx2 v[32:33], v30, s[44:47], s64 offen sc1"], [32], vm)
        bo = (st % K2_NR) * lstr
        src, so = (63, st * sstr) if st < NSF else (62, (st - NSF) * sstr)
        for q in range(nI):
            A(f"s_add_u32 m0, s58, {bo + 1024*q}")
            A(f"s_add_u32 s65, s{src}, {so + 1024*q}")
            vm("buffer_load_dwordx4 v10, s[44:47], s65 offen sc1 lds", f"d{st}")
    stamp(A, 1)
    n0 = 3 if isB else K2_NR
    for st in range(n0): dma(st)
    vm.wait("d0")
    stamp(A, 2)
    A("s_barrier")
    vm.wait("d1")
    A("s_barrier")
    for st in range(n0, K2_NR): dma(st)
    for j in range(nst - 2):
        vm.wait(f"d{j+2}")
        A("s_barrier")
        if j + K2_NR < nst: dma(j + K2_NR)
    for i in (3, 4, 5): stamp(A, i)

def p2_compute(A):
    stamp(A, 0)
    A("v_mov_b32 v26, 0")
    A(f"ds_read_b64 v[22:23], v26 offset:{K1_NONCE}")
    p2_ids(A)
    srd(A, 72, 4, T * D * 2)
    srd(A, 84 if not STAMPS else 68, 28, T * D * 4)
    A("v_cmp_eq_u32 vcc, 0, v0")
    A(f"v_mov_b32 v24, {OOB}")
    A("v_cndmask_b32 v24, v24, v26, vcc")
    L = A.label("nof")
    A("s_cmp_eq_u32 s78, 0")
    A(f"s_cbranch_scc1 {L}")
    A("s_waitcnt vmcnt(0) lgkmcnt(0)")
    A("buffer_store_dwordx2 v[22:23], v24, s[44:47], s77 offen sc1")
    A(f"{L}:")
    FRAG = 112
    ACCY = 28; ACCF = 48; XR = 68; SR = 78; DR = 82; PR = 92
    nst = K2_NST
    A("s_lshl_b32 s57, s50, 7")
    A("s_lshl_b32 s58, s49, 6")
    A("s_add_u32 s57, s57, s58")
    A("s_add_u32 s57, s57, s48")
    A("v_lshl_add_u32 v17, v6, 2, s57")
    A("v_mul_u32_u24 v18, 1280, v17")
    A("v_lshl_add_u32 v18, v5, 3, v18")
    A("s_mul_i32 s58, s51, 160")
    for m in range(5):
        A(f"buffer_load_dwordx2 v[{XR+2*m}:{XR+2*m+1}], v18, s[72:75], s58 offen offset:{32*m}")
    A("v_lshlrev_b32 v25, 4, v17")
    A(f"s_mov_b32 s62, {WS_STATS}")
    A("v_lshlrev_b32 v26, 3, v5")
    A("v_add_u32 v26, s58, v26")
    for m in range(5):
        A(f"global_load_dwordx2 v[{DR+2*m}:{DR+2*m+1}], v26, s[20:21] offset:{32*m}")
    A("s_lshl_b32 s57, s48, 10")
    A(f"s_add_u32 s57, s57, {K2_BOFF}")
    A("v_add_u32 v20, s57, v10")
    A(f"v_add_u32 v21, {K2_R0 + 3*10240}, v10")
    A(f"v_add_u32 v19, {K2_R0}, v10")
    for r in range(40):
        A(f"v_mov_b32 v{ACCY+r}, 0")
    plist = []
    P = plist.append
    mm, rs, sd = SR, SR + 1, SR + 2
    for m in range(5):
        x = XR + 2 * m; t = 2; du = 12; p = PR + 4 * m
        for hh in range(2):
            P(f"v_lshlrev_b32 v{t+2*hh}, 16, v{x+hh}")
            P(f"v_and_b32 v{t+2*hh+1}, 0xffff0000, v{x+hh}")
        for r in range(4): P(f"v_sub_f32 v{t+r}, v{t+r}, v{mm}")
        for hh in range(2):
            P(f"v_cvt_pk_bf16_f32 v{t+4+hh}, v{t+2*hh}, v{t+2*hh+1}")
        for hh in range(2):
            P(f"v_lshlrev_b32 v{t+2*hh}, 16, v{t+4+hh}")
            P(f"v_and_b32 v{t+2*hh+1}, 0xffff0000, v{t+4+hh}")
        for r in range(4): P(f"v_mul_f32 v{t+4+r}, v{t+r}, v{rs}")
        for r in range(4): P(f"v_fma_f32 v{t+r}, -v{t+4+r}, v{sd}, v{t+r}")
        for r in range(4): P(f"v_fma_f32 v{t+4+r}, v{t+r}, v{rs}, v{t+4+r}")
        for hh in range(2):
            P(f"v_cvt_pk_bf16_f32 v{t+hh}, v{t+4+2*hh}, v{t+4+2*hh+1}")
        for hh in range(2):
            P(f"v_lshlrev_b32 v{t+4+2*hh}, 16, v{t+hh}")
            P(f"v_and_b32 v{t+4+2*hh+1}, 0xffff0000, v{t+hh}")
        for hh in range(2):
            P(f"v_lshlrev_b32 v{du+2*hh}, 16, v{DR+2*m+hh}")
            P(f"v_and_b32 v{du+2*hh+1}, 0xffff0000, v{DR+2*m+hh}")
        for r in range(4): P(f"v_mul_f32 v{t+4+r}, v{t+4+r}, v{du+r}")
        for hh in range(2):
            P(f"v_cvt_pk_bf16_f32 v{t+hh}, v{t+4+2*hh}, v{t+4+2*hh+1}")
        for hh in range(2):
            P(f"v_lshlrev_b32 v{p+2*hh}, 16, v{t+hh}")
            P(f"v_and_b32 v{p+2*hh+1}, 0xffff0000, v{t+hh}")
    glist = []
    G = glist.append
    for m in range(5):
        a = ACCF + 4 * m; t = 2
        for hh in range(2):
            G(f"v_cvt_pk_bf16_f32 v{t+hh}, v{a+2*hh}, v{a+2*hh+1}")
        for hh in range(2):
            G(f"v_lshlrev_b32 v{a+2*hh}, 16, v{t+hh}")
            G(f"v_and_b32 v{a+2*hh+1}, 0xffff0000, v{t+hh}")
        for r in range(4): G(f"v_mul_f32 v{t+r}, {hexf(-LOG2E)}, v{a+r}")
        for r in range(4): G(f"v_exp_f32 v{t+r}, v{t+r}")
        for r in range(4): G(f"v_add_f32 v{t+r}, 1.0, v{t+r}")
        for r in range(4): G(f"v_rcp_f32 v{t+r}, v{t+r}")
        for r in range(4): G(f"v_mul_f32 v{t+r}, v{t+r}, v{a+r}")
        for hh in range(2):
            G(f"v_cvt_pk_bf16_f32 v{t+4+hh}, v{t+2*hh}, v{t+2*hh+1}")
        for hh in range(2):
            G(f"v_lshlrev_b32 v{a+2*hh}, 16, v{t+4+hh}")
            G(f"v_and_b32 v{a+2*hh+1}, 0xffff0000, v{t+4+hh}")
    fset = lambda stage, kk: FRAG + ((stage % 3) * 2 + kk) * 24
    def reads(stage, kk):
        sl = stage % K2_NR
        ra = 21 if sl >= 3 else 19
        oa = (sl - 3 if sl >= 3 else sl) * 10240
        f = fset(stage, kk)
        out = [f"ds_read_b128 {vr(f+20,4)}, v20 offset:{sl*8192 + kk*4096}"]
        out += [f"ds_read_b128 {vr(f+4*m,4)}, v{ra} offset:{oa + kk*5120 + m*1024}" for m in range(5)]
        return out
    def mfmas(stage, kk):
        f = fset(stage, kk); acc = ACCF if stage < NSF else ACCY
        return [f"v_mfma_f32_16x16x32_bf16 {vr(acc+4*m,4)}, {vr(f+4*m,4)}, {vr(f+20,4)}, {vr(acc+4*m,4)}" for m in range(5)]
    stamp(A, 1)
    A("s_barrier")
    stamp(A, 2)
    A(f"buffer_load_dwordx4 v[{SR}:{SR+3}], v25, s[44:47], s62 offen sc1")
    for kk in range(2):
        for r in reads(0, kk): A(r)
    A("s_barrier")
    for kk in range(2):
        for r in reads(1, kk): A(r)
    for j in range(nst):
        A(f"s_waitcnt lgkmcnt({12 if j < nst - 1 else 0})")
        mf = mfmas(j, 0) + mfmas(j, 1)
        if j < nst - 2:
            for m in mf[:2]: A(m)
            if j == 8:
                A("s_waitcnt vmcnt(0)")
                L = A.label("noy")
                A("s_cmp_lg_u32 s78, 0")
                A(f"s_cbranch_scc1 {L}")
                A("buffer_store_dwordx2 v[22:23], v24, s[44:47], s77 offen sc1")
                A(f"{L}:")
            A("s_barrier")
            rd = reads(j + 2, 0) + reads(j + 2, 1)
            rest = mf[2:]
            for i, m in enumerate(rest):
                for r in rd[(i * 12) // 8: ((i + 1) * 12) // 8]: A(r)
                A(m)
                if j >= 8:
                    for _ in range(2):
                        if plist: A(plist.pop(0))
                        elif j >= NSF + 2 and glist: A(glist.pop(0))
        else:
            for m in mf: A(m)
    assert not plist and not glist
    stamp(A, 3)
    A("v_lshlrev_b32 v18, 1, v18")
    A("s_lshl_b32 s58, s58, 1")
    so = 84 if not STAMPS else 68
    for m in range(5):
        t = 112 + 4 * m
        for hh in range(2):
            A(f"v_pk_add_f32 {vr(PR+4*m+2*hh,2)}, {vr(ACCY+4*m+2*hh,2)}, {vr(PR+4*m+2*hh,2)}")
        for hh in range(2):
            A(f"v_lshlrev_b32 v{t+2*hh}, 16, v{XR+2*m+hh}")
            A(f"v_and_b32 v{t+2*hh+1}, 0xffff0000, v{XR+2*m+hh}")
        for hh in range(2):
            A(f"v_pk_mul_f32 {vr(PR+4*m+2*hh,2)}, {vr(PR+4*m+2*hh,2)}, {vr(ACCF+4*m+2*hh,2)}")
        for hh in range(2):
            A(f"v_pk_add_f32 {vr(t+2*hh,2)}, {vr(t+2*hh,2)}, {vr(PR+4*m+2*hh,2)}")
        A(f"buffer_store_dwordx4 v[{t}:{t+3}], v18, s[{so}:{so+3}], s58 offen offset:{64*m}")
    stamp(A, 4); stamp(A, 5)

HEADER = open("recurrent_scan__ssm_conv_s5__dense_activation_relu__prompt.s.ref").read().split("; @launch")[0]

def kd(name, vgpr=256):
    return f""".p2align 6
.amdhsa_kernel {name}
  .amdhsa_next_free_vgpr {vgpr}
  .amdhsa_next_free_sgpr 102
  .amdhsa_accum_offset {vgpr}
  .amdhsa_group_segment_fixed_size 0
  .amdhsa_kernarg_size 120
  .amdhsa_user_sgpr_count 2
  .amdhsa_user_sgpr_kernarg_segment_ptr 1
  .amdhsa_system_sgpr_workgroup_id_x 1
.end_amdhsa_kernel
"""

def build():
    out = HEADER
    out += f"; @launch kernel=k1_kernel grid=(256,1,1) block=(512,1,1) lds={K1_LDS}\n"
    out += '.amdgcn_target "amdgcn-amd-amdhsa--gfx950"\n.text\n'
    for name, fn in (("k1_kernel", kernel1),):
        A = Asm(); A.nlabel = 0 if name == "k1_kernel" else 1000
        fn(A)
        lines = fix_hazards(A.lines, verbose=True)
        out += f".globl {name}\n.p2align 8\n.type {name},@function\n"
        out += "\n".join(("    " + l if not l.endswith(":") else l) for l in lines) + "\n"
    out += '.section .rodata,"a"\n' + kd("k1_kernel")
    return out

if __name__ == "__main__":
    if len(sys.argv) > 2: STAMPS = True; DBG = sys.argv[2]
    dst = sys.argv[1] if len(sys.argv) > 1 else "recurrent_scan__ssm_conv_s5__dense_activation_relu__prompt.s"
    open(dst, "w").write(build())
    print("wrote", dst)
```

```python
import sys, struct
from asmlib import *

T, D, DFF = 2048, 640, 1728
WS_STATS = 0x000000
WS_WSP   = 0x010000
WS_E     = 0x050000
WS_F2    = 0x080000
WS_F1    = 0x090000
WS_CP    = 0x100000
WS_W2P   = 0x300000
WS_H1    = 0x600000
WS_HF    = 0xC00000
WS_S     = 0x1400000
WS_TS    = 0x1A00000
WS_SIZE  = 0x1B00000
OOB = 0x7ffffff0

import os
MAP = os.environ.get("MAP", "bp")
STAMPS = False
DBG = "nopf"
def stamp(A, i):
    if STAMPS and i == 0:
        A("s_memrealtime s[96:97]")
    if STAMPS:
        A(f"s_memtime s[{80+2*i}:{81+2*i}]")
def stamps_flush(A, n, kidx, waitvm=True):
    if not STAMPS: return
    A("s_waitcnt lgkmcnt(0) vmcnt(0)" if waitvm else "s_waitcnt lgkmcnt(0)")
    A("s_memtime s[98:99]")
    A("s_memrealtime s[100:101]")
    A("s_waitcnt lgkmcnt(0)")
    if "dbg" in DBG:
        Ld = A.label("nodbg")
        A("s_and_b32 s57, s2, 0xfb")
        A("s_or_b32 s57, s57, s34")
        A("s_cmp_lg_u32 s57, 0")
        A(f"s_cbranch_scc1 {Ld}")
        if kidx == 0: A("s_mov_b32 s79, s80")
        A("s_mul_i32 s57, s2, 7")
        sel = [2, 3, 5, 6] if kidx == 0 else [0, 2, 3]
        for k, i in enumerate(sel):
            A(f"s_sub_u32 s58, s{80+2*i}, s79")
            A("v_mov_b32 v3, s58")
            A(f"v_mov_b32 v2, s57")
            A(f"global_store_dword v2, v3, s[30:31] offset:{8 + 4*k + (0 if kidx == 0 else 16)}")
        A(f"{Ld}:")
    A("s_lshl_b32 s57, s2, 3")
    A("s_add_u32 s57, s57, s34")
    A("s_lshl_b32 s57, s57, 6")
    A(f"s_add_u32 s57, s57, {WS_TS + kidx*131072}")
    A("v_mov_b32 v2, 0")
    for i in range(n):
        A(f"v_mov_b32 v3, s{80+2*i}")
        A(f"buffer_store_dword v3, v2, s[44:47], s57 offen offset:{4*i}")
    A(f"v_mov_b32 v3, s98")
    A(f"buffer_store_dword v3, v2, s[44:47], s57 offen offset:{4*n}")
    A(f"v_mov_b32 v3, s96")
    A(f"buffer_store_dword v3, v2, s[44:47], s57 offen offset:56")
    A(f"v_mov_b32 v3, s100")
    A(f"buffer_store_dword v3, v2, s[44:47], s57 offen offset:60")

def f2u(x): return struct.unpack("<I", struct.pack("<f", x))[0]
def hexf(x): return f"0x{f2u(x):08x}"
LOG2E = 1.4426950408889634
INV2PI = 0.15915494309189535

def divc(A, vq, vsrc, d, maxv):
    for sh in (16, 17, 18, 19, 20):
        mul = ((1 << sh) + d - 1) // d
        if all((c * mul) >> sh == c // d for c in range(maxv)) and maxv * mul < (1 << 32) and mul < (1 << 24):
            A(f"v_mul_u32_u24 {vr(vq)}, {mul}, {vr(vsrc)}")
            A(f"v_lshrrev_b32 {vr(vq)}, {sh}, {vr(vq)}")
            return
    raise Exception("no magic")

def srd(A, s, base, size):
    A(f"s_mov_b32 s{s}, s{base}")
    A(f"s_and_b32 s{s+1}, s{base+1}, 0xffff")
    A(f"s_mov_b32 s{s+2}, {size}")
    A(f"s_mov_b32 s{s+3}, 0x20000")

def cmul_add(A, dst, w, h, u):
    A(f"v_pk_fma_f32 {vr(dst,2)}, {vr(w,2)}, {vr(h,2)}, {vr(u,2)} op_sel:[0,0,0] op_sel_hi:[0,1,1]")
    A(f"v_pk_fma_f32 {vr(dst,2)}, {vr(w,2)}, {vr(h,2)}, {vr(dst,2)} op_sel:[1,1,0] op_sel_hi:[1,0,1] neg_lo:[1,0,0]")
def cmul(A, dst, w, h):
    A(f"v_pk_mul_f32 {vr(dst,2)}, {vr(w,2)}, {vr(h,2)} op_sel:[0,0] op_sel_hi:[0,1]")
    A(f"v_pk_fma_f32 {vr(dst,2)}, {vr(w,2)}, {vr(h,2)}, {vr(dst,2)} op_sel:[1,1,0] op_sel_hi:[1,0,1] neg_lo:[1,0,0]")

def wave_sum(A, regs):
    for mod in ("row_shr:1 row_mask:0xf bank_mask:0xf bound_ctrl:0", "row_shr:2 row_mask:0xf bank_mask:0xf bound_ctrl:0",
                "row_shr:4 row_mask:0xf bank_mask:0xf bound_ctrl:0", "row_shr:8 row_mask:0xf bank_mask:0xf bound_ctrl:0",
                "row_bcast:15 row_mask:0xa bank_mask:0xf", "row_bcast:31 row_mask:0xc bank_mask:0xf"):
        for r in regs:
            A(f"v_add_f32_dpp {vr(r)}, {vr(r)}, {vr(r)} {mod}")

def bf16r(A, r):
    A(f"v_cvt_pk_bf16_f32 {vr(r)}, {vr(r)}, {vr(r)}")
    A(f"v_lshlrev_b32 {vr(r)}, 16, {vr(r)}")

class VM:
    def __init__(s, A): s.A = A; s.ops = []
    def __call__(s, text, tag): s.A(text); s.ops.append(tag)
    def wait(s, tag, extra=""):
        idx = max([i for i, t in enumerate(s.ops) if t == tag], default=None)
        if idx is None:
            if extra: s.A(f"s_waitcnt {extra}")
            return
        n = len(s.ops) - 1 - idx
        assert n <= 63, n
        s.A(f"s_waitcnt vmcnt({n}) {extra}".strip())
        s.ops = s.ops[idx + 1:]
    def waitall(s, extra=""):
        s.A(f"s_waitcnt vmcnt(0) {extra}".strip()); s.ops = []

def common_ids(A):
    A("v_lshrrev_b32 v2, 6, v0")
    A("v_and_b32 v1, 255, v0")
    A("v_and_b32 v0, 63, v0")
    A("v_readfirstlane_b32 s34, v2")
    A("s_lshr_b32 s35, s2, 3")
    A("s_and_b32 s57, s2, 3")
    A("s_lshl_b32 s57, s57, 2")
    A("s_lshr_b32 s50, s35, 3")
    A("s_add_u32 s50, s50, s57")
    if MAP == "mixed":
        A("s_and_b32 s49, s35, 1")
        A("s_bfe_u32 s51, s35, 0x20001")
        A("s_and_b32 s57, s2, 4")
        A("s_add_u32 s51, s51, s57")
    else:
        A("s_bfe_u32 s49, s2, 0x10002")
        A("s_and_b32 s51, s35, 7")
    A("s_and_b32 s48, s34, 3")
    A("s_lshr_b32 s52, s48, 1")
    A("s_and_b32 s53, s48, 1")
    A("v_lshrrev_b32 v3, 3, v0")
    A("v_and_b32 v4, 7, v0")
    A("v_lshrrev_b32 v5, 4, v0")
    A("v_and_b32 v6, 15, v0")

def poll(A, load, stmp, scount, vtmp, target, iters=200000):
    L = A.label("poll"); Lx = A.label("pollx")
    A(f"s_mov_b32 s{scount}, {iters}")
    A(f"{L}:")
    A(load)
    A("s_waitcnt vmcnt(0)")
    A(f"v_readfirstlane_b32 s{stmp}, {vr(vtmp)}")
    A(f"s_cmp_eq_u32 s{stmp}, {target}")
    A(f"s_cbranch_scc1 {Lx}")
    A("s_sleep 1")
    A(f"s_sub_u32 s{scount}, s{scount}, 1")
    A(f"s_cmp_lg_u32 s{scount}, 0")
    A(f"s_cbranch_scc1 {L}")
    A(f"{Lx}:")

K1F_STAGE = 28672 + 16384
K1Y_STAGE = 20480 + 16384
K1_STATS = 0
K1_WS = 1024
K1_NONCE = 1984
K1F_RED = 2048
K1F_BUF = 9216
K1Y_T = 2048
K1Y_BUF = 25088
K1Y_SCR = K1Y_BUF + 3 * K1Y_STAGE
K1_LDS = 156160

def kernel1(A):
    A("k1_kernel:")
    A("s_cmp_ge_u32 s2, 256")
    A("s_cbranch_scc1 k1_end")
    stamp(A, 0)
    A("s_load_dwordx16 s[4:19], s[0:1], 0")
    A("s_load_dwordx8 s[20:27], s[0:1], 64")
    A("s_load_dwordx4 s[28:31], s[0:1], 96")
    A("s_load_dwordx2 s[32:33], s[0:1], 112")
    common_ids(A)
    A("s_lshr_b32 s57, s51, 1")
    A("s_mul_i32 s54, s57, 27")
    A("s_and_b32 s57, s51, 1")
    A("s_mul_i32 s57, s57, 14")
    A("s_add_u32 s54, s54, s57")
    A("s_waitcnt lgkmcnt(0)")
    srd(A, 36, 4, T * D * 2)
    srd(A, 44, 32, WS_SIZE)
    A("s_cmp_ge_u32 s34, 4")
    A("s_cbranch_scc1 k1_ld")
    A("s_cmp_lg_u32 s49, 0")
    A("s_cbranch_scc1 k1_cF")
    k1_compute(A, False)
    A("s_branch p2_comp")
    A("k1_cF:")
    k1_compute(A, True)
    A("p2_comp:")
    stamps_flush(A, 8, 0, False)
    p2_compute(A)
    stamps_flush(A, 6, 1)
    A("s_branch k1_end")
    A("k1_ld:")
    A("s_cmp_lg_u32 s49, 0")
    A("s_cbranch_scc1 k1_lF")
    k1_loader(A, False)
    A("s_branch p2_ld")
    A("k1_lF:")
    k1_loader(A, True)
    A("p2_ld:")
    stamps_flush(A, 8, 0, False)
    p2_loaders(A)
    A("k1_end:")
    A("s_endpgm")

def stats_compute(A, vm):
    for r in range(2):
        for i in range(5):
            A(f"v_lshlrev_b32 v{40+10*r+2*i}, 16, v{20+5*r+i}")
            A(f"v_and_b32 v{41+10*r+2*i}, 0xffff0000, v{20+5*r+i}")
    for r in range(2):
        b = 40 + 10 * r
        A(f"v_add_f32 v{60+r}, v{b}, v{b+1}")
        for i in range(2, 10):
            A(f"v_add_f32 v{60+r}, v{60+r}, v{b+i}")
    wave_sum(A, [60, 61])
    A("v_readlane_b32 s57, v60, 63")
    A("v_readlane_b32 s58, v61, 63")
    A(f"v_mov_b32 v62, {hexf(1.0/640)}")
    A("v_mul_f32 v60, s57, v62")
    A("v_mul_f32 v61, s58, v62")
    for r in range(2):
        b = 40 + 10 * r
        for i in range(10):
            A(f"v_sub_f32 v{b+i}, v{b+i}, v{60+r}")
    for r in range(2):
        b = 40 + 10 * r
        A(f"v_mul_f32 v{64+r}, v{b}, v{b}")
        for i in range(1, 10):
            A(f"v_fmac_f32 v{64+r}, v{b+i}, v{b+i}")
    wave_sum(A, [64, 65])
    A("v_readlane_b32 s57, v64, 63")
    A("v_readlane_b32 s58, v65, 63")
    A("v_mul_f32 v64, s57, v62")
    A("v_mul_f32 v65, s58, v62")
    A("v_and_b32 v66, 1, v0")
    A("v_cmp_eq_u32 vcc, 1, v66")
    A("v_cndmask_b32 v68, v60, v61, vcc")
    A("v_cndmask_b32 v70, v64, v65, vcc")
    bf16r(A, 68)
    bf16r(A, 70)
    A(f"v_add_f32 v70, {hexf(1e-5)}, v70")
    bf16r(A, 70)
    A("v_sqrt_f32 v70, v70")
    bf16r(A, 70)
    A("v_rcp_f32 v69, v70")
    A("v_fma_f32 v71, -v70, v69, 1.0")
    A("v_fma_f32 v69, v71, v69, v69")
    A("v_mov_b32 v71, 0")
    A("v_lshlrev_b32 v66, 4, v0")
    A(f"v_mov_b32 v67, {OOB}")
    A("v_cmp_gt_u32 vcc, 2, v0")
    A("v_cndmask_b32 v66, v67, v66, vcc")
    A("s_lshl_b32 s57, s63, 4")
    A(f"s_add_u32 s57, s57, {WS_STATS}")
    vm("buffer_store_dwordx4 v[68:71], v66, s[44:47], s57 offen sc1", "st")

def k1_loader(A, isF):
    vm = VM(A)
    STG = K1F_STAGE if isF else K1Y_STAGE
    BUF = K1F_BUF if isF else K1Y_BUF
    ASZ = 28672 if isF else 20480
    if not isF:
        L = A.label("nononce")
        A("s_or_b32 s57, s2, s48")
        A("s_cmp_lg_u32 s57, 0")
        A(f"s_cbranch_scc1 {L}")
        A("s_memrealtime s[70:71]")
        A("v_mov_b32 v18, 0")
        A("s_waitcnt lgkmcnt(0)")
        A("s_or_b32 s70, s70, 1")
        A("v_mov_b32 v20, s70")
        A("v_mov_b32 v21, s71")
        A("s_mov_b64 exec, 1")
        A("global_store_dwordx2 v18, v[20:21], s[30:31] sc1")
        A("s_mov_b64 exec, -1")
        A(f"{L}:")
    A("v_xor_b32 v17, v4, v3")
    A("v_mul_u32_u24 v19, 5120, v3")
    A("v_lshl_add_u32 v247, v17, 4, v19")
    A("s_lshl_b32 s60, s50, 7")
    A("s_lshl_b32 s59, s52, 6")
    A("s_add_u32 s60, s60, s59")
    A("s_lshl_b32 s59, s53, 1")
    A("s_add_u32 s60, s60, s59")
    A("s_mul_i32 s60, s60, 1280")
    A("s_lshl_b32 s62, s48, 12")
    A(f"s_add_u32 s62, s62, {ASZ+BUF}")
    def dmaX(st):
        bo = (st % 3) * STG
        for q in range(4):
            A(f"s_add_u32 m0, s62, {bo + 1024*q}")
            A(f"s_add_u32 s65, s60, {st*128 + (32*(q&1) + (q>>1))*1280}")
            vm(f"buffer_load_dwordx4 v247, s[36:39], s65 offen lds", f"d{st}")
    stamp(A, 5)
    dmaX(0)
    if isF:
        srd(A, 40, 24, D * DFF * 2)
        A("s_mul_i32 s59, s48, 55296")
        A("s_lshl_b32 s64, s54, 5")
        A("s_add_u32 s59, s59, s64")
        A("s_mul_i32 s61, s48, 7168")
        A(f"s_add_u32 s61, s61, {BUF}")
        for q in range(7):
            A(f"v_add_u32 v17, {64*q}, v0")
            divc(A, 18, 17, 28, 448)
            A("v_mul_u32_u24 v19, 28, v18")
            A("v_sub_u32 v19, v17, v19")
            A("v_lshrrev_b32 v17, 2, v18")
            A("v_and_b32 v17, 2, v17")
            A("v_xor_b32 v19, v19, v17")
            A("v_mul_u32_u24 v18, 3456, v18")
            A(f"v_lshl_add_u32 v{240+q}, v19, 4, v18")
            A(f"s_add_u32 m0, s61, {1024*q}")
            A("s_nop 0")
            vm(f"buffer_load_dwordx4 v{240+q}, s[40:43], s59 offen lds", "d0")
    else:
        A("s_cmp_lt_u32 s48, 2")
        A("s_cselect_b32 s64, s10, s12")
        A("s_cselect_b32 s65, s11, s13")
        srd(A, 40, 64, D * D * 2)
        A("v_xor_b32 v18, s52, v17")
        A("v_mul_u32_u24 v19, 1280, v3")
        A("v_lshl_add_u32 v240, v18, 4, v19")
        A("s_mul_i32 s59, s51, 80")
        A("s_mul_i32 s64, s53, 40")
        A("s_add_u32 s59, s59, s64")
        A("s_mul_i32 s59, s59, 1280")
        A("s_mul_i32 s61, s53, 10240")
        A("s_lshl_b32 s64, s52, 10")
        A("s_add_u32 s61, s61, s64")
        A(f"s_add_u32 s61, s61, {BUF}")
    def dmaA(st):
        bo = (st % 3) * STG
        tag = f"d{st}"
        if isF:
            A(f"s_add_u32 s65, s59, {st*64*3456}")
            for q in range(7):
                A(f"s_add_u32 m0, s61, {bo + 1024*q}")
                A("s_nop 0")
                vm(f"buffer_load_dwordx4 v{240+q}, s[40:43], s65 offen lds", tag)
        else:
            for q in range(5):
                A(f"s_add_u32 m0, s61, {bo + 2048*q}")
                A(f"s_add_u32 s65, s59, {st*128 + q*8*1280}")
                vm(f"buffer_load_dwordx4 v240, s[40:43], s65 offen lds", tag)
    def dma(st):
        dmaA(st); dmaX(st)
    if not isF: dmaA(0)
    stamp(A, 6)
    dma(1)
    stamp(A, 7)
    A(f"v_mov_b32 v15, {OOB}")
    if isF:
        A("s_mul_i32 s76, s51, 224")
        A("s_add_u32 s76, s76, 1280")
        def c2():
            A("v_lshlrev_b32 v9, 2, v1")
            for r in range(8):
                A(f"ds_read_b32 v{108+r}, v9 offset:{K1F_RED+896*r}")
            A("s_waitcnt lgkmcnt(0)")
            for r in range(1, 8):
                A(f"v_add_f32 v108, v108, v{108+r}")
            A("s_mul_i32 s57, s50, 3072")
            A("s_add_u32 s57, s57, s76")
            A("s_lshl_b32 s57, s57, 2")
            A(f"s_add_u32 s57, s57, {WS_WSP}")
            A("v_cmp_gt_u32 vcc, 224, v1")
            A("v_cndmask_b32 v9, v15, v9, vcc")
            vm("buffer_store_dword v108, v9, s[44:47], s57 offen sc1", "st")
        pre = {0: [c2]}
        chunks = {1: [lambda: vm.wait("st")]}
        nws = 224
    else:
        A("s_mul_i32 s76, s51, 160")
        def w2a():
            srd(A, 68, 26, D * DFF * 2)
            A("s_lshl_b32 s57, s50, 3")
            A("s_add_u32 s57, s57, s51")
            A("s_lshl_b32 s57, s57, 2")
            A("s_add_u32 s57, s57, s48")
            A("s_lshr_b32 s72, s57, 3")
            A("s_and_b32 s73, s57, 7")
            A("s_mul_i32 s58, s72, 40960")
            A("s_mul_i32 s57, s73, 160")
            A("s_add_u32 s58, s58, s57")
            A("s_mul_i32 s74, s48, 5120")
            A(f"s_add_u32 s74, s74, {K1Y_SCR}")
            for q in range(5):
                A(f"v_add_u32 v17, {64*q}, v0")
                divc(A, 18, 17, 10, 320)
                A("v_mul_u32_u24 v19, 10, v18")
                A("v_sub_u32 v19, v17, v19")
                A("v_mul_u32_u24 v18, 1280, v18")
                A("v_lshl_add_u32 v16, v19, 4, v18")
                A(f"s_add_u32 m0, s74, {1024*q}")
                A("s_nop 0")
                vm("buffer_load_dwordx4 v16, s[68:71], s58 offen lds", "w2")
        def w2b():
            A("v_lshrrev_b32 v17, 2, v6")
            A("v_lshl_add_u32 v17, v5, 2, v17")
            A("v_mul_u32_u24 v17, 160, v17")
            A("v_and_b32 v18, 3, v6")
            A("v_lshl_add_u32 v17, v18, 3, v17")
            A("v_add_u32 v17, s74, v17")
            vm.wait("w2")
            for m in range(5):
                for h in range(2):
                    A(f"ds_read_b64_tr_b16 v[{120+4*m+2*h}:{121+4*m+2*h}], v17 offset:{h*2560 + m*32}")
            A("s_mul_i32 s57, s73, 54")
            A("s_add_u32 s57, s57, s72")
            A("s_mul_i32 s57, s57, 5120")
            A(f"s_add_u32 s57, s57, {WS_W2P}")
            A("s_cmp_lt_u32 s72, 54")
            A(f"s_cselect_b32 s57, s57, {OOB}")
            A("v_lshlrev_b32 v18, 4, v0")
            A("v_add_u32 v19, 4096, v18")
            A("s_waitcnt lgkmcnt(0)")
            for m in range(5):
                vm(f"buffer_store_dwordx4 v[{120+4*m}:{123+4*m}], v18, s[44:47], s57 offen offset:{1024*m} sc1" if m < 4 else
                   f"buffer_store_dwordx4 v[{120+4*m}:{123+4*m}], v19, s[44:47], s57 offen sc1", "st2")
        pre = {}
        chunks = {3: [w2a], 5: [w2b], 7: [lambda: vm.wait('st2')]}
        nws = 160
    A("v_and_b32 v20, 15, v0")
    A("v_lshrrev_b32 v21, 3, v20")
    A("v_and_b32 v22, 7, v20")
    A("v_lshlrev_b32 v21, 7, v21")
    A("v_add_u32 v21, v21, v22")
    A("s_lshl_b32 s57, s50, 3")
    A("v_add_u32 v21, s57, v21")
    A("s_lshl_b32 s57, s49, 7")
    A("s_add_u32 s57, s57, s51")
    A("v_lshl_add_u32 v22, v20, 3, s57")
    A("v_and_b32 v23, 16, v0")
    A("v_cmp_eq_u32 vcc, 0, v23")
    A("v_cndmask_b32 v25, v22, v21, vcc")
    A("v_lshlrev_b32 v25, 7, v25")
    A(f"v_add_u32 v25, {WS_F1}, v25")
    A("v_mov_b32 v26, 0")
    def n1():
        vm("global_load_dwordx2 v[28:29], v26, s[30:31] sc1", "nn")
    def n2():
        Lp = A.label("np"); Lx = A.label("npx"); Lc = A.label("npc")
        A("s_mov_b32 s58, 200000")
        vm.wait("nn")
        A(f"s_branch {Lc}")
        A(f"{Lp}:")
        A("s_sleep 1")
        A("global_load_dwordx2 v[28:29], v26, s[30:31] sc1")
        A("s_waitcnt vmcnt(0)")
        A(f"{Lc}:")
        A("v_readfirstlane_b32 s57, v28")
        A("s_cmp_lg_u32 s57, 0")
        A(f"s_cbranch_scc1 {Lx}")
        A("s_sub_u32 s58, s58, 1")
        A("s_cmp_lg_u32 s58, 0")
        A(f"s_cbranch_scc1 {Lp}")
        A(f"{Lx}:")
        A("s_lshl_b32 s57, s49, 7")
        A("s_lshl_b32 s58, s50, 3")
        A("s_add_u32 s57, s57, s58")
        A("s_add_u32 s57, s57, s51")
        A("s_lshl_b32 s57, s57, 7")
        A(f"s_add_u32 s79, s57, {WS_F1}")
        A("v_cmp_eq_u32 vcc, 0, v1")
        A("v_cndmask_b32 v27, v15, v26, vcc")
        vm("buffer_store_dwordx2 v[28:29], v27, s[44:47], s79 offen sc1", "fs")
    def n3():
        vm("buffer_store_dwordx2 v[28:29], v27, s[44:47], s79 offen offset:8 sc1", "fs")
    chunks.setdefault(1, []).insert(0, n1)
    chunks.setdefault(2, []).append(n2)
    chunks.setdefault(8, []).insert(0, n3)
    def g1():
        vm("buffer_load_dwordx2 v[32:33], v25, s[44:47], 0 offen sc1", "fl")
    def g2():
        Lp = A.label("poll"); Lx = A.label("pollx"); Lc = A.label("pollc")
        A("s_mov_b32 s58, 200000")
        vm.wait("fl")
        A(f"s_branch {Lc}")
        A(f"{Lp}:")
        A("s_sleep 1")
        A("buffer_load_dwordx2 v[32:33], v25, s[44:47], 0 offen sc1")
        A("s_waitcnt vmcnt(0)")
        A(f"{Lc}:")
        A("v_cmp_ne_u64 vcc, v[32:33], v[28:29]")
        A("s_cmp_eq_u64 vcc, 0")
        A(f"s_cbranch_scc1 {Lx}")
        A("s_sub_u32 s58, s58, 1")
        A("s_cmp_lg_u32 s58, 0")
        A(f"s_cbranch_scc1 {Lp}")
        A(f"{Lx}:")
        A("v_lshlrev_b32 v34, 4, v1")
        A("s_lshl_b32 s57, s50, 11")
        A(f"s_add_u32 s57, s57, {WS_STATS}")
        vm("buffer_load_dwordx2 v[36:37], v34, s[44:47], s57 offen sc1", "ga")
        A("v_lshlrev_b32 v35, 2, v1")
        A("s_lshl_b32 s57, s76, 2")
        A(f"s_add_u32 s57, s57, {WS_WSP}")
        for sl in range(16):
            vm(f"buffer_load_dword v{40+sl}, v35, s[44:47], s57 offen sc1", "ga")
            A(f"s_add_u32 s57, s57, {3072*4}")
    def g3():
        vm.wait("ga")
        A("v_lshlrev_b32 v34, 3, v1")
        A("v_cmp_gt_u32 vcc, 128, v1")
        A("s_and_saveexec_b64 s[66:67], vcc")
        A(f"ds_write_b64 v34, v[36:37] offset:{K1_STATS}")
        A("s_mov_b64 exec, s[66:67]")
        for sl in range(1, 16):
            A(f"v_add_f32 v40, v40, v{40+sl}")
        A(f"v_cmp_gt_u32 vcc, {nws}, v1")
        A("s_and_saveexec_b64 s[66:67], vcc")
        A(f"ds_write_b32 v35, v40 offset:{K1_WS}")
        A("s_mov_b64 exec, s[66:67]")
        A(f"ds_write_b64 v26, v[28:29] offset:{K1_NONCE}")
        A("s_waitcnt lgkmcnt(0)")
    chunks.setdefault(6, []).append(g1)
    chunks.setdefault(7, []).insert(0, g2)
    vm.wait("d0")
    stamp(A, 1)
    A("s_barrier")
    for j in range(9):
        for f in pre.get(j, []): f()
        if j + 2 <= 9: dma(j + 2)
        for f in chunks.get(j, []): f()
        vm.wait(f"d{j+1}", "lgkmcnt(0)")
        A("s_barrier")
    stamp(A, 2)
    g3()
    stamp(A, 3)
    stamp(A, 4)
    A("s_barrier")

def k1_side(A, isF):
    vm = VM(A)
    A("s_lshl_b32 s57, s49, 3")
    A("s_add_u32 s57, s57, s51")
    A("s_lshl_b32 s57, s57, 3")
    A("s_lshl_b32 s58, s50, 7")
    A("s_add_u32 s57, s57, s58")
    A("s_lshl_b32 s58, s48, 1")
    A("s_add_u32 s63, s57, s58")
    A("s_mul_i32 s57, s63, 1280")
    A("s_add_u32 s58, s57, 1280")
    A("v_lshlrev_b32 v2, 2, v0")
    for i in range(5):
        vm(f"buffer_load_dword v{20+i}, v2, s[36:39], s57 offen offset:{256*i}", "sm")
    for i in range(5):
        vm(f"buffer_load_dword v{25+i}, v2, s[36:39], s58 offen offset:{256*i}", "sm")
    A(f"v_mov_b32 v15, {OOB}")
    if isF:
        srd(A, 40, 24, D * DFF * 2)
        divc(A, 7, 1, 28, 256)
        A("v_mul_u32_u24 v8, 28, v7")
        A("v_sub_u32 v8, v1, v8")
        A("s_mov_b32 s57, 17280")
        A("v_mul_lo_u32 v9, v7, s57")
        A("v_lshl_add_u32 v9, v8, 4, v9")
        A("s_mul_i32 s57, s50, 138240")
        A("s_lshl_b32 s64, s54, 5")
        A("s_add_u32 s57, s57, s64")
        for r in range(5):
            vm(f"buffer_load_dwordx4 v[{72+4*r}:{75+4*r}], v9, s[40:43], s57 offen", "sm2")
            A("s_add_u32 s57, s57, 3456")
        srd(A, 68, 14, D * D * 2)
        srd(A, 72, 16, D * D * 2)
        A("s_lshl_b32 s57, s50, 3")
        A("s_add_u32 s57, s57, s51")
        A("s_lshl_b32 s57, s57, 4")
        A("v_lshrrev_b32 v10, 4, v1")
        A("v_add_u32 v10, s57, v10")
        divc(A, 11, 10, 40, 2048)
        A("v_mul_u32_u24 v12, 40, v11")
        A("v_sub_u32 v12, v10, v12")
        A("v_lshl_add_u32 v13, v11, 4, v6")
        A("v_mul_u32_u24 v13, 1280, v13")
        A("v_lshl_add_u32 v13, v12, 5, v13")
        vm("buffer_load_dwordx4 v[92:95], v13, s[68:71], 0 offen", "sm3")
        vm("buffer_load_dwordx4 v[96:99], v13, s[68:71], 0 offen offset:16", "sm3")
        vm("buffer_load_dwordx4 v[100:103], v13, s[72:75], 0 offen", "sm3")
        vm("buffer_load_dwordx4 v[104:107], v13, s[72:75], 0 offen offset:16", "sm3")
        divc(A, 14, 11, 5, 64)
        A("v_mul_u32_u24 v16, 5, v14")
        A("v_sub_u32 v16, v11, v16")
        A("v_mul_u32_u24 v14, 40, v14")
        A("v_add_u32 v14, v14, v12")
        A("v_mul_u32_u24 v14, 5120, v14")
        A("v_lshl_add_u32 v14, v16, 10, v14")
        A("v_lshl_add_u32 v14, v6, 4, v14")
        A("v_cmp_gt_u32 vcc, 1600, v10")
        A("v_cndmask_b32 v14, v15, v14, vcc")
        yield
        vm.wait("sm")
        stats_compute(A, vm)
        vm.wait("sm2")
        for c in range(4):
            A(f"v_lshlrev_b32 v{108+2*c}, 16, v{72+c}")
            A(f"v_and_b32 v{109+2*c}, 0xffff0000, v{72+c}")
        for r in range(1, 5):
            for c in range(4):
                A(f"v_lshlrev_b32 v116, 16, v{72+4*r+c}")
                A(f"v_and_b32 v117, 0xffff0000, v{72+4*r+c}")
                A(f"v_add_f32 v{108+2*c}, v{108+2*c}, v116")
                A(f"v_add_f32 v{109+2*c}, v{109+2*c}, v117")
        A("v_mul_u32_u24 v9, 896, v7")
        A("v_lshl_add_u32 v9, v8, 5, v9")
        A("v_cmp_gt_u32 vcc, 224, v1")
        A("s_and_saveexec_b64 s[66:67], vcc")
        A(f"ds_write_b128 v9, v[108:111] offset:{K1F_RED}")
        A(f"ds_write_b128 v9, v[112:115] offset:{K1F_RED+16}")
        A("s_mov_b64 exec, s[66:67]")
        vm.wait("sm3")
        A("s_mov_b32 s57, 0x05040100")
        A("s_mov_b32 s58, 0x07060302")
        for c in range(8):
            A(f"v_xor_b32 v{100+c}, 0x80008000, v{100+c}")
        A(f"s_mov_b32 s65, {WS_CP}")
        for g in range(4):
            o = 40 + 4 * g
            A(f"v_perm_b32 v{o}, v{100+g}, v{92+g}, s57")
            A(f"v_perm_b32 v{o+1}, v{100+g}, v{92+g}, s58")
            A(f"v_perm_b32 v{o+2}, v{104+g}, v{96+g}, s57")
            A(f"v_perm_b32 v{o+3}, v{104+g}, v{96+g}, s58")
            vm(f"buffer_store_dwordx4 v[{o}:{o+3}], v14, s[44:47], s65 offen offset:{256*g} sc1", "st")
    else:
        A("s_cmp_lt_u32 s48, 2")
        A("s_cselect_b32 s64, s10, s12")
        A("s_cselect_b32 s65, s11, s13")
        srd(A, 40, 64, D * D * 2)
        divc(A, 9, 1, 80, 256)
        A("v_mul_u32_u24 v10, 80, v9")
        A("v_sub_u32 v10, v1, v10")
        A("s_mul_i32 s57, s51, 80")
        A("v_add_u32 v11, s57, v10")
        A("v_lshlrev_b32 v11, 1, v11")
        vm("global_load_ushort v92, v11, s[6:7]", "sm3")
        vm("global_load_ushort v93, v11, s[8:9]", "sm3")
        vm("global_load_ushort v94, v11, s[18:19]", "sm3")
        A("s_lshl_b32 s57, s53, 6")
        A("v_add_u32 v7, s57, v0")
        A("s_mul_i32 s57, s51, 80")
        A("v_add_u32 v8, s57, v7")
        A("v_mul_u32_u24 v8, 1280, v8")
        A("s_mul_i32 s57, s50, 80")
        for r in range(5):
            vm(f"buffer_load_dwordx4 v[{72+4*r}:{75+4*r}], v8, s[40:43], s57 offen offset:{16*r}", "sm2")
        divc(A, 12, 1, 40, 256)
        A("v_mul_u32_u24 v13, 40, v12")
        A("v_sub_u32 v13, v1, v13")
        A("v_mul_u32_u24 v12, 5120, v12")
        A("v_lshl_add_u32 v12, v13, 4, v12")
        A("v_cmp_gt_u32 vcc, 80, v1")
        A("v_cndmask_b32 v12, v15, v12, vcc")
        A("s_mul_i32 s57, s50, 10240")
        A("s_mul_i32 s58, s51, 640")
        A("s_add_u32 s57, s57, s58")
        A(f"s_add_u32 s57, s57, {WS_E}")
        for r in range(4): A(f"v_mov_b32 v{112+r}, -1")
        vm("buffer_store_dwordx4 v[112:115], v12, s[44:47], s57 offen sc1", "st")
        yield
        vm.wait("sm")
        stats_compute(A, vm)
        vm.wait("sm2")
        A("s_mov_b32 s57, 0x3f803f80")
        A("v_mov_b32 v108, 0")
        A("v_mov_b32 v109, 0")
        for r in range(20):
            A(f"v_dot2_f32_bf16 v{108+(r&1)}, v{72+r}, s57, v{108+(r&1)}")
        A("s_nop 2")
        A("v_add_f32 v108, v108, v109")
        A("s_mul_i32 s57, s50, 3072")
        A("s_mul_i32 s58, s51, 160")
        A("s_add_u32 s57, s57, s58")
        A("s_add_u32 s57, s57, s52")
        A("s_lshl_b32 s57, s57, 2")
        A(f"s_add_u32 s57, s57, {WS_WSP}")
        A("v_lshlrev_b32 v8, 3, v7")
        A("v_cmp_gt_u32 vcc, 80, v7")
        A("v_cndmask_b32 v8, v15, v8, vcc")
        vm("buffer_store_dword v108, v8, s[44:47], s57 offen sc1", "st")
        for r in (92, 93, 94): A(f"v_lshlrev_b32 v{r}, 16, v{r}")
        A(f"v_mul_f32 v94, {hexf(LOG2E)}, v94")
        A("v_exp_f32 v94, v94")
        bf16r(A, 94)
        A("v_mul_f32 v95, v94, v92")
        A("v_mul_f32 v96, v94, v93")
        A(f"v_mul_f32 v95, {hexf(LOG2E)}, v95")
        A(f"v_mul_f32 v96, {hexf(INV2PI)}, v96")
        A("v_mul_u32_u24 v97, 288, v10")
        A("v_lshl_add_u32 v97, v9, 3, v97")
        A("v_cmp_gt_u32 vcc, 240, v1")
        A("s_and_saveexec_b64 s[66:67], vcc")
        for r in range(11):
            A(f"v_add_u32 v98, {3*r}, v9")
            A("v_lshlrev_b32 v99, 2, v98")
            A("v_lshlrev_b32 v100, 6, v98")
            A("v_subrev_u32 v100, 1024, v100")
            A("v_cmp_gt_u32 vcc, 16, v98")
            A("v_cndmask_b32 v99, v100, v99, vcc")
            A("v_cvt_f32_u32 v99, v99")
            A("v_mul_f32 v100, v99, v95")
            A("v_mul_f32 v101, v99, v96")
            A("v_exp_f32 v100, v100")
            A("v_fract_f32 v101, v101")
            A("v_cos_f32 v102, v101")
            A("v_sin_f32 v103, v101")
            A("v_mul_f32 v102, v100, v102")
            A("v_mul_f32 v103, v100, v103")
            A(f"ds_write_b64 v97, v[102:103] offset:{K1Y_T+24*r}")
        A("s_mov_b64 exec, s[66:67]")
        A("v_exp_f32 v100, v95")
        A("v_fract_f32 v101, v96")
        A("v_cos_f32 v102, v101")
        A("v_sin_f32 v103, v101")
        A("v_mul_f32 v102, v100, v102")
        A("v_mul_f32 v103, v100, v103")
        A("v_add_f32 v98, -1.0, v102")
        A("v_mul_f32 v99, v92, v92")
        A("v_fmac_f32 v99, v93, v93")
        A("v_rcp_f32 v100, v99")
        A("v_fma_f32 v101, -v99, v100, 1.0")
        A("v_fma_f32 v100, v101, v100, v100")
        A("v_add_f32 v100, v100, v100")
        A("v_mul_f32 v104, v98, v92")
        A("v_fmac_f32 v104, v103, v93")
        A("v_mul_f32 v105, v103, v92")
        A("v_fma_f32 v105, -v98, v93, v105")
        A("v_mul_f32 v104, v104, v100")
        A("v_mul_f32 v105, v105, v100")
        A("v_cmp_gt_u32 vcc, 80, v1")
        A("s_and_saveexec_b64 s[66:67], vcc")
        A(f"ds_write_b128 v97, v[102:105] offset:{K1Y_T+272}")
        A("s_mov_b64 exec, s[66:67]")
    A("s_waitcnt lgkmcnt(0)")
    yield

def k1_prefetch_setup(A, isF):
    A("s_and_b32 s57, s2, 3")
    A("s_lshl_b32 s57, s57, 9")
    A("s_lshl_b32 s59, s35, 4")
    A("s_add_u32 s57, s57, s59")
    A("s_mul_i32 s57, s57, 1280")
    A("v_lshrrev_b32 v10, 2, v0")
    A("v_and_b32 v11, 3, v0")
    A("v_mul_u32_u24 v10, 1280, v10")
    A("v_lshl_add_u32 v10, v11, 7, v10")
    A("s_mul_i32 s58, s53, 384")
    A("s_add_u32 s66, s57, s58")
    A("s_add_u32 s66, s66, 384")
    if isF:
        srd(A, 40, 24, D * DFF * 2)
        A("v_min_u32 v11, 53, v0")
        A("v_lshlrev_b32 v11, 7, v11")
        A("s_mul_i32 s67, s35, 6912")
        A("s_add_u32 s58, s48, 3")
        A(f"s_mul_i32 s58, s58, {64*3456}")
        A("s_add_u32 s67, s67, s58")
        A(f"s_add_u32 s68, s67, {4*64*3456}")
    else:
        A("s_cmp_lt_u32 s48, 2")
        A("s_cselect_b32 s64, s10, s12")
        A("s_cselect_b32 s65, s11, s13")
        srd(A, 40, 64, D * D * 2)
        divc(A, 12, 0, 20, 64)
        A("v_mul_u32_u24 v13, 20, v12")
        A("v_sub_u32 v13, v0, v13")
        A("v_min_u32 v12, 2, v12")
        A("v_mul_u32_u24 v13, 1280, v13")
        A("v_lshl_add_u32 v11, v12, 7, v13")
        A("s_mul_i32 s67, s35, 25600")
        A("s_mul_i32 s58, s53, 384")
        A("s_add_u32 s68, s67, 896")
        A("s_add_u32 s67, s67, s58")
        A("s_add_u32 s67, s67, 384")
def k1_prefetch(A, isF, batch):
    if "nopf" in DBG: return
    if batch == 0:
        A("buffer_load_dword v12, v11, s[40:43], s67 offen")
        A("buffer_load_dword v13, v10, s[36:39], s66 offen")
    else:
        A("buffer_load_dword v12, v11, s[40:43], s68 offen")

def k1_compute(A, isF):
    ACC = 128; FRAG = 32
    MT = 7 if isF else 5; NT = 4
    STG = K1F_STAGE if isF else K1Y_STAGE
    BUF = K1F_BUF if isF else K1Y_BUF
    ASZ = 28672 if isF else 20480
    side = k1_side(A, isF) if "noside" not in DBG else iter([0, 0])
    next(side)
    AB = 232; BB = 244
    if isF:
        A("v_lshrrev_b32 v17, 2, v6")
        A("v_lshl_add_u32 v17, v5, 3, v17")
        A("v_mul_u32_u24 v17, 448, v17")
        A("v_and_b32 v18, 3, v6")
        A("v_lshl_add_u32 v17, v18, 3, v17")
        A("s_mul_i32 s57, s52, 224")
        A(f"s_add_u32 s57, s57, {BUF}")
        A("v_add_u32 v17, s57, v17")
        A("v_and_b32 v18, 1, v5")
        A("v_lshlrev_b32 v18, 5, v18")
        A("v_add_u32 v19, v17, v18")
        A("v_sub_u32 v17, v17, v18")
        A("s_cmp_eq_u32 s52, 0")
        A("s_cselect_b64 vcc, -1, 0")
        AB = 240; BB = 246
        A(f"v_cndmask_b32 v{AB}, v17, v19, vcc")
        A(f"v_cndmask_b32 v{AB+1}, v19, v17, vcc")
    else:
        A("v_and_b32 v17, 1, v6")
        A("v_lshrrev_b32 v18, 1, v6")
        A("v_lshl_add_u32 v19, v17, 3, v18")
        A("v_xor_b32 v17, v17, v18")
        A("v_xor_b32 v17, v17, v5")
        A("v_lshlrev_b32 v19, 7, v19")
        A("v_lshl_add_u32 v19, v17, 4, v19")
        A("s_mul_i32 s57, s52, 10240")
        A(f"s_add_u32 s57, s57, {BUF}")
        AB = 240; BB = 246
        A(f"v_add_u32 v{AB}, s57, v19")
        A(f"v_xor_b32 v{AB+1}, 64, v{AB}")
    A("v_and_b32 v18, 7, v0")
    A("v_xor_b32 v18, v18, v5")
    A("v_lshlrev_b32 v17, 7, v6")
    A("s_lshl_b32 s57, s53, 13")
    A(f"s_add_u32 s57, s57, {ASZ+BUF}")
    A("v_add_u32 v17, s57, v17")
    A(f"v_lshl_add_u32 v{BB}, v18, 4, v17")
    A(f"v_xor_b32 v{BB+1}, 64, v{BB}")
    for b in (1, 2):
        for i in range(2):
            A(f"v_add_u32 v{AB+2*b+i}, {b*STG}, v{AB+i}")
            A(f"v_add_u32 v{BB+2*b+i}, {b*STG}, v{BB+i}")
    for r in range(MT * NT * 4):
        A(f"v_mov_b32 v{ACC+r}, 0")
    fA = lambda st, m: FRAG + st * (MT + NT) * 4 + m * 4
    fB = lambda st, n: FRAG + st * (MT + NT) * 4 + MT * 4 + n * 4
    accr = lambda m, n: ACC + (m * NT + n) * 4
    def reads(stage, kk):
        b = stage % 3; st = kk
        out = []
        for n in range(NT):
            out.append(f"ds_read_b128 {vr(fB(st,n),4)}, v{BB+2*b+kk} offset:{n*2048}")
        for m in range(MT):
            if isF:
                for h in range(2):
                    out.append(f"ds_read_b64_tr_b16 {vr(fA(st,m)+2*h,2)}, v{AB+2*b+(m&1)} offset:{(32*kk+4*h)*448 + m*32}")
            else:
                out.append(f"ds_read_b128 {vr(fA(st,m),4)}, v{AB+2*b+kk} offset:{m*2048}")
        return out
    def mfmas(st):
        return [f"v_mfma_f32_16x16x32_bf16 {vr(accr(m,n),4)}, {vr(fA(st,m),4)}, {vr(fB(st,n),4)}, {vr(accr(m,n),4)}"
                for m in range(MT) for n in range(NT)]
    next(side)
    stamp(A, 1)
    A("s_barrier")
    stamp(A, 2)
    for r in reads(0, 0): A(r)
    PRE = 3
    for j in range(10):
        A("s_waitcnt lgkmcnt(0)")
        mf = mfmas(0); rd = reads(j, 1)
        for i, m in enumerate(mf):
            A(m)
            if i < len(rd): A(rd[i])
        A("s_waitcnt lgkmcnt(0)")
        mf = mfmas(1)
        if j < 9:
            rd = reads(j + 1, 0)
            for m in mf[:PRE]: A(m)
            if j == 1: A("s_waitcnt vmcnt(0)")
            A("s_barrier")
            for i, m in enumerate(mf[PRE:]):
                if i < len(rd): A(rd[i])
                A(m)
        else:
            for m in mf: A(m)
    stamp(A, 3)
    A("s_barrier")
    stamp(A, 4)
    if isF: k1F_epilogue(A, ACC)
    else: k1Y_epilogue(A, ACC)

def frag_store_plan(ntiles, parity):
    plan = []
    t = 0
    if parity == 1:
        plan.append(("single", [0], 0, 1)); t = 1
    while t + 1 < ntiles:
        plan.append(("pair", [t, t + 1], (t + parity) // 2, 0)); t += 2
    if t < ntiles:
        plan.append(("single", [t], (t + parity) // 2, 0))
    return plan

def k1F_epilogue(A, ACC):
    A("s_lshl_b32 s57, s53, 9")
    A("v_lshlrev_b32 v17, 5, v6")
    A("v_add_u32 v17, s57, v17")
    A(f"ds_read_b128 v[32:35], v17 offset:{K1_STATS}")
    A(f"ds_read_b128 v[36:39], v17 offset:{K1_STATS+16}")
    A("s_mul_i32 s57, s52, 448")
    A("v_lshlrev_b32 v18, 4, v5")
    A("v_add_u32 v18, s57, v18")
    for m in range(7):
        A(f"ds_read_b128 v[{40+4*m}:{43+4*m}], v18 offset:{K1_WS+64*m}")
    A("s_mul_i32 s57, s52, 7")
    A("s_add_u32 s57, s57, s54")
    A("s_and_b32 s64, s57, 1")
    A("s_lshr_b32 s57, s57, 1")
    A("s_mul_i32 s58, s50, 54")
    A("s_add_u32 s57, s57, s58")
    A("s_lshl_b32 s57, s57, 3")
    A("s_lshl_b32 s58, s53, 2")
    A("s_add_u32 s57, s57, s58")
    A("s_lshl_b32 s57, s57, 10")
    A(f"s_add_u32 s65, s57, {WS_HF}")
    A("v_lshlrev_b32 v17, 4, v0")
    A("s_and_b32 s57, s51, s52")
    A("s_and_b32 s57, s57, 1")
    A("s_cmp_eq_u32 s57, 0")
    A(f"s_cselect_b32 s57, 0, {OOB}")
    A("v_add_u32 v19, s57, v17")
    A("s_waitcnt lgkmcnt(0)")
    def conv(m, n, dst):
        a = ACC + (m * 4 + n) * 4
        w = 40 + 4 * m; st = 32 + 2 * n
        for hh in range(2):
            A(f"v_pk_fma_f32 {vr(a+2*hh,2)}, {vr(w+2*hh,2)}, {vr(st,2)}, {vr(a+2*hh,2)} op_sel:[0,0,0] op_sel_hi:[1,0,1] neg_lo:[1,0,0] neg_hi:[1,0,0]")
        for hh in range(2):
            A(f"v_pk_mul_f32 {vr(a+2*hh,2)}, {vr(a+2*hh,2)}, {vr(st,2)} op_sel:[0,1] op_sel_hi:[1,1]")
        for hh in range(2):
            A(f"v_cvt_pk_bf16_f32 v{dst+hh}, v{a+2*hh}, v{a+2*hh+1}")
        for hh in range(2):
            A(f"v_pk_max_i16 v{dst+hh}, v{dst+hh}, 0")
    L1 = A.label("ep1"); L2 = A.label("epx")
    A("s_cmp_lg_u32 s64, 0")
    A(f"s_cbranch_scc1 {L1}")
    for parity in (0, 1):
        if parity == 1: A(f"{L1}:")
        plan = frag_store_plan(7, parity)
        if parity == 1:
            k, tl, ks, _ = plan.pop()
            plan += [("single", [tl[0]], ks, 0), ("single", [tl[1]], ks, 1)]
        cnt = 0
        for kind, tl, ks, half in plan:
            A(f"s_add_u32 s57, s65, {ks*8192}")
            for n in range(4):
                t = 72 + 4 * (cnt % 4); cnt += 1
                if kind == "pair":
                    conv(tl[0], n, t); conv(tl[1], n, t + 2)
                    A(f"buffer_store_dwordx4 v[{t}:{t+3}], v17, s[44:47], s57 offen offset:{1024*n} sc1")
                else:
                    conv(tl[0], n, t)
                    vo = 19 if tl[0] == 6 else 17
                    if "nosingle" not in DBG: A(f"buffer_store_dwordx2 v[{t}:{t+1}], v{vo}, s[44:47], s57 offen offset:{1024*n + 8*half} sc1")
        if parity == 0: A(f"s_branch {L2}")
    A(f"{L2}:")
    for i in (5, 6, 7): stamp(A, i)

def k1Y_epilogue(A, ACC):
    ST = 32; WSR = 40; P = 208; TB = 60
    A("s_lshl_b32 s57, s53, 9")
    A("v_lshlrev_b32 v17, 5, v6")
    A("v_add_u32 v17, s57, v17")
    A(f"ds_read_b128 v[{ST}:{ST+3}], v17 offset:{K1_STATS}")
    A(f"ds_read_b128 v[{ST+4}:{ST+7}], v17 offset:{K1_STATS+16}")
    A("s_mul_i32 s57, s52, 320")
    A("v_lshlrev_b32 v18, 4, v5")
    A("v_add_u32 v18, s57, v18")
    for m in range(5):
        A(f"ds_read_b128 v[{WSR+4*m}:{WSR+4*m+3}], v18 offset:{K1_WS+64*m}")
    A("s_mul_i32 s57, s52, 11520")
    A("v_mul_u32_u24 v19, 576, v5")
    A("v_add_u32 v19, s57, v19")
    A("v_lshl_add_u32 v20, v6, 3, v19")
    A("s_lshl_b32 s57, s50, 1")
    A("s_add_u32 s64, s57, s53")
    A("s_mul_i32 s57, s51, 80")
    A("s_mul_i32 s58, s52, 40")
    A("s_add_u32 s57, s57, s58")
    A("s_lshl_b32 s68, s57, 3")
    A("v_lshlrev_b32 v21, 4, v5")
    A("v_add_u32 v21, s68, v21")
    A("v_cmp_eq_u32 vcc, 15, v6")
    A(f"v_mov_b32 v18, {OOB}")
    A("v_cndmask_b32 v22, v18, v21, vcc")
    A("s_mul_i32 s69, s64, 5120")
    A(f"s_add_u32 s69, s69, {WS_E}")
    def load_tab1(m, base):
        for q in range(2):
            o = K1Y_T + (8 * m + q) * 288
            b = base + 12 * q
            A(f"ds_read_b128 v[{b}:{b+3}], v19 offset:{o+272}")
            A(f"ds_read_b64 v[{b+4}:{b+5}], v19 offset:{o+8}")
            A(f"ds_read_b64 v[{b+6}:{b+7}], v19 offset:{o+16}")
            A(f"ds_read_b64 v[{b+8}:{b+9}], v19 offset:{o+32}")
            A(f"ds_read_b64 v[{b+10}:{b+11}], v19 offset:{o+64}")
    load_tab1(0, TB)
    TMP = 108
    for m in range(5):
        base = TB + 24 * (m & 1)
        A("s_waitcnt lgkmcnt(0)")
        if m < 4: load_tab1(m + 1, TB + 24 * ((m + 1) & 1))
        for n in range(4):
            for q in range(2):
                u = ACC + (m * 4 + n) * 4 + 2 * q
                w = WSR + 4 * m + 2 * q
                st = ST + 2 * n
                cf = base + 12 * q + 2
                t0 = TMP + 4 * q
                A(f"v_pk_fma_f32 {vr(t0,2)}, {vr(w,2)}, {vr(st,2)}, {vr(u,2)} op_sel:[0,0,0] op_sel_hi:[1,0,1] neg_lo:[1,0,0] neg_hi:[1,0,0]")
                A(f"v_pk_mul_f32 {vr(t0+2,2)}, {vr(cf,2)}, {vr(st,2)} op_sel:[0,1] op_sel_hi:[1,1]")
                cmul(A, u, t0 + 2, t0)
        for n in range(1, 4):
            for q in range(2):
                a = base + 12 * q
                e = P + 4 * m + 2 * q
                t0 = TMP + 4 * q
                prev = (ACC + (m * 4) * 4 + 2 * q) if n == 1 else (t0 if n == 3 else t0 + 2)
                dst = e if n == 3 else (t0 + 2 if n == 1 else t0)
                u = ACC + (m * 4 + n) * 4 + 2 * q
                cmul_add(A, dst, a, prev, u)
        for ki, k in enumerate((1, 2, 4, 8)):
            for q in range(2):
                e = P + 4 * m + 2 * q
                t0 = TMP + 4 * q
                A(f"v_mov_b32_dpp v{t0}, v{e} row_shr:{k} row_mask:0xf bank_mask:0xf bound_ctrl:0")
                A(f"v_mov_b32_dpp v{t0+1}, v{e+1} row_shr:{k} row_mask:0xf bank_mask:0xf bound_ctrl:0")
            for q in range(2):
                e = P + 4 * m + 2 * q
                t0 = TMP + 4 * q
                cmul_add(A, e, base + 12 * q + 4 + 2 * ki, t0, e)
        pb = TMP + 8 + 4 * (m & 1)
        for r in range(4):
            A(f"v_min_u32 v{pb+r}, -2, v{P+4*m+r}")
        A(f"buffer_store_dwordx4 v[{pb}:{pb+3}], v22, s[44:47], s69 offen offset:{64*m} sc1")
    stamp(A, 5)
    A("v_sub_u32 v23, s64, v6")
    A("v_subrev_u32 v24, 1, v23")
    A("v_subrev_u32 v25, 17, v23")
    A("v_cmp_le_i32 vcc, 0, v24")
    A("v_mul_u32_u24 v24, 5120, v24")
    A("v_add_u32 v24, v24, v21")
    A("v_cndmask_b32 v24, v18, v24, vcc")
    A("v_cmp_le_i32 vcc, 0, v25")
    A("v_mul_u32_u24 v25, 5120, v25")
    A("v_add_u32 v25, v25, v21")
    A("v_cndmask_b32 v25, v18, v25, vcc")
    A(f"s_mov_b32 s69, {WS_E}")
    EN = 32; EF = 52; TB2 = 72
    def load_tab2(m, base):
        for q in range(2):
            o = K1Y_T + (8 * m + q) * 288
            b = base + 8 * q
            A(f"ds_read_b64 v[{b}:{b+1}], v20 offset:{o+128}")
            A(f"ds_read_b64 v[{b+2}:{b+3}], v19 offset:{o+256}")
            A(f"ds_read_b64 v[{b+4}:{b+5}], v20 offset:{o}")
            A(f"ds_read_b64 v[{b+6}:{b+7}], v19 offset:{o+272}")
    load_tab2(0, TB2)
    A("s_mul_i32 s57, s51, 5")
    A("s_lshl_b32 s58, s52, 1")
    A("s_add_u32 s57, s57, s58")
    A("s_mul_i32 s58, s50, 40")
    A("s_add_u32 s57, s57, s58")
    A("s_lshl_b32 s57, s57, 3")
    A("s_lshl_b32 s58, s53, 2")
    A("s_add_u32 s57, s57, s58")
    A("s_lshl_b32 s57, s57, 10")
    A(f"s_add_u32 s65, s57, {WS_H1}")
    A("v_lshlrev_b32 v27, 4, v0")
    Lp = A.label("lb"); Lx = A.label("lbx")
    A("s_mov_b32 s58, 100000")
    A(f"{Lp}:")
    for m in range(5):
        A(f"buffer_load_dwordx4 v[{EN+4*m}:{EN+4*m+3}], v24, s[44:47], s69 offen offset:{64*m} sc1")
        A(f"buffer_load_dwordx4 v[{EF+4*m}:{EF+4*m+3}], v25, s[44:47], s69 offen offset:{64*m} sc1")
    A("s_waitcnt vmcnt(0)")
    A(f"v_max3_u32 v26, v{EN}, v{EN+1}, v{EN+2}")
    for r in range(3, 39, 2):
        A(f"v_max3_u32 v26, v26, v{EN+r}, v{EN+r+1}")
    A(f"v_max_u32 v26, v26, v{EN+39}")
    A("v_cmp_eq_u32 vcc, -1, v26")
    A("s_cmp_eq_u64 vcc, 0")
    A(f"s_cbranch_scc1 {Lx}")
    A("s_sleep 1")
    A("s_sub_u32 s58, s58, 1")
    A("s_cmp_lg_u32 s58, 0")
    A(f"s_cbranch_scc1 {Lp}")
    A(f"{Lx}:")
    stamp(A, 6)
    PK = 228
    for m in range(5):
        base = TB2 + 16 * (m & 1)
        A("s_waitcnt lgkmcnt(0)")
        if m < 4: load_tab2(m + 1, TB2 + 16 * ((m + 1) & 1))
        for q in range(2):
            cmul_add(A, EN + 4 * m + 2 * q, base + 8 * q + 2, EF + 4 * m + 2 * q, EN + 4 * m + 2 * q)
        for q in range(2):
            cmul(A, EF + 4 * m + 2 * q, base + 8 * q, EN + 4 * m + 2 * q)
        for k in (8, 4, 2, 1):
            for r in range(4):
                x = EF + 4 * m + r
                A(f"v_add_f32_dpp v{x}, v{x}, v{x} row_ror:{k} row_mask:0xf bank_mask:0xf")
        for q in range(2):
            e = P + 4 * m + 2 * q
            t0 = TMP + 4 * q
            A(f"v_mov_b32_dpp v{t0}, v{e} row_shr:1 row_mask:0xf bank_mask:0xf bound_ctrl:0")
            A(f"v_mov_b32_dpp v{t0+1}, v{e+1} row_shr:1 row_mask:0xf bank_mask:0xf bound_ctrl:0")
        for q in range(2):
            t0 = TMP + 4 * q
            cmul_add(A, t0, base + 8 * q + 4, EF + 4 * m + 2 * q, t0)
        for n in range(4):
            for q in range(2):
                u = ACC + (m * 4 + n) * 4 + 2 * q
                prev = (TMP + 4 * q) if n == 0 else u - 4
                cmul_add(A, u, base + 8 * q + 6, prev, u)
    stamp(A, 7)
    L1 = A.label("ey1"); L2 = A.label("eyx")
    A("s_cmp_lg_u32 s52, 0")
    A(f"s_cbranch_scc1 {L1}")
    for parity in (0, 1):
        if parity == 1: A(f"{L1}:")
        cnt = 0
        for kind, tl, ks, half in frag_store_plan(5, parity):
            A(f"s_add_u32 s57, s65, {ks*8192}")
            for n in range(4):
                t = 32 + 4 * (cnt % 8); cnt += 1
                for x, m in enumerate(tl):
                    u = ACC + (m * 4 + n) * 4
                    A(f"v_cvt_pk_bf16_f32 v{t+2*x}, v{u}, v{u+1}")
                    A(f"v_cvt_pk_bf16_f32 v{t+2*x+1}, v{u+2}, v{u+3}")
                if kind == "pair":
                    A(f"buffer_store_dwordx4 v[{t}:{t+3}], v27, s[44:47], s57 offen offset:{1024*n} sc1")
                else:
                    if "nosingle" not in DBG: A(f"buffer_store_dwordx2 v[{t}:{t+1}], v27, s[44:47], s57 offen offset:{1024*n + 8*half} sc1")
        if parity == 0: A(f"s_branch {L2}")
    A(f"{L2}:")

K2_NR = 7
K2_R0 = 25088
K2_BOFF = K2_R0 + K2_NR * 10240
K2_NST = 47
NSF = 27

def p2_ids(A):
    A("s_lshl_b32 s57, s49, 7")
    A("s_lshl_b32 s58, s50, 3")
    A("s_add_u32 s57, s57, s58")
    A("s_add_u32 s57, s57, s51")
    A("s_lshl_b32 s57, s57, 7")
    A("s_lshl_b32 s58, s48, 3")
    A("s_add_u32 s57, s57, s58")
    A(f"s_add_u32 s77, s57, {WS_F2}")
    A("s_mov_b32 s78, s49")
    A("s_and_b32 s57, s2, 3")
    A("s_bfe_u32 s58, s2, 0x10002")
    A("s_lshr_b32 s59, s35, 2")
    A("s_lshl_b32 s50, s57, 2")
    A("s_lshr_b32 s57, s59, 1")
    A("s_add_u32 s50, s50, s57")
    A("s_and_b32 s49, s59, 1")
    A("s_lshl_b32 s51, s58, 2")
    A("s_and_b32 s57, s35, 3")
    A("s_add_u32 s51, s51, s57")
    A("v_lshlrev_b32 v10, 4, v0")

def spin_flags(A, loads, regs, vm=None):
    Lp = A.label("sp"); Lx = A.label("spx")
    A("s_mov_b32 s70, 400000")
    A(f"{Lp}:")
    for l in loads: A(l)
    A("s_waitcnt vmcnt(0)")
    for i, r in enumerate(regs):
        A(f"v_cmp_ne_u64 {'vcc' if i == 0 else 's[72:73]'}, v[{r}:{r+1}], v[28:29]")
        if i: A("s_or_b64 vcc, vcc, s[72:73]")
    A("s_cmp_eq_u64 vcc, 0")
    A(f"s_cbranch_scc1 {Lx}")
    A("s_sleep 1")
    A("s_sub_u32 s70, s70, 1")
    A("s_cmp_lg_u32 s70, 0")
    A(f"s_cbranch_scc1 {Lp}")
    A(f"{Lx}:")
    if vm: vm.ops = []

def p2_loaders(A):
    stamp(A, 0)
    p2_ids(A)
    A("s_mul_i32 s57, s53, 5120")
    A(f"s_mul_i32 s62, s51, {20*10240}")
    A("s_add_u32 s62, s62, s57")
    A(f"s_add_u32 s62, s62, {WS_CP}")
    A(f"s_mul_i32 s63, s51, {27*10240}")
    A("s_add_u32 s63, s63, s57")
    A(f"s_add_u32 s63, s63, {WS_W2P}")
    A(f"s_add_u32 s57, s57, {K2_R0}")
    A("s_lshl_b32 s58, s53, 13")
    A("s_lshl_b32 s59, s49, 12")
    A("s_add_u32 s58, s58, s59")
    A(f"s_mul_i32 s64, s50, {40*8192}")
    A("s_add_u32 s64, s64, s58")
    A(f"s_add_u32 s64, s64, {WS_H1}")
    A(f"s_mul_i32 s66, s50, {54*8192}")
    A("s_add_u32 s66, s66, s58")
    A(f"s_add_u32 s66, s66, {WS_HF}")
    A("s_lshl_b32 s59, s53, 12")
    A(f"s_add_u32 s59, s59, {K2_BOFF}")
    A("s_cmp_lg_u32 s52, 0")
    A("s_cselect_b32 s62, s64, s62")
    A("s_cselect_b32 s63, s66, s63")
    A("s_cselect_b32 s58, s59, s57")
    A("s_cbranch_scc0 p2_lA")
    p2_loader(A, True)
    stamps_flush(A, 6, 1)
    A("s_branch k1_end")
    A("p2_lA:")
    p2_loader(A, False)
    stamps_flush(A, 6, 1)

def p2_loader(A, isB):
    vm = VM(A)
    nst = K2_NST
    nI = 4 if isB else 5
    sstr = 16384 if isB else 10240
    lstr = 8192 if isB else 10240
    if not isB:
        A("v_lshlrev_b32 v30, 7, v0")
        A(f"v_add_u32 v30, {WS_F1+8}, v30")
        A("s_mov_b32 s64, 8192")
        A("s_mov_b32 s65, 16384")
        A("s_mov_b32 s66, 24576")
        spin_flags(A, ["buffer_load_dwordx2 v[32:33], v30, s[44:47], 0 offen sc1", "buffer_load_dwordx2 v[34:35], v30, s[44:47], s64 offen sc1",
                       "buffer_load_dwordx2 v[36:37], v30, s[44:47], s65 offen sc1", "buffer_load_dwordx2 v[38:39], v30, s[44:47], s66 offen sc1"], [32, 34, 36, 38])
    else:
        A("v_bfe_u32 v30, v0, 2, 3")
        A("v_and_b32 v31, 3, v0")
        A("v_lshlrev_b32 v30, 7, v30")
        A("v_lshl_add_u32 v30, v31, 3, v30")
        A("s_lshl_b32 s64, s50, 10")
        A(f"s_add_u32 s64, s64, {WS_F2}")
        A(f"s_add_u32 s66, s64, {128*128}")
        spin_flags(A, ["buffer_load_dwordx2 v[32:33], v30, s[44:47], s66 offen sc1"], [32])
    def dma(st):
        if isB and st == NSF:
            spin_flags(A, ["buffer_load_dwordx2 v[32:33], v30, s[44:47], s64 offen sc1"], [32], vm)
        bo = (st % K2_NR) * lstr
        src, so = (63, st * sstr) if st < NSF else (62, (st - NSF) * sstr)
        for q in range(nI):
            A(f"s_add_u32 m0, s58, {bo + 1024*q}")
            A(f"s_add_u32 s65, s{src}, {so + 1024*q}")
            vm("buffer_load_dwordx4 v10, s[44:47], s65 offen sc1 lds", f"d{st}")
    stamp(A, 1)
    n0 = 3 if isB else K2_NR
    for st in range(n0): dma(st)
    vm.wait("d0")
    stamp(A, 2)
    A("s_barrier")
    vm.wait("d1")
    A("s_barrier")
    for st in range(n0, K2_NR): dma(st)
    for j in range(nst - 2):
        vm.wait(f"d{j+2}")
        A("s_barrier")
        if j + K2_NR < nst: dma(j + K2_NR)
    for i in (3, 4, 5): stamp(A, i)

def p2_compute(A):
    stamp(A, 0)
    A("v_mov_b32 v26, 0")
    A(f"ds_read_b64 v[22:23], v26 offset:{K1_NONCE}")
    p2_ids(A)
    srd(A, 72, 4, T * D * 2)
    srd(A, 84 if not STAMPS else 68, 28, T * D * 4)
    A("v_cmp_eq_u32 vcc, 0, v0")
    A(f"v_mov_b32 v24, {OOB}")
    A("v_cndmask_b32 v24, v24, v26, vcc")
    L = A.label("nof")
    A("s_cmp_eq_u32 s78, 0")
    A(f"s_cbranch_scc1 {L}")
    A("s_waitcnt vmcnt(0) lgkmcnt(0)")
    A("buffer_store_dwordx2 v[22:23], v24, s[44:47], s77 offen sc1")
    A(f"{L}:")
    FRAG = 112
    ACCY = 28; ACCF = 48; XR = 68; SR = 78; DR = 82; PR = 92
    nst = K2_NST
    A("s_lshl_b32 s57, s50, 7")
    A("s_lshl_b32 s58, s49, 6")
    A("s_add_u32 s57, s57, s58")
    A("s_add_u32 s57, s57, s48")
    A("v_lshl_add_u32 v17, v6, 2, s57")
    A("v_mul_u32_u24 v18, 1280, v17")
    A("v_lshl_add_u32 v18, v5, 3, v18")
    A("s_mul_i32 s58, s51, 160")
    for m in range(5):
        A(f"buffer_load_dwordx2 v[{XR+2*m}:{XR+2*m+1}], v18, s[72:75], s58 offen offset:{32*m}")
    A("v_lshlrev_b32 v25, 4, v17")
    A(f"s_mov_b32 s62, {WS_STATS}")
    A("v_lshlrev_b32 v26, 3, v5")
    A("v_add_u32 v26, s58, v26")
    for m in range(5):
        A(f"global_load_dwordx2 v[{DR+2*m}:{DR+2*m+1}], v26, s[20:21] offset:{32*m}")
    A("s_lshl_b32 s57, s48, 10")
    A(f"s_add_u32 s57, s57, {K2_BOFF}")
    A("v_add_u32 v20, s57, v10")
    A(f"v_add_u32 v21, {K2_R0 + 3*10240}, v10")
    A(f"v_add_u32 v19, {K2_R0}, v10")
    for r in range(40):
        A(f"v_mov_b32 v{ACCY+r}, 0")
    plist = []
    P = plist.append
    mm, rs, sd = SR, SR + 1, SR + 2
    for m in range(5):
        x = XR + 2 * m; t = 2; du = 12; p = PR + 4 * m
        for hh in range(2):
            P(f"v_lshlrev_b32 v{t+2*hh}, 16, v{x+hh}")
            P(f"v_and_b32 v{t+2*hh+1}, 0xffff0000, v{x+hh}")
        for r in range(4): P(f"v_sub_f32 v{t+r}, v{t+r}, v{mm}")
        for hh in range(2):
            P(f"v_cvt_pk_bf16_f32 v{t+4+hh}, v{t+2*hh}, v{t+2*hh+1}")
        for hh in range(2):
            P(f"v_lshlrev_b32 v{t+2*hh}, 16, v{t+4+hh}")
            P(f"v_and_b32 v{t+2*hh+1}, 0xffff0000, v{t+4+hh}")
        for r in range(4): P(f"v_mul_f32 v{t+4+r}, v{t+r}, v{rs}")
        for r in range(4): P(f"v_fma_f32 v{t+r}, -v{t+4+r}, v{sd}, v{t+r}")
        for r in range(4): P(f"v_fma_f32 v{t+4+r}, v{t+r}, v{rs}, v{t+4+r}")
        for hh in range(2):
            P(f"v_cvt_pk_bf16_f32 v{t+hh}, v{t+4+2*hh}, v{t+4+2*hh+1}")
        for hh in range(2):
            P(f"v_lshlrev_b32 v{t+4+2*hh}, 16, v{t+hh}")
            P(f"v_and_b32 v{t+4+2*hh+1}, 0xffff0000, v{t+hh}")
        for hh in range(2):
            P(f"v_lshlrev_b32 v{du+2*hh}, 16, v{DR+2*m+hh}")
            P(f"v_and_b32 v{du+2*hh+1}, 0xffff0000, v{DR+2*m+hh}")
        for r in range(4): P(f"v_mul_f32 v{t+4+r}, v{t+4+r}, v{du+r}")
        for hh in range(2):
            P(f"v_cvt_pk_bf16_f32 v{t+hh}, v{t+4+2*hh}, v{t+4+2*hh+1}")
        for hh in range(2):
            P(f"v_lshlrev_b32 v{p+2*hh}, 16, v{t+hh}")
            P(f"v_and_b32 v{p+2*hh+1}, 0xffff0000, v{t+hh}")
    glist = []
    G = glist.append
    for m in range(5):
        a = ACCF + 4 * m; t = 2
        for hh in range(2):
            G(f"v_cvt_pk_bf16_f32 v{t+hh}, v{a+2*hh}, v{a+2*hh+1}")
        for hh in range(2):
            G(f"v_lshlrev_b32 v{a+2*hh}, 16, v{t+hh}")
            G(f"v_and_b32 v{a+2*hh+1}, 0xffff0000, v{t+hh}")
        for r in range(4): G(f"v_mul_f32 v{t+r}, {hexf(-LOG2E)}, v{a+r}")
        for r in range(4): G(f"v_exp_f32 v{t+r}, v{t+r}")
        for r in range(4): G(f"v_add_f32 v{t+r}, 1.0, v{t+r}")
        for r in range(4): G(f"v_rcp_f32 v{t+r}, v{t+r}")
        for r in range(4): G(f"v_mul_f32 v{t+r}, v{t+r}, v{a+r}")
        for hh in range(2):
            G(f"v_cvt_pk_bf16_f32 v{t+4+hh}, v{t+2*hh}, v{t+2*hh+1}")
        for hh in range(2):
            G(f"v_lshlrev_b32 v{a+2*hh}, 16, v{t+4+hh}")
            G(f"v_and_b32 v{a+2*hh+1}, 0xffff0000, v{t+4+hh}")
    fset = lambda stage, kk: FRAG + ((stage % 3) * 2 + kk) * 24
    def reads(stage, kk):
        sl = stage % K2_NR
        ra = 21 if sl >= 3 else 19
        oa = (sl - 3 if sl >= 3 else sl) * 10240
        f = fset(stage, kk)
        out = [f"ds_read_b128 {vr(f+20,4)}, v20 offset:{sl*8192 + kk*4096}"]
        out += [f"ds_read_b128 {vr(f+4*m,4)}, v{ra} offset:{oa + kk*5120 + m*1024}" for m in range(5)]
        return out
    def mfmas(stage, kk):
        f = fset(stage, kk); acc = ACCF if stage < NSF else ACCY
        return [f"v_mfma_f32_16x16x32_bf16 {vr(acc+4*m,4)}, {vr(f+4*m,4)}, {vr(f+20,4)}, {vr(acc+4*m,4)}" for m in range(5)]
    stamp(A, 1)
    A("s_barrier")
    stamp(A, 2)
    A(f"buffer_load_dwordx4 v[{SR}:{SR+3}], v25, s[44:47], s62 offen sc1")
    for kk in range(2):
        for r in reads(0, kk): A(r)
    A("s_barrier")
    for kk in range(2):
        for r in reads(1, kk): A(r)
    for j in range(nst):
        A(f"s_waitcnt lgkmcnt({12 if j < nst - 1 else 0})")
        mf = mfmas(j, 0) + mfmas(j, 1)
        if j < nst - 2:
            for m in mf[:2]: A(m)
            if j == 8:
                A("s_waitcnt vmcnt(0)")
                L = A.label("noy")
                A("s_cmp_lg_u32 s78, 0")
                A(f"s_cbranch_scc1 {L}")
                A("buffer_store_dwordx2 v[22:23], v24, s[44:47], s77 offen sc1")
                A(f"{L}:")
            A("s_barrier")
            rd = reads(j + 2, 0) + reads(j + 2, 1)
            rest = mf[2:]
            for i, m in enumerate(rest):
                for r in rd[(i * 12) // 8: ((i + 1) * 12) // 8]: A(r)
                A(m)
                if j >= 8:
                    for _ in range(2):
                        if plist: A(plist.pop(0))
                        elif j >= NSF + 2 and glist: A(glist.pop(0))
        else:
            for m in mf: A(m)
    assert not plist and not glist
    stamp(A, 3)
    A("v_lshlrev_b32 v18, 1, v18")
    A("s_lshl_b32 s58, s58, 1")
    so = 84 if not STAMPS else 68
    for m in range(5):
        t = 112 + 4 * m
        for hh in range(2):
            A(f"v_pk_add_f32 {vr(PR+4*m+2*hh,2)}, {vr(ACCY+4*m+2*hh,2)}, {vr(PR+4*m+2*hh,2)}")
        for hh in range(2):
            A(f"v_lshlrev_b32 v{t+2*hh}, 16, v{XR+2*m+hh}")
            A(f"v_and_b32 v{t+2*hh+1}, 0xffff0000, v{XR+2*m+hh}")
        for hh in range(2):
            A(f"v_pk_mul_f32 {vr(PR+4*m+2*hh,2)}, {vr(PR+4*m+2*hh,2)}, {vr(ACCF+4*m+2*hh,2)}")
        for hh in range(2):
            A(f"v_pk_add_f32 {vr(t+2*hh,2)}, {vr(t+2*hh,2)}, {vr(PR+4*m+2*hh,2)}")
        A(f"buffer_store_dwordx4 v[{t}:{t+3}], v18, s[{so}:{so+3}], s58 offen offset:{64*m}")
    stamp(A, 4); stamp(A, 5)

HEADER = open("recurrent_scan__ssm_conv_s5__dense_activation_relu__prompt.s.ref").read().split("; @launch")[0]

def kd(name, vgpr=256):
    return f""".p2align 6
.amdhsa_kernel {name}
  .amdhsa_next_free_vgpr {vgpr}
  .amdhsa_next_free_sgpr 102
  .amdhsa_accum_offset {vgpr}
  .amdhsa_group_segment_fixed_size 0
  .amdhsa_kernarg_size 120
  .amdhsa_user_sgpr_count 2
  .amdhsa_user_sgpr_kernarg_segment_ptr 1
  .amdhsa_system_sgpr_workgroup_id_x 1
.end_amdhsa_kernel
"""

def build():
    out = HEADER
    out += f"; @launch kernel=k1_kernel grid=(256,1,1) block=(512,1,1) lds={K1_LDS}\n"
    out += '.amdgcn_target "amdgcn-amd-amdhsa--gfx950"\n.text\n'
    for name, fn in (("k1_kernel", kernel1),):
        A = Asm(); A.nlabel = 0 if name == "k1_kernel" else 1000
        fn(A)
        lines = fix_hazards(A.lines, verbose=True)
        out += f".globl {name}\n.p2align 8\n.type {name},@function\n"
        out += "\n".join(("    " + l if not l.endswith(":") else l) for l in lines) + "\n"
    out += '.section .rodata,"a"\n' + kd("k1_kernel")
    return out

if __name__ == "__main__":
    if len(sys.argv) > 2: STAMPS = True; DBG = sys.argv[2]
    dst = sys.argv[1] if len(sys.argv) > 1 else "recurrent_scan__ssm_conv_s5__dense_activation_relu__prompt.s"
    open(dst, "w").write(build())
    print("wrote", dst)
```

```python
import sys, struct
from asmlib import *

T, D, DFF = 2048, 640, 1728
WS_STATS = 0x000000
WS_E     = 0x010000
WS_WSP   = 0x0A0000
WS_WSYO  = 0x0E0000
WS_F3    = 0x0E8000
WS_F2    = 0x080000
WS_F1    = 0x090000
WS_CP    = 0x100000
WS_W2P   = 0x300000
WS_H1    = 0x600000
WS_HF    = 0xC00000
WS_S     = 0x1400000
WS_TS    = 0x1A00000
WS_SIZE  = 0x1B00000
OOB = 0x7ffffff0

import os
MAP = os.environ.get("MAP", "bp")
GI = int(os.environ.get("GI", 7))
STAMPS = False
DBG = "nopf"
def stamp(A, i):
    if STAMPS and i == 0:
        A("s_memrealtime s[96:97]")
    if STAMPS:
        A(f"s_memtime s[{80+2*i}:{81+2*i}]")
def stamps_flush(A, n, kidx, waitvm=True):
    if not STAMPS: return
    A("s_waitcnt lgkmcnt(0) vmcnt(0)" if waitvm else "s_waitcnt lgkmcnt(0)")
    A("s_memtime s[98:99]")
    A("s_memrealtime s[100:101]")
    A("s_waitcnt lgkmcnt(0)")
    A("s_lshl_b32 s57, s2, 3")
    A("s_add_u32 s57, s57, s34")
    A("s_lshl_b32 s57, s57, 6")
    A(f"s_add_u32 s57, s57, {WS_TS + kidx*131072}")
    A("v_mov_b32 v2, 0")
    for i in range(n):
        A(f"v_mov_b32 v3, s{80+2*i}")
        A(f"buffer_store_dword v3, v2, s[44:47], s57 offen offset:{4*i}")
    A(f"v_mov_b32 v3, s98")
    A(f"buffer_store_dword v3, v2, s[44:47], s57 offen offset:{4*n}")
    A(f"v_mov_b32 v3, s96")
    A(f"buffer_store_dword v3, v2, s[44:47], s57 offen offset:56")
    A(f"v_mov_b32 v3, s100")
    A(f"buffer_store_dword v3, v2, s[44:47], s57 offen offset:60")

def f2u(x): return struct.unpack("<I", struct.pack("<f", x))[0]
def hexf(x): return f"0x{f2u(x):08x}"
LOG2E = 1.4426950408889634
INV2PI = 0.15915494309189535

def divc(A, vq, vsrc, d, maxv):
    for sh in (16, 17, 18, 19, 20):
        mul = ((1 << sh) + d - 1) // d
        if all((c * mul) >> sh == c // d for c in range(maxv)) and maxv * mul < (1 << 32) and mul < (1 << 24):
            A(f"v_mul_u32_u24 {vr(vq)}, {mul}, {vr(vsrc)}")
            A(f"v_lshrrev_b32 {vr(vq)}, {sh}, {vr(vq)}")
            return
    raise Exception("no magic")

def srd(A, s, base, size):
    A(f"s_mov_b32 s{s}, s{base}")
    A(f"s_and_b32 s{s+1}, s{base+1}, 0xffff")
    A(f"s_mov_b32 s{s+2}, {size}")
    A(f"s_mov_b32 s{s+3}, 0x20000")

def cmul_add(A, dst, w, h, u):
    A(f"v_pk_fma_f32 {vr(dst,2)}, {vr(w,2)}, {vr(h,2)}, {vr(u,2)} op_sel:[0,0,0] op_sel_hi:[0,1,1]")
    A(f"v_pk_fma_f32 {vr(dst,2)}, {vr(w,2)}, {vr(h,2)}, {vr(dst,2)} op_sel:[1,1,0] op_sel_hi:[1,0,1] neg_lo:[1,0,0]")
def cmul(A, dst, w, h):
    A(f"v_pk_mul_f32 {vr(dst,2)}, {vr(w,2)}, {vr(h,2)} op_sel:[0,0] op_sel_hi:[0,1]")
    A(f"v_pk_fma_f32 {vr(dst,2)}, {vr(w,2)}, {vr(h,2)}, {vr(dst,2)} op_sel:[1,1,0] op_sel_hi:[1,0,1] neg_lo:[1,0,0]")

def wave_sum(A, regs):
    for mod in ("row_shr:1 row_mask:0xf bank_mask:0xf bound_ctrl:0", "row_shr:2 row_mask:0xf bank_mask:0xf bound_ctrl:0",
                "row_shr:4 row_mask:0xf bank_mask:0xf bound_ctrl:0", "row_shr:8 row_mask:0xf bank_mask:0xf bound_ctrl:0",
                "row_bcast:15 row_mask:0xa bank_mask:0xf", "row_bcast:31 row_mask:0xc bank_mask:0xf"):
        for r in regs:
            A(f"v_add_f32_dpp {vr(r)}, {vr(r)}, {vr(r)} {mod}")

def bf16r(A, r):
    A(f"v_cvt_pk_bf16_f32 {vr(r)}, {vr(r)}, {vr(r)}")
    A(f"v_lshlrev_b32 {vr(r)}, 16, {vr(r)}")

class VM:
    def __init__(s, A): s.A = A; s.ops = []
    def __call__(s, text, tag): s.A(text); s.ops.append(tag)
    def wait(s, tag, extra=""):
        idx = max([i for i, t in enumerate(s.ops) if t == tag], default=None)
        if idx is None:
            if extra: s.A(f"s_waitcnt {extra}")
            return
        n = len(s.ops) - 1 - idx
        assert n <= 63, n
        s.A(f"s_waitcnt vmcnt({n}) {extra}".strip())
        s.ops = s.ops[idx + 1:]
    def waitall(s, extra=""):
        s.A(f"s_waitcnt vmcnt(0) {extra}".strip()); s.ops = []

def common_ids(A):
    A("v_lshrrev_b32 v2, 6, v0")
    A("v_and_b32 v1, 255, v0")
    A("v_and_b32 v0, 63, v0")
    A("v_readfirstlane_b32 s34, v2")
    A("s_lshr_b32 s35, s2, 3")
    A("s_and_b32 s57, s2, 3")
    A("s_lshl_b32 s57, s57, 2")
    A("s_lshr_b32 s50, s35, 3")
    A("s_add_u32 s50, s50, s57")
    if MAP == "mixed":
        A("s_and_b32 s49, s35, 1")
        A("s_bfe_u32 s51, s35, 0x20001")
        A("s_and_b32 s57, s2, 4")
        A("s_add_u32 s51, s51, s57")
    else:
        A("s_bfe_u32 s49, s2, 0x10002")
        A("s_and_b32 s51, s35, 7")
    A("s_and_b32 s48, s34, 3")
    A("s_lshr_b32 s52, s48, 1")
    A("s_and_b32 s53, s48, 1")
    A("v_lshrrev_b32 v3, 3, v0")
    A("v_and_b32 v4, 7, v0")
    A("v_lshrrev_b32 v5, 4, v0")
    A("v_and_b32 v6, 15, v0")

def poll(A, load, stmp, scount, vtmp, target, iters=200000):
    L = A.label("poll"); Lx = A.label("pollx")
    A(f"s_mov_b32 s{scount}, {iters}")
    A(f"{L}:")
    A(load)
    A("s_waitcnt vmcnt(0)")
    A(f"v_readfirstlane_b32 s{stmp}, {vr(vtmp)}")
    A(f"s_cmp_eq_u32 s{stmp}, {target}")
    A(f"s_cbranch_scc1 {Lx}")
    A("s_sleep 1")
    A(f"s_sub_u32 s{scount}, s{scount}, 1")
    A(f"s_cmp_lg_u32 s{scount}, 0")
    A(f"s_cbranch_scc1 {L}")
    A(f"{Lx}:")

K1F_STAGE = 28672 + 16384
K1Y_STAGE = 20480 + 16384
K1_STATS = 0
K1_WS = 2048
K1_NONCE = 3008
K1F_RED = 3072
K1F_BUF = 10240
K1Y_T = 3072
K1Y_BUF = 26112
K1Y_SCR = K1Y_BUF + 3 * K1Y_STAGE
K1_LE = 157184
K1_LDS = 157184 + 4096

def kernel1(A):
    A("k1_kernel:")
    A("s_cmp_ge_u32 s2, 256")
    A("s_cbranch_scc1 k1_end")
    stamp(A, 0)
    A("s_load_dwordx16 s[4:19], s[0:1], 0")
    A("s_load_dwordx8 s[20:27], s[0:1], 64")
    A("s_load_dwordx4 s[28:31], s[0:1], 96")
    A("s_load_dwordx2 s[32:33], s[0:1], 112")
    common_ids(A)
    A("s_lshr_b32 s57, s51, 1")
    A("s_mul_i32 s54, s57, 27")
    A("s_and_b32 s57, s51, 1")
    A("s_mul_i32 s57, s57, 14")
    A("s_add_u32 s54, s54, s57")
    A("s_waitcnt lgkmcnt(0)")
    srd(A, 36, 4, T * D * 2)
    srd(A, 44, 32, WS_SIZE)
    A("s_cmp_ge_u32 s34, 4")
    A("s_cbranch_scc1 k1_ld")
    A("s_cmp_lg_u32 s49, 0")
    A("s_cbranch_scc1 k1_cF")
    k1_compute(A, False)
    A("s_branch p2_comp")
    A("k1_cF:")
    k1_compute(A, True)
    A("p2_comp:")
    stamps_flush(A, 8, 0, False)
    p2_compute(A)
    stamps_flush(A, 6, 1)
    A("s_branch k1_end")
    A("k1_ld:")
    A("s_cmp_lg_u32 s49, 0")
    A("s_cbranch_scc1 k1_lF")
    k1_loader(A, False)
    A("s_branch p2_ld")
    A("k1_lF:")
    k1_loader(A, True)
    A("p2_ld:")
    stamps_flush(A, 8, 0, False)
    p2_loaders(A)
    A("k1_end:")
    A("s_endpgm")

def stats_compute(A, vm, SRC):
    for r in range(2):
        for i in range(5):
            A(f"v_lshlrev_b32 v{40+10*r+2*i}, 16, v{SRC+5*r+i}")
            A(f"v_and_b32 v{41+10*r+2*i}, 0xffff0000, v{SRC+5*r+i}")
    for r in range(2):
        b = 40 + 10 * r
        A(f"v_add_f32 v{60+r}, v{b}, v{b+1}")
        for i in range(2, 10):
            A(f"v_add_f32 v{60+r}, v{60+r}, v{b+i}")
    wave_sum(A, [60, 61])
    A("v_readlane_b32 s57, v60, 63")
    A("v_readlane_b32 s58, v61, 63")
    A(f"v_mov_b32 v62, {hexf(1.0/640)}")
    A("v_mul_f32 v60, s57, v62")
    A("v_mul_f32 v61, s58, v62")
    for r in range(2):
        b = 40 + 10 * r
        for i in range(10):
            A(f"v_sub_f32 v{b+i}, v{b+i}, v{60+r}")
    for r in range(2):
        b = 40 + 10 * r
        A(f"v_mul_f32 v{64+r}, v{b}, v{b}")
        for i in range(1, 10):
            A(f"v_fmac_f32 v{64+r}, v{b+i}, v{b+i}")
    wave_sum(A, [64, 65])
    A("v_readlane_b32 s57, v64, 63")
    A("v_readlane_b32 s58, v65, 63")
    A("v_mul_f32 v64, s57, v62")
    A("v_mul_f32 v65, s58, v62")
    A("v_and_b32 v66, 1, v0")
    A("v_cmp_eq_u32 vcc, 1, v66")
    A("v_cndmask_b32 v68, v60, v61, vcc")
    A("v_cndmask_b32 v70, v64, v65, vcc")
    bf16r(A, 68)
    bf16r(A, 70)
    A(f"v_add_f32 v70, {hexf(1e-5)}, v70")
    bf16r(A, 70)
    A("v_sqrt_f32 v70, v70")
    bf16r(A, 70)
    A("v_rcp_f32 v69, v70")
    A("v_fma_f32 v71, -v70, v69, 1.0")
    A("v_fma_f32 v69, v71, v69, v69")
    A("v_mov_b32 v71, 0")
    A("v_lshlrev_b32 v66, 4, v0")
    A(f"v_mov_b32 v67, {OOB}")
    A("v_cmp_gt_u32 vcc, 2, v0")
    A("v_cndmask_b32 v66, v67, v66, vcc")
    A("s_lshl_b32 s57, s63, 4")
    A(f"s_add_u32 s57, s57, {WS_STATS}")
    vm("buffer_store_dwordx4 v[68:71], v66, s[44:47], s57 offen sc1", "st")

def k1_loader(A, isF):
    vm = VM(A)
    STG = K1F_STAGE if isF else K1Y_STAGE
    BUF = K1F_BUF if isF else K1Y_BUF
    ASZ = 28672 if isF else 20480
    if not isF:
        L = A.label("nononce")
        A("s_or_b32 s57, s2, s48")
        A("s_cmp_lg_u32 s57, 0")
        A(f"s_cbranch_scc1 {L}")
        A("s_memrealtime s[70:71]")
        A("v_mov_b32 v18, 0")
        A("s_waitcnt lgkmcnt(0)")
        A("s_or_b32 s70, s70, 1")
        A("v_mov_b32 v20, s70")
        A("v_mov_b32 v21, s71")
        A("s_mov_b64 exec, 1")
        A("global_store_dwordx2 v18, v[20:21], s[30:31] sc1")
        A("s_mov_b64 exec, -1")
        A(f"{L}:")
    A("v_xor_b32 v17, v4, v3")
    A("v_mul_u32_u24 v19, 5120, v3")
    A("v_lshl_add_u32 v247, v17, 4, v19")
    A("s_lshl_b32 s60, s50, 7")
    A("s_lshl_b32 s59, s52, 6")
    A("s_add_u32 s60, s60, s59")
    A("s_lshl_b32 s59, s53, 1")
    A("s_add_u32 s60, s60, s59")
    A("s_mul_i32 s60, s60, 1280")
    A("s_lshl_b32 s62, s48, 12")
    A(f"s_add_u32 s62, s62, {ASZ+BUF}")
    def dmaX(st):
        bo = (st % 3) * STG
        for q in range(4):
            A(f"s_add_u32 m0, s62, {bo + 1024*q}")
            A(f"s_add_u32 s65, s60, {st*128 + (32*(q&1) + (q>>1))*1280}")
            vm(f"buffer_load_dwordx4 v247, s[36:39], s65 offen lds", f"d{st}")
    stamp(A, 5)
    dmaX(0)
    if isF:
        srd(A, 40, 24, D * DFF * 2)
        A("s_mul_i32 s59, s48, 55296")
        A("s_lshl_b32 s64, s54, 5")
        A("s_add_u32 s59, s59, s64")
        A("s_mul_i32 s61, s48, 7168")
        A(f"s_add_u32 s61, s61, {BUF}")
        for q in range(7):
            A(f"v_add_u32 v17, {64*q}, v0")
            divc(A, 18, 17, 28, 448)
            A("v_mul_u32_u24 v19, 28, v18")
            A("v_sub_u32 v19, v17, v19")
            A("v_lshrrev_b32 v17, 2, v18")
            A("v_and_b32 v17, 2, v17")
            A("v_xor_b32 v19, v19, v17")
            A("v_mul_u32_u24 v18, 3456, v18")
            A(f"v_lshl_add_u32 v{240+q}, v19, 4, v18")
            A(f"s_add_u32 m0, s61, {1024*q}")
            A("s_nop 0")
            vm(f"buffer_load_dwordx4 v{240+q}, s[40:43], s59 offen lds", "d0")
    else:
        A("s_cmp_lt_u32 s48, 2")
        A("s_cselect_b32 s64, s10, s12")
        A("s_cselect_b32 s65, s11, s13")
        srd(A, 40, 64, D * D * 2)
        A("v_xor_b32 v18, s52, v17")
        A("v_mul_u32_u24 v19, 1280, v3")
        A("v_lshl_add_u32 v240, v18, 4, v19")
        A("s_mul_i32 s59, s51, 80")
        A("s_mul_i32 s64, s53, 40")
        A("s_add_u32 s59, s59, s64")
        A("s_mul_i32 s59, s59, 1280")
        A("s_mul_i32 s61, s53, 10240")
        A("s_lshl_b32 s64, s52, 10")
        A("s_add_u32 s61, s61, s64")
        A(f"s_add_u32 s61, s61, {BUF}")
    def dmaA(st):
        bo = (st % 3) * STG
        tag = f"d{st}"
        if isF:
            A(f"s_add_u32 s65, s59, {st*64*3456}")
            for q in range(7):
                A(f"s_add_u32 m0, s61, {bo + 1024*q}")
                A("s_nop 0")
                vm(f"buffer_load_dwordx4 v{240+q}, s[40:43], s65 offen lds", tag)
        else:
            for q in range(5):
                A(f"s_add_u32 m0, s61, {bo + 2048*q}")
                A(f"s_add_u32 s65, s59, {st*128 + q*8*1280}")
                vm(f"buffer_load_dwordx4 v240, s[40:43], s65 offen lds", tag)
    def dma(st):
        dmaA(st); dmaX(st)
    if not isF: dmaA(0)
    stamp(A, 6)
    if "nodpf" not in DBG: A("s_barrier")
    dma(1)
    stamp(A, 7)
    A(f"v_mov_b32 v15, {OOB}")
    A("v_mov_b32 v26, 0")
    def s5():
        A("v_bfe_u32 v20, v0, 1, 4")
        A("v_and_b32 v21, 7, v20")
        A("v_lshrrev_b32 v22, 3, v20")
        A("v_lshl_add_u32 v21, v22, 7, v21")
        A("s_lshl_b32 s57, s50, 3")
        A("v_add_u32 v21, s57, v21")
        A("s_lshl_b32 s57, s49, 7")
        A("s_add_u32 s57, s57, s51")
        A("v_lshl_add_u32 v22, v20, 3, s57")
        A("v_cmp_gt_u32 vcc, 32, v0")
        A("v_cndmask_b32 v25, v22, v21, vcc")
        A("v_lshlrev_b32 v25, 7, v25")
        A("v_and_b32 v20, 1, v0")
        A("v_lshl_add_u32 v25, v20, 4, v25")
        A(f"v_add_u32 v25, {WS_F3}, v25")
    def g1():
        vm("buffer_load_dwordx4 v[32:35], v25, s[44:47], 0 offen sc1", "fl")
    def g2():
        Lp = A.label("poll"); Lx = A.label("pollx"); Lc = A.label("pollc")
        A("s_mov_b32 s58, 200000")
        vm.wait("fl")
        A(f"s_branch {Lc}")
        A(f"{Lp}:")
        A("s_sleep 1")
        A("buffer_load_dwordx4 v[32:35], v25, s[44:47], 0 offen sc1")
        A("s_waitcnt vmcnt(0)")
        A(f"{Lc}:")
        A("v_cmp_ne_u64 vcc, v[32:33], v[28:29]")
        A("v_cmp_ne_u64 s[66:67], v[34:35], v[28:29]")
        A("s_or_b64 vcc, vcc, s[66:67]")
        A("s_cmp_eq_u64 vcc, 0")
        A(f"s_cbranch_scc1 {Lx}")
        A("s_sub_u32 s58, s58, 1")
        A("s_cmp_lg_u32 s58, 0")
        A(f"s_cbranch_scc1 {Lp}")
        A(f"{Lx}:")
        A("v_lshlrev_b32 v34, 4, v1")
        A("s_lshl_b32 s57, s50, 11")
        A(f"s_add_u32 s57, s57, {WS_STATS}")
        vm("buffer_load_dwordx4 v[36:39], v34, s[44:47], s57 offen sc1", "ga")
        A("v_lshlrev_b32 v35, 2, v1")
        if isF:
            A("s_mul_i32 s57, s51, 896")
            A(f"s_add_u32 s57, s57, {WS_WSP}")
            for sl_ in range(32):
                vm(f"buffer_load_dword v{40+sl_}, v35, s[44:47], s57 offen sc1", "ga")
                A(f"s_add_u32 s57, s57, {1792*4}")
        else:
            A("s_mul_i32 s57, s51, 640")
            A(f"s_add_u32 s57, s57, {WS_WSYO}")
            vm("buffer_load_dword v40, v35, s[44:47], s57 offen sc1", "ga")
    def g3():
        vm.wait("ga")
        A("v_cmp_gt_u32 vcc, 128, v1")
        A("s_and_saveexec_b64 s[66:67], vcc")
        A(f"ds_write_b128 v34, v[36:39] offset:{K1_STATS}")
        A("s_mov_b64 exec, s[66:67]")
        if isF:
            for sl_ in range(1, 32):
                A(f"v_add_f32 v40, v40, v{40+sl_}")
        A(f"v_cmp_gt_u32 vcc, {224 if isF else 160}, v1")
        A("s_and_saveexec_b64 s[66:67], vcc")
        A(f"ds_write_b32 v35, v40 offset:{K1_WS}")
        A("s_mov_b64 exec, s[66:67]")
    chunks = {}
    post = []
    if isF:
        def crep():
            Lq = A.label("cq")
            A("s_cmp_eq_u32 s52, 0")
            A(f"s_cbranch_scc1 {Lq}")
            srd(A, 68, 14, D * D * 2)
            sc = 80 if not STAMPS else 60
            srd(A, sc, 16, D * D * 2)
            for rd_ in range(2):
                R = 92 + 16 * rd_
                A("s_lshl_b32 s57, s50, 3")
                A("s_add_u32 s57, s57, s51")
                A("s_lshl_b32 s57, s57, 4")
                A("s_lshl_b32 s58, s53, 2")
                A("s_add_u32 s57, s57, s58")
                A(f"s_add_u32 s57, s57, {8*rd_}")
                A("v_add_u32 v10, s57, v5")
                divc(A, 11, 10, 40, 2048)
                A("v_mul_u32_u24 v12, 40, v11")
                A("v_sub_u32 v12, v10, v12")
                A("v_lshl_add_u32 v13, v11, 4, v6")
                A("v_mul_u32_u24 v13, 1280, v13")
                A("v_lshl_add_u32 v13, v12, 5, v13")
                A(f"buffer_load_dwordx4 v[{R}:{R+3}], v13, s[68:71], 0 offen")
                A(f"buffer_load_dwordx4 v[{R+4}:{R+7}], v13, s[68:71], 0 offen offset:16")
                A(f"buffer_load_dwordx4 v[{R+8}:{R+11}], v13, s[{sc}:{sc+3}], 0 offen")
                A(f"buffer_load_dwordx4 v[{R+12}:{R+15}], v13, s[{sc}:{sc+3}], 0 offen offset:16")
                divc(A, 14, 11, 5, 64)
                A("v_mul_u32_u24 v16, 5, v14")
                A("v_sub_u32 v16, v11, v16")
                A("v_mul_u32_u24 v14, 40, v14")
                A("v_add_u32 v14, v14, v12")
                A("v_mul_u32_u24 v14, 5120, v14")
                A("v_lshl_add_u32 v14, v16, 10, v14")
                A("v_lshl_add_u32 v14, v6, 4, v14")
                A("v_cmp_gt_u32 vcc, 1600, v10")
                A(f"v_cndmask_b32 v{17+rd_}, v15, v14, vcc")
            A("s_mov_b32 s57, 0x05040100")
            A("s_mov_b32 s58, 0x07060302")
            A(f"s_mov_b32 s65, {WS_CP}")
            A("s_waitcnt vmcnt(0)")
            for rd_ in range(2):
                R = 92 + 16 * rd_
                for c in range(8): A(f"v_xor_b32 v{R+8+c}, 0x80008000, v{R+8+c}")
                for g in range(4):
                    o = 40 + 16 * rd_ + 4 * g
                    A(f"v_perm_b32 v{o}, v{R+8+g}, v{R+g}, s57")
                    A(f"v_perm_b32 v{o+1}, v{R+8+g}, v{R+g}, s58")
                    A(f"v_perm_b32 v{o+2}, v{R+12+g}, v{R+4+g}, s57")
                    A(f"v_perm_b32 v{o+3}, v{R+12+g}, v{R+4+g}, s58")
                    A(f"buffer_store_dwordx4 v[{o}:{o+3}], v{17+rd_}, s[44:47], s65 offen offset:{256*g} sc1")
            A("s_waitcnt vmcnt(0)")
            A(f"{Lq}:")
            A("buffer_store_dwordx2 v[28:29], v27, s[44:47], s79 offen sc1")
        post = [crep]
    else:
        def w2a():
            srd(A, 68, 26, D * DFF * 2)
            A("s_lshl_b32 s57, s50, 3")
            A("s_add_u32 s57, s57, s51")
            A("s_lshl_b32 s57, s57, 2")
            A("s_add_u32 s57, s57, s48")
            A("s_lshr_b32 s75, s57, 3")
            A("s_and_b32 s76, s57, 7")
            A("s_mul_i32 s58, s75, 40960")
            A("s_mul_i32 s57, s76, 160")
            A("s_add_u32 s58, s58, s57")
            A("s_mul_i32 s77, s48, 5120")
            A(f"s_add_u32 s77, s77, {K1Y_SCR}")
            for q in range(5):
                A(f"v_add_u32 v17, {64*q}, v0")
                divc(A, 18, 17, 10, 320)
                A("v_mul_u32_u24 v19, 10, v18")
                A("v_sub_u32 v19, v17, v19")
                A("v_mul_u32_u24 v18, 1280, v18")
                A("v_lshl_add_u32 v16, v19, 4, v18")
                A(f"s_add_u32 m0, s77, {1024*q}")
                A("s_nop 0")
                vm("buffer_load_dwordx4 v16, s[68:71], s58 offen lds", "w2")
        def w2b():
            A("v_lshrrev_b32 v17, 2, v6")
            A("v_lshl_add_u32 v17, v5, 2, v17")
            A("v_mul_u32_u24 v17, 160, v17")
            A("v_and_b32 v18, 3, v6")
            A("v_lshl_add_u32 v17, v18, 3, v17")
            A("v_add_u32 v17, s77, v17")
            vm.wait("w2")
            for m in range(5):
                for h in range(2):
                    A(f"ds_read_b64_tr_b16 v[{164+4*m+2*h}:{165+4*m+2*h}], v17 offset:{h*2560 + m*32}")
            A("s_mul_i32 s57, s76, 54")
            A("s_add_u32 s57, s57, s75")
            A("s_mul_i32 s57, s57, 5120")
            A(f"s_add_u32 s57, s57, {WS_W2P}")
            A("s_cmp_lt_u32 s75, 54")
            A(f"s_cselect_b32 s57, s57, {OOB}")
            A("v_lshlrev_b32 v18, 4, v0")
            A("v_add_u32 v19, 4096, v18")
            A("s_waitcnt lgkmcnt(0)")
            for m in range(5):
                vm(f"buffer_store_dwordx4 v[{164+4*m}:{167+4*m}], v18, s[44:47], s57 offen offset:{1024*m} sc1" if m < 4 else
                   f"buffer_store_dwordx4 v[{164+4*m}:{167+4*m}], v19, s[44:47], s57 offen sc1", "st2")
        def w2c():
            vm.wait("st2")
            vm("buffer_store_dwordx2 v[28:29], v27, s[44:47], s79 offen sc1", "fs")
        def lbk():
            Lq = A.label("lq")
            A("s_cmp_eq_u32 s52, 0")
            A(f"s_cbranch_scc1 {Lq}")
            A("v_min_u32 v8, 39, v0")
            A("s_mul_i32 s57, s53, 40")
            A("v_add_u32 v8, s57, v8")
            A("v_lshlrev_b32 v9, 3, v8")
            A(f"v_add_u32 v9, {K1_LE}, v9")
            A("v_mul_u32_u24 v10, 288, v8")
            A("s_mul_i32 s57, s51, 1280")
            A("v_lshlrev_b32 v11, 4, v8")
            A("v_add_u32 v11, s57, v11")
            A("s_mul_i32 s74, s50, 10240")
            A(f"s_add_u32 s74, s74, {WS_E}")
            A(f"ds_read_b64 v[72:73], v10 offset:{K1Y_T+128+8}")
            A(f"ds_read_b64 v[74:75], v10 offset:{K1Y_T+128+16}")
            A("s_barrier")
            Lp = A.label("lb"); Lx = A.label("lbx")
            A("ds_read_b64 v[64:65], v9")
            A("ds_read_b64 v[66:67], v9 offset:640")
            A("v_mov_b32 v82, v28")
            A("v_mov_b32 v83, v29")
            A("s_waitcnt lgkmcnt(0)")
            cmul_add(A, 80, 72, 64, 66)
            A("buffer_store_dwordx4 v[80:83], v11, s[44:47], s74 offen sc1")
            A("s_mov_b32 s75, 100000")
            A(f"{Lp}:")
            for i in range(15):
                A(f"s_sub_u32 s57, s50, {i+1}")
                A("s_mul_i32 s58, s57, 10240")
                A(f"s_add_u32 s58, s58, {WS_E}")
                A(f"s_cmp_gt_u32 s50, {i}")
                A(f"s_cselect_b32 s58, s58, {OOB}")
                A(f"buffer_load_dwordx4 v[{96+4*i}:{99+4*i}], v11, s[44:47], s58 offen sc1")
            A("s_waitcnt vmcnt(0)")
            A("s_mov_b64 vcc, 0")
            for i in range(15):
                A(f"v_cmp_ne_u64 s[70:71], v[{98+4*i}:{99+4*i}], v[28:29]")
                A(f"s_cmp_gt_u32 s50, {i}")
                A("s_cselect_b64 s[70:71], s[70:71], 0")
                A("s_or_b64 vcc, vcc, s[70:71]")
            A("s_cmp_eq_u64 vcc, 0")
            A(f"s_cbranch_scc1 {Lx}")
            A("s_sleep 1")
            A("s_sub_u32 s75, s75, 1")
            A("s_cmp_lg_u32 s75, 0")
            A(f"s_cbranch_scc1 {Lp}")
            A(f"{Lx}:")
            for i in range(13, -1, -1):
                cmul_add(A, 96 + 4 * i, 74, 96 + 4 * (i + 1), 96 + 4 * i)
            cmul_add(A, 84, 72, 96, 64)
            A("ds_write_b64 v9, v[96:97] offset:1280")
            A("ds_write_b64 v9, v[84:85] offset:1920")
            A("s_waitcnt lgkmcnt(0)")
            A("s_barrier")
            A(f"{Lq}:")
        chunks = {4: [w2a], 8: [w2b]}; post = [w2c, lbk]
    def n1():
        vm("global_load_dwordx2 v[28:29], v26, s[30:31] sc1", "nn")
    def n2():
        Lp = A.label("np"); Lx = A.label("npx"); Lc = A.label("npc")
        A("s_mov_b32 s58, 200000")
        vm.wait("nn")
        A(f"s_branch {Lc}")
        A(f"{Lp}:")
        A("s_sleep 1")
        A("global_load_dwordx2 v[28:29], v26, s[30:31] sc1")
        A("s_waitcnt vmcnt(0)")
        A(f"{Lc}:")
        A("v_readfirstlane_b32 s57, v28")
        A("s_cmp_lg_u32 s57, 0")
        A(f"s_cbranch_scc1 {Lx}")
        A("s_sub_u32 s58, s58, 1")
        A("s_cmp_lg_u32 s58, 0")
        A(f"s_cbranch_scc1 {Lp}")
        A(f"{Lx}:")
        A(f"ds_write_b64 v26, v[28:29] offset:{K1_NONCE}")
        A("s_lshl_b32 s57, s49, 7")
        A("s_lshl_b32 s58, s50, 3")
        A("s_add_u32 s57, s57, s58")
        A("s_add_u32 s57, s57, s51")
        A("s_lshl_b32 s57, s57, 5")
        A("s_lshl_b32 s58, s48, 3")
        A("s_add_u32 s57, s57, s58")
        A(f"s_add_u32 s79, s57, {WS_F1}")
        A("v_cmp_eq_u32 vcc, 0, v0")
        A("v_cndmask_b32 v27, v15, v26, vcc")
    sched = ((1, n1), (2, n2), (3, s5), (GI, g1), (GI + 1, g2))
    for k, f in sched:
        chunks.setdefault(k, []).append(f)
    vm.wait("d0")
    stamp(A, 1)
    A("s_barrier")
    for j in range(9):
        if j + 2 <= 9: dma(j + 2)
        for f in chunks.get(j, []): f()
        vm.wait(f"d{j+1}", "lgkmcnt(0)")
        A("s_barrier")
    stamp(A, 2)
    g3()
    A("s_waitcnt lgkmcnt(0)")
    stamp(A, 3)
    stamp(A, 4)
    A("s_barrier")
    for f in post: f()

def k1_side(A, isF):
    if isF:
        yield
    else:
        divc(A, 9, 1, 80, 256)
        A("v_mul_u32_u24 v10, 80, v9")
        A("v_sub_u32 v10, v1, v10")
        A("s_mul_i32 s57, s51, 80")
        A("v_add_u32 v11, s57, v10")
        A("v_lshlrev_b32 v11, 1, v11")
        A("global_load_ushort v92, v11, s[6:7]")
        A("global_load_ushort v93, v11, s[8:9]")
        A("global_load_ushort v94, v11, s[18:19]")
        yield
        A("s_waitcnt vmcnt(26)")
        for r in (92, 93, 94): A(f"v_lshlrev_b32 v{r}, 16, v{r}")
        A(f"v_mul_f32 v94, {hexf(LOG2E)}, v94")
        A("v_exp_f32 v94, v94")
        bf16r(A, 94)
        A("v_mul_f32 v95, v94, v92")
        A("v_mul_f32 v96, v94, v93")
        A(f"v_mul_f32 v95, {hexf(LOG2E)}, v95")
        A(f"v_mul_f32 v96, {hexf(INV2PI)}, v96")
        A("v_mul_u32_u24 v97, 288, v10")
        A("v_lshl_add_u32 v97, v9, 3, v97")
        A("v_cmp_gt_u32 vcc, 240, v1")
        A("s_and_saveexec_b64 s[66:67], vcc")
        for r in range(11):
            A(f"v_add_u32 v98, {3*r}, v9")
            A("v_lshlrev_b32 v99, 2, v98")
            A("v_lshlrev_b32 v100, 6, v98")
            A("v_subrev_u32 v100, 1024, v100")
            A("v_cmp_gt_u32 vcc, 16, v98")
            A("v_cndmask_b32 v99, v100, v99, vcc")
            A("v_cvt_f32_u32 v99, v99")
            A("v_mul_f32 v100, v99, v95")
            A("v_mul_f32 v101, v99, v96")
            A("v_exp_f32 v100, v100")
            A("v_fract_f32 v101, v101")
            A("v_cos_f32 v102, v101")
            A("v_sin_f32 v103, v101")
            A("v_mul_f32 v102, v100, v102")
            A("v_mul_f32 v103, v100, v103")
            A(f"ds_write_b64 v97, v[102:103] offset:{K1Y_T+24*r}")
        A("s_mov_b64 exec, s[66:67]")
        A("v_exp_f32 v100, v95")
        A("v_fract_f32 v101, v96")
        A("v_cos_f32 v102, v101")
        A("v_sin_f32 v103, v101")
        A("v_mul_f32 v102, v100, v102")
        A("v_mul_f32 v103, v100, v103")
        A("v_add_f32 v98, -1.0, v102")
        A("v_mul_f32 v99, v92, v92")
        A("v_fmac_f32 v99, v93, v93")
        A("v_rcp_f32 v100, v99")
        A("v_fma_f32 v101, -v99, v100, 1.0")
        A("v_fma_f32 v100, v101, v100, v100")
        A("v_add_f32 v100, v100, v100")
        A("v_mul_f32 v104, v98, v92")
        A("v_fmac_f32 v104, v103, v93")
        A("v_mul_f32 v105, v103, v92")
        A("v_fma_f32 v105, -v98, v93, v105")
        A("v_mul_f32 v104, v104, v100")
        A("v_mul_f32 v105, v105, v100")
        A("v_cmp_gt_u32 vcc, 80, v1")
        A("s_and_saveexec_b64 s[66:67], vcc")
        A(f"ds_write_b128 v97, v[102:105] offset:{K1Y_T+272}")
        A("s_mov_b64 exec, s[66:67]")
    A("s_waitcnt lgkmcnt(0)")
    yield

def k1_prefetch_setup(A, isF):
    A("s_and_b32 s57, s2, 3")
    A("s_lshl_b32 s57, s57, 9")
    A("s_lshl_b32 s59, s35, 4")
    A("s_add_u32 s57, s57, s59")
    A("s_mul_i32 s57, s57, 1280")
    A("v_lshrrev_b32 v10, 2, v0")
    A("v_and_b32 v11, 3, v0")
    A("v_mul_u32_u24 v10, 1280, v10")
    A("v_lshl_add_u32 v10, v11, 7, v10")
    A("s_mul_i32 s58, s53, 384")
    A("s_add_u32 s66, s57, s58")
    A("s_add_u32 s66, s66, 384")
    if isF:
        srd(A, 40, 24, D * DFF * 2)
        A("v_min_u32 v11, 53, v0")
        A("v_lshlrev_b32 v11, 7, v11")
        A("s_mul_i32 s67, s35, 6912")
        A("s_add_u32 s58, s48, 3")
        A(f"s_mul_i32 s58, s58, {64*3456}")
        A("s_add_u32 s67, s67, s58")
        A(f"s_add_u32 s68, s67, {4*64*3456}")
    else:
        A("s_cmp_lt_u32 s48, 2")
        A("s_cselect_b32 s64, s10, s12")
        A("s_cselect_b32 s65, s11, s13")
        srd(A, 40, 64, D * D * 2)
        divc(A, 12, 0, 20, 64)
        A("v_mul_u32_u24 v13, 20, v12")
        A("v_sub_u32 v13, v0, v13")
        A("v_min_u32 v12, 2, v12")
        A("v_mul_u32_u24 v13, 1280, v13")
        A("v_lshl_add_u32 v11, v12, 7, v13")
        A("s_mul_i32 s67, s35, 25600")
        A("s_mul_i32 s58, s53, 384")
        A("s_add_u32 s68, s67, 896")
        A("s_add_u32 s67, s67, s58")
        A("s_add_u32 s67, s67, 384")
def k1_prefetch(A, isF, batch):
    if "nopf" in DBG: return
    if batch == 0:
        A("buffer_load_dword v12, v11, s[40:43], s67 offen")
        A("buffer_load_dword v13, v10, s[36:39], s66 offen")
    else:
        A("buffer_load_dword v12, v11, s[40:43], s68 offen")

def k1_compute(A, isF):
    ACC = 128; FRAG = 32
    MT = 7 if isF else 5; NT = 4
    STG = K1F_STAGE if isF else K1Y_STAGE
    BUF = K1F_BUF if isF else K1Y_BUF
    ASZ = 28672 if isF else 20480
    side = k1_side(A, isF) if "noside" not in DBG else iter([0, 0])
    next(side)
    AB = 232; BB = 244
    if isF:
        A("v_lshrrev_b32 v17, 2, v6")
        A("v_lshl_add_u32 v17, v5, 3, v17")
        A("v_mul_u32_u24 v17, 448, v17")
        A("v_and_b32 v18, 3, v6")
        A("v_lshl_add_u32 v17, v18, 3, v17")
        A("s_mul_i32 s57, s52, 224")
        A(f"s_add_u32 s57, s57, {BUF}")
        A("v_add_u32 v17, s57, v17")
        A("v_and_b32 v18, 1, v5")
        A("v_lshlrev_b32 v18, 5, v18")
        A("v_add_u32 v19, v17, v18")
        A("v_sub_u32 v17, v17, v18")
        A("s_cmp_eq_u32 s52, 0")
        A("s_cselect_b64 vcc, -1, 0")
        AB = 240; BB = 246
        A(f"v_cndmask_b32 v{AB}, v17, v19, vcc")
        A(f"v_cndmask_b32 v{AB+1}, v19, v17, vcc")
    else:
        A("v_and_b32 v17, 1, v6")
        A("v_lshrrev_b32 v18, 1, v6")
        A("v_lshl_add_u32 v19, v17, 3, v18")
        A("v_xor_b32 v17, v17, v18")
        A("v_xor_b32 v17, v17, v5")
        A("v_lshlrev_b32 v19, 7, v19")
        A("v_lshl_add_u32 v19, v17, 4, v19")
        A("s_mul_i32 s57, s52, 10240")
        A(f"s_add_u32 s57, s57, {BUF}")
        AB = 240; BB = 246
        A(f"v_add_u32 v{AB}, s57, v19")
        A(f"v_xor_b32 v{AB+1}, 64, v{AB}")
    A("v_and_b32 v18, 7, v0")
    A("v_xor_b32 v18, v18, v5")
    A("v_lshlrev_b32 v17, 7, v6")
    A("s_lshl_b32 s57, s53, 13")
    A(f"s_add_u32 s57, s57, {ASZ+BUF}")
    A("v_add_u32 v17, s57, v17")
    A(f"v_lshl_add_u32 v{BB}, v18, 4, v17")
    A(f"v_xor_b32 v{BB+1}, 64, v{BB}")
    for b in (1, 2):
        for i in range(2):
            A(f"v_add_u32 v{AB+2*b+i}, {b*STG}, v{AB+i}")
            A(f"v_add_u32 v{BB+2*b+i}, {b*STG}, v{BB+i}")
    for r in range(MT * NT * 4):
        A(f"v_mov_b32 v{ACC+r}, 0")
    fA = lambda st, m: FRAG + st * (MT + NT) * 4 + m * 4
    fB = lambda st, n: FRAG + st * (MT + NT) * 4 + MT * 4 + n * 4
    accr = lambda m, n: ACC + (m * NT + n) * 4
    def reads(stage, kk):
        b = stage % 3; st = kk
        out = []
        for n in range(NT):
            out.append(f"ds_read_b128 {vr(fB(st,n),4)}, v{BB+2*b+kk} offset:{n*2048}")
        for m in range(MT):
            if isF:
                for h in range(2):
                    out.append(f"ds_read_b64_tr_b16 {vr(fA(st,m)+2*h,2)}, v{AB+2*b+(m&1)} offset:{(32*kk+4*h)*448 + m*32}")
            else:
                out.append(f"ds_read_b128 {vr(fA(st,m),4)}, v{AB+2*b+kk} offset:{m*2048}")
        return out
    def mfmas(st):
        return [f"v_mfma_f32_16x16x32_bf16 {vr(accr(m,n),4)}, {vr(fA(st,m),4)}, {vr(fB(st,n),4)}, {vr(accr(m,n),4)}"
                for m in range(MT) for n in range(NT)]
    vm = VM(A)
    A(f"v_mov_b32 v15, {OOB}")
    A("v_mov_b32 v26, 0")
    A("v_lshlrev_b32 v2, 2, v0")
    Lsk = A.label("sk")
    if isF:
        srd(A, 40, 24, D * DFF * 2)
        divc(A, 7, 0, 28, 64)
        A("v_mul_u32_u24 v8, 28, v7")
        A("v_sub_u32 v8, v0, v8")
        A("v_min_u32 v7, 1, v7")
        A("s_mov_b32 s57, 34560")
        A("v_mul_lo_u32 v12, v7, s57")
        A("v_lshl_add_u32 v12, v8, 4, v12")
        A("s_mul_i32 s57, s50, 138240")
        A("s_mul_i32 s58, s53, 69120")
        A("s_add_u32 s57, s57, s58")
        A("s_lshl_b32 s58, s54, 5")
        A("s_add_u32 s57, s57, s58")
        A("s_lshl_b32 s59, s51, 3")
        A("s_lshl_b32 s58, s50, 7")
        A("s_add_u32 s59, s59, s58")
        A("s_add_u32 s59, s59, 64")
        A("s_lshl_b32 s58, s48, 1")
        A("s_add_u32 s63, s59, s58")
        A("s_mul_i32 s59, s63, 1280")
        A("s_barrier")
        for r in range(2):
            for i in range(5): A(f"buffer_load_dword v{80+5*r+i}, v2, s[36:39], s59 offen offset:{256*i}")
            A("s_add_u32 s59, s59, 1280")
        A("global_load_dwordx2 v[28:29], v26, s[30:31] sc1")
        A("s_cmp_lg_u32 s52, 0")
        A(f"s_cbranch_scc1 {Lsk}")
        for r in range(10):
            A(f"buffer_load_dwordx4 v[{40+4*r}:{43+4*r}], v12, s[40:43], s57 offen")
            A("s_add_u32 s57, s57, 3456")
        A("s_waitcnt vmcnt(0)")
        for c in range(4):
            A(f"v_lshlrev_b32 v{108+2*c}, 16, v{40+c}")
            A(f"v_and_b32 v{109+2*c}, 0xffff0000, v{40+c}")
        for r in range(1, 10):
            for c in range(4):
                A(f"v_lshlrev_b32 v116, 16, v{40+4*r+c}")
                A(f"v_and_b32 v117, 0xffff0000, v{40+4*r+c}")
                A(f"v_add_f32 v{108+2*c}, v{108+2*c}, v116")
                A(f"v_add_f32 v{109+2*c}, v{109+2*c}, v117")
        A("s_lshl_b32 s57, s53, 11")
        A("v_lshlrev_b32 v12, 5, v0")
        A("v_add_u32 v12, s57, v12")
        A(f"ds_write_b128 v12, v[108:111] offset:{K1F_RED}")
        A(f"ds_write_b128 v12, v[112:115] offset:{K1F_RED+16}")
        A("v_lshlrev_b32 v13, 4, v0")
        A("v_add_u32 v12, s57, v13")
        A("s_waitcnt lgkmcnt(0)")
        A(f"ds_read_b128 v[108:111], v12 offset:{K1F_RED}")
        A(f"ds_read_b128 v[112:115], v12 offset:{K1F_RED+896}")
        A("v_cmp_gt_u32 vcc, 56, v0")
        A("v_cndmask_b32 v13, v15, v13, vcc")
        A("s_lshl_b32 s57, s50, 1")
        A("s_add_u32 s57, s57, s53")
        A("s_mul_i32 s57, s57, 1792")
        A("s_mul_i32 s58, s51, 224")
        A("s_add_u32 s57, s57, s58")
        A("s_lshl_b32 s57, s57, 2")
        A(f"s_add_u32 s57, s57, {WS_WSP}")
        A("s_waitcnt lgkmcnt(0)")
        A("v_pk_add_f32 v[108:109], v[108:109], v[112:113]")
        A("v_pk_add_f32 v[110:111], v[110:111], v[114:115]")
        A("buffer_store_dwordx4 v[108:111], v13, s[44:47], s57 offen sc1")
        A(f"{Lsk}:")
        A("s_waitcnt vmcnt(1)")
        stats_compute(A, vm, 80)
    else:
        A("s_cmp_lt_u32 s48, 2")
        A("s_cselect_b32 s64, s10, s12")
        A("s_cselect_b32 s65, s11, s13")
        srd(A, 40, 64, D * D * 2)
        A("s_mul_i32 s57, s51, 80")
        A("s_mul_i32 s58, s50, 5")
        A("s_add_u32 s57, s57, s58")
        A("s_mul_i32 s58, s53, 3")
        A("s_add_u32 s72, s57, s58")
        A("s_lshl_b32 s59, s51, 3")
        A("s_lshl_b32 s58, s50, 7")
        A("s_add_u32 s59, s59, s58")
        A("s_lshl_b32 s58, s48, 1")
        A("s_add_u32 s63, s59, s58")
        A("s_mul_i32 s59, s63, 1280")
        A("s_barrier")
        for r in range(2):
            for i in range(5): A(f"buffer_load_dword v{208+5*r+i}, v2, s[36:39], s59 offen offset:{256*i}")
            A("s_add_u32 s59, s59, 1280")
        A("s_mul_i32 s57, s72, 1280")
        for r in range(3):
            for i in range(5): A(f"buffer_load_dword v{72+5*r+i}, v2, s[40:43], s57 offen offset:{256*i}")
            A("s_add_u32 s57, s57, 1280")
        A("global_load_dwordx2 v[28:29], v26, s[30:31] sc1")
    next(side)
    if not isF:
        A("s_waitcnt vmcnt(0)")
        stats_compute(A, vm, 208)
        A("s_mov_b32 s57, 0x3f803f80")
        for r in range(3): A(f"v_mov_b32 v{108+r}, 0")
        for i in range(5):
            for r in range(3): A(f"v_dot2_f32_bf16 v{108+r}, v{72+5*r+i}, s57, v{108+r}")
        A("s_nop 3")
        wave_sum(A, [108, 109, 110])
        A("v_cmp_eq_u32 vcc, 63, v0")
        A("v_cndmask_b32 v12, v15, v26, vcc")
        A("s_lshl_b32 s57, s72, 1")
        A("s_add_u32 s57, s57, s52")
        A("s_lshl_b32 s57, s57, 2")
        A(f"s_add_u32 s57, s57, {WS_WSYO}")
        A("buffer_store_dword v108, v12, s[44:47], s57 offen sc1")
        A("buffer_store_dword v109, v12, s[44:47], s57 offen offset:8 sc1")
        A("s_cmp_eq_u32 s53, 0")
        A(f"s_cselect_b32 s57, s57, {OOB}")
        A("buffer_store_dword v110, v12, s[44:47], s57 offen offset:16 sc1")
    A("v_cmp_eq_u32 vcc, 0, v0")
    A("v_cndmask_b32 v16, v15, v26, vcc")
    A("s_lshl_b32 s57, s49, 7")
    A("s_lshl_b32 s58, s50, 3")
    A("s_add_u32 s57, s57, s58")
    A("s_add_u32 s57, s57, s51")
    A("s_lshl_b32 s57, s57, 7")
    A("s_lshl_b32 s58, s48, 3")
    A("s_add_u32 s57, s57, s58")
    A(f"s_add_u32 s76, s57, {WS_F3}")
    stamp(A, 1)
    A("s_barrier")
    stamp(A, 2)
    for r in reads(0, 0): A(r)
    PRE = 3
    for j in range(10):
        A("s_waitcnt lgkmcnt(0)")
        mf = mfmas(0); rd = reads(j, 1)
        for i, m in enumerate(mf):
            A(m)
            if i < len(rd): A(rd[i])
        A("s_waitcnt lgkmcnt(0)")
        mf = mfmas(1)
        if j < 9:
            rd = reads(j + 1, 0)
            for m in mf[:PRE]: A(m)
            if j == 1:
                A("s_waitcnt vmcnt(0)")
                Lp = A.label("np"); Lx = A.label("npx")
                A("s_mov_b32 s58, 200000")
                A(f"{Lp}:")
                A("v_readfirstlane_b32 s57, v28")
                A("s_cmp_lg_u32 s57, 0")
                A(f"s_cbranch_scc1 {Lx}")
                A("s_sleep 1")
                A("global_load_dwordx2 v[28:29], v26, s[30:31] sc1")
                A("s_waitcnt vmcnt(0)")
                A("s_sub_u32 s58, s58, 1")
                A("s_cmp_lg_u32 s58, 0")
                A(f"s_cbranch_scc1 {Lp}")
                A(f"{Lx}:")
                A("buffer_store_dwordx2 v[28:29], v16, s[44:47], s76 offen sc1")
            A("s_barrier")
            for i, m in enumerate(mf[PRE:]):
                if i < len(rd): A(rd[i])
                A(m)
        else:
            for m in mf: A(m)
    stamp(A, 3)
    A("s_waitcnt vmcnt(0)")
    A("s_barrier")
    stamp(A, 4)
    if isF: k1F_epilogue(A, ACC)
    else: k1Y_epilogue(A, ACC)

def frag_store_plan(ntiles, parity):
    plan = []
    t = 0
    if parity == 1:
        plan.append(("single", [0], 0, 1)); t = 1
    while t + 1 < ntiles:
        plan.append(("pair", [t, t + 1], (t + parity) // 2, 0)); t += 2
    if t < ntiles:
        plan.append(("single", [t], (t + parity) // 2, 0))
    return plan

def k1F_epilogue(A, ACC):
    A("s_lshl_b32 s57, s53, 10")
    A("v_lshlrev_b32 v17, 6, v6")
    A("v_add_u32 v17, s57, v17")
    for n in range(4):
        A(f"ds_read_b64 v[{32+2*n}:{33+2*n}], v17 offset:{K1_STATS+16*n}")
    A("s_mul_i32 s57, s52, 448")
    A("v_lshlrev_b32 v18, 4, v5")
    A("v_add_u32 v18, s57, v18")
    for m in range(7):
        A(f"ds_read_b128 v[{40+4*m}:{43+4*m}], v18 offset:{K1_WS+64*m}")
    A("s_mul_i32 s57, s52, 7")
    A("s_add_u32 s57, s57, s54")
    A("s_and_b32 s64, s57, 1")
    A("s_lshr_b32 s57, s57, 1")
    A("s_mul_i32 s58, s50, 54")
    A("s_add_u32 s57, s57, s58")
    A("s_lshl_b32 s57, s57, 3")
    A("s_lshl_b32 s58, s53, 2")
    A("s_add_u32 s57, s57, s58")
    A("s_lshl_b32 s57, s57, 10")
    A(f"s_add_u32 s65, s57, {WS_HF}")
    A("v_lshlrev_b32 v17, 4, v0")
    A("s_and_b32 s57, s51, s52")
    A("s_and_b32 s57, s57, 1")
    A("s_cmp_eq_u32 s57, 0")
    A(f"s_cselect_b32 s57, 0, {OOB}")
    A("v_add_u32 v19, s57, v17")
    A("s_waitcnt lgkmcnt(0)")
    def conv(m, n, dst):
        a = ACC + (m * 4 + n) * 4
        w = 40 + 4 * m; st = 32 + 2 * n
        for hh in range(2):
            A(f"v_pk_fma_f32 {vr(a+2*hh,2)}, {vr(w+2*hh,2)}, {vr(st,2)}, {vr(a+2*hh,2)} op_sel:[0,0,0] op_sel_hi:[1,0,1] neg_lo:[1,0,0] neg_hi:[1,0,0]")
        for hh in range(2):
            A(f"v_pk_mul_f32 {vr(a+2*hh,2)}, {vr(a+2*hh,2)}, {vr(st,2)} op_sel:[0,1] op_sel_hi:[1,1]")
        for hh in range(2):
            A(f"v_cvt_pk_bf16_f32 v{dst+hh}, v{a+2*hh}, v{a+2*hh+1}")
        for hh in range(2):
            A(f"v_pk_max_i16 v{dst+hh}, v{dst+hh}, 0")
    L1 = A.label("ep1"); L2 = A.label("epx")
    A("s_cmp_lg_u32 s64, 0")
    A(f"s_cbranch_scc1 {L1}")
    for parity in (0, 1):
        if parity == 1: A(f"{L1}:")
        plan = frag_store_plan(7, parity)
        if parity == 1:
            k, tl, ks, _ = plan.pop()
            plan += [("single", [tl[0]], ks, 0), ("single", [tl[1]], ks, 1)]
        cnt = 0
        for kind, tl, ks, half in plan:
            A(f"s_add_u32 s57, s65, {ks*8192}")
            for n in range(4):
                t = 72 + 4 * (cnt % 4); cnt += 1
                if kind == "pair":
                    conv(tl[0], n, t); conv(tl[1], n, t + 2)
                    A(f"buffer_store_dwordx4 v[{t}:{t+3}], v17, s[44:47], s57 offen offset:{1024*n} sc1")
                else:
                    conv(tl[0], n, t)
                    vo = 19 if tl[0] == 6 else 17
                    if "nosingle" not in DBG: A(f"buffer_store_dwordx2 v[{t}:{t+1}], v{vo}, s[44:47], s57 offen offset:{1024*n + 8*half} sc1")
        if parity == 0: A(f"s_branch {L2}")
    A(f"{L2}:")
    for i in (5, 6, 7): stamp(A, i)

def k1Y_epilogue(A, ACC):
    ST = 32; WSR = 40; P = 208; TB = 60
    A("s_lshl_b32 s57, s53, 10")
    A("v_lshlrev_b32 v17, 6, v6")
    A("v_add_u32 v17, s57, v17")
    for n in range(4):
        A(f"ds_read_b64 v[{ST+2*n}:{ST+2*n+1}], v17 offset:{K1_STATS+16*n}")
    A("v_mov_b32 v17, 0")
    A(f"ds_read_b64 v[30:31], v17 offset:{K1_NONCE}")
    A("s_mul_i32 s57, s52, 320")
    A("v_lshlrev_b32 v18, 4, v5")
    A("v_add_u32 v18, s57, v18")
    for m in range(5):
        A(f"ds_read_b128 v[{WSR+4*m}:{WSR+4*m+3}], v18 offset:{K1_WS+64*m}")
    A("s_mul_i32 s57, s52, 11520")
    A("v_mul_u32_u24 v19, 576, v5")
    A("v_add_u32 v19, s57, v19")
    A("v_lshl_add_u32 v20, v6, 3, v19")
    A("s_mul_i32 s57, s53, 640")
    A("s_mul_i32 s58, s52, 320")
    A("s_add_u32 s57, s57, s58")
    A(f"s_add_u32 s57, s57, {K1_LE}")
    A("v_lshlrev_b32 v21, 4, v5")
    A("v_add_u32 v21, s57, v21")
    A("v_lshlrev_b32 v22, 4, v0")
    A(f"v_add_u32 v22, {K1_LE+2560}, v22")
    A("v_cmp_eq_u32 vcc, 15, v6")
    A("v_cndmask_b32 v22, v22, v21, vcc")
    def load_tab1(m, base):
        for q in range(2):
            o = K1Y_T + (8 * m + q) * 288
            b = base + 12 * q
            A(f"ds_read_b128 v[{b}:{b+3}], v19 offset:{o+272}")
            A(f"ds_read_b64 v[{b+4}:{b+5}], v19 offset:{o+8}")
            A(f"ds_read_b64 v[{b+6}:{b+7}], v19 offset:{o+16}")
            A(f"ds_read_b64 v[{b+8}:{b+9}], v19 offset:{o+32}")
            A(f"ds_read_b64 v[{b+10}:{b+11}], v19 offset:{o+64}")
    load_tab1(0, TB)
    TMP = 108
    for m in range(5):
        base = TB + 24 * (m & 1)
        A("s_waitcnt lgkmcnt(0)")
        if m < 4: load_tab1(m + 1, TB + 24 * ((m + 1) & 1))
        for n in range(4):
            for q in range(2):
                u = ACC + (m * 4 + n) * 4 + 2 * q
                w = WSR + 4 * m + 2 * q
                st = ST + 2 * n
                cf = base + 12 * q + 2
                t0 = TMP + 4 * q
                A(f"v_pk_fma_f32 {vr(t0,2)}, {vr(w,2)}, {vr(st,2)}, {vr(u,2)} op_sel:[0,0,0] op_sel_hi:[1,0,1] neg_lo:[1,0,0] neg_hi:[1,0,0]")
                A(f"v_pk_mul_f32 {vr(t0+2,2)}, {vr(cf,2)}, {vr(st,2)} op_sel:[0,1] op_sel_hi:[1,1]")
                cmul(A, u, t0 + 2, t0)
        for n in range(1, 4):
            for q in range(2):
                a = base + 12 * q
                e = P + 4 * m + 2 * q
                t0 = TMP + 4 * q
                prev = (ACC + (m * 4) * 4 + 2 * q) if n == 1 else (t0 if n == 3 else t0 + 2)
                dst = e if n == 3 else (t0 + 2 if n == 1 else t0)
                u = ACC + (m * 4 + n) * 4 + 2 * q
                cmul_add(A, dst, a, prev, u)
        for ki, k in enumerate((1, 2, 4, 8)):
            for q in range(2):
                e = P + 4 * m + 2 * q
                t0 = TMP + 4 * q
                A(f"v_mov_b32_dpp v{t0}, v{e} row_shr:{k} row_mask:0xf bank_mask:0xf bound_ctrl:0")
                A(f"v_mov_b32_dpp v{t0+1}, v{e+1} row_shr:{k} row_mask:0xf bank_mask:0xf bound_ctrl:0")
            for q in range(2):
                e = P + 4 * m + 2 * q
                t0 = TMP + 4 * q
                cmul_add(A, e, base + 12 * q + 4 + 2 * ki, t0, e)
        A(f"ds_write_b128 v22, v[{P+4*m}:{P+4*m+3}] offset:{64*m}")
    A("s_waitcnt lgkmcnt(0)")
    stamp(A, 5)
    A("s_barrier")
    TMP = 112
    for m in range(5):
        for q in range(2):
            o = K1Y_T + (8 * m + q) * 288; b = 32 + 8 * m + 4 * q
            A(f"ds_read_b64 v[{b}:{b+1}], v20 offset:{o}")
            A(f"ds_read_b64 v[{b+2}:{b+3}], v19 offset:{o+272}")
    A("s_mul_i32 s57, s51, 5")
    A("s_lshl_b32 s58, s52, 1")
    A("s_add_u32 s57, s57, s58")
    A("s_mul_i32 s58, s50, 40")
    A("s_add_u32 s57, s57, s58")
    A("s_lshl_b32 s57, s57, 3")
    A("s_lshl_b32 s58, s53, 2")
    A("s_add_u32 s57, s57, s58")
    A("s_lshl_b32 s57, s57, 10")
    A(f"s_add_u32 s65, s57, {WS_H1}")
    A("v_lshlrev_b32 v27, 4, v0")
    for m in range(5):
        for r in range(4):
            A(f"v_mov_b32_dpp v{92+4*m+r}, v{P+4*m+r} row_shr:1 row_mask:0xf bank_mask:0xf bound_ctrl:0")
    A("s_waitcnt lgkmcnt(0)")
    A("s_barrier")
    stamp(A, 6)
    for m in range(5):
        A(f"ds_read_b128 v[{72+4*m}:{75+4*m}], v21 offset:{1280+64*m}")
    A("s_waitcnt lgkmcnt(0)")
    for m in range(5):
        for q in range(2):
            cmul_add(A, 92 + 4 * m + 2 * q, 32 + 8 * m + 4 * q, 72 + 4 * m + 2 * q, 92 + 4 * m + 2 * q)
    for n in range(4):
        for m in range(5):
            for q in range(2):
                u = ACC + (m * 4 + n) * 4 + 2 * q
                prev = (92 + 4 * m + 2 * q) if n == 0 else u - 4
                cmul_add(A, u, 32 + 8 * m + 4 * q + 2, prev, u)
    stamp(A, 7)
    L1 = A.label("ey1"); L2 = A.label("eyx")
    A("s_cmp_lg_u32 s52, 0")
    A(f"s_cbranch_scc1 {L1}")
    for parity in (0, 1):
        if parity == 1: A(f"{L1}:")
        cnt = 0
        for kind, tl, ks, half in frag_store_plan(5, parity):
            A(f"s_add_u32 s57, s65, {ks*8192}")
            for n in range(4):
                t = 32 + 4 * (cnt % 8); cnt += 1
                for x, m in enumerate(tl):
                    u = ACC + (m * 4 + n) * 4
                    A(f"v_cvt_pk_bf16_f32 v{t+2*x}, v{u}, v{u+1}")
                    A(f"v_cvt_pk_bf16_f32 v{t+2*x+1}, v{u+2}, v{u+3}")
                if kind == "pair":
                    A(f"buffer_store_dwordx4 v[{t}:{t+3}], v27, s[44:47], s57 offen offset:{1024*n} sc1")
                else:
                    if "nosingle" not in DBG: A(f"buffer_store_dwordx2 v[{t}:{t+1}], v27, s[44:47], s57 offen offset:{1024*n + 8*half} sc1")
        if parity == 0: A(f"s_branch {L2}")
    A(f"{L2}:")

K2_NR = 7
K2_R0 = 26112
K2_BOFF = K2_R0 + K2_NR * 10240
K2_NST = 47
NSF = 27

def p2_ids(A):
    A("s_lshl_b32 s57, s49, 7")
    A("s_lshl_b32 s58, s50, 3")
    A("s_add_u32 s57, s57, s58")
    A("s_add_u32 s57, s57, s51")
    A("s_lshl_b32 s57, s57, 7")
    A("s_lshl_b32 s58, s48, 3")
    A("s_add_u32 s57, s57, s58")
    A(f"s_add_u32 s77, s57, {WS_F2}")
    A("s_mov_b32 s78, s49")
    A("s_and_b32 s57, s2, 3")
    A("s_bfe_u32 s58, s2, 0x10002")
    A("s_lshr_b32 s59, s35, 2")
    A("s_lshl_b32 s50, s57, 2")
    A("s_lshr_b32 s57, s59, 1")
    A("s_add_u32 s50, s50, s57")
    A("s_and_b32 s49, s59, 1")
    A("s_lshl_b32 s51, s58, 2")
    A("s_and_b32 s57, s35, 3")
    A("s_add_u32 s51, s51, s57")
    A("v_lshlrev_b32 v10, 4, v0")

def spin_flags(A, loads, regs, vm=None, iters=400000):
    Lp = A.label("sp"); Lx = A.label("spx")
    A(f"s_mov_b32 s70, {iters}")
    A(f"{Lp}:")
    for l in loads: A(l)
    A("s_waitcnt vmcnt(0)")
    for i, r in enumerate(regs):
        A(f"v_cmp_ne_u64 {'vcc' if i == 0 else 's[72:73]'}, v[{r}:{r+1}], v[28:29]")
        if i: A("s_or_b64 vcc, vcc, s[72:73]")
    A("s_cmp_eq_u64 vcc, 0")
    A(f"s_cbranch_scc1 {Lx}")
    A("s_sleep 1")
    A("s_sub_u32 s70, s70, 1")
    A("s_cmp_lg_u32 s70, 0")
    A(f"s_cbranch_scc1 {Lp}")
    A(f"{Lx}:")
    if vm: vm.ops = []

def p2_loaders(A):
    stamp(A, 0)
    p2_ids(A)
    A("s_mul_i32 s57, s53, 5120")
    A(f"s_mul_i32 s62, s51, {20*10240}")
    A("s_add_u32 s62, s62, s57")
    A(f"s_add_u32 s62, s62, {WS_CP}")
    A(f"s_mul_i32 s63, s51, {27*10240}")
    A("s_add_u32 s63, s63, s57")
    A(f"s_add_u32 s63, s63, {WS_W2P}")
    A(f"s_add_u32 s57, s57, {K2_R0}")
    A("s_lshl_b32 s58, s53, 13")
    A("s_lshl_b32 s59, s49, 12")
    A("s_add_u32 s58, s58, s59")
    A(f"s_mul_i32 s64, s50, {40*8192}")
    A("s_add_u32 s64, s64, s58")
    A(f"s_add_u32 s64, s64, {WS_H1}")
    A(f"s_mul_i32 s66, s50, {54*8192}")
    A("s_add_u32 s66, s66, s58")
    A(f"s_add_u32 s66, s66, {WS_HF}")
    A("s_lshl_b32 s59, s53, 12")
    A(f"s_add_u32 s59, s59, {K2_BOFF}")
    A("s_cmp_lg_u32 s52, 0")
    A("s_cselect_b32 s62, s64, s62")
    A("s_cselect_b32 s63, s66, s63")
    A("s_cselect_b32 s58, s59, s57")
    A("s_cbranch_scc0 p2_lA")
    p2_loader(A, True)
    stamps_flush(A, 6, 1)
    A("s_branch k1_end")
    A("p2_lA:")
    p2_loader(A, False)
    stamps_flush(A, 6, 1)

def p2_loader(A, isB):
    vm = VM(A)
    nst = K2_NST
    nI = 4 if isB else 5
    sstr = 16384 if isB else 10240
    lstr = 8192 if isB else 10240
    if not isB:
        A("v_lshlrev_b32 v30, 4, v0")
        A(f"v_add_u32 v30, {WS_F1}, v30")
        wl = lambda o: [f"buffer_load_dwordx4 v[{32+4*k}:{35+4*k}], v30, s[44:47], 0 offen offset:{o + 1024*k} sc1" if o + 1024*k < 4096 else
                        f"buffer_load_dwordx4 v[{32+4*k}:{35+4*k}], v31, s[44:47], 0 offen offset:{o + 1024*k - 4096} sc1" for k in range(4)]
        A("v_add_u32 v31, 4096, v30")
    else:
        A("v_bfe_u32 v30, v0, 2, 3")
        A("v_and_b32 v31, 3, v0")
        A("v_lshlrev_b32 v30, 7, v30")
        A("v_lshl_add_u32 v30, v31, 3, v30")
        A("s_lshl_b32 s64, s50, 10")
        A(f"s_add_u32 s64, s64, {WS_F2}")
        A(f"s_add_u32 s66, s64, {128*128}")
        spin_flags(A, ["buffer_load_dwordx2 v[32:33], v30, s[44:47], s66 offen sc1"], [32])
    def dma(st):
        if isB and st == NSF:
            spin_flags(A, ["buffer_load_dwordx2 v[32:33], v30, s[44:47], s64 offen sc1"], [32], vm)
        if not isB and st == NSF:
            spin_flags(A, wl(4096), [32 + 2 * k for k in range(8)], vm)
        bo = (st % K2_NR) * lstr
        src, so = (63, st * sstr) if st < NSF else (62, (st - NSF) * sstr)
        for q in range(nI):
            A(f"s_add_u32 m0, s58, {bo + 1024*q}")
            A(f"s_add_u32 s65, s{src}, {so + 1024*q}")
            vm("buffer_load_dwordx4 v10, s[44:47], s65 offen sc1 lds", f"d{st}")
    stamp(A, 1)
    n0 = 3 if isB else K2_NR
    if isB:
        for st in range(n0): dma(st)
    else:
        Lb = A.label("nox"); Lc = A.label("late"); Ld = A.label("done")
        A("s_cmp_lg_u32 s78, 0")
        A(f"s_cbranch_scc1 {Lb}")
        spin_flags(A, wl(0), [32 + 2 * k for k in range(8)], iters=2)
        A("s_cmp_eq_u32 s70, 0")
        A(f"s_cbranch_scc1 {Lc}")
        for st in range(n0): dma(st)
        A("s_barrier")
        A("s_barrier")
        A(f"s_branch {Ld}")
        A(f"{Lc}:")
        A("s_barrier")
        A("s_barrier")
        A(f"{Lb}:")
        spin_flags(A, wl(0), [32 + 2 * k for k in range(8)])
        vm.ops = []
        for st in range(n0): dma(st)
        A(f"{Ld}:")
    vm.wait("d0")
    stamp(A, 2)
    A("s_barrier")
    vm.wait("d1")
    A("s_barrier")
    for st in range(n0, K2_NR): dma(st)
    for j in range(nst - 2):
        vm.wait(f"d{j+2}")
        A("s_barrier")
        if j + K2_NR < nst: dma(j + K2_NR)
    for i in (3, 4, 5): stamp(A, i)

def p2_compute(A):
    stamp(A, 0)
    A("v_mov_b32 v26, 0")
    A(f"ds_read_b64 v[22:23], v26 offset:{K1_NONCE}")
    p2_ids(A)
    srd(A, 72, 4, T * D * 2)
    srd(A, 84 if not STAMPS else 68, 28, T * D * 4)
    A("v_cmp_eq_u32 vcc, 0, v0")
    A(f"v_mov_b32 v24, {OOB}")
    A("v_cndmask_b32 v24, v24, v26, vcc")
    L = A.label("nof")
    A("s_cmp_eq_u32 s78, 0")
    A(f"s_cbranch_scc1 {L}")
    A("s_waitcnt vmcnt(0) lgkmcnt(0)")
    A("buffer_store_dwordx2 v[22:23], v24, s[44:47], s77 offen sc1")
    A(f"{L}:")
    FRAG = 112
    ACCY = 28; ACCF = 48; XR = 68; SR = 78; DR = 82; PR = 92
    nst = K2_NST
    A("s_lshl_b32 s57, s50, 7")
    A("s_lshl_b32 s58, s49, 6")
    A("s_add_u32 s57, s57, s58")
    A("s_add_u32 s57, s57, s48")
    A("v_lshl_add_u32 v17, v6, 2, s57")
    A("v_mul_u32_u24 v18, 1280, v17")
    A("v_lshl_add_u32 v18, v5, 3, v18")
    A("s_mul_i32 s58, s51, 160")
    for m in range(5):
        A(f"buffer_load_dwordx2 v[{XR+2*m}:{XR+2*m+1}], v18, s[72:75], s58 offen offset:{32*m}")
    A("v_lshlrev_b32 v25, 4, v17")
    A(f"s_mov_b32 s62, {WS_STATS}")
    A("v_lshlrev_b32 v26, 3, v5")
    A("v_add_u32 v26, s58, v26")
    for m in range(5):
        A(f"global_load_dwordx2 v[{DR+2*m}:{DR+2*m+1}], v26, s[20:21] offset:{32*m}")
    A("s_lshl_b32 s57, s48, 10")
    A(f"s_add_u32 s57, s57, {K2_BOFF}")
    A("v_add_u32 v20, s57, v10")
    A(f"v_add_u32 v21, {K2_R0 + 3*10240}, v10")
    A(f"v_add_u32 v19, {K2_R0}, v10")
    for r in range(40):
        A(f"v_mov_b32 v{ACCY+r}, 0")
    plist = []
    P = plist.append
    mm, rs, sd = SR, SR + 1, SR + 2
    for m in range(5):
        x = XR + 2 * m; t = 2; du = 12; p = PR + 4 * m
        for hh in range(2):
            P(f"v_lshlrev_b32 v{t+2*hh}, 16, v{x+hh}")
            P(f"v_and_b32 v{t+2*hh+1}, 0xffff0000, v{x+hh}")
        for r in range(4): P(f"v_sub_f32 v{t+r}, v{t+r}, v{mm}")
        for hh in range(2):
            P(f"v_cvt_pk_bf16_f32 v{t+4+hh}, v{t+2*hh}, v{t+2*hh+1}")
        for hh in range(2):
            P(f"v_lshlrev_b32 v{t+2*hh}, 16, v{t+4+hh}")
            P(f"v_and_b32 v{t+2*hh+1}, 0xffff0000, v{t+4+hh}")
        for r in range(4): P(f"v_mul_f32 v{t+4+r}, v{t+r}, v{rs}")
        for r in range(4): P(f"v_fma_f32 v{t+r}, -v{t+4+r}, v{sd}, v{t+r}")
        for r in range(4): P(f"v_fma_f32 v{t+4+r}, v{t+r}, v{rs}, v{t+4+r}")
        for hh in range(2):
            P(f"v_cvt_pk_bf16_f32 v{t+hh}, v{t+4+2*hh}, v{t+4+2*hh+1}")
        for hh in range(2):
            P(f"v_lshlrev_b32 v{t+4+2*hh}, 16, v{t+hh}")
            P(f"v_and_b32 v{t+4+2*hh+1}, 0xffff0000, v{t+hh}")
        for hh in range(2):
            P(f"v_lshlrev_b32 v{du+2*hh}, 16, v{DR+2*m+hh}")
            P(f"v_and_b32 v{du+2*hh+1}, 0xffff0000, v{DR+2*m+hh}")
        for r in range(4): P(f"v_mul_f32 v{t+4+r}, v{t+4+r}, v{du+r}")
        for hh in range(2):
            P(f"v_cvt_pk_bf16_f32 v{t+hh}, v{t+4+2*hh}, v{t+4+2*hh+1}")
        for hh in range(2):
            P(f"v_lshlrev_b32 v{p+2*hh}, 16, v{t+hh}")
            P(f"v_and_b32 v{p+2*hh+1}, 0xffff0000, v{t+hh}")
    glist = []
    G = glist.append
    for m in range(5):
        a = ACCF + 4 * m; t = 2
        for hh in range(2):
            G(f"v_cvt_pk_bf16_f32 v{t+hh}, v{a+2*hh}, v{a+2*hh+1}")
        for hh in range(2):
            G(f"v_lshlrev_b32 v{a+2*hh}, 16, v{t+hh}")
            G(f"v_and_b32 v{a+2*hh+1}, 0xffff0000, v{t+hh}")
        for r in range(4): G(f"v_mul_f32 v{t+r}, {hexf(-LOG2E)}, v{a+r}")
        for r in range(4): G(f"v_exp_f32 v{t+r}, v{t+r}")
        for r in range(4): G(f"v_add_f32 v{t+r}, 1.0, v{t+r}")
        for r in range(4): G(f"v_rcp_f32 v{t+r}, v{t+r}")
        for r in range(4): G(f"v_mul_f32 v{t+r}, v{t+r}, v{a+r}")
        for hh in range(2):
            G(f"v_cvt_pk_bf16_f32 v{t+4+hh}, v{t+2*hh}, v{t+2*hh+1}")
        for hh in range(2):
            G(f"v_lshlrev_b32 v{a+2*hh}, 16, v{t+4+hh}")
            G(f"v_and_b32 v{a+2*hh+1}, 0xffff0000, v{t+4+hh}")
    fset = lambda stage, kk: FRAG + ((stage % 3) * 2 + kk) * 24
    def reads(stage, kk):
        sl = stage % K2_NR
        ra = 21 if sl >= 3 else 19
        oa = (sl - 3 if sl >= 3 else sl) * 10240
        f = fset(stage, kk)
        out = [f"ds_read_b128 {vr(f+20,4)}, v20 offset:{sl*8192 + kk*4096}"]
        out += [f"ds_read_b128 {vr(f+4*m,4)}, v{ra} offset:{oa + kk*5120 + m*1024}" for m in range(5)]
        return out
    def mfmas(stage, kk):
        f = fset(stage, kk); acc = ACCF if stage < NSF else ACCY
        return [f"v_mfma_f32_16x16x32_bf16 {vr(acc+4*m,4)}, {vr(f+4*m,4)}, {vr(f+20,4)}, {vr(acc+4*m,4)}" for m in range(5)]
    stamp(A, 1)
    A("s_barrier")
    stamp(A, 2)
    A(f"buffer_load_dwordx4 v[{SR}:{SR+3}], v25, s[44:47], s62 offen sc1")
    for kk in range(2):
        for r in reads(0, kk): A(r)
    A("s_barrier")
    for kk in range(2):
        for r in reads(1, kk): A(r)
    for j in range(nst):
        A(f"s_waitcnt lgkmcnt({12 if j < nst - 1 else 0})")
        mf = mfmas(j, 0) + mfmas(j, 1)
        if j < nst - 2:
            for m in mf[:2]: A(m)
            if j == 8:
                A("s_waitcnt vmcnt(0)")
                L = A.label("noy")
                A("s_cmp_lg_u32 s78, 0")
                A(f"s_cbranch_scc1 {L}")
                A("buffer_store_dwordx2 v[22:23], v24, s[44:47], s77 offen sc1")
                A(f"{L}:")
            A("s_barrier")
            rd = reads(j + 2, 0) + reads(j + 2, 1)
            rest = mf[2:]
            for i, m in enumerate(rest):
                for r in rd[(i * 12) // 8: ((i + 1) * 12) // 8]: A(r)
                A(m)
                if j >= 8:
                    for _ in range(2):
                        if plist: A(plist.pop(0))
                        elif j >= NSF + 2 and glist: A(glist.pop(0))
        else:
            for m in mf: A(m)
    assert not plist and not glist
    stamp(A, 3)
    A("v_lshlrev_b32 v18, 1, v18")
    A("s_lshl_b32 s58, s58, 1")
    so = 84 if not STAMPS else 68
    for m in range(5):
        t = 112 + 4 * m
        for hh in range(2):
            A(f"v_pk_add_f32 {vr(PR+4*m+2*hh,2)}, {vr(ACCY+4*m+2*hh,2)}, {vr(PR+4*m+2*hh,2)}")
        for hh in range(2):
            A(f"v_lshlrev_b32 v{t+2*hh}, 16, v{XR+2*m+hh}")
            A(f"v_and_b32 v{t+2*hh+1}, 0xffff0000, v{XR+2*m+hh}")
        for hh in range(2):
            A(f"v_pk_mul_f32 {vr(PR+4*m+2*hh,2)}, {vr(PR+4*m+2*hh,2)}, {vr(ACCF+4*m+2*hh,2)}")
        for hh in range(2):
            A(f"v_pk_add_f32 {vr(t+2*hh,2)}, {vr(t+2*hh,2)}, {vr(PR+4*m+2*hh,2)}")
        A(f"buffer_store_dwordx4 v[{t}:{t+3}], v18, s[{so}:{so+3}], s58 offen offset:{64*m}")
    stamp(A, 4); stamp(A, 5)

HEADER = open("recurrent_scan__ssm_conv_s5__dense_activation_relu__prompt.s.ref").read().split("; @launch")[0]

def kd(name, vgpr=256):
    return f""".p2align 6
.amdhsa_kernel {name}
  .amdhsa_next_free_vgpr {vgpr}
  .amdhsa_next_free_sgpr 102
  .amdhsa_accum_offset {vgpr}
  .amdhsa_group_segment_fixed_size 0
  .amdhsa_kernarg_size 120
  .amdhsa_user_sgpr_count 2
  .amdhsa_user_sgpr_kernarg_segment_ptr 1
  .amdhsa_system_sgpr_workgroup_id_x 1
.end_amdhsa_kernel
"""

def build():
    out = HEADER
    out += f"; @launch kernel=k1_kernel grid=(256,1,1) block=(512,1,1) lds={K1_LDS}\n"
    out += '.amdgcn_target "amdgcn-amd-amdhsa--gfx950"\n.text\n'
    for name, fn in (("k1_kernel", kernel1),):
        A = Asm(); A.nlabel = 0 if name == "k1_kernel" else 1000
        fn(A)
        lines = fix_hazards(A.lines, verbose=True)
        out += f".globl {name}\n.p2align 8\n.type {name},@function\n"
        out += "\n".join(("    " + l if not l.endswith(":") else l) for l in lines) + "\n"
    out += '.section .rodata,"a"\n' + kd("k1_kernel")
    return out

if __name__ == "__main__":
    if len(sys.argv) > 2: STAMPS = True; DBG = sys.argv[2]
    dst = sys.argv[1] if len(sys.argv) > 1 else "recurrent_scan__ssm_conv_s5__dense_activation_relu__prompt.s"
    open(dst, "w").write(build())
    print("wrote", dst)
```

```python
import sys, struct
from asmlib import *

T, D, DFF = 2048, 640, 1728
WS_STATS = 0x000000
WS_E     = 0x010000
WS_WSP   = 0x0A0000
WS_WSYO  = 0x0E0000
WS_F3    = 0x0E8000
WS_F2    = 0x080000
WS_F1    = 0x090000
WS_CP    = 0x100000
WS_W2P   = 0x300000
WS_H1    = 0x600000
WS_HF    = 0xC00000
WS_S     = 0x1400000
WS_TS    = 0x1A00000
WS_SIZE  = 0x1B00000
OOB = 0x7ffffff0

import os
MAP = os.environ.get("MAP", "bp")
GI = int(os.environ.get("GI", 7))
STAMPS = False
DBG = "nopf"
def stamp(A, i):
    if STAMPS and i == 0:
        A("s_memrealtime s[96:97]")
    if STAMPS:
        A(f"s_memtime s[{80+2*i}:{81+2*i}]")
def stamps_flush(A, n, kidx, waitvm=True):
    if not STAMPS: return
    A("s_waitcnt lgkmcnt(0) vmcnt(0)" if waitvm else "s_waitcnt lgkmcnt(0)")
    A("s_memtime s[98:99]")
    A("s_memrealtime s[100:101]")
    A("s_waitcnt lgkmcnt(0)")
    A("s_lshl_b32 s57, s2, 3")
    A("s_add_u32 s57, s57, s34")
    A("s_lshl_b32 s57, s57, 6")
    A(f"s_add_u32 s57, s57, {WS_TS + kidx*131072}")
    A("v_mov_b32 v2, 0")
    for i in range(n):
        A(f"v_mov_b32 v3, s{80+2*i}")
        A(f"buffer_store_dword v3, v2, s[44:47], s57 offen offset:{4*i}")
    A(f"v_mov_b32 v3, s98")
    A(f"buffer_store_dword v3, v2, s[44:47], s57 offen offset:{4*n}")
    A(f"v_mov_b32 v3, s96")
    A(f"buffer_store_dword v3, v2, s[44:47], s57 offen offset:56")
    A(f"v_mov_b32 v3, s100")
    A(f"buffer_store_dword v3, v2, s[44:47], s57 offen offset:60")

def f2u(x): return struct.unpack("<I", struct.pack("<f", x))[0]
def hexf(x): return f"0x{f2u(x):08x}"
LOG2E = 1.4426950408889634
INV2PI = 0.15915494309189535

def divc(A, vq, vsrc, d, maxv):
    for sh in (16, 17, 18, 19, 20):
        mul = ((1 << sh) + d - 1) // d
        if all((c * mul) >> sh == c // d for c in range(maxv)) and maxv * mul < (1 << 32) and mul < (1 << 24):
            A(f"v_mul_u32_u24 {vr(vq)}, {mul}, {vr(vsrc)}")
            A(f"v_lshrrev_b32 {vr(vq)}, {sh}, {vr(vq)}")
            return
    raise Exception("no magic")

def srd(A, s, base, size):
    A(f"s_mov_b32 s{s}, s{base}")
    A(f"s_and_b32 s{s+1}, s{base+1}, 0xffff")
    A(f"s_mov_b32 s{s+2}, {size}")
    A(f"s_mov_b32 s{s+3}, 0x20000")

def cmul_add(A, dst, w, h, u):
    A(f"v_pk_fma_f32 {vr(dst,2)}, {vr(w,2)}, {vr(h,2)}, {vr(u,2)} op_sel:[0,0,0] op_sel_hi:[0,1,1]")
    A(f"v_pk_fma_f32 {vr(dst,2)}, {vr(w,2)}, {vr(h,2)}, {vr(dst,2)} op_sel:[1,1,0] op_sel_hi:[1,0,1] neg_lo:[1,0,0]")
def cmul(A, dst, w, h):
    A(f"v_pk_mul_f32 {vr(dst,2)}, {vr(w,2)}, {vr(h,2)} op_sel:[0,0] op_sel_hi:[0,1]")
    A(f"v_pk_fma_f32 {vr(dst,2)}, {vr(w,2)}, {vr(h,2)}, {vr(dst,2)} op_sel:[1,1,0] op_sel_hi:[1,0,1] neg_lo:[1,0,0]")

def wave_sum(A, regs):
    for mod in ("row_shr:1 row_mask:0xf bank_mask:0xf bound_ctrl:0", "row_shr:2 row_mask:0xf bank_mask:0xf bound_ctrl:0",
                "row_shr:4 row_mask:0xf bank_mask:0xf bound_ctrl:0", "row_shr:8 row_mask:0xf bank_mask:0xf bound_ctrl:0",
                "row_bcast:15 row_mask:0xa bank_mask:0xf", "row_bcast:31 row_mask:0xc bank_mask:0xf"):
        for r in regs:
            A(f"v_add_f32_dpp {vr(r)}, {vr(r)}, {vr(r)} {mod}")

def bf16r(A, r):
    A(f"v_cvt_pk_bf16_f32 {vr(r)}, {vr(r)}, {vr(r)}")
    A(f"v_lshlrev_b32 {vr(r)}, 16, {vr(r)}")

class VM:
    def __init__(s, A): s.A = A; s.ops = []
    def __call__(s, text, tag): s.A(text); s.ops.append(tag)
    def wait(s, tag, extra=""):
        idx = max([i for i, t in enumerate(s.ops) if t == tag], default=None)
        if idx is None:
            if extra: s.A(f"s_waitcnt {extra}")
            return
        n = len(s.ops) - 1 - idx
        assert n <= 63, n
        s.A(f"s_waitcnt vmcnt({n}) {extra}".strip())
        s.ops = s.ops[idx + 1:]
    def waitall(s, extra=""):
        s.A(f"s_waitcnt vmcnt(0) {extra}".strip()); s.ops = []

def common_ids(A):
    A("v_lshrrev_b32 v2, 6, v0")
    A("v_and_b32 v1, 255, v0")
    A("v_and_b32 v0, 63, v0")
    A("v_readfirstlane_b32 s34, v2")
    A("s_lshr_b32 s35, s2, 3")
    A("s_and_b32 s57, s2, 3")
    A("s_lshl_b32 s57, s57, 2")
    A("s_lshr_b32 s50, s35, 3")
    A("s_add_u32 s50, s50, s57")
    if MAP == "mixed":
        A("s_and_b32 s49, s35, 1")
        A("s_bfe_u32 s51, s35, 0x20001")
        A("s_and_b32 s57, s2, 4")
        A("s_add_u32 s51, s51, s57")
    else:
        A("s_bfe_u32 s49, s2, 0x10002")
        A("s_and_b32 s51, s35, 7")
    A("s_and_b32 s48, s34, 3")
    A("s_lshr_b32 s52, s48, 1")
    A("s_and_b32 s53, s48, 1")
    A("v_lshrrev_b32 v3, 3, v0")
    A("v_and_b32 v4, 7, v0")
    A("v_lshrrev_b32 v5, 4, v0")
    A("v_and_b32 v6, 15, v0")

def poll(A, load, stmp, scount, vtmp, target, iters=200000):
    L = A.label("poll"); Lx = A.label("pollx")
    A(f"s_mov_b32 s{scount}, {iters}")
    A(f"{L}:")
    A(load)
    A("s_waitcnt vmcnt(0)")
    A(f"v_readfirstlane_b32 s{stmp}, {vr(vtmp)}")
    A(f"s_cmp_eq_u32 s{stmp}, {target}")
    A(f"s_cbranch_scc1 {Lx}")
    A("s_sleep 1")
    A(f"s_sub_u32 s{scount}, s{scount}, 1")
    A(f"s_cmp_lg_u32 s{scount}, 0")
    A(f"s_cbranch_scc1 {L}")
    A(f"{Lx}:")

K1F_STAGE = 28672 + 16384
K1Y_STAGE = 20480 + 16384
K1_STATS = 0
K1_WS = 2048
K1_NONCE = 3008
K1F_RED = 3072
K1F_BUF = 10240
K1Y_T = 3072
K1Y_BUF = 26112
K1Y_SCR = K1Y_BUF + 3 * K1Y_STAGE
K1_LE = 157184
K1_LDS = 157184 + 4096

def kernel1(A):
    A("k1_kernel:")
    A("s_cmp_ge_u32 s2, 256")
    A("s_cbranch_scc1 k1_end")
    stamp(A, 0)
    A("s_load_dwordx16 s[4:19], s[0:1], 0")
    A("s_load_dwordx8 s[20:27], s[0:1], 64")
    A("s_load_dwordx4 s[28:31], s[0:1], 96")
    A("s_load_dwordx2 s[32:33], s[0:1], 112")
    common_ids(A)
    A("s_lshr_b32 s57, s51, 1")
    A("s_mul_i32 s54, s57, 27")
    A("s_and_b32 s57, s51, 1")
    A("s_mul_i32 s57, s57, 14")
    A("s_add_u32 s54, s54, s57")
    A("s_waitcnt lgkmcnt(0)")
    srd(A, 36, 4, T * D * 2)
    srd(A, 44, 32, WS_SIZE)
    A("s_cmp_ge_u32 s34, 4")
    A("s_cbranch_scc1 k1_ld")
    A("s_cmp_lg_u32 s49, 0")
    A("s_cbranch_scc1 k1_cF")
    k1_compute(A, False)
    A("s_branch p2_comp")
    A("k1_cF:")
    k1_compute(A, True)
    A("p2_comp:")
    stamps_flush(A, 8, 0, False)
    p2_compute(A)
    stamps_flush(A, 6, 1)
    A("s_branch k1_end")
    A("k1_ld:")
    A("s_cmp_lg_u32 s49, 0")
    A("s_cbranch_scc1 k1_lF")
    k1_loader(A, False)
    A("s_branch p2_ld")
    A("k1_lF:")
    k1_loader(A, True)
    A("p2_ld:")
    stamps_flush(A, 8, 0, False)
    p2_loaders(A)
    A("k1_end:")
    A("s_endpgm")

def stats_compute(A, vm, SRC):
    for r in range(2):
        for i in range(5):
            A(f"v_lshlrev_b32 v{40+10*r+2*i}, 16, v{SRC+5*r+i}")
            A(f"v_and_b32 v{41+10*r+2*i}, 0xffff0000, v{SRC+5*r+i}")
    for r in range(2):
        b = 40 + 10 * r
        A(f"v_add_f32 v{60+r}, v{b}, v{b+1}")
        for i in range(2, 10):
            A(f"v_add_f32 v{60+r}, v{60+r}, v{b+i}")
    wave_sum(A, [60, 61])
    A("v_readlane_b32 s57, v60, 63")
    A("v_readlane_b32 s58, v61, 63")
    A(f"v_mov_b32 v62, {hexf(1.0/640)}")
    A("v_mul_f32 v60, s57, v62")
    A("v_mul_f32 v61, s58, v62")
    for r in range(2):
        b = 40 + 10 * r
        for i in range(10):
            A(f"v_sub_f32 v{b+i}, v{b+i}, v{60+r}")
    for r in range(2):
        b = 40 + 10 * r
        A(f"v_mul_f32 v{64+r}, v{b}, v{b}")
        for i in range(1, 10):
            A(f"v_fmac_f32 v{64+r}, v{b+i}, v{b+i}")
    wave_sum(A, [64, 65])
    A("v_readlane_b32 s57, v64, 63")
    A("v_readlane_b32 s58, v65, 63")
    A("v_mul_f32 v64, s57, v62")
    A("v_mul_f32 v65, s58, v62")
    A("v_and_b32 v66, 1, v0")
    A("v_cmp_eq_u32 vcc, 1, v66")
    A("v_cndmask_b32 v68, v60, v61, vcc")
    A("v_cndmask_b32 v70, v64, v65, vcc")
    bf16r(A, 68)
    bf16r(A, 70)
    A(f"v_add_f32 v70, {hexf(1e-5)}, v70")
    bf16r(A, 70)
    A("v_sqrt_f32 v70, v70")
    bf16r(A, 70)
    A("v_rcp_f32 v69, v70")
    A("v_fma_f32 v71, -v70, v69, 1.0")
    A("v_fma_f32 v69, v71, v69, v69")
    A("v_mov_b32 v71, 0")
    A("v_lshlrev_b32 v66, 4, v0")
    A(f"v_mov_b32 v67, {OOB}")
    A("v_cmp_gt_u32 vcc, 2, v0")
    A("v_cndmask_b32 v66, v67, v66, vcc")
    A("s_lshl_b32 s57, s63, 4")
    A(f"s_add_u32 s57, s57, {WS_STATS}")
    vm("buffer_store_dwordx4 v[68:71], v66, s[44:47], s57 offen sc1", "st")

def k1_loader(A, isF):
    vm = VM(A)
    STG = K1F_STAGE if isF else K1Y_STAGE
    BUF = K1F_BUF if isF else K1Y_BUF
    ASZ = 28672 if isF else 20480
    if not isF:
        L = A.label("nononce")
        A("s_or_b32 s57, s2, s48")
        A("s_cmp_lg_u32 s57, 0")
        A(f"s_cbranch_scc1 {L}")
        A("s_memrealtime s[70:71]")
        A("v_mov_b32 v18, 0")
        A("s_waitcnt lgkmcnt(0)")
        A("s_or_b32 s70, s70, 1")
        A("v_mov_b32 v20, s70")
        A("v_mov_b32 v21, s71")
        A("s_mov_b64 exec, 1")
        A("global_store_dwordx2 v18, v[20:21], s[30:31] sc1")
        A("s_mov_b64 exec, -1")
        A(f"{L}:")
    A("v_xor_b32 v17, v4, v3")
    A("v_mul_u32_u24 v19, 5120, v3")
    A("v_lshl_add_u32 v247, v17, 4, v19")
    A("s_lshl_b32 s60, s50, 7")
    A("s_lshl_b32 s59, s52, 6")
    A("s_add_u32 s60, s60, s59")
    A("s_lshl_b32 s59, s53, 1")
    A("s_add_u32 s60, s60, s59")
    A("s_mul_i32 s60, s60, 1280")
    A("s_lshl_b32 s62, s48, 12")
    A(f"s_add_u32 s62, s62, {ASZ+BUF}")
    def dmaX(st):
        bo = (st % 3) * STG
        for q in range(4):
            A(f"s_add_u32 m0, s62, {bo + 1024*q}")
            A(f"s_add_u32 s65, s60, {st*128 + (32*(q&1) + (q>>1))*1280}")
            vm(f"buffer_load_dwordx4 v247, s[36:39], s65 offen lds", f"d{st}")
    stamp(A, 5)
    dmaX(0)
    if isF:
        srd(A, 40, 24, D * DFF * 2)
        A("s_mul_i32 s59, s48, 55296")
        A("s_lshl_b32 s64, s54, 5")
        A("s_add_u32 s59, s59, s64")
        A("s_mul_i32 s61, s48, 7168")
        A(f"s_add_u32 s61, s61, {BUF}")
        for q in range(7):
            A(f"v_add_u32 v17, {64*q}, v0")
            divc(A, 18, 17, 28, 448)
            A("v_mul_u32_u24 v19, 28, v18")
            A("v_sub_u32 v19, v17, v19")
            A("v_lshrrev_b32 v17, 2, v18")
            A("v_and_b32 v17, 2, v17")
            A("v_xor_b32 v19, v19, v17")
            A("v_mul_u32_u24 v18, 3456, v18")
            A(f"v_lshl_add_u32 v{240+q}, v19, 4, v18")
            A(f"s_add_u32 m0, s61, {1024*q}")
            A("s_nop 0")
            vm(f"buffer_load_dwordx4 v{240+q}, s[40:43], s59 offen lds", "d0")
    else:
        A("s_cmp_lt_u32 s48, 2")
        A("s_cselect_b32 s64, s10, s12")
        A("s_cselect_b32 s65, s11, s13")
        srd(A, 40, 64, D * D * 2)
        A("v_xor_b32 v18, s52, v17")
        A("v_mul_u32_u24 v19, 1280, v3")
        A("v_lshl_add_u32 v240, v18, 4, v19")
        A("s_mul_i32 s59, s51, 80")
        A("s_mul_i32 s64, s53, 40")
        A("s_add_u32 s59, s59, s64")
        A("s_mul_i32 s59, s59, 1280")
        A("s_mul_i32 s61, s53, 10240")
        A("s_lshl_b32 s64, s52, 10")
        A("s_add_u32 s61, s61, s64")
        A(f"s_add_u32 s61, s61, {BUF}")
    def dmaA(st):
        bo = (st % 3) * STG
        tag = f"d{st}"
        if isF:
            A(f"s_add_u32 s65, s59, {st*64*3456}")
            for q in range(7):
                A(f"s_add_u32 m0, s61, {bo + 1024*q}")
                A("s_nop 0")
                vm(f"buffer_load_dwordx4 v{240+q}, s[40:43], s65 offen lds", tag)
        else:
            for q in range(5):
                A(f"s_add_u32 m0, s61, {bo + 2048*q}")
                A(f"s_add_u32 s65, s59, {st*128 + q*8*1280}")
                vm(f"buffer_load_dwordx4 v240, s[40:43], s65 offen lds", tag)
    def dma(st):
        dmaA(st); dmaX(st)
    if not isF: dmaA(0)
    stamp(A, 6)
    if "nodpf" not in DBG: A("s_barrier")
    dma(1)
    stamp(A, 7)
    A(f"v_mov_b32 v15, {OOB}")
    A("v_mov_b32 v26, 0")
    def s5():
        A("v_bfe_u32 v20, v0, 1, 4")
        A("v_and_b32 v21, 7, v20")
        A("v_lshrrev_b32 v22, 3, v20")
        A("v_lshl_add_u32 v21, v22, 7, v21")
        A("s_lshl_b32 s57, s50, 3")
        A("v_add_u32 v21, s57, v21")
        A("s_lshl_b32 s57, s49, 7")
        A("s_add_u32 s57, s57, s51")
        A("v_lshl_add_u32 v22, v20, 3, s57")
        A("v_cmp_gt_u32 vcc, 32, v0")
        A("v_cndmask_b32 v25, v22, v21, vcc")
        A("v_lshlrev_b32 v25, 7, v25")
        A("v_and_b32 v20, 1, v0")
        A("v_lshl_add_u32 v25, v20, 4, v25")
        A(f"v_add_u32 v25, {WS_F3}, v25")
    def g1():
        vm("buffer_load_dwordx4 v[32:35], v25, s[44:47], 0 offen sc1", "fl")
    def g2():
        Lp = A.label("poll"); Lx = A.label("pollx"); Lc = A.label("pollc")
        A("s_mov_b32 s58, 200000")
        vm.wait("fl")
        A(f"s_branch {Lc}")
        A(f"{Lp}:")
        A("s_sleep 1")
        A("buffer_load_dwordx4 v[32:35], v25, s[44:47], 0 offen sc1")
        A("s_waitcnt vmcnt(0)")
        A(f"{Lc}:")
        A("v_cmp_ne_u64 vcc, v[32:33], v[28:29]")
        A("v_cmp_ne_u64 s[66:67], v[34:35], v[28:29]")
        A("s_or_b64 vcc, vcc, s[66:67]")
        A("s_cmp_eq_u64 vcc, 0")
        A(f"s_cbranch_scc1 {Lx}")
        A("s_sub_u32 s58, s58, 1")
        A("s_cmp_lg_u32 s58, 0")
        A(f"s_cbranch_scc1 {Lp}")
        A(f"{Lx}:")
        A("v_lshlrev_b32 v34, 4, v1")
        A("s_lshl_b32 s57, s50, 11")
        A(f"s_add_u32 s57, s57, {WS_STATS}")
        vm("buffer_load_dwordx4 v[36:39], v34, s[44:47], s57 offen sc1", "ga")
        A("v_lshlrev_b32 v35, 2, v1")
        if isF:
            A("s_mul_i32 s57, s51, 896")
            A(f"s_add_u32 s57, s57, {WS_WSP}")
            for sl_ in range(32):
                vm(f"buffer_load_dword v{40+sl_}, v35, s[44:47], s57 offen sc1", "ga")
                A(f"s_add_u32 s57, s57, {1792*4}")
        else:
            A("s_mul_i32 s57, s51, 640")
            A(f"s_add_u32 s57, s57, {WS_WSYO}")
            vm("buffer_load_dword v40, v35, s[44:47], s57 offen sc1", "ga")
    def g3():
        vm.wait("ga")
        A("v_cmp_gt_u32 vcc, 128, v1")
        A("s_and_saveexec_b64 s[66:67], vcc")
        A(f"ds_write_b128 v34, v[36:39] offset:{K1_STATS}")
        A("s_mov_b64 exec, s[66:67]")
        if isF:
            for sl_ in range(1, 32):
                A(f"v_add_f32 v40, v40, v{40+sl_}")
        A(f"v_cmp_gt_u32 vcc, {224 if isF else 160}, v1")
        A("s_and_saveexec_b64 s[66:67], vcc")
        A(f"ds_write_b32 v35, v40 offset:{K1_WS}")
        A("s_mov_b64 exec, s[66:67]")
    chunks = {}
    post = []
    if isF:
        def crep():
            Lq = A.label("cq")
            A("s_cmp_eq_u32 s52, 0")
            A(f"s_cbranch_scc1 {Lq}")
            srd(A, 68, 14, D * D * 2)
            sc = 80 if not STAMPS else 60
            srd(A, sc, 16, D * D * 2)
            for rd_ in range(2):
                R = 92 + 16 * rd_
                A("s_lshl_b32 s57, s50, 3")
                A("s_add_u32 s57, s57, s51")
                A("s_lshl_b32 s57, s57, 4")
                A("s_lshl_b32 s58, s53, 2")
                A("s_add_u32 s57, s57, s58")
                A(f"s_add_u32 s57, s57, {8*rd_}")
                A("v_add_u32 v10, s57, v5")
                divc(A, 11, 10, 40, 2048)
                A("v_mul_u32_u24 v12, 40, v11")
                A("v_sub_u32 v12, v10, v12")
                A("v_lshl_add_u32 v13, v11, 4, v6")
                A("v_mul_u32_u24 v13, 1280, v13")
                A("v_lshl_add_u32 v13, v12, 5, v13")
                A(f"buffer_load_dwordx4 v[{R}:{R+3}], v13, s[68:71], 0 offen")
                A(f"buffer_load_dwordx4 v[{R+4}:{R+7}], v13, s[68:71], 0 offen offset:16")
                A(f"buffer_load_dwordx4 v[{R+8}:{R+11}], v13, s[{sc}:{sc+3}], 0 offen")
                A(f"buffer_load_dwordx4 v[{R+12}:{R+15}], v13, s[{sc}:{sc+3}], 0 offen offset:16")
                divc(A, 14, 11, 5, 64)
                A("v_mul_u32_u24 v16, 5, v14")
                A("v_sub_u32 v16, v11, v16")
                A("v_mul_u32_u24 v14, 40, v14")
                A("v_add_u32 v14, v14, v12")
                A("v_mul_u32_u24 v14, 5120, v14")
                A("v_lshl_add_u32 v14, v16, 10, v14")
                A("v_lshl_add_u32 v14, v6, 4, v14")
                A("v_cmp_gt_u32 vcc, 1600, v10")
                A(f"v_cndmask_b32 v{17+rd_}, v15, v14, vcc")
            A("s_mov_b32 s57, 0x05040100")
            A("s_mov_b32 s58, 0x07060302")
            A(f"s_mov_b32 s65, {WS_CP}")
            A("s_waitcnt vmcnt(0)")
            for rd_ in range(2):
                R = 92 + 16 * rd_
                for c in range(8): A(f"v_xor_b32 v{R+8+c}, 0x80008000, v{R+8+c}")
                for g in range(4):
                    o = 40 + 16 * rd_ + 4 * g
                    A(f"v_perm_b32 v{o}, v{R+8+g}, v{R+g}, s57")
                    A(f"v_perm_b32 v{o+1}, v{R+8+g}, v{R+g}, s58")
                    A(f"v_perm_b32 v{o+2}, v{R+12+g}, v{R+4+g}, s57")
                    A(f"v_perm_b32 v{o+3}, v{R+12+g}, v{R+4+g}, s58")
                    A(f"buffer_store_dwordx4 v[{o}:{o+3}], v{17+rd_}, s[44:47], s65 offen offset:{256*g} sc1")
            A("s_waitcnt vmcnt(0)")
            A(f"{Lq}:")
            A("buffer_store_dwordx2 v[28:29], v27, s[44:47], s79 offen sc1")
        post = [crep]
    else:
        def w2a():
            srd(A, 68, 26, D * DFF * 2)
            A("s_lshl_b32 s57, s50, 3")
            A("s_add_u32 s57, s57, s51")
            A("s_lshl_b32 s57, s57, 2")
            A("s_add_u32 s57, s57, s48")
            A("s_lshr_b32 s75, s57, 3")
            A("s_and_b32 s76, s57, 7")
            A("s_mul_i32 s58, s75, 40960")
            A("s_mul_i32 s57, s76, 160")
            A("s_add_u32 s58, s58, s57")
            A("s_mul_i32 s77, s48, 5120")
            A(f"s_add_u32 s77, s77, {K1Y_SCR}")
            for q in range(5):
                A(f"v_add_u32 v17, {64*q}, v0")
                divc(A, 18, 17, 10, 320)
                A("v_mul_u32_u24 v19, 10, v18")
                A("v_sub_u32 v19, v17, v19")
                A("v_mul_u32_u24 v18, 1280, v18")
                A("v_lshl_add_u32 v16, v19, 4, v18")
                A(f"s_add_u32 m0, s77, {1024*q}")
                A("s_nop 0")
                vm("buffer_load_dwordx4 v16, s[68:71], s58 offen lds", "w2")
        def w2b():
            A("v_lshrrev_b32 v17, 2, v6")
            A("v_lshl_add_u32 v17, v5, 2, v17")
            A("v_mul_u32_u24 v17, 160, v17")
            A("v_and_b32 v18, 3, v6")
            A("v_lshl_add_u32 v17, v18, 3, v17")
            A("v_add_u32 v17, s77, v17")
            vm.wait("w2")
            for m in range(5):
                for h in range(2):
                    A(f"ds_read_b64_tr_b16 v[{164+4*m+2*h}:{165+4*m+2*h}], v17 offset:{h*2560 + m*32}")
            A("s_mul_i32 s57, s76, 54")
            A("s_add_u32 s57, s57, s75")
            A("s_mul_i32 s57, s57, 5120")
            A(f"s_add_u32 s57, s57, {WS_W2P}")
            A("s_cmp_lt_u32 s75, 54")
            A(f"s_cselect_b32 s57, s57, {OOB}")
            A("v_lshlrev_b32 v18, 4, v0")
            A("v_add_u32 v19, 4096, v18")
            A("s_waitcnt lgkmcnt(0)")
            for m in range(5):
                vm(f"buffer_store_dwordx4 v[{164+4*m}:{167+4*m}], v18, s[44:47], s57 offen offset:{1024*m} sc1" if m < 4 else
                   f"buffer_store_dwordx4 v[{164+4*m}:{167+4*m}], v19, s[44:47], s57 offen sc1", "st2")
        def w2c():
            vm.wait("st2")
            vm("buffer_store_dwordx2 v[28:29], v27, s[44:47], s79 offen sc1", "fs")
        def lbk():
            Lq = A.label("lq")
            A("s_cmp_eq_u32 s52, 0")
            A(f"s_cbranch_scc1 {Lq}")
            A("v_min_u32 v8, 39, v0")
            A("s_mul_i32 s57, s53, 40")
            A("v_add_u32 v8, s57, v8")
            A("v_lshlrev_b32 v9, 3, v8")
            A(f"v_add_u32 v9, {K1_LE}, v9")
            A("v_mul_u32_u24 v10, 288, v8")
            A("s_mul_i32 s57, s51, 1280")
            A("v_lshlrev_b32 v11, 4, v8")
            A("v_add_u32 v11, s57, v11")
            A("s_mul_i32 s74, s50, 10240")
            A(f"s_add_u32 s74, s74, {WS_E}")
            A(f"ds_read_b64 v[72:73], v10 offset:{K1Y_T+128+8}")
            A(f"ds_read_b64 v[74:75], v10 offset:{K1Y_T+128+16}")
            A("s_barrier")
            Lp = A.label("lb"); Lx = A.label("lbx")
            A("ds_read_b64 v[64:65], v9")
            A("ds_read_b64 v[66:67], v9 offset:640")
            A("v_mov_b32 v82, v28")
            A("v_mov_b32 v83, v29")
            A("s_waitcnt lgkmcnt(0)")
            cmul_add(A, 80, 72, 64, 66)
            A("buffer_store_dwordx4 v[80:83], v11, s[44:47], s74 offen sc1")
            A("s_mov_b32 s75, 100000")
            A(f"{Lp}:")
            for i in range(15):
                A(f"s_sub_u32 s57, s50, {i+1}")
                A("s_mul_i32 s58, s57, 10240")
                A(f"s_add_u32 s58, s58, {WS_E}")
                A(f"s_cmp_gt_u32 s50, {i}")
                A(f"s_cselect_b32 s58, s58, {OOB}")
                A(f"buffer_load_dwordx4 v[{96+4*i}:{99+4*i}], v11, s[44:47], s58 offen sc1")
            A("s_waitcnt vmcnt(0)")
            A("s_mov_b64 vcc, 0")
            for i in range(15):
                A(f"v_cmp_ne_u64 s[70:71], v[{98+4*i}:{99+4*i}], v[28:29]")
                A(f"s_cmp_gt_u32 s50, {i}")
                A("s_cselect_b64 s[70:71], s[70:71], 0")
                A("s_or_b64 vcc, vcc, s[70:71]")
            A("s_cmp_eq_u64 vcc, 0")
            A(f"s_cbranch_scc1 {Lx}")
            A("s_sleep 1")
            A("s_sub_u32 s75, s75, 1")
            A("s_cmp_lg_u32 s75, 0")
            A(f"s_cbranch_scc1 {Lp}")
            A(f"{Lx}:")
            for i in range(13, -1, -1):
                cmul_add(A, 96 + 4 * i, 74, 96 + 4 * (i + 1), 96 + 4 * i)
            cmul_add(A, 84, 72, 96, 64)
            A("ds_write_b64 v9, v[96:97] offset:1280")
            A("ds_write_b64 v9, v[84:85] offset:1920")
            A("s_waitcnt lgkmcnt(0)")
            A("s_barrier")
            A(f"{Lq}:")
        chunks = {4: [w2a], 8: [w2b]}; post = [w2c, lbk]
    def n1():
        vm("global_load_dwordx2 v[28:29], v26, s[30:31] sc1", "nn")
    def n2():
        Lp = A.label("np"); Lx = A.label("npx"); Lc = A.label("npc")
        A("s_mov_b32 s58, 200000")
        vm.wait("nn")
        A(f"s_branch {Lc}")
        A(f"{Lp}:")
        A("s_sleep 1")
        A("global_load_dwordx2 v[28:29], v26, s[30:31] sc1")
        A("s_waitcnt vmcnt(0)")
        A(f"{Lc}:")
        A("v_readfirstlane_b32 s57, v28")
        A("s_cmp_lg_u32 s57, 0")
        A(f"s_cbranch_scc1 {Lx}")
        A("s_sub_u32 s58, s58, 1")
        A("s_cmp_lg_u32 s58, 0")
        A(f"s_cbranch_scc1 {Lp}")
        A(f"{Lx}:")
        A(f"ds_write_b64 v26, v[28:29] offset:{K1_NONCE}")
        A("s_lshl_b32 s57, s49, 7")
        A("s_lshl_b32 s58, s50, 3")
        A("s_add_u32 s57, s57, s58")
        A("s_add_u32 s57, s57, s51")
        A("s_lshl_b32 s57, s57, 5")
        A("s_lshl_b32 s58, s48, 3")
        A("s_add_u32 s57, s57, s58")
        A(f"s_add_u32 s79, s57, {WS_F1}")
        A("v_cmp_eq_u32 vcc, 0, v0")
        A("v_cndmask_b32 v27, v15, v26, vcc")
    sched = ((1, n1), (2, n2), (3, s5), (GI, g1), (GI + 1, g2))
    for k, f in sched:
        chunks.setdefault(k, []).append(f)
    vm.wait("d0")
    stamp(A, 1)
    A("s_barrier")
    for j in range(9):
        if j + 2 <= 9: dma(j + 2)
        for f in chunks.get(j, []): f()
        vm.wait(f"d{j+1}", "lgkmcnt(0)")
        A("s_barrier")
    stamp(A, 2)
    g3()
    A("s_waitcnt lgkmcnt(0)")
    stamp(A, 3)
    stamp(A, 4)
    A("s_barrier")
    for f in post: f()

def k1_side(A, isF):
    if isF:
        yield
    else:
        divc(A, 9, 1, 80, 256)
        A("v_mul_u32_u24 v10, 80, v9")
        A("v_sub_u32 v10, v1, v10")
        A("s_mul_i32 s57, s51, 80")
        A("v_add_u32 v11, s57, v10")
        A("v_lshlrev_b32 v11, 1, v11")
        A("global_load_ushort v92, v11, s[6:7]")
        A("global_load_ushort v93, v11, s[8:9]")
        A("global_load_ushort v94, v11, s[18:19]")
        yield
        A("s_waitcnt vmcnt(26)")
        for r in (92, 93, 94): A(f"v_lshlrev_b32 v{r}, 16, v{r}")
        A(f"v_mul_f32 v94, {hexf(LOG2E)}, v94")
        A("v_exp_f32 v94, v94")
        bf16r(A, 94)
        A("v_mul_f32 v95, v94, v92")
        A("v_mul_f32 v96, v94, v93")
        A(f"v_mul_f32 v95, {hexf(LOG2E)}, v95")
        A(f"v_mul_f32 v96, {hexf(INV2PI)}, v96")
        A("v_mul_u32_u24 v97, 288, v10")
        A("v_lshl_add_u32 v97, v9, 3, v97")
        A("v_cmp_gt_u32 vcc, 240, v1")
        A("s_and_saveexec_b64 s[66:67], vcc")
        for r in range(11):
            A(f"v_add_u32 v98, {3*r}, v9")
            A("v_lshlrev_b32 v99, 2, v98")
            A("v_lshlrev_b32 v100, 6, v98")
            A("v_subrev_u32 v100, 1024, v100")
            A("v_cmp_gt_u32 vcc, 16, v98")
            A("v_cndmask_b32 v99, v100, v99, vcc")
            A("v_cvt_f32_u32 v99, v99")
            A("v_mul_f32 v100, v99, v95")
            A("v_mul_f32 v101, v99, v96")
            A("v_exp_f32 v100, v100")
            A("v_fract_f32 v101, v101")
            A("v_cos_f32 v102, v101")
            A("v_sin_f32 v103, v101")
            A("v_mul_f32 v102, v100, v102")
            A("v_mul_f32 v103, v100, v103")
            A(f"ds_write_b64 v97, v[102:103] offset:{K1Y_T+24*r}")
        A("s_mov_b64 exec, s[66:67]")
        A("v_exp_f32 v100, v95")
        A("v_fract_f32 v101, v96")
        A("v_cos_f32 v102, v101")
        A("v_sin_f32 v103, v101")
        A("v_mul_f32 v102, v100, v102")
        A("v_mul_f32 v103, v100, v103")
        A("v_add_f32 v98, -1.0, v102")
        A("v_mul_f32 v99, v92, v92")
        A("v_fmac_f32 v99, v93, v93")
        A("v_rcp_f32 v100, v99")
        A("v_fma_f32 v101, -v99, v100, 1.0")
        A("v_fma_f32 v100, v101, v100, v100")
        A("v_add_f32 v100, v100, v100")
        A("v_mul_f32 v104, v98, v92")
        A("v_fmac_f32 v104, v103, v93")
        A("v_mul_f32 v105, v103, v92")
        A("v_fma_f32 v105, -v98, v93, v105")
        A("v_mul_f32 v104, v104, v100")
        A("v_mul_f32 v105, v105, v100")
        A("v_cmp_gt_u32 vcc, 80, v1")
        A("s_and_saveexec_b64 s[66:67], vcc")
        A(f"ds_write_b128 v97, v[102:105] offset:{K1Y_T+272}")
        A("s_mov_b64 exec, s[66:67]")
    A("s_waitcnt lgkmcnt(0)")
    yield

def k1_prefetch_setup(A, isF):
    A("s_and_b32 s57, s2, 3")
    A("s_lshl_b32 s57, s57, 9")
    A("s_lshl_b32 s59, s35, 4")
    A("s_add_u32 s57, s57, s59")
    A("s_mul_i32 s57, s57, 1280")
    A("v_lshrrev_b32 v10, 2, v0")
    A("v_and_b32 v11, 3, v0")
    A("v_mul_u32_u24 v10, 1280, v10")
    A("v_lshl_add_u32 v10, v11, 7, v10")
    A("s_mul_i32 s58, s53, 384")
    A("s_add_u32 s66, s57, s58")
    A("s_add_u32 s66, s66, 384")
    if isF:
        srd(A, 40, 24, D * DFF * 2)
        A("v_min_u32 v11, 53, v0")
        A("v_lshlrev_b32 v11, 7, v11")
        A("s_mul_i32 s67, s35, 6912")
        A("s_add_u32 s58, s48, 3")
        A(f"s_mul_i32 s58, s58, {64*3456}")
        A("s_add_u32 s67, s67, s58")
        A(f"s_add_u32 s68, s67, {4*64*3456}")
    else:
        A("s_cmp_lt_u32 s48, 2")
        A("s_cselect_b32 s64, s10, s12")
        A("s_cselect_b32 s65, s11, s13")
        srd(A, 40, 64, D * D * 2)
        divc(A, 12, 0, 20, 64)
        A("v_mul_u32_u24 v13, 20, v12")
        A("v_sub_u32 v13, v0, v13")
        A("v_min_u32 v12, 2, v12")
        A("v_mul_u32_u24 v13, 1280, v13")
        A("v_lshl_add_u32 v11, v12, 7, v13")
        A("s_mul_i32 s67, s35, 25600")
        A("s_mul_i32 s58, s53, 384")
        A("s_add_u32 s68, s67, 896")
        A("s_add_u32 s67, s67, s58")
        A("s_add_u32 s67, s67, 384")
def k1_prefetch(A, isF, batch):
    if "nopf" in DBG: return
    if batch == 0:
        A("buffer_load_dword v12, v11, s[40:43], s67 offen")
        A("buffer_load_dword v13, v10, s[36:39], s66 offen")
    else:
        A("buffer_load_dword v12, v11, s[40:43], s68 offen")

def k1_compute(A, isF):
    ACC = 128; FRAG = 32
    MT = 7 if isF else 5; NT = 4
    STG = K1F_STAGE if isF else K1Y_STAGE
    BUF = K1F_BUF if isF else K1Y_BUF
    ASZ = 28672 if isF else 20480
    side = k1_side(A, isF) if "noside" not in DBG else iter([0, 0])
    next(side)
    AB = 232; BB = 244
    if isF:
        A("v_lshrrev_b32 v17, 2, v6")
        A("v_lshl_add_u32 v17, v5, 3, v17")
        A("v_mul_u32_u24 v17, 448, v17")
        A("v_and_b32 v18, 3, v6")
        A("v_lshl_add_u32 v17, v18, 3, v17")
        A("s_mul_i32 s57, s52, 224")
        A(f"s_add_u32 s57, s57, {BUF}")
        A("v_add_u32 v17, s57, v17")
        A("v_and_b32 v18, 1, v5")
        A("v_lshlrev_b32 v18, 5, v18")
        A("v_add_u32 v19, v17, v18")
        A("v_sub_u32 v17, v17, v18")
        A("s_cmp_eq_u32 s52, 0")
        A("s_cselect_b64 vcc, -1, 0")
        AB = 240; BB = 246
        A(f"v_cndmask_b32 v{AB}, v17, v19, vcc")
        A(f"v_cndmask_b32 v{AB+1}, v19, v17, vcc")
    else:
        A("v_and_b32 v17, 1, v6")
        A("v_lshrrev_b32 v18, 1, v6")
        A("v_lshl_add_u32 v19, v17, 3, v18")
        A("v_xor_b32 v17, v17, v18")
        A("v_xor_b32 v17, v17, v5")
        A("v_lshlrev_b32 v19, 7, v19")
        A("v_lshl_add_u32 v19, v17, 4, v19")
        A("s_mul_i32 s57, s52, 10240")
        A(f"s_add_u32 s57, s57, {BUF}")
        AB = 240; BB = 246
        A(f"v_add_u32 v{AB}, s57, v19")
        A(f"v_xor_b32 v{AB+1}, 64, v{AB}")
    A("v_and_b32 v18, 7, v0")
    A("v_xor_b32 v18, v18, v5")
    A("v_lshlrev_b32 v17, 7, v6")
    A("s_lshl_b32 s57, s53, 13")
    A(f"s_add_u32 s57, s57, {ASZ+BUF}")
    A("v_add_u32 v17, s57, v17")
    A(f"v_lshl_add_u32 v{BB}, v18, 4, v17")
    A(f"v_xor_b32 v{BB+1}, 64, v{BB}")
    for b in (1, 2):
        for i in range(2):
            A(f"v_add_u32 v{AB+2*b+i}, {b*STG}, v{AB+i}")
            A(f"v_add_u32 v{BB+2*b+i}, {b*STG}, v{BB+i}")
    for r in range(MT * NT * 4):
        A(f"v_mov_b32 v{ACC+r}, 0")
    fA = lambda st, m: FRAG + st * (MT + NT) * 4 + m * 4
    fB = lambda st, n: FRAG + st * (MT + NT) * 4 + MT * 4 + n * 4
    accr = lambda m, n: ACC + (m * NT + n) * 4
    def reads(stage, kk):
        b = stage % 3; st = kk
        out = []
        for n in range(NT):
            out.append(f"ds_read_b128 {vr(fB(st,n),4)}, v{BB+2*b+kk} offset:{n*2048}")
        for m in range(MT):
            if isF:
                for h in range(2):
                    out.append(f"ds_read_b64_tr_b16 {vr(fA(st,m)+2*h,2)}, v{AB+2*b+(m&1)} offset:{(32*kk+4*h)*448 + m*32}")
            else:
                out.append(f"ds_read_b128 {vr(fA(st,m),4)}, v{AB+2*b+kk} offset:{m*2048}")
        return out
    def mfmas(st):
        return [f"v_mfma_f32_16x16x32_bf16 {vr(accr(m,n),4)}, {vr(fA(st,m),4)}, {vr(fB(st,n),4)}, {vr(accr(m,n),4)}"
                for m in range(MT) for n in range(NT)]
    vm = VM(A)
    A(f"v_mov_b32 v15, {OOB}")
    A("v_mov_b32 v26, 0")
    A("v_lshlrev_b32 v2, 2, v0")
    Lsk = A.label("sk")
    if isF:
        srd(A, 40, 24, D * DFF * 2)
        divc(A, 7, 0, 28, 64)
        A("v_mul_u32_u24 v8, 28, v7")
        A("v_sub_u32 v8, v0, v8")
        A("v_min_u32 v7, 1, v7")
        A("s_mov_b32 s57, 34560")
        A("v_mul_lo_u32 v12, v7, s57")
        A("v_lshl_add_u32 v12, v8, 4, v12")
        A("s_mul_i32 s57, s50, 138240")
        A("s_mul_i32 s58, s53, 69120")
        A("s_add_u32 s57, s57, s58")
        A("s_lshl_b32 s58, s54, 5")
        A("s_add_u32 s57, s57, s58")
        A("s_lshl_b32 s59, s51, 3")
        A("s_lshl_b32 s58, s50, 7")
        A("s_add_u32 s59, s59, s58")
        A("s_add_u32 s59, s59, 64")
        A("s_lshl_b32 s58, s48, 1")
        A("s_add_u32 s63, s59, s58")
        A("s_mul_i32 s59, s63, 1280")
        A("s_barrier")
        for r in range(2):
            for i in range(5): A(f"buffer_load_dword v{80+5*r+i}, v2, s[36:39], s59 offen offset:{256*i}")
            A("s_add_u32 s59, s59, 1280")
        A("global_load_dwordx2 v[28:29], v26, s[30:31] sc1")
        A("s_cmp_lg_u32 s52, 0")
        A(f"s_cbranch_scc1 {Lsk}")
        for r in range(10):
            A(f"buffer_load_dwordx4 v[{40+4*r}:{43+4*r}], v12, s[40:43], s57 offen")
            A("s_add_u32 s57, s57, 3456")
        A("s_waitcnt vmcnt(0)")
        for c in range(4):
            A(f"v_lshlrev_b32 v{108+2*c}, 16, v{40+c}")
            A(f"v_and_b32 v{109+2*c}, 0xffff0000, v{40+c}")
        for r in range(1, 10):
            for c in range(4):
                A(f"v_lshlrev_b32 v116, 16, v{40+4*r+c}")
                A(f"v_and_b32 v117, 0xffff0000, v{40+4*r+c}")
                A(f"v_add_f32 v{108+2*c}, v{108+2*c}, v116")
                A(f"v_add_f32 v{109+2*c}, v{109+2*c}, v117")
        A("s_lshl_b32 s57, s53, 11")
        A("v_lshlrev_b32 v12, 5, v0")
        A("v_add_u32 v12, s57, v12")
        A(f"ds_write_b128 v12, v[108:111] offset:{K1F_RED}")
        A(f"ds_write_b128 v12, v[112:115] offset:{K1F_RED+16}")
        A("v_lshlrev_b32 v13, 4, v0")
        A("v_add_u32 v12, s57, v13")
        A("s_waitcnt lgkmcnt(0)")
        A(f"ds_read_b128 v[108:111], v12 offset:{K1F_RED}")
        A(f"ds_read_b128 v[112:115], v12 offset:{K1F_RED+896}")
        A("v_cmp_gt_u32 vcc, 56, v0")
        A("v_cndmask_b32 v13, v15, v13, vcc")
        A("s_lshl_b32 s57, s50, 1")
        A("s_add_u32 s57, s57, s53")
        A("s_mul_i32 s57, s57, 1792")
        A("s_mul_i32 s58, s51, 224")
        A("s_add_u32 s57, s57, s58")
        A("s_lshl_b32 s57, s57, 2")
        A(f"s_add_u32 s57, s57, {WS_WSP}")
        A("s_waitcnt lgkmcnt(0)")
        A("v_pk_add_f32 v[108:109], v[108:109], v[112:113]")
        A("v_pk_add_f32 v[110:111], v[110:111], v[114:115]")
        A("buffer_store_dwordx4 v[108:111], v13, s[44:47], s57 offen sc1")
        A(f"{Lsk}:")
        A("s_waitcnt vmcnt(1)")
        stats_compute(A, vm, 80)
    else:
        A("s_cmp_lt_u32 s48, 2")
        A("s_cselect_b32 s64, s10, s12")
        A("s_cselect_b32 s65, s11, s13")
        srd(A, 40, 64, D * D * 2)
        A("s_mul_i32 s57, s51, 80")
        A("s_mul_i32 s58, s50, 5")
        A("s_add_u32 s57, s57, s58")
        A("s_mul_i32 s58, s53, 3")
        A("s_add_u32 s72, s57, s58")
        A("s_lshl_b32 s59, s51, 3")
        A("s_lshl_b32 s58, s50, 7")
        A("s_add_u32 s59, s59, s58")
        A("s_lshl_b32 s58, s48, 1")
        A("s_add_u32 s63, s59, s58")
        A("s_mul_i32 s59, s63, 1280")
        A("s_barrier")
        for r in range(2):
            for i in range(5): A(f"buffer_load_dword v{208+5*r+i}, v2, s[36:39], s59 offen offset:{256*i}")
            A("s_add_u32 s59, s59, 1280")
        A("s_mul_i32 s57, s72, 1280")
        for r in range(3):
            for i in range(5): A(f"buffer_load_dword v{72+5*r+i}, v2, s[40:43], s57 offen offset:{256*i}")
            A("s_add_u32 s57, s57, 1280")
        A("global_load_dwordx2 v[28:29], v26, s[30:31] sc1")
    next(side)
    if not isF:
        A("s_waitcnt vmcnt(0)")
        stats_compute(A, vm, 208)
        A("s_mov_b32 s57, 0x3f803f80")
        for r in range(3): A(f"v_mov_b32 v{108+r}, 0")
        for i in range(5):
            for r in range(3): A(f"v_dot2_f32_bf16 v{108+r}, v{72+5*r+i}, s57, v{108+r}")
        A("s_nop 3")
        wave_sum(A, [108, 109, 110])
        A("v_cmp_eq_u32 vcc, 63, v0")
        A("v_cndmask_b32 v12, v15, v26, vcc")
        A("s_lshl_b32 s57, s72, 1")
        A("s_add_u32 s57, s57, s52")
        A("s_lshl_b32 s57, s57, 2")
        A(f"s_add_u32 s57, s57, {WS_WSYO}")
        A("buffer_store_dword v108, v12, s[44:47], s57 offen sc1")
        A("buffer_store_dword v109, v12, s[44:47], s57 offen offset:8 sc1")
        A("s_cmp_eq_u32 s53, 0")
        A(f"s_cselect_b32 s57, s57, {OOB}")
        A("buffer_store_dword v110, v12, s[44:47], s57 offen offset:16 sc1")
    A("v_cmp_eq_u32 vcc, 0, v0")
    A("v_cndmask_b32 v16, v15, v26, vcc")
    A("s_lshl_b32 s57, s49, 7")
    A("s_lshl_b32 s58, s50, 3")
    A("s_add_u32 s57, s57, s58")
    A("s_add_u32 s57, s57, s51")
    A("s_lshl_b32 s57, s57, 7")
    A("s_lshl_b32 s58, s48, 3")
    A("s_add_u32 s57, s57, s58")
    A(f"s_add_u32 s76, s57, {WS_F3}")
    stamp(A, 1)
    A("s_barrier")
    stamp(A, 2)
    for r in reads(0, 0): A(r)
    PRE = 3
    for j in range(10):
        A("s_waitcnt lgkmcnt(0)")
        mf = mfmas(0); rd = reads(j, 1)
        for i, m in enumerate(mf):
            A(m)
            if i < len(rd): A(rd[i])
        A("s_waitcnt lgkmcnt(0)")
        mf = mfmas(1)
        if j < 9:
            rd = reads(j + 1, 0)
            for m in mf[:PRE]: A(m)
            if j == 1:
                A("s_waitcnt vmcnt(0)")
                Lp = A.label("np"); Lx = A.label("npx")
                A("s_mov_b32 s58, 200000")
                A(f"{Lp}:")
                A("v_readfirstlane_b32 s57, v28")
                A("s_cmp_lg_u32 s57, 0")
                A(f"s_cbranch_scc1 {Lx}")
                A("s_sleep 1")
                A("global_load_dwordx2 v[28:29], v26, s[30:31] sc1")
                A("s_waitcnt vmcnt(0)")
                A("s_sub_u32 s58, s58, 1")
                A("s_cmp_lg_u32 s58, 0")
                A(f"s_cbranch_scc1 {Lp}")
                A(f"{Lx}:")
                A("buffer_store_dwordx2 v[28:29], v16, s[44:47], s76 offen sc1")
            A("s_barrier")
            for i, m in enumerate(mf[PRE:]):
                if i < len(rd): A(rd[i])
                A(m)
        else:
            for m in mf: A(m)
    stamp(A, 3)
    A("s_waitcnt vmcnt(0)")
    A("s_barrier")
    stamp(A, 4)
    if isF: k1F_epilogue(A, ACC)
    else: k1Y_epilogue(A, ACC)

def frag_store_plan(ntiles, parity):
    plan = []
    t = 0
    if parity == 1:
        plan.append(("single", [0], 0, 1)); t = 1
    while t + 1 < ntiles:
        plan.append(("pair", [t, t + 1], (t + parity) // 2, 0)); t += 2
    if t < ntiles:
        plan.append(("single", [t], (t + parity) // 2, 0))
    return plan

def k1F_epilogue(A, ACC):
    A("s_lshl_b32 s57, s53, 10")
    A("v_lshlrev_b32 v17, 6, v6")
    A("v_add_u32 v17, s57, v17")
    for n in range(4):
        A(f"ds_read_b64 v[{32+2*n}:{33+2*n}], v17 offset:{K1_STATS+16*n}")
    A("s_mul_i32 s57, s52, 448")
    A("v_lshlrev_b32 v18, 4, v5")
    A("v_add_u32 v18, s57, v18")
    for m in range(7):
        A(f"ds_read_b128 v[{40+4*m}:{43+4*m}], v18 offset:{K1_WS+64*m}")
    A("s_mul_i32 s57, s52, 7")
    A("s_add_u32 s57, s57, s54")
    A("s_and_b32 s64, s57, 1")
    A("s_lshr_b32 s57, s57, 1")
    A("s_mul_i32 s58, s50, 54")
    A("s_add_u32 s57, s57, s58")
    A("s_lshl_b32 s57, s57, 3")
    A("s_lshl_b32 s58, s53, 2")
    A("s_add_u32 s57, s57, s58")
    A("s_lshl_b32 s57, s57, 10")
    A(f"s_add_u32 s65, s57, {WS_HF}")
    A("v_lshlrev_b32 v17, 4, v0")
    A("s_and_b32 s57, s51, s52")
    A("s_and_b32 s57, s57, 1")
    A("s_cmp_eq_u32 s57, 0")
    A(f"s_cselect_b32 s57, 0, {OOB}")
    A("v_add_u32 v19, s57, v17")
    A("s_waitcnt lgkmcnt(0)")
    def conv(m, n, dst):
        a = ACC + (m * 4 + n) * 4
        w = 40 + 4 * m; st = 32 + 2 * n
        for hh in range(2):
            A(f"v_pk_fma_f32 {vr(a+2*hh,2)}, {vr(w+2*hh,2)}, {vr(st,2)}, {vr(a+2*hh,2)} op_sel:[0,0,0] op_sel_hi:[1,0,1] neg_lo:[1,0,0] neg_hi:[1,0,0]")
        for hh in range(2):
            A(f"v_pk_mul_f32 {vr(a+2*hh,2)}, {vr(a+2*hh,2)}, {vr(st,2)} op_sel:[0,1] op_sel_hi:[1,1]")
        for hh in range(2):
            A(f"v_cvt_pk_bf16_f32 v{dst+hh}, v{a+2*hh}, v{a+2*hh+1}")
        for hh in range(2):
            A(f"v_pk_max_i16 v{dst+hh}, v{dst+hh}, 0")
    L1 = A.label("ep1"); L2 = A.label("epx")
    A("s_cmp_lg_u32 s64, 0")
    A(f"s_cbranch_scc1 {L1}")
    for parity in (0, 1):
        if parity == 1: A(f"{L1}:")
        plan = frag_store_plan(7, parity)
        if parity == 1:
            k, tl, ks, _ = plan.pop()
            plan += [("single", [tl[0]], ks, 0), ("single", [tl[1]], ks, 1)]
        cnt = 0
        for kind, tl, ks, half in plan:
            A(f"s_add_u32 s57, s65, {ks*8192}")
            for n in range(4):
                t = 72 + 4 * (cnt % 4); cnt += 1
                if kind == "pair":
                    conv(tl[0], n, t); conv(tl[1], n, t + 2)
                    A(f"buffer_store_dwordx4 v[{t}:{t+3}], v17, s[44:47], s57 offen offset:{1024*n} sc1")
                else:
                    conv(tl[0], n, t)
                    vo = 19 if tl[0] == 6 else 17
                    if "nosingle" not in DBG: A(f"buffer_store_dwordx2 v[{t}:{t+1}], v{vo}, s[44:47], s57 offen offset:{1024*n + 8*half} sc1")
        if parity == 0: A(f"s_branch {L2}")
    A(f"{L2}:")
    for i in (5, 6, 7): stamp(A, i)

def k1Y_epilogue(A, ACC):
    ST = 32; WSR = 40; P = 208; TB = 60
    A("s_lshl_b32 s57, s53, 10")
    A("v_lshlrev_b32 v17, 6, v6")
    A("v_add_u32 v17, s57, v17")
    for n in range(4):
        A(f"ds_read_b64 v[{ST+2*n}:{ST+2*n+1}], v17 offset:{K1_STATS+16*n}")
    A("v_mov_b32 v17, 0")
    A(f"ds_read_b64 v[30:31], v17 offset:{K1_NONCE}")
    A("s_mul_i32 s57, s52, 320")
    A("v_lshlrev_b32 v18, 4, v5")
    A("v_add_u32 v18, s57, v18")
    for m in range(5):
        A(f"ds_read_b128 v[{WSR+4*m}:{WSR+4*m+3}], v18 offset:{K1_WS+64*m}")
    A("s_mul_i32 s57, s52, 11520")
    A("v_mul_u32_u24 v19, 576, v5")
    A("v_add_u32 v19, s57, v19")
    A("v_lshl_add_u32 v20, v6, 3, v19")
    A("s_mul_i32 s57, s53, 640")
    A("s_mul_i32 s58, s52, 320")
    A("s_add_u32 s57, s57, s58")
    A(f"s_add_u32 s57, s57, {K1_LE}")
    A("v_lshlrev_b32 v21, 4, v5")
    A("v_add_u32 v21, s57, v21")
    A("v_lshlrev_b32 v22, 4, v0")
    A(f"v_add_u32 v22, {K1_LE+2560}, v22")
    A("v_cmp_eq_u32 vcc, 15, v6")
    A("v_cndmask_b32 v22, v22, v21, vcc")
    def load_tab1(m, base):
        for q in range(2):
            o = K1Y_T + (8 * m + q) * 288
            b = base + 12 * q
            A(f"ds_read_b128 v[{b}:{b+3}], v19 offset:{o+272}")
            A(f"ds_read_b64 v[{b+4}:{b+5}], v19 offset:{o+8}")
            A(f"ds_read_b64 v[{b+6}:{b+7}], v19 offset:{o+16}")
            A(f"ds_read_b64 v[{b+8}:{b+9}], v19 offset:{o+32}")
            A(f"ds_read_b64 v[{b+10}:{b+11}], v19 offset:{o+64}")
    load_tab1(0, TB)
    TMP = 108
    for m in range(5):
        base = TB + 24 * (m & 1)
        A("s_waitcnt lgkmcnt(0)")
        if m < 4: load_tab1(m + 1, TB + 24 * ((m + 1) & 1))
        for n in range(4):
            for q in range(2):
                u = ACC + (m * 4 + n) * 4 + 2 * q
                w = WSR + 4 * m + 2 * q
                st = ST + 2 * n
                cf = base + 12 * q + 2
                t0 = TMP + 4 * q
                A(f"v_pk_fma_f32 {vr(t0,2)}, {vr(w,2)}, {vr(st,2)}, {vr(u,2)} op_sel:[0,0,0] op_sel_hi:[1,0,1] neg_lo:[1,0,0] neg_hi:[1,0,0]")
                A(f"v_pk_mul_f32 {vr(t0+2,2)}, {vr(cf,2)}, {vr(st,2)} op_sel:[0,1] op_sel_hi:[1,1]")
                cmul(A, u, t0 + 2, t0)
        for n in range(1, 4):
            for q in range(2):
                a = base + 12 * q
                e = P + 4 * m + 2 * q
                t0 = TMP + 4 * q
                prev = (ACC + (m * 4) * 4 + 2 * q) if n == 1 else (t0 if n == 3 else t0 + 2)
                dst = e if n == 3 else (t0 + 2 if n == 1 else t0)
                u = ACC + (m * 4 + n) * 4 + 2 * q
                cmul_add(A, dst, a, prev, u)
        for ki, k in enumerate((1, 2, 4, 8)):
            for q in range(2):
                e = P + 4 * m + 2 * q
                t0 = TMP + 4 * q
                A(f"v_mov_b32_dpp v{t0}, v{e} row_shr:{k} row_mask:0xf bank_mask:0xf bound_ctrl:0")
                A(f"v_mov_b32_dpp v{t0+1}, v{e+1} row_shr:{k} row_mask:0xf bank_mask:0xf bound_ctrl:0")
            for q in range(2):
                e = P + 4 * m + 2 * q
                t0 = TMP + 4 * q
                cmul_add(A, e, base + 12 * q + 4 + 2 * ki, t0, e)
        A(f"ds_write_b128 v22, v[{P+4*m}:{P+4*m+3}] offset:{64*m}")
    A("s_waitcnt lgkmcnt(0)")
    stamp(A, 5)
    A("s_barrier")
    TMP = 112
    for m in range(5):
        for q in range(2):
            o = K1Y_T + (8 * m + q) * 288; b = 32 + 8 * m + 4 * q
            A(f"ds_read_b64 v[{b}:{b+1}], v20 offset:{o}")
            A(f"ds_read_b64 v[{b+2}:{b+3}], v19 offset:{o+272}")
    A("s_mul_i32 s57, s51, 5")
    A("s_lshl_b32 s58, s52, 1")
    A("s_add_u32 s57, s57, s58")
    A("s_mul_i32 s58, s50, 40")
    A("s_add_u32 s57, s57, s58")
    A("s_lshl_b32 s57, s57, 3")
    A("s_lshl_b32 s58, s53, 2")
    A("s_add_u32 s57, s57, s58")
    A("s_lshl_b32 s57, s57, 10")
    A(f"s_add_u32 s65, s57, {WS_H1}")
    A("v_lshlrev_b32 v27, 4, v0")
    for m in range(5):
        for r in range(4):
            A(f"v_mov_b32_dpp v{92+4*m+r}, v{P+4*m+r} row_shr:1 row_mask:0xf bank_mask:0xf bound_ctrl:0")
    A("s_waitcnt lgkmcnt(0)")
    A("s_barrier")
    stamp(A, 6)
    for m in range(5):
        A(f"ds_read_b128 v[{72+4*m}:{75+4*m}], v21 offset:{1280+64*m}")
    A("s_waitcnt lgkmcnt(0)")
    for m in range(5):
        for q in range(2):
            cmul_add(A, 92 + 4 * m + 2 * q, 32 + 8 * m + 4 * q, 72 + 4 * m + 2 * q, 92 + 4 * m + 2 * q)
    for n in range(4):
        for m in range(5):
            for q in range(2):
                u = ACC + (m * 4 + n) * 4 + 2 * q
                prev = (92 + 4 * m + 2 * q) if n == 0 else u - 4
                cmul_add(A, u, 32 + 8 * m + 4 * q + 2, prev, u)
    stamp(A, 7)
    L1 = A.label("ey1"); L2 = A.label("eyx")
    A("s_cmp_lg_u32 s52, 0")
    A(f"s_cbranch_scc1 {L1}")
    for parity in (0, 1):
        if parity == 1: A(f"{L1}:")
        cnt = 0
        for kind, tl, ks, half in frag_store_plan(5, parity):
            A(f"s_add_u32 s57, s65, {ks*8192}")
            for n in range(4):
                t = 32 + 4 * (cnt % 8); cnt += 1
                for x, m in enumerate(tl):
                    u = ACC + (m * 4 + n) * 4
                    A(f"v_cvt_pk_bf16_f32 v{t+2*x}, v{u}, v{u+1}")
                    A(f"v_cvt_pk_bf16_f32 v{t+2*x+1}, v{u+2}, v{u+3}")
                if kind == "pair":
                    A(f"buffer_store_dwordx4 v[{t}:{t+3}], v27, s[44:47], s57 offen offset:{1024*n} sc1")
                else:
                    if "nosingle" not in DBG: A(f"buffer_store_dwordx2 v[{t}:{t+1}], v27, s[44:47], s57 offen offset:{1024*n + 8*half} sc1")
        if parity == 0: A(f"s_branch {L2}")
    A(f"{L2}:")

K2_NR = 7
K2_R0 = 26112
K2_BOFF = K2_R0 + K2_NR * 10240
K2_NST = 47
NSF = 27

def p2_ids(A):
    A("s_lshl_b32 s57, s49, 7")
    A("s_lshl_b32 s58, s50, 3")
    A("s_add_u32 s57, s57, s58")
    A("s_add_u32 s57, s57, s51")
    A("s_lshl_b32 s57, s57, 7")
    A("s_lshl_b32 s58, s48, 3")
    A("s_add_u32 s57, s57, s58")
    A(f"s_add_u32 s77, s57, {WS_F2}")
    A("s_mov_b32 s78, s49")
    A("s_and_b32 s57, s2, 3")
    A("s_bfe_u32 s58, s2, 0x10002")
    A("s_lshr_b32 s59, s35, 2")
    A("s_lshl_b32 s50, s57, 2")
    A("s_lshr_b32 s57, s59, 1")
    A("s_add_u32 s50, s50, s57")
    A("s_and_b32 s49, s59, 1")
    A("s_lshl_b32 s51, s58, 2")
    A("s_and_b32 s57, s35, 3")
    A("s_add_u32 s51, s51, s57")
    A("v_lshlrev_b32 v10, 4, v0")

def spin_flags(A, loads, regs, vm=None, iters=400000, first_wait=None):
    Lp = A.label("sp"); Lx = A.label("spx")
    A(f"s_mov_b32 s70, {iters}")
    Lc = A.label("spc")
    if first_wait:
        first_wait()
        A(f"s_branch {Lc}")
    A(f"{Lp}:")
    for l in loads: A(l)
    A("s_waitcnt vmcnt(0)")
    A(f"{Lc}:")
    for i, r in enumerate(regs):
        A(f"v_cmp_ne_u64 {'vcc' if i == 0 else 's[72:73]'}, v[{r}:{r+1}], v[28:29]")
        if i: A("s_or_b64 vcc, vcc, s[72:73]")
    A("s_cmp_eq_u64 vcc, 0")
    A(f"s_cbranch_scc1 {Lx}")
    A("s_sleep 1")
    A("s_sub_u32 s70, s70, 1")
    A("s_cmp_lg_u32 s70, 0")
    A(f"s_cbranch_scc1 {Lp}")
    A(f"{Lx}:")
    if vm and not first_wait: vm.ops = []

def p2_loaders(A):
    stamp(A, 0)
    p2_ids(A)
    A("s_mul_i32 s57, s53, 5120")
    A(f"s_mul_i32 s62, s51, {20*10240}")
    A("s_add_u32 s62, s62, s57")
    A(f"s_add_u32 s62, s62, {WS_CP}")
    A(f"s_mul_i32 s63, s51, {27*10240}")
    A("s_add_u32 s63, s63, s57")
    A(f"s_add_u32 s63, s63, {WS_W2P}")
    A(f"s_add_u32 s57, s57, {K2_R0}")
    A("s_lshl_b32 s58, s53, 13")
    A("s_lshl_b32 s59, s49, 12")
    A("s_add_u32 s58, s58, s59")
    A(f"s_mul_i32 s64, s50, {40*8192}")
    A("s_add_u32 s64, s64, s58")
    A(f"s_add_u32 s64, s64, {WS_H1}")
    A(f"s_mul_i32 s66, s50, {54*8192}")
    A("s_add_u32 s66, s66, s58")
    A(f"s_add_u32 s66, s66, {WS_HF}")
    A("s_lshl_b32 s59, s53, 12")
    A(f"s_add_u32 s59, s59, {K2_BOFF}")
    A("s_cmp_lg_u32 s52, 0")
    A("s_cselect_b32 s62, s64, s62")
    A("s_cselect_b32 s63, s66, s63")
    A("s_cselect_b32 s58, s59, s57")
    A("s_cbranch_scc0 p2_lA")
    p2_loader(A, True)
    stamps_flush(A, 6, 1)
    A("s_branch k1_end")
    A("p2_lA:")
    p2_loader(A, False)
    stamps_flush(A, 6, 1)

def p2_loader(A, isB):
    vm = VM(A)
    nst = K2_NST
    nI = 4 if isB else 5
    sstr = 16384 if isB else 10240
    lstr = 8192 if isB else 10240
    if not isB:
        A("v_lshlrev_b32 v30, 4, v0")
        A(f"v_add_u32 v30, {WS_F1}, v30")
        wl = lambda o: [f"buffer_load_dwordx4 v[{32+4*k}:{35+4*k}], v30, s[44:47], 0 offen offset:{o + 1024*k} sc1" if o + 1024*k < 4096 else
                        f"buffer_load_dwordx4 v[{32+4*k}:{35+4*k}], v31, s[44:47], 0 offen offset:{o + 1024*k - 4096} sc1" for k in range(4)]
        A("v_add_u32 v31, 4096, v30")
    else:
        A("v_bfe_u32 v30, v0, 2, 3")
        A("v_and_b32 v31, 3, v0")
        A("v_lshlrev_b32 v30, 7, v30")
        A("v_lshl_add_u32 v30, v31, 3, v30")
        A("s_lshl_b32 s64, s50, 10")
        A(f"s_add_u32 s64, s64, {WS_F2}")
        A(f"s_add_u32 s66, s64, {128*128}")
        spin_flags(A, ["buffer_load_dwordx2 v[32:33], v30, s[44:47], s66 offen sc1"], [32])
    def dma(st):
        L2 = ["buffer_load_dwordx2 v[32:33], v30, s[44:47], s64 offen sc1"] if isB else wl(4096)
        R2 = [32] if isB else [32 + 2 * k for k in range(8)]
        if st == NSF - 3:
            for l in L2: vm(l, "f2")
        if st == NSF:
            spin_flags(A, L2, R2, vm, first_wait=lambda: vm.wait("f2"))
        bo = (st % K2_NR) * lstr
        src, so = (63, st * sstr) if st < NSF else (62, (st - NSF) * sstr)
        for q in range(nI):
            A(f"s_add_u32 m0, s58, {bo + 1024*q}")
            A(f"s_add_u32 s65, s{src}, {so + 1024*q}")
            vm("buffer_load_dwordx4 v10, s[44:47], s65 offen sc1 lds", f"d{st}")
    stamp(A, 1)
    n0 = 3 if isB else K2_NR
    if isB:
        for st in range(n0): dma(st)
    else:
        Lb = A.label("nox"); Lc = A.label("late"); Ld = A.label("done")
        A("s_cmp_lg_u32 s78, 0")
        A(f"s_cbranch_scc1 {Lb}")
        spin_flags(A, wl(0), [32 + 2 * k for k in range(8)], iters=2)
        A("s_cmp_eq_u32 s70, 0")
        A(f"s_cbranch_scc1 {Lc}")
        for st in range(n0): dma(st)
        A("s_barrier")
        A("s_barrier")
        A(f"s_branch {Ld}")
        A(f"{Lc}:")
        A("s_barrier")
        A("s_barrier")
        A(f"{Lb}:")
        spin_flags(A, wl(0), [32 + 2 * k for k in range(8)])
        vm.ops = []
        for st in range(n0): dma(st)
        A(f"{Ld}:")
    vm.wait("d0")
    stamp(A, 2)
    A("s_barrier")
    vm.wait("d1")
    A("s_barrier")
    for st in range(n0, K2_NR): dma(st)
    for j in range(nst - 2):
        vm.wait(f"d{j+2}")
        A("s_barrier")
        if j + K2_NR < nst: dma(j + K2_NR)
    for i in (3, 4, 5): stamp(A, i)

def p2_compute(A):
    stamp(A, 0)
    A("v_mov_b32 v26, 0")
    A(f"ds_read_b64 v[22:23], v26 offset:{K1_NONCE}")
    p2_ids(A)
    srd(A, 72, 4, T * D * 2)
    srd(A, 84 if not STAMPS else 68, 28, T * D * 4)
    A("v_cmp_eq_u32 vcc, 0, v0")
    A(f"v_mov_b32 v24, {OOB}")
    A("v_cndmask_b32 v24, v24, v26, vcc")
    L = A.label("nof")
    A("s_cmp_eq_u32 s78, 0")
    A(f"s_cbranch_scc1 {L}")
    A("s_waitcnt vmcnt(0) lgkmcnt(0)")
    A("buffer_store_dwordx2 v[22:23], v24, s[44:47], s77 offen sc1")
    A(f"{L}:")
    FRAG = 112
    ACCY = 28; ACCF = 48; XR = 68; SR = 78; DR = 82; PR = 92
    nst = K2_NST
    A("s_lshl_b32 s57, s50, 7")
    A("s_lshl_b32 s58, s49, 6")
    A("s_add_u32 s57, s57, s58")
    A("s_add_u32 s57, s57, s48")
    A("v_lshl_add_u32 v17, v6, 2, s57")
    A("v_mul_u32_u24 v18, 1280, v17")
    A("v_lshl_add_u32 v18, v5, 3, v18")
    A("s_mul_i32 s58, s51, 160")
    for m in range(5):
        A(f"buffer_load_dwordx2 v[{XR+2*m}:{XR+2*m+1}], v18, s[72:75], s58 offen offset:{32*m}")
    A("v_lshlrev_b32 v25, 4, v17")
    A(f"s_mov_b32 s62, {WS_STATS}")
    A("v_lshlrev_b32 v26, 3, v5")
    A("v_add_u32 v26, s58, v26")
    for m in range(5):
        A(f"global_load_dwordx2 v[{DR+2*m}:{DR+2*m+1}], v26, s[20:21] offset:{32*m}")
    A("s_lshl_b32 s57, s48, 10")
    A(f"s_add_u32 s57, s57, {K2_BOFF}")
    A("v_add_u32 v20, s57, v10")
    A(f"v_add_u32 v21, {K2_R0 + 3*10240}, v10")
    A(f"v_add_u32 v19, {K2_R0}, v10")
    for r in range(40):
        A(f"v_mov_b32 v{ACCY+r}, 0")
    plist = []
    P = plist.append
    mm, rs, sd = SR, SR + 1, SR + 2
    for m in range(5):
        x = XR + 2 * m; t = 2; du = 12; p = PR + 4 * m
        for hh in range(2):
            P(f"v_lshlrev_b32 v{t+2*hh}, 16, v{x+hh}")
            P(f"v_and_b32 v{t+2*hh+1}, 0xffff0000, v{x+hh}")
        for r in range(4): P(f"v_sub_f32 v{t+r}, v{t+r}, v{mm}")
        for hh in range(2):
            P(f"v_cvt_pk_bf16_f32 v{t+4+hh}, v{t+2*hh}, v{t+2*hh+1}")
        for hh in range(2):
            P(f"v_lshlrev_b32 v{t+2*hh}, 16, v{t+4+hh}")
            P(f"v_and_b32 v{t+2*hh+1}, 0xffff0000, v{t+4+hh}")
        for r in range(4): P(f"v_mul_f32 v{t+4+r}, v{t+r}, v{rs}")
        for r in range(4): P(f"v_fma_f32 v{t+r}, -v{t+4+r}, v{sd}, v{t+r}")
        for r in range(4): P(f"v_fma_f32 v{t+4+r}, v{t+r}, v{rs}, v{t+4+r}")
        for hh in range(2):
            P(f"v_cvt_pk_bf16_f32 v{t+hh}, v{t+4+2*hh}, v{t+4+2*hh+1}")
        for hh in range(2):
            P(f"v_lshlrev_b32 v{t+4+2*hh}, 16, v{t+hh}")
            P(f"v_and_b32 v{t+4+2*hh+1}, 0xffff0000, v{t+hh}")
        for hh in range(2):
            P(f"v_lshlrev_b32 v{du+2*hh}, 16, v{DR+2*m+hh}")
            P(f"v_and_b32 v{du+2*hh+1}, 0xffff0000, v{DR+2*m+hh}")
        for r in range(4): P(f"v_mul_f32 v{t+4+r}, v{t+4+r}, v{du+r}")
        for hh in range(2):
            P(f"v_cvt_pk_bf16_f32 v{t+hh}, v{t+4+2*hh}, v{t+4+2*hh+1}")
        for hh in range(2):
            P(f"v_lshlrev_b32 v{p+2*hh}, 16, v{t+hh}")
            P(f"v_and_b32 v{p+2*hh+1}, 0xffff0000, v{t+hh}")
    glist = []
    G = glist.append
    for m in range(5):
        a = ACCF + 4 * m; t = 2
        for hh in range(2):
            G(f"v_cvt_pk_bf16_f32 v{t+hh}, v{a+2*hh}, v{a+2*hh+1}")
        for hh in range(2):
            G(f"v_lshlrev_b32 v{a+2*hh}, 16, v{t+hh}")
            G(f"v_and_b32 v{a+2*hh+1}, 0xffff0000, v{t+hh}")
        for r in range(4): G(f"v_mul_f32 v{t+r}, {hexf(-LOG2E)}, v{a+r}")
        for r in range(4): G(f"v_exp_f32 v{t+r}, v{t+r}")
        for r in range(4): G(f"v_add_f32 v{t+r}, 1.0, v{t+r}")
        for r in range(4): G(f"v_rcp_f32 v{t+r}, v{t+r}")
        for r in range(4): G(f"v_mul_f32 v{t+r}, v{t+r}, v{a+r}")
        for hh in range(2):
            G(f"v_cvt_pk_bf16_f32 v{t+4+hh}, v{t+2*hh}, v{t+2*hh+1}")
        for hh in range(2):
            G(f"v_lshlrev_b32 v{a+2*hh}, 16, v{t+4+hh}")
            G(f"v_and_b32 v{a+2*hh+1}, 0xffff0000, v{t+4+hh}")
    fset = lambda stage, kk: FRAG + ((stage % 3) * 2 + kk) * 24
    def reads(stage, kk):
        sl = stage % K2_NR
        ra = 21 if sl >= 3 else 19
        oa = (sl - 3 if sl >= 3 else sl) * 10240
        f = fset(stage, kk)
        out = [f"ds_read_b128 {vr(f+20,4)}, v20 offset:{sl*8192 + kk*4096}"]
        out += [f"ds_read_b128 {vr(f+4*m,4)}, v{ra} offset:{oa + kk*5120 + m*1024}" for m in range(5)]
        return out
    def mfmas(stage, kk):
        f = fset(stage, kk); acc = ACCF if stage < NSF else ACCY
        return [f"v_mfma_f32_16x16x32_bf16 {vr(acc+4*m,4)}, {vr(f+4*m,4)}, {vr(f+20,4)}, {vr(acc+4*m,4)}" for m in range(5)]
    stamp(A, 1)
    A("s_barrier")
    stamp(A, 2)
    A(f"buffer_load_dwordx4 v[{SR}:{SR+3}], v25, s[44:47], s62 offen sc1")
    for kk in range(2):
        for r in reads(0, kk): A(r)
    A("s_barrier")
    for kk in range(2):
        for r in reads(1, kk): A(r)
    for j in range(nst):
        A(f"s_waitcnt lgkmcnt({12 if j < nst - 1 else 0})")
        mf = mfmas(j, 0) + mfmas(j, 1)
        if j < nst - 2:
            for m in mf[:2]: A(m)
            if j == 8:
                A("s_waitcnt vmcnt(0)")
                L = A.label("noy")
                A("s_cmp_lg_u32 s78, 0")
                A(f"s_cbranch_scc1 {L}")
                A("buffer_store_dwordx2 v[22:23], v24, s[44:47], s77 offen sc1")
                A(f"{L}:")
            A("s_barrier")
            rd = reads(j + 2, 0) + reads(j + 2, 1)
            rest = mf[2:]
            for i, m in enumerate(rest):
                for r in rd[(i * 12) // 8: ((i + 1) * 12) // 8]: A(r)
                A(m)
                if j >= 8:
                    for _ in range(2):
                        if plist: A(plist.pop(0))
                        elif j >= NSF + 2 and glist: A(glist.pop(0))
        else:
            for m in mf: A(m)
    assert not plist and not glist
    stamp(A, 3)
    A("v_lshlrev_b32 v18, 1, v18")
    A("s_lshl_b32 s58, s58, 1")
    so = 84 if not STAMPS else 68
    for m in range(5):
        t = 112 + 4 * m
        for hh in range(2):
            A(f"v_pk_add_f32 {vr(PR+4*m+2*hh,2)}, {vr(ACCY+4*m+2*hh,2)}, {vr(PR+4*m+2*hh,2)}")
        for hh in range(2):
            A(f"v_lshlrev_b32 v{t+2*hh}, 16, v{XR+2*m+hh}")
            A(f"v_and_b32 v{t+2*hh+1}, 0xffff0000, v{XR+2*m+hh}")
        for hh in range(2):
            A(f"v_pk_mul_f32 {vr(PR+4*m+2*hh,2)}, {vr(PR+4*m+2*hh,2)}, {vr(ACCF+4*m+2*hh,2)}")
        for hh in range(2):
            A(f"v_pk_add_f32 {vr(t+2*hh,2)}, {vr(t+2*hh,2)}, {vr(PR+4*m+2*hh,2)}")
        A(f"buffer_store_dwordx4 v[{t}:{t+3}], v18, s[{so}:{so+3}], s58 offen offset:{64*m}")
    stamp(A, 4); stamp(A, 5)

HEADER = open("recurrent_scan__ssm_conv_s5__dense_activation_relu__prompt.s.ref").read().split("; @launch")[0]

def kd(name, vgpr=256):
    return f""".p2align 6
.amdhsa_kernel {name}
  .amdhsa_next_free_vgpr {vgpr}
  .amdhsa_next_free_sgpr 102
  .amdhsa_accum_offset {vgpr}
  .amdhsa_group_segment_fixed_size 0
  .amdhsa_kernarg_size 120
  .amdhsa_user_sgpr_count 2
  .amdhsa_user_sgpr_kernarg_segment_ptr 1
  .amdhsa_system_sgpr_workgroup_id_x 1
.end_amdhsa_kernel
"""

def build():
    out = HEADER
    out += f"; @launch kernel=k1_kernel grid=(256,1,1) block=(512,1,1) lds={K1_LDS}\n"
    out += '.amdgcn_target "amdgcn-amd-amdhsa--gfx950"\n.text\n'
    for name, fn in (("k1_kernel", kernel1),):
        A = Asm(); A.nlabel = 0 if name == "k1_kernel" else 1000
        fn(A)
        lines = fix_hazards(A.lines, verbose=True)
        out += f".globl {name}\n.p2align 8\n.type {name},@function\n"
        out += "\n".join(("    " + l if not l.endswith(":") else l) for l in lines) + "\n"
    out += '.section .rodata,"a"\n' + kd("k1_kernel")
    return out

if __name__ == "__main__":
    if len(sys.argv) > 2: STAMPS = True; DBG = sys.argv[2]
    dst = sys.argv[1] if len(sys.argv) > 1 else "recurrent_scan__ssm_conv_s5__dense_activation_relu__prompt.s"
    open(dst, "w").write(build())
    print("wrote", dst)
```

```python
import sys, struct
from asmlib import *

T, D, DFF = 2048, 640, 1728
WS_STATS = 0x000000
WS_E     = 0x010000
WS_WSP   = 0x0A0000
WS_WSYO  = 0x0E0000
WS_F3    = 0x0E8000
WS_F2    = 0x080000
WS_F1    = 0x090000
WS_CP    = 0x100000
WS_W2P   = 0x300000
WS_H1    = 0x600000
WS_HF    = 0xC00000
WS_S     = 0x1400000
WS_TS    = 0x1A00000
WS_SIZE  = 0x1B00000
OOB = 0x7ffffff0

import os
MAP = os.environ.get("MAP", "bp")
GI = int(os.environ.get("GI", 7))
STAMPS = False
DBG = "nopf"
def stamp(A, i):
    if STAMPS and i == 0:
        A("s_memrealtime s[96:97]")
    if STAMPS:
        A(f"s_memtime s[{80+2*i}:{81+2*i}]")
def stamps_flush(A, n, kidx, waitvm=True):
    if not STAMPS: return
    A("s_waitcnt lgkmcnt(0) vmcnt(0)" if waitvm else "s_waitcnt lgkmcnt(0)")
    A("s_memtime s[98:99]")
    A("s_memrealtime s[100:101]")
    A("s_waitcnt lgkmcnt(0)")
    A("s_lshl_b32 s57, s2, 3")
    A("s_add_u32 s57, s57, s34")
    A("s_lshl_b32 s57, s57, 6")
    A(f"s_add_u32 s57, s57, {WS_TS + kidx*131072}")
    A("v_mov_b32 v2, 0")
    for i in range(n):
        A(f"v_mov_b32 v3, s{80+2*i}")
        A(f"buffer_store_dword v3, v2, s[44:47], s57 offen offset:{4*i}")
    A(f"v_mov_b32 v3, s98")
    A(f"buffer_store_dword v3, v2, s[44:47], s57 offen offset:{4*n}")
    A(f"v_mov_b32 v3, s96")
    A(f"buffer_store_dword v3, v2, s[44:47], s57 offen offset:56")
    A(f"v_mov_b32 v3, s100")
    A(f"buffer_store_dword v3, v2, s[44:47], s57 offen offset:60")

def f2u(x): return struct.unpack("<I", struct.pack("<f", x))[0]
def hexf(x): return f"0x{f2u(x):08x}"
LOG2E = 1.4426950408889634
INV2PI = 0.15915494309189535

def divc(A, vq, vsrc, d, maxv):
    for sh in (16, 17, 18, 19, 20):
        mul = ((1 << sh) + d - 1) // d
        if all((c * mul) >> sh == c // d for c in range(maxv)) and maxv * mul < (1 << 32) and mul < (1 << 24):
            A(f"v_mul_u32_u24 {vr(vq)}, {mul}, {vr(vsrc)}")
            A(f"v_lshrrev_b32 {vr(vq)}, {sh}, {vr(vq)}")
            return
    raise Exception("no magic")

def srd(A, s, base, size):
    A(f"s_mov_b32 s{s}, s{base}")
    A(f"s_and_b32 s{s+1}, s{base+1}, 0xffff")
    A(f"s_mov_b32 s{s+2}, {size}")
    A(f"s_mov_b32 s{s+3}, 0x20000")

def cmul_add(A, dst, w, h, u):
    A(f"v_pk_fma_f32 {vr(dst,2)}, {vr(w,2)}, {vr(h,2)}, {vr(u,2)} op_sel:[0,0,0] op_sel_hi:[0,1,1]")
    A(f"v_pk_fma_f32 {vr(dst,2)}, {vr(w,2)}, {vr(h,2)}, {vr(dst,2)} op_sel:[1,1,0] op_sel_hi:[1,0,1] neg_lo:[1,0,0]")
def cmul(A, dst, w, h):
    A(f"v_pk_mul_f32 {vr(dst,2)}, {vr(w,2)}, {vr(h,2)} op_sel:[0,0] op_sel_hi:[0,1]")
    A(f"v_pk_fma_f32 {vr(dst,2)}, {vr(w,2)}, {vr(h,2)}, {vr(dst,2)} op_sel:[1,1,0] op_sel_hi:[1,0,1] neg_lo:[1,0,0]")

def wave_sum(A, regs):
    for mod in ("row_shr:1 row_mask:0xf bank_mask:0xf bound_ctrl:0", "row_shr:2 row_mask:0xf bank_mask:0xf bound_ctrl:0",
                "row_shr:4 row_mask:0xf bank_mask:0xf bound_ctrl:0", "row_shr:8 row_mask:0xf bank_mask:0xf bound_ctrl:0",
                "row_bcast:15 row_mask:0xa bank_mask:0xf", "row_bcast:31 row_mask:0xc bank_mask:0xf"):
        for r in regs:
            A(f"v_add_f32_dpp {vr(r)}, {vr(r)}, {vr(r)} {mod}")

def bf16r(A, r):
    A(f"v_cvt_pk_bf16_f32 {vr(r)}, {vr(r)}, {vr(r)}")
    A(f"v_lshlrev_b32 {vr(r)}, 16, {vr(r)}")

class VM:
    def __init__(s, A): s.A = A; s.ops = []
    def __call__(s, text, tag): s.A(text); s.ops.append(tag)
    def wait(s, tag, extra=""):
        idx = max([i for i, t in enumerate(s.ops) if t == tag], default=None)
        if idx is None:
            if extra: s.A(f"s_waitcnt {extra}")
            return
        n = len(s.ops) - 1 - idx
        assert n <= 63, n
        s.A(f"s_waitcnt vmcnt({n}) {extra}".strip())
        s.ops = s.ops[idx + 1:]
    def waitall(s, extra=""):
        s.A(f"s_waitcnt vmcnt(0) {extra}".strip()); s.ops = []

def common_ids(A):
    A("v_lshrrev_b32 v2, 6, v0")
    A("v_and_b32 v1, 255, v0")
    A("v_and_b32 v0, 63, v0")
    A("v_readfirstlane_b32 s34, v2")
    A("s_lshr_b32 s35, s2, 3")
    A("s_and_b32 s57, s2, 3")
    A("s_lshl_b32 s57, s57, 2")
    A("s_lshr_b32 s50, s35, 3")
    A("s_add_u32 s50, s50, s57")
    if MAP == "mixed":
        A("s_and_b32 s49, s35, 1")
        A("s_bfe_u32 s51, s35, 0x20001")
        A("s_and_b32 s57, s2, 4")
        A("s_add_u32 s51, s51, s57")
    else:
        A("s_bfe_u32 s49, s2, 0x10002")
        A("s_and_b32 s51, s35, 7")
    A("s_and_b32 s48, s34, 3")
    A("s_lshr_b32 s52, s48, 1")
    A("s_and_b32 s53, s48, 1")
    A("v_lshrrev_b32 v3, 3, v0")
    A("v_and_b32 v4, 7, v0")
    A("v_lshrrev_b32 v5, 4, v0")
    A("v_and_b32 v6, 15, v0")

def poll(A, load, stmp, scount, vtmp, target, iters=200000):
    L = A.label("poll"); Lx = A.label("pollx")
    A(f"s_mov_b32 s{scount}, {iters}")
    A(f"{L}:")
    A(load)
    A("s_waitcnt vmcnt(0)")
    A(f"v_readfirstlane_b32 s{stmp}, {vr(vtmp)}")
    A(f"s_cmp_eq_u32 s{stmp}, {target}")
    A(f"s_cbranch_scc1 {Lx}")
    A("s_sleep 1")
    A(f"s_sub_u32 s{scount}, s{scount}, 1")
    A(f"s_cmp_lg_u32 s{scount}, 0")
    A(f"s_cbranch_scc1 {L}")
    A(f"{Lx}:")

K1F_STAGE = 28672 + 16384
K1Y_STAGE = 20480 + 16384
K1_STATS = 0
K1_WS = 2048
K1_NONCE = 3008
K1F_RED = 3072
K1F_BUF = 10240
K1Y_T = 3072
K1Y_BUF = 26112
K1Y_SCR = K1Y_BUF + 3 * K1Y_STAGE
K1_LE = 157184
K1_LDS = 157184 + 4096

def kernel1(A):
    A("k1_kernel:")
    A("s_cmp_ge_u32 s2, 256")
    A("s_cbranch_scc1 k1_end")
    stamp(A, 0)
    A("s_load_dwordx16 s[4:19], s[0:1], 0")
    A("s_load_dwordx8 s[20:27], s[0:1], 64")
    A("s_load_dwordx4 s[28:31], s[0:1], 96")
    A("s_load_dwordx2 s[32:33], s[0:1], 112")
    common_ids(A)
    A("s_lshr_b32 s57, s51, 1")
    A("s_mul_i32 s54, s57, 27")
    A("s_and_b32 s57, s51, 1")
    A("s_mul_i32 s57, s57, 14")
    A("s_add_u32 s54, s54, s57")
    A("s_waitcnt lgkmcnt(0)")
    srd(A, 36, 4, T * D * 2)
    srd(A, 44, 32, WS_SIZE)
    A("s_cmp_ge_u32 s34, 4")
    A("s_cbranch_scc1 k1_ld")
    A("s_cmp_lg_u32 s49, 0")
    A("s_cbranch_scc1 k1_cF")
    k1_compute(A, False)
    A("s_branch p2_comp")
    A("k1_cF:")
    k1_compute(A, True)
    A("p2_comp:")
    stamps_flush(A, 8, 0, False)
    p2_compute(A)
    stamps_flush(A, 6, 1)
    A("s_branch k1_end")
    A("k1_ld:")
    A("s_cmp_lg_u32 s49, 0")
    A("s_cbranch_scc1 k1_lF")
    k1_loader(A, False)
    A("s_branch p2_ld")
    A("k1_lF:")
    k1_loader(A, True)
    A("p2_ld:")
    stamps_flush(A, 8, 0, False)
    p2_loaders(A)
    A("k1_end:")
    A("s_endpgm")

def stats_compute(A, vm, SRC):
    for r in range(2):
        for i in range(5):
            A(f"v_lshlrev_b32 v{40+10*r+2*i}, 16, v{SRC+5*r+i}")
            A(f"v_and_b32 v{41+10*r+2*i}, 0xffff0000, v{SRC+5*r+i}")
    for r in range(2):
        b = 40 + 10 * r
        A(f"v_add_f32 v{60+r}, v{b}, v{b+1}")
        for i in range(2, 10):
            A(f"v_add_f32 v{60+r}, v{60+r}, v{b+i}")
    wave_sum(A, [60, 61])
    A("v_readlane_b32 s57, v60, 63")
    A("v_readlane_b32 s58, v61, 63")
    A(f"v_mov_b32 v62, {hexf(1.0/640)}")
    A("v_mul_f32 v60, s57, v62")
    A("v_mul_f32 v61, s58, v62")
    for r in range(2):
        b = 40 + 10 * r
        for i in range(10):
            A(f"v_sub_f32 v{b+i}, v{b+i}, v{60+r}")
    for r in range(2):
        b = 40 + 10 * r
        A(f"v_mul_f32 v{64+r}, v{b}, v{b}")
        for i in range(1, 10):
            A(f"v_fmac_f32 v{64+r}, v{b+i}, v{b+i}")
    wave_sum(A, [64, 65])
    A("v_readlane_b32 s57, v64, 63")
    A("v_readlane_b32 s58, v65, 63")
    A("v_mul_f32 v64, s57, v62")
    A("v_mul_f32 v65, s58, v62")
    A("v_and_b32 v66, 1, v0")
    A("v_cmp_eq_u32 vcc, 1, v66")
    A("v_cndmask_b32 v68, v60, v61, vcc")
    A("v_cndmask_b32 v70, v64, v65, vcc")
    bf16r(A, 68)
    bf16r(A, 70)
    A(f"v_add_f32 v70, {hexf(1e-5)}, v70")
    bf16r(A, 70)
    A("v_sqrt_f32 v70, v70")
    bf16r(A, 70)
    A("v_rcp_f32 v69, v70")
    A("v_fma_f32 v71, -v70, v69, 1.0")
    A("v_fma_f32 v69, v71, v69, v69")
    A("v_mov_b32 v71, 0")
    A("v_lshlrev_b32 v66, 4, v0")
    A(f"v_mov_b32 v67, {OOB}")
    A("v_cmp_gt_u32 vcc, 2, v0")
    A("v_cndmask_b32 v66, v67, v66, vcc")
    A("s_lshl_b32 s57, s63, 4")
    A(f"s_add_u32 s57, s57, {WS_STATS}")
    vm("buffer_store_dwordx4 v[68:71], v66, s[44:47], s57 offen sc1", "st")

def k1_loader(A, isF):
    vm = VM(A)
    STG = K1F_STAGE if isF else K1Y_STAGE
    BUF = K1F_BUF if isF else K1Y_BUF
    ASZ = 28672 if isF else 20480
    if not isF:
        L = A.label("nononce")
        A("s_or_b32 s57, s2, s48")
        A("s_cmp_lg_u32 s57, 0")
        A(f"s_cbranch_scc1 {L}")
        A("s_memrealtime s[70:71]")
        A("v_mov_b32 v18, 0")
        A("s_waitcnt lgkmcnt(0)")
        A("s_or_b32 s70, s70, 1")
        A("v_mov_b32 v20, s70")
        A("v_mov_b32 v21, s71")
        A("s_mov_b64 exec, 1")
        A("global_store_dwordx2 v18, v[20:21], s[30:31] sc1")
        A("s_mov_b64 exec, -1")
        A(f"{L}:")
    A("v_xor_b32 v17, v4, v3")
    A("v_mul_u32_u24 v19, 5120, v3")
    A("v_lshl_add_u32 v247, v17, 4, v19")
    A("s_lshl_b32 s60, s50, 7")
    A("s_lshl_b32 s59, s52, 6")
    A("s_add_u32 s60, s60, s59")
    A("s_lshl_b32 s59, s53, 1")
    A("s_add_u32 s60, s60, s59")
    A("s_mul_i32 s60, s60, 1280")
    A("s_lshl_b32 s62, s48, 12")
    A(f"s_add_u32 s62, s62, {ASZ+BUF}")
    def dmaX(st):
        bo = (st % 3) * STG
        for q in range(4):
            A(f"s_add_u32 m0, s62, {bo + 1024*q}")
            A(f"s_add_u32 s65, s60, {st*128 + (32*(q&1) + (q>>1))*1280}")
            vm(f"buffer_load_dwordx4 v247, s[36:39], s65 offen lds", f"d{st}")
    stamp(A, 5)
    dmaX(0)
    if isF:
        srd(A, 40, 24, D * DFF * 2)
        A("s_mul_i32 s59, s48, 55296")
        A("s_lshl_b32 s64, s54, 5")
        A("s_add_u32 s59, s59, s64")
        A("s_mul_i32 s61, s48, 7168")
        A(f"s_add_u32 s61, s61, {BUF}")
        for q in range(7):
            A(f"v_add_u32 v17, {64*q}, v0")
            divc(A, 18, 17, 28, 448)
            A("v_mul_u32_u24 v19, 28, v18")
            A("v_sub_u32 v19, v17, v19")
            A("v_lshrrev_b32 v17, 2, v18")
            A("v_and_b32 v17, 2, v17")
            A("v_xor_b32 v19, v19, v17")
            A("v_mul_u32_u24 v18, 3456, v18")
            A(f"v_lshl_add_u32 v{240+q}, v19, 4, v18")
            A(f"s_add_u32 m0, s61, {1024*q}")
            A("s_nop 0")
            vm(f"buffer_load_dwordx4 v{240+q}, s[40:43], s59 offen lds", "d0")
    else:
        A("s_cmp_lt_u32 s48, 2")
        A("s_cselect_b32 s64, s10, s12")
        A("s_cselect_b32 s65, s11, s13")
        srd(A, 40, 64, D * D * 2)
        A("v_xor_b32 v18, s52, v17")
        A("v_mul_u32_u24 v19, 1280, v3")
        A("v_lshl_add_u32 v240, v18, 4, v19")
        A("s_mul_i32 s59, s51, 80")
        A("s_mul_i32 s64, s53, 40")
        A("s_add_u32 s59, s59, s64")
        A("s_mul_i32 s59, s59, 1280")
        A("s_mul_i32 s61, s53, 10240")
        A("s_lshl_b32 s64, s52, 10")
        A("s_add_u32 s61, s61, s64")
        A(f"s_add_u32 s61, s61, {BUF}")
    def dmaA(st):
        bo = (st % 3) * STG
        tag = f"d{st}"
        if isF:
            A(f"s_add_u32 s65, s59, {st*64*3456}")
            for q in range(7):
                A(f"s_add_u32 m0, s61, {bo + 1024*q}")
                A("s_nop 0")
                vm(f"buffer_load_dwordx4 v{240+q}, s[40:43], s65 offen lds", tag)
        else:
            for q in range(5):
                A(f"s_add_u32 m0, s61, {bo + 2048*q}")
                A(f"s_add_u32 s65, s59, {st*128 + q*8*1280}")
                vm(f"buffer_load_dwordx4 v240, s[40:43], s65 offen lds", tag)
    def dma(st):
        dmaA(st); dmaX(st)
    if not isF: dmaA(0)
    stamp(A, 6)
    if "nodpf" not in DBG: A("s_barrier")
    dma(1)
    stamp(A, 7)
    A(f"v_mov_b32 v15, {OOB}")
    A("v_mov_b32 v26, 0")
    def s5():
        A("v_bfe_u32 v20, v0, 1, 4")
        A("v_and_b32 v21, 7, v20")
        A("v_lshrrev_b32 v22, 3, v20")
        A("v_lshl_add_u32 v21, v22, 7, v21")
        A("s_lshl_b32 s57, s50, 3")
        A("v_add_u32 v21, s57, v21")
        A("s_lshl_b32 s57, s49, 7")
        A("s_add_u32 s57, s57, s51")
        A("v_lshl_add_u32 v22, v20, 3, s57")
        A("v_cmp_gt_u32 vcc, 32, v0")
        A("v_cndmask_b32 v25, v22, v21, vcc")
        A("v_lshlrev_b32 v25, 7, v25")
        A("v_and_b32 v20, 1, v0")
        A("v_lshl_add_u32 v25, v20, 4, v25")
        A(f"v_add_u32 v25, {WS_F3}, v25")
    def g1():
        vm("buffer_load_dwordx4 v[32:35], v25, s[44:47], 0 offen sc1", "fl")
    def g2():
        Lp = A.label("poll"); Lx = A.label("pollx"); Lc = A.label("pollc")
        A("s_mov_b32 s58, 200000")
        vm.wait("fl")
        A(f"s_branch {Lc}")
        A(f"{Lp}:")
        A("s_sleep 1")
        A("buffer_load_dwordx4 v[32:35], v25, s[44:47], 0 offen sc1")
        A("s_waitcnt vmcnt(0)")
        A(f"{Lc}:")
        A("v_cmp_ne_u64 vcc, v[32:33], v[28:29]")
        A("v_cmp_ne_u64 s[66:67], v[34:35], v[28:29]")
        A("s_or_b64 vcc, vcc, s[66:67]")
        A("s_cmp_eq_u64 vcc, 0")
        A(f"s_cbranch_scc1 {Lx}")
        A("s_sub_u32 s58, s58, 1")
        A("s_cmp_lg_u32 s58, 0")
        A(f"s_cbranch_scc1 {Lp}")
        A(f"{Lx}:")
        A("v_lshlrev_b32 v34, 4, v1")
        A("s_lshl_b32 s57, s50, 11")
        A(f"s_add_u32 s57, s57, {WS_STATS}")
        vm("buffer_load_dwordx4 v[36:39], v34, s[44:47], s57 offen sc1", "ga")
        A("v_lshlrev_b32 v35, 2, v1")
        if isF:
            A("s_mul_i32 s57, s51, 896")
            A(f"s_add_u32 s57, s57, {WS_WSP}")
            for sl_ in range(32):
                vm(f"buffer_load_dword v{40+sl_}, v35, s[44:47], s57 offen sc1", "ga")
                A(f"s_add_u32 s57, s57, {1792*4}")
        else:
            A("s_mul_i32 s57, s51, 640")
            A(f"s_add_u32 s57, s57, {WS_WSYO}")
            vm("buffer_load_dword v40, v35, s[44:47], s57 offen sc1", "ga")
    def g3():
        vm.wait("ga")
        A("v_cmp_gt_u32 vcc, 128, v1")
        A("s_and_saveexec_b64 s[66:67], vcc")
        A(f"ds_write_b128 v34, v[36:39] offset:{K1_STATS}")
        A("s_mov_b64 exec, s[66:67]")
        if isF:
            for sl_ in range(1, 32):
                A(f"v_add_f32 v40, v40, v{40+sl_}")
        A(f"v_cmp_gt_u32 vcc, {224 if isF else 160}, v1")
        A("s_and_saveexec_b64 s[66:67], vcc")
        A(f"ds_write_b32 v35, v40 offset:{K1_WS}")
        A("s_mov_b64 exec, s[66:67]")
    chunks = {}
    post = []
    if isF:
        def crep():
            Lq = A.label("cq")
            A("s_cmp_eq_u32 s52, 0")
            A(f"s_cbranch_scc1 {Lq}")
            srd(A, 68, 14, D * D * 2)
            sc = 80 if not STAMPS else 60
            srd(A, sc, 16, D * D * 2)
            for rd_ in range(2):
                R = 92 + 16 * rd_
                A("s_lshl_b32 s57, s50, 3")
                A("s_add_u32 s57, s57, s51")
                A("s_lshl_b32 s57, s57, 4")
                A("s_lshl_b32 s58, s53, 2")
                A("s_add_u32 s57, s57, s58")
                A(f"s_add_u32 s57, s57, {8*rd_}")
                A("v_add_u32 v10, s57, v5")
                divc(A, 11, 10, 40, 2048)
                A("v_mul_u32_u24 v12, 40, v11")
                A("v_sub_u32 v12, v10, v12")
                A("v_lshl_add_u32 v13, v11, 4, v6")
                A("v_mul_u32_u24 v13, 1280, v13")
                A("v_lshl_add_u32 v13, v12, 5, v13")
                A(f"buffer_load_dwordx4 v[{R}:{R+3}], v13, s[68:71], 0 offen")
                A(f"buffer_load_dwordx4 v[{R+4}:{R+7}], v13, s[68:71], 0 offen offset:16")
                A(f"buffer_load_dwordx4 v[{R+8}:{R+11}], v13, s[{sc}:{sc+3}], 0 offen")
                A(f"buffer_load_dwordx4 v[{R+12}:{R+15}], v13, s[{sc}:{sc+3}], 0 offen offset:16")
                divc(A, 14, 11, 5, 64)
                A("v_mul_u32_u24 v16, 5, v14")
                A("v_sub_u32 v16, v11, v16")
                A("v_mul_u32_u24 v14, 40, v14")
                A("v_add_u32 v14, v14, v12")
                A("v_mul_u32_u24 v14, 5120, v14")
                A("v_lshl_add_u32 v14, v16, 10, v14")
                A("v_lshl_add_u32 v14, v6, 4, v14")
                A("v_cmp_gt_u32 vcc, 1600, v10")
                A(f"v_cndmask_b32 v{17+rd_}, v15, v14, vcc")
            A("s_mov_b32 s57, 0x05040100")
            A("s_mov_b32 s58, 0x07060302")
            A(f"s_mov_b32 s65, {WS_CP}")
            A("s_waitcnt vmcnt(0)")
            for rd_ in range(2):
                R = 92 + 16 * rd_
                for c in range(8): A(f"v_xor_b32 v{R+8+c}, 0x80008000, v{R+8+c}")
                for g in range(4):
                    o = 40 + 16 * rd_ + 4 * g
                    A(f"v_perm_b32 v{o}, v{R+8+g}, v{R+g}, s57")
                    A(f"v_perm_b32 v{o+1}, v{R+8+g}, v{R+g}, s58")
                    A(f"v_perm_b32 v{o+2}, v{R+12+g}, v{R+4+g}, s57")
                    A(f"v_perm_b32 v{o+3}, v{R+12+g}, v{R+4+g}, s58")
                    A(f"buffer_store_dwordx4 v[{o}:{o+3}], v{17+rd_}, s[44:47], s65 offen offset:{256*g} sc1")
            A("s_waitcnt vmcnt(0)")
            A(f"{Lq}:")
            A("buffer_store_dwordx2 v[28:29], v27, s[44:47], s79 offen sc1")
        post = [crep]
    else:
        def w2a():
            srd(A, 68, 26, D * DFF * 2)
            A("s_lshl_b32 s57, s50, 3")
            A("s_add_u32 s57, s57, s51")
            A("s_lshl_b32 s57, s57, 2")
            A("s_add_u32 s57, s57, s48")
            A("s_lshr_b32 s75, s57, 3")
            A("s_and_b32 s76, s57, 7")
            A("s_mul_i32 s58, s75, 40960")
            A("s_mul_i32 s57, s76, 160")
            A("s_add_u32 s58, s58, s57")
            A("s_mul_i32 s77, s48, 5120")
            A(f"s_add_u32 s77, s77, {K1Y_SCR}")
            for q in range(5):
                A(f"v_add_u32 v17, {64*q}, v0")
                divc(A, 18, 17, 10, 320)
                A("v_mul_u32_u24 v19, 10, v18")
                A("v_sub_u32 v19, v17, v19")
                A("v_mul_u32_u24 v18, 1280, v18")
                A("v_lshl_add_u32 v16, v19, 4, v18")
                A(f"s_add_u32 m0, s77, {1024*q}")
                A("s_nop 0")
                vm("buffer_load_dwordx4 v16, s[68:71], s58 offen lds", "w2")
        def w2b():
            A("v_lshrrev_b32 v17, 2, v6")
            A("v_lshl_add_u32 v17, v5, 2, v17")
            A("v_mul_u32_u24 v17, 160, v17")
            A("v_and_b32 v18, 3, v6")
            A("v_lshl_add_u32 v17, v18, 3, v17")
            A("v_add_u32 v17, s77, v17")
            vm.wait("w2")
            for m in range(5):
                for h in range(2):
                    A(f"ds_read_b64_tr_b16 v[{164+4*m+2*h}:{165+4*m+2*h}], v17 offset:{h*2560 + m*32}")
            A("s_mul_i32 s57, s76, 54")
            A("s_add_u32 s57, s57, s75")
            A("s_mul_i32 s57, s57, 5120")
            A(f"s_add_u32 s57, s57, {WS_W2P}")
            A("s_cmp_lt_u32 s75, 54")
            A(f"s_cselect_b32 s57, s57, {OOB}")
            A("v_lshlrev_b32 v18, 4, v0")
            A("v_add_u32 v19, 4096, v18")
            A("s_waitcnt lgkmcnt(0)")
            for m in range(5):
                vm(f"buffer_store_dwordx4 v[{164+4*m}:{167+4*m}], v18, s[44:47], s57 offen offset:{1024*m} sc1" if m < 4 else
                   f"buffer_store_dwordx4 v[{164+4*m}:{167+4*m}], v19, s[44:47], s57 offen sc1", "st2")
        def w2c():
            vm.wait("st2")
            vm("buffer_store_dwordx2 v[28:29], v27, s[44:47], s79 offen sc1", "fs")
        def lbk():
            Lq = A.label("lq")
            A("s_cmp_eq_u32 s52, 0")
            A(f"s_cbranch_scc1 {Lq}")
            A("v_min_u32 v8, 39, v0")
            A("s_mul_i32 s57, s53, 40")
            A("v_add_u32 v8, s57, v8")
            A("v_lshlrev_b32 v9, 3, v8")
            A(f"v_add_u32 v9, {K1_LE}, v9")
            A("v_mul_u32_u24 v10, 288, v8")
            A("s_mul_i32 s57, s51, 1280")
            A("v_lshlrev_b32 v11, 4, v8")
            A("v_add_u32 v11, s57, v11")
            A("s_mul_i32 s74, s50, 10240")
            A(f"s_add_u32 s74, s74, {WS_E}")
            A(f"ds_read_b64 v[72:73], v10 offset:{K1Y_T+128+8}")
            A(f"ds_read_b64 v[74:75], v10 offset:{K1Y_T+128+16}")
            A("s_barrier")
            Lp = A.label("lb"); Lx = A.label("lbx")
            A("ds_read_b64 v[64:65], v9")
            A("ds_read_b64 v[66:67], v9 offset:640")
            A("v_mov_b32 v82, v28")
            A("v_mov_b32 v83, v29")
            A("s_waitcnt lgkmcnt(0)")
            cmul_add(A, 80, 72, 64, 66)
            A("buffer_store_dwordx4 v[80:83], v11, s[44:47], s74 offen sc1")
            A("s_mov_b32 s75, 100000")
            A(f"{Lp}:")
            for i in range(15):
                A(f"s_sub_u32 s57, s50, {i+1}")
                A("s_mul_i32 s58, s57, 10240")
                A(f"s_add_u32 s58, s58, {WS_E}")
                A(f"s_cmp_gt_u32 s50, {i}")
                A(f"s_cselect_b32 s58, s58, {OOB}")
                A(f"buffer_load_dwordx4 v[{96+4*i}:{99+4*i}], v11, s[44:47], s58 offen sc1")
            A("s_waitcnt vmcnt(0)")
            A("s_mov_b64 vcc, 0")
            for i in range(15):
                A(f"v_cmp_ne_u64 s[70:71], v[{98+4*i}:{99+4*i}], v[28:29]")
                A(f"s_cmp_gt_u32 s50, {i}")
                A("s_cselect_b64 s[70:71], s[70:71], 0")
                A("s_or_b64 vcc, vcc, s[70:71]")
            A("s_cmp_eq_u64 vcc, 0")
            A(f"s_cbranch_scc1 {Lx}")
            A("s_sleep 1")
            A("s_sub_u32 s75, s75, 1")
            A("s_cmp_lg_u32 s75, 0")
            A(f"s_cbranch_scc1 {Lp}")
            A(f"{Lx}:")
            for i in range(13, -1, -1):
                cmul_add(A, 96 + 4 * i, 74, 96 + 4 * (i + 1), 96 + 4 * i)
            cmul_add(A, 84, 72, 96, 64)
            A("ds_write_b64 v9, v[96:97] offset:1280")
            A("ds_write_b64 v9, v[84:85] offset:1920")
            A("s_waitcnt lgkmcnt(0)")
            A("s_barrier")
            A(f"{Lq}:")
        chunks = {4: [w2a], 8: [w2b]}; post = [w2c, lbk]
    def n1():
        vm("global_load_dwordx2 v[28:29], v26, s[30:31] sc1", "nn")
    def n2():
        Lp = A.label("np"); Lx = A.label("npx"); Lc = A.label("npc")
        A("s_mov_b32 s58, 200000")
        vm.wait("nn")
        A(f"s_branch {Lc}")
        A(f"{Lp}:")
        A("s_sleep 1")
        A("global_load_dwordx2 v[28:29], v26, s[30:31] sc1")
        A("s_waitcnt vmcnt(0)")
        A(f"{Lc}:")
        A("v_readfirstlane_b32 s57, v28")
        A("s_cmp_lg_u32 s57, 0")
        A(f"s_cbranch_scc1 {Lx}")
        A("s_sub_u32 s58, s58, 1")
        A("s_cmp_lg_u32 s58, 0")
        A(f"s_cbranch_scc1 {Lp}")
        A(f"{Lx}:")
        A(f"ds_write_b64 v26, v[28:29] offset:{K1_NONCE}")
        A("s_lshl_b32 s57, s49, 7")
        A("s_lshl_b32 s58, s50, 3")
        A("s_add_u32 s57, s57, s58")
        A("s_add_u32 s57, s57, s51")
        A("s_lshl_b32 s57, s57, 5")
        A("s_lshl_b32 s58, s48, 3")
        A("s_add_u32 s57, s57, s58")
        A(f"s_add_u32 s79, s57, {WS_F1}")
        A("v_cmp_eq_u32 vcc, 0, v0")
        A("v_cndmask_b32 v27, v15, v26, vcc")
    sched = ((1, n1), (2, n2), (3, s5), (GI, g1), (GI + 1, g2))
    for k, f in sched:
        chunks.setdefault(k, []).append(f)
    vm.wait("d0")
    stamp(A, 1)
    A("s_barrier")
    for j in range(9):
        if j + 2 <= 9: dma(j + 2)
        for f in chunks.get(j, []): f()
        vm.wait(f"d{j+1}", "lgkmcnt(0)")
        A("s_barrier")
    stamp(A, 2)
    g3()
    A("s_waitcnt lgkmcnt(0)")
    stamp(A, 3)
    stamp(A, 4)
    A("s_barrier")
    for f in post: f()

def k1_side(A, isF):
    if isF:
        yield
    else:
        divc(A, 9, 1, 80, 256)
        A("v_mul_u32_u24 v10, 80, v9")
        A("v_sub_u32 v10, v1, v10")
        A("s_mul_i32 s57, s51, 80")
        A("v_add_u32 v11, s57, v10")
        A("v_lshlrev_b32 v11, 1, v11")
        A("global_load_ushort v92, v11, s[6:7]")
        A("global_load_ushort v93, v11, s[8:9]")
        A("global_load_ushort v94, v11, s[18:19]")
        yield
        A("s_waitcnt vmcnt(26)")
        for r in (92, 93, 94): A(f"v_lshlrev_b32 v{r}, 16, v{r}")
        A(f"v_mul_f32 v94, {hexf(LOG2E)}, v94")
        A("v_exp_f32 v94, v94")
        bf16r(A, 94)
        A("v_mul_f32 v95, v94, v92")
        A("v_mul_f32 v96, v94, v93")
        A(f"v_mul_f32 v95, {hexf(LOG2E)}, v95")
        A(f"v_mul_f32 v96, {hexf(INV2PI)}, v96")
        A("v_mul_u32_u24 v97, 288, v10")
        A("v_lshl_add_u32 v97, v9, 3, v97")
        A("v_cmp_gt_u32 vcc, 240, v1")
        A("s_and_saveexec_b64 s[66:67], vcc")
        for r in range(11):
            A(f"v_add_u32 v98, {3*r}, v9")
            A("v_lshlrev_b32 v99, 2, v98")
            A("v_lshlrev_b32 v100, 6, v98")
            A("v_subrev_u32 v100, 1024, v100")
            A("v_cmp_gt_u32 vcc, 16, v98")
            A("v_cndmask_b32 v99, v100, v99, vcc")
            A("v_cvt_f32_u32 v99, v99")
            A("v_mul_f32 v100, v99, v95")
            A("v_mul_f32 v101, v99, v96")
            A("v_exp_f32 v100, v100")
            A("v_fract_f32 v101, v101")
            A("v_cos_f32 v102, v101")
            A("v_sin_f32 v103, v101")
            A("v_mul_f32 v102, v100, v102")
            A("v_mul_f32 v103, v100, v103")
            A(f"ds_write_b64 v97, v[102:103] offset:{K1Y_T+24*r}")
        A("s_mov_b64 exec, s[66:67]")
        A("v_exp_f32 v100, v95")
        A("v_fract_f32 v101, v96")
        A("v_cos_f32 v102, v101")
        A("v_sin_f32 v103, v101")
        A("v_mul_f32 v102, v100, v102")
        A("v_mul_f32 v103, v100, v103")
        A("v_add_f32 v98, -1.0, v102")
        A("v_mul_f32 v99, v92, v92")
        A("v_fmac_f32 v99, v93, v93")
        A("v_rcp_f32 v100, v99")
        A("v_fma_f32 v101, -v99, v100, 1.0")
        A("v_fma_f32 v100, v101, v100, v100")
        A("v_add_f32 v100, v100, v100")
        A("v_mul_f32 v104, v98, v92")
        A("v_fmac_f32 v104, v103, v93")
        A("v_mul_f32 v105, v103, v92")
        A("v_fma_f32 v105, -v98, v93, v105")
        A("v_mul_f32 v104, v104, v100")
        A("v_mul_f32 v105, v105, v100")
        A("v_cmp_gt_u32 vcc, 80, v1")
        A("s_and_saveexec_b64 s[66:67], vcc")
        A(f"ds_write_b128 v97, v[102:105] offset:{K1Y_T+272}")
        A("s_mov_b64 exec, s[66:67]")
    A("s_waitcnt lgkmcnt(0)")
    yield

def k1_prefetch_setup(A, isF):
    A("s_and_b32 s57, s2, 3")
    A("s_lshl_b32 s57, s57, 9")
    A("s_lshl_b32 s59, s35, 4")
    A("s_add_u32 s57, s57, s59")
    A("s_mul_i32 s57, s57, 1280")
    A("v_lshrrev_b32 v10, 2, v0")
    A("v_and_b32 v11, 3, v0")
    A("v_mul_u32_u24 v10, 1280, v10")
    A("v_lshl_add_u32 v10, v11, 7, v10")
    A("s_mul_i32 s58, s53, 384")
    A("s_add_u32 s66, s57, s58")
    A("s_add_u32 s66, s66, 384")
    if isF:
        srd(A, 40, 24, D * DFF * 2)
        A("v_min_u32 v11, 53, v0")
        A("v_lshlrev_b32 v11, 7, v11")
        A("s_mul_i32 s67, s35, 6912")
        A("s_add_u32 s58, s48, 3")
        A(f"s_mul_i32 s58, s58, {64*3456}")
        A("s_add_u32 s67, s67, s58")
        A(f"s_add_u32 s68, s67, {4*64*3456}")
    else:
        A("s_cmp_lt_u32 s48, 2")
        A("s_cselect_b32 s64, s10, s12")
        A("s_cselect_b32 s65, s11, s13")
        srd(A, 40, 64, D * D * 2)
        divc(A, 12, 0, 20, 64)
        A("v_mul_u32_u24 v13, 20, v12")
        A("v_sub_u32 v13, v0, v13")
        A("v_min_u32 v12, 2, v12")
        A("v_mul_u32_u24 v13, 1280, v13")
        A("v_lshl_add_u32 v11, v12, 7, v13")
        A("s_mul_i32 s67, s35, 25600")
        A("s_mul_i32 s58, s53, 384")
        A("s_add_u32 s68, s67, 896")
        A("s_add_u32 s67, s67, s58")
        A("s_add_u32 s67, s67, 384")
def k1_prefetch(A, isF, batch):
    if "nopf" in DBG: return
    if batch == 0:
        A("buffer_load_dword v12, v11, s[40:43], s67 offen")
        A("buffer_load_dword v13, v10, s[36:39], s66 offen")
    else:
        A("buffer_load_dword v12, v11, s[40:43], s68 offen")

def k1_compute(A, isF):
    ACC = 128; FRAG = 32
    MT = 7 if isF else 5; NT = 4
    STG = K1F_STAGE if isF else K1Y_STAGE
    BUF = K1F_BUF if isF else K1Y_BUF
    ASZ = 28672 if isF else 20480
    side = k1_side(A, isF) if "noside" not in DBG else iter([0, 0])
    next(side)
    AB = 232; BB = 244
    if isF:
        A("v_lshrrev_b32 v17, 2, v6")
        A("v_lshl_add_u32 v17, v5, 3, v17")
        A("v_mul_u32_u24 v17, 448, v17")
        A("v_and_b32 v18, 3, v6")
        A("v_lshl_add_u32 v17, v18, 3, v17")
        A("s_mul_i32 s57, s52, 224")
        A(f"s_add_u32 s57, s57, {BUF}")
        A("v_add_u32 v17, s57, v17")
        A("v_and_b32 v18, 1, v5")
        A("v_lshlrev_b32 v18, 5, v18")
        A("v_add_u32 v19, v17, v18")
        A("v_sub_u32 v17, v17, v18")
        A("s_cmp_eq_u32 s52, 0")
        A("s_cselect_b64 vcc, -1, 0")
        AB = 240; BB = 246
        A(f"v_cndmask_b32 v{AB}, v17, v19, vcc")
        A(f"v_cndmask_b32 v{AB+1}, v19, v17, vcc")
    else:
        A("v_and_b32 v17, 1, v6")
        A("v_lshrrev_b32 v18, 1, v6")
        A("v_lshl_add_u32 v19, v17, 3, v18")
        A("v_xor_b32 v17, v17, v18")
        A("v_xor_b32 v17, v17, v5")
        A("v_lshlrev_b32 v19, 7, v19")
        A("v_lshl_add_u32 v19, v17, 4, v19")
        A("s_mul_i32 s57, s52, 10240")
        A(f"s_add_u32 s57, s57, {BUF}")
        AB = 240; BB = 246
        A(f"v_add_u32 v{AB}, s57, v19")
        A(f"v_xor_b32 v{AB+1}, 64, v{AB}")
    A("v_and_b32 v18, 7, v0")
    A("v_xor_b32 v18, v18, v5")
    A("v_lshlrev_b32 v17, 7, v6")
    A("s_lshl_b32 s57, s53, 13")
    A(f"s_add_u32 s57, s57, {ASZ+BUF}")
    A("v_add_u32 v17, s57, v17")
    A(f"v_lshl_add_u32 v{BB}, v18, 4, v17")
    A(f"v_xor_b32 v{BB+1}, 64, v{BB}")
    for b in (1, 2):
        for i in range(2):
            A(f"v_add_u32 v{AB+2*b+i}, {b*STG}, v{AB+i}")
            A(f"v_add_u32 v{BB+2*b+i}, {b*STG}, v{BB+i}")
    for r in range(MT * NT * 4):
        A(f"v_mov_b32 v{ACC+r}, 0")
    fA = lambda st, m: FRAG + st * (MT + NT) * 4 + m * 4
    fB = lambda st, n: FRAG + st * (MT + NT) * 4 + MT * 4 + n * 4
    accr = lambda m, n: ACC + (m * NT + n) * 4
    def reads(stage, kk):
        b = stage % 3; st = kk
        out = []
        for n in range(NT):
            out.append(f"ds_read_b128 {vr(fB(st,n),4)}, v{BB+2*b+kk} offset:{n*2048}")
        for m in range(MT):
            if isF:
                for h in range(2):
                    out.append(f"ds_read_b64_tr_b16 {vr(fA(st,m)+2*h,2)}, v{AB+2*b+(m&1)} offset:{(32*kk+4*h)*448 + m*32}")
            else:
                out.append(f"ds_read_b128 {vr(fA(st,m),4)}, v{AB+2*b+kk} offset:{m*2048}")
        return out
    def mfmas(st):
        return [f"v_mfma_f32_16x16x32_bf16 {vr(accr(m,n),4)}, {vr(fA(st,m),4)}, {vr(fB(st,n),4)}, {vr(accr(m,n),4)}"
                for m in range(MT) for n in range(NT)]
    vm = VM(A)
    A(f"v_mov_b32 v15, {OOB}")
    A("v_mov_b32 v26, 0")
    A("v_lshlrev_b32 v2, 2, v0")
    Lsk = A.label("sk")
    if isF:
        srd(A, 40, 24, D * DFF * 2)
        divc(A, 7, 0, 28, 64)
        A("v_mul_u32_u24 v8, 28, v7")
        A("v_sub_u32 v8, v0, v8")
        A("v_min_u32 v7, 1, v7")
        A("s_mov_b32 s57, 34560")
        A("v_mul_lo_u32 v12, v7, s57")
        A("v_lshl_add_u32 v12, v8, 4, v12")
        A("s_mul_i32 s57, s50, 138240")
        A("s_mul_i32 s58, s53, 69120")
        A("s_add_u32 s57, s57, s58")
        A("s_lshl_b32 s58, s54, 5")
        A("s_add_u32 s57, s57, s58")
        A("s_lshl_b32 s59, s51, 3")
        A("s_lshl_b32 s58, s50, 7")
        A("s_add_u32 s59, s59, s58")
        A("s_add_u32 s59, s59, 64")
        A("s_lshl_b32 s58, s48, 1")
        A("s_add_u32 s63, s59, s58")
        A("s_mul_i32 s59, s63, 1280")
        A("s_barrier")
        for r in range(2):
            for i in range(5): A(f"buffer_load_dword v{80+5*r+i}, v2, s[36:39], s59 offen offset:{256*i}")
            A("s_add_u32 s59, s59, 1280")
        A("global_load_dwordx2 v[28:29], v26, s[30:31] sc1")
        A("s_cmp_lg_u32 s52, 0")
        A(f"s_cbranch_scc1 {Lsk}")
        for r in range(10):
            A(f"buffer_load_dwordx4 v[{40+4*r}:{43+4*r}], v12, s[40:43], s57 offen")
            A("s_add_u32 s57, s57, 3456")
        A("s_waitcnt vmcnt(0)")
        for c in range(4):
            A(f"v_lshlrev_b32 v{108+2*c}, 16, v{40+c}")
            A(f"v_and_b32 v{109+2*c}, 0xffff0000, v{40+c}")
        for r in range(1, 10):
            for c in range(4):
                A(f"v_lshlrev_b32 v116, 16, v{40+4*r+c}")
                A(f"v_and_b32 v117, 0xffff0000, v{40+4*r+c}")
                A(f"v_add_f32 v{108+2*c}, v{108+2*c}, v116")
                A(f"v_add_f32 v{109+2*c}, v{109+2*c}, v117")
        A("s_lshl_b32 s57, s53, 11")
        A("v_lshlrev_b32 v12, 5, v0")
        A("v_add_u32 v12, s57, v12")
        A(f"ds_write_b128 v12, v[108:111] offset:{K1F_RED}")
        A(f"ds_write_b128 v12, v[112:115] offset:{K1F_RED+16}")
        A("v_lshlrev_b32 v13, 4, v0")
        A("v_add_u32 v12, s57, v13")
        A("s_waitcnt lgkmcnt(0)")
        A(f"ds_read_b128 v[108:111], v12 offset:{K1F_RED}")
        A(f"ds_read_b128 v[112:115], v12 offset:{K1F_RED+896}")
        A("v_cmp_gt_u32 vcc, 56, v0")
        A("v_cndmask_b32 v13, v15, v13, vcc")
        A("s_lshl_b32 s57, s50, 1")
        A("s_add_u32 s57, s57, s53")
        A("s_mul_i32 s57, s57, 1792")
        A("s_mul_i32 s58, s51, 224")
        A("s_add_u32 s57, s57, s58")
        A("s_lshl_b32 s57, s57, 2")
        A(f"s_add_u32 s57, s57, {WS_WSP}")
        A("s_waitcnt lgkmcnt(0)")
        A("v_pk_add_f32 v[108:109], v[108:109], v[112:113]")
        A("v_pk_add_f32 v[110:111], v[110:111], v[114:115]")
        A("buffer_store_dwordx4 v[108:111], v13, s[44:47], s57 offen sc1")
        A(f"{Lsk}:")
        A("s_waitcnt vmcnt(1)")
        stats_compute(A, vm, 80)
    else:
        A("s_cmp_lt_u32 s48, 2")
        A("s_cselect_b32 s64, s10, s12")
        A("s_cselect_b32 s65, s11, s13")
        srd(A, 40, 64, D * D * 2)
        A("s_mul_i32 s57, s51, 80")
        A("s_mul_i32 s58, s50, 5")
        A("s_add_u32 s57, s57, s58")
        A("s_mul_i32 s58, s53, 3")
        A("s_add_u32 s72, s57, s58")
        A("s_lshl_b32 s59, s51, 3")
        A("s_lshl_b32 s58, s50, 7")
        A("s_add_u32 s59, s59, s58")
        A("s_lshl_b32 s58, s48, 1")
        A("s_add_u32 s63, s59, s58")
        A("s_mul_i32 s59, s63, 1280")
        A("s_barrier")
        for r in range(2):
            for i in range(5): A(f"buffer_load_dword v{208+5*r+i}, v2, s[36:39], s59 offen offset:{256*i}")
            A("s_add_u32 s59, s59, 1280")
        A("s_mul_i32 s57, s72, 1280")
        for r in range(3):
            for i in range(5): A(f"buffer_load_dword v{72+5*r+i}, v2, s[40:43], s57 offen offset:{256*i}")
            A("s_add_u32 s57, s57, 1280")
        A("global_load_dwordx2 v[28:29], v26, s[30:31] sc1")
    next(side)
    if not isF:
        A("s_waitcnt vmcnt(0)")
        stats_compute(A, vm, 208)
        A("s_mov_b32 s57, 0x3f803f80")
        for r in range(3): A(f"v_mov_b32 v{108+r}, 0")
        for i in range(5):
            for r in range(3): A(f"v_dot2_f32_bf16 v{108+r}, v{72+5*r+i}, s57, v{108+r}")
        A("s_nop 3")
        wave_sum(A, [108, 109, 110])
        A("v_cmp_eq_u32 vcc, 63, v0")
        A("v_cndmask_b32 v12, v15, v26, vcc")
        A("s_lshl_b32 s57, s72, 1")
        A("s_add_u32 s57, s57, s52")
        A("s_lshl_b32 s57, s57, 2")
        A(f"s_add_u32 s57, s57, {WS_WSYO}")
        A("buffer_store_dword v108, v12, s[44:47], s57 offen sc1")
        A("buffer_store_dword v109, v12, s[44:47], s57 offen offset:8 sc1")
        A("s_cmp_eq_u32 s53, 0")
        A(f"s_cselect_b32 s57, s57, {OOB}")
        A("buffer_store_dword v110, v12, s[44:47], s57 offen offset:16 sc1")
    A("v_cmp_eq_u32 vcc, 0, v0")
    A("v_cndmask_b32 v16, v15, v26, vcc")
    A("s_lshl_b32 s57, s49, 7")
    A("s_lshl_b32 s58, s50, 3")
    A("s_add_u32 s57, s57, s58")
    A("s_add_u32 s57, s57, s51")
    A("s_lshl_b32 s57, s57, 7")
    A("s_lshl_b32 s58, s48, 3")
    A("s_add_u32 s57, s57, s58")
    A(f"s_add_u32 s76, s57, {WS_F3}")
    stamp(A, 1)
    A("s_barrier")
    stamp(A, 2)
    for r in reads(0, 0): A(r)
    PRE = 3
    for j in range(10):
        A("s_waitcnt lgkmcnt(0)")
        mf = mfmas(0); rd = reads(j, 1)
        for i, m in enumerate(mf):
            A(m)
            if i < len(rd): A(rd[i])
        A("s_waitcnt lgkmcnt(0)")
        mf = mfmas(1)
        if j < 9:
            rd = reads(j + 1, 0)
            for m in mf[:PRE]: A(m)
            if j == 1:
                A("s_waitcnt vmcnt(0)")
                Lp = A.label("np"); Lx = A.label("npx")
                A("s_mov_b32 s58, 200000")
                A(f"{Lp}:")
                A("v_readfirstlane_b32 s57, v28")
                A("s_cmp_lg_u32 s57, 0")
                A(f"s_cbranch_scc1 {Lx}")
                A("s_sleep 1")
                A("global_load_dwordx2 v[28:29], v26, s[30:31] sc1")
                A("s_waitcnt vmcnt(0)")
                A("s_sub_u32 s58, s58, 1")
                A("s_cmp_lg_u32 s58, 0")
                A(f"s_cbranch_scc1 {Lp}")
                A(f"{Lx}:")
                A("buffer_store_dwordx2 v[28:29], v16, s[44:47], s76 offen sc1")
            A("s_barrier")
            for i, m in enumerate(mf[PRE:]):
                if i < len(rd): A(rd[i])
                A(m)
        else:
            for m in mf: A(m)
    stamp(A, 3)
    A("s_waitcnt vmcnt(0)")
    A("s_barrier")
    stamp(A, 4)
    if isF: k1F_epilogue(A, ACC)
    else: k1Y_epilogue(A, ACC)

def frag_store_plan(ntiles, parity):
    plan = []
    t = 0
    if parity == 1:
        plan.append(("single", [0], 0, 1)); t = 1
    while t + 1 < ntiles:
        plan.append(("pair", [t, t + 1], (t + parity) // 2, 0)); t += 2
    if t < ntiles:
        plan.append(("single", [t], (t + parity) // 2, 0))
    return plan

def k1F_epilogue(A, ACC):
    A("s_lshl_b32 s57, s53, 10")
    A("v_lshlrev_b32 v17, 6, v6")
    A("v_add_u32 v17, s57, v17")
    for n in range(4):
        A(f"ds_read_b64 v[{32+2*n}:{33+2*n}], v17 offset:{K1_STATS+16*n}")
    A("s_mul_i32 s57, s52, 448")
    A("v_lshlrev_b32 v18, 4, v5")
    A("v_add_u32 v18, s57, v18")
    for m in range(7):
        A(f"ds_read_b128 v[{40+4*m}:{43+4*m}], v18 offset:{K1_WS+64*m}")
    A("s_mul_i32 s57, s52, 7")
    A("s_add_u32 s57, s57, s54")
    A("s_and_b32 s64, s57, 1")
    A("s_lshr_b32 s57, s57, 1")
    A("s_mul_i32 s58, s50, 54")
    A("s_add_u32 s57, s57, s58")
    A("s_lshl_b32 s57, s57, 3")
    A("s_lshl_b32 s58, s53, 2")
    A("s_add_u32 s57, s57, s58")
    A("s_lshl_b32 s57, s57, 10")
    A(f"s_add_u32 s65, s57, {WS_HF}")
    A("v_lshlrev_b32 v17, 4, v0")
    A("s_and_b32 s57, s51, s52")
    A("s_and_b32 s57, s57, 1")
    A("s_cmp_eq_u32 s57, 0")
    A(f"s_cselect_b32 s57, 0, {OOB}")
    A("v_add_u32 v19, s57, v17")
    A("s_waitcnt lgkmcnt(0)")
    def conv(m, n, dst):
        a = ACC + (m * 4 + n) * 4
        w = 40 + 4 * m; st = 32 + 2 * n
        for hh in range(2):
            A(f"v_pk_fma_f32 {vr(a+2*hh,2)}, {vr(w+2*hh,2)}, {vr(st,2)}, {vr(a+2*hh,2)} op_sel:[0,0,0] op_sel_hi:[1,0,1] neg_lo:[1,0,0] neg_hi:[1,0,0]")
        for hh in range(2):
            A(f"v_pk_mul_f32 {vr(a+2*hh,2)}, {vr(a+2*hh,2)}, {vr(st,2)} op_sel:[0,1] op_sel_hi:[1,1]")
        for hh in range(2):
            A(f"v_cvt_pk_bf16_f32 v{dst+hh}, v{a+2*hh}, v{a+2*hh+1}")
        for hh in range(2):
            A(f"v_pk_max_i16 v{dst+hh}, v{dst+hh}, 0")
    L1 = A.label("ep1"); L2 = A.label("epx")
    A("s_cmp_lg_u32 s64, 0")
    A(f"s_cbranch_scc1 {L1}")
    for parity in (0, 1):
        if parity == 1: A(f"{L1}:")
        plan = frag_store_plan(7, parity)
        if parity == 1:
            k, tl, ks, _ = plan.pop()
            plan += [("single", [tl[0]], ks, 0), ("single", [tl[1]], ks, 1)]
        cnt = 0
        for kind, tl, ks, half in plan:
            A(f"s_add_u32 s57, s65, {ks*8192}")
            for n in range(4):
                t = 72 + 4 * (cnt % 4); cnt += 1
                if kind == "pair":
                    conv(tl[0], n, t); conv(tl[1], n, t + 2)
                    A(f"buffer_store_dwordx4 v[{t}:{t+3}], v17, s[44:47], s57 offen offset:{1024*n} sc1")
                else:
                    conv(tl[0], n, t)
                    vo = 19 if tl[0] == 6 else 17
                    if "nosingle" not in DBG: A(f"buffer_store_dwordx2 v[{t}:{t+1}], v{vo}, s[44:47], s57 offen offset:{1024*n + 8*half} sc1")
        if parity == 0: A(f"s_branch {L2}")
    A(f"{L2}:")
    for i in (5, 6, 7): stamp(A, i)

def k1Y_epilogue(A, ACC):
    ST = 32; WSR = 40; P = 208; TB = 60
    A("s_lshl_b32 s57, s53, 10")
    A("v_lshlrev_b32 v17, 6, v6")
    A("v_add_u32 v17, s57, v17")
    for n in range(4):
        A(f"ds_read_b64 v[{ST+2*n}:{ST+2*n+1}], v17 offset:{K1_STATS+16*n}")
    A("v_mov_b32 v17, 0")
    A(f"ds_read_b64 v[30:31], v17 offset:{K1_NONCE}")
    A("s_mul_i32 s57, s52, 320")
    A("v_lshlrev_b32 v18, 4, v5")
    A("v_add_u32 v18, s57, v18")
    for m in range(5):
        A(f"ds_read_b128 v[{WSR+4*m}:{WSR+4*m+3}], v18 offset:{K1_WS+64*m}")
    A("s_mul_i32 s57, s52, 11520")
    A("v_mul_u32_u24 v19, 576, v5")
    A("v_add_u32 v19, s57, v19")
    A("v_lshl_add_u32 v20, v6, 3, v19")
    A("s_mul_i32 s57, s53, 640")
    A("s_mul_i32 s58, s52, 320")
    A("s_add_u32 s57, s57, s58")
    A(f"s_add_u32 s57, s57, {K1_LE}")
    A("v_lshlrev_b32 v21, 4, v5")
    A("v_add_u32 v21, s57, v21")
    A("v_lshlrev_b32 v22, 4, v0")
    A(f"v_add_u32 v22, {K1_LE+2560}, v22")
    A("v_cmp_eq_u32 vcc, 15, v6")
    A("v_cndmask_b32 v22, v22, v21, vcc")
    def load_tab1(m, base):
        for q in range(2):
            o = K1Y_T + (8 * m + q) * 288
            b = base + 12 * q
            A(f"ds_read_b128 v[{b}:{b+3}], v19 offset:{o+272}")
            A(f"ds_read_b64 v[{b+4}:{b+5}], v19 offset:{o+8}")
            A(f"ds_read_b64 v[{b+6}:{b+7}], v19 offset:{o+16}")
            A(f"ds_read_b64 v[{b+8}:{b+9}], v19 offset:{o+32}")
            A(f"ds_read_b64 v[{b+10}:{b+11}], v19 offset:{o+64}")
    load_tab1(0, TB)
    TMP = 108
    for m in range(5):
        base = TB + 24 * (m & 1)
        A("s_waitcnt lgkmcnt(0)")
        if m < 4: load_tab1(m + 1, TB + 24 * ((m + 1) & 1))
        for n in range(4):
            for q in range(2):
                u = ACC + (m * 4 + n) * 4 + 2 * q
                w = WSR + 4 * m + 2 * q
                st = ST + 2 * n
                cf = base + 12 * q + 2
                t0 = TMP + 4 * q
                A(f"v_pk_fma_f32 {vr(t0,2)}, {vr(w,2)}, {vr(st,2)}, {vr(u,2)} op_sel:[0,0,0] op_sel_hi:[1,0,1] neg_lo:[1,0,0] neg_hi:[1,0,0]")
                A(f"v_pk_mul_f32 {vr(t0+2,2)}, {vr(cf,2)}, {vr(st,2)} op_sel:[0,1] op_sel_hi:[1,1]")
                cmul(A, u, t0 + 2, t0)
        for n in range(1, 4):
            for q in range(2):
                a = base + 12 * q
                e = P + 4 * m + 2 * q
                t0 = TMP + 4 * q
                prev = (ACC + (m * 4) * 4 + 2 * q) if n == 1 else (t0 if n == 3 else t0 + 2)
                dst = e if n == 3 else (t0 + 2 if n == 1 else t0)
                u = ACC + (m * 4 + n) * 4 + 2 * q
                cmul_add(A, dst, a, prev, u)
        for ki, k in enumerate((1, 2, 4, 8)):
            for q in range(2):
                e = P + 4 * m + 2 * q
                t0 = TMP + 4 * q
                A(f"v_mov_b32_dpp v{t0}, v{e} row_shr:{k} row_mask:0xf bank_mask:0xf bound_ctrl:0")
                A(f"v_mov_b32_dpp v{t0+1}, v{e+1} row_shr:{k} row_mask:0xf bank_mask:0xf bound_ctrl:0")
            for q in range(2):
                e = P + 4 * m + 2 * q
                t0 = TMP + 4 * q
                cmul_add(A, e, base + 12 * q + 4 + 2 * ki, t0, e)
        A(f"ds_write_b128 v22, v[{P+4*m}:{P+4*m+3}] offset:{64*m}")
    A("s_waitcnt lgkmcnt(0)")
    stamp(A, 5)
    A("s_barrier")
    TMP = 112
    for m in range(5):
        for q in range(2):
            o = K1Y_T + (8 * m + q) * 288; b = 32 + 8 * m + 4 * q
            A(f"ds_read_b64 v[{b}:{b+1}], v20 offset:{o}")
            A(f"ds_read_b64 v[{b+2}:{b+3}], v19 offset:{o+272}")
    A("s_mul_i32 s57, s51, 5")
    A("s_lshl_b32 s58, s52, 1")
    A("s_add_u32 s57, s57, s58")
    A("s_mul_i32 s58, s50, 40")
    A("s_add_u32 s57, s57, s58")
    A("s_lshl_b32 s57, s57, 3")
    A("s_lshl_b32 s58, s53, 2")
    A("s_add_u32 s57, s57, s58")
    A("s_lshl_b32 s57, s57, 10")
    A(f"s_add_u32 s65, s57, {WS_H1}")
    A("v_lshlrev_b32 v27, 4, v0")
    for m in range(5):
        for r in range(4):
            A(f"v_mov_b32_dpp v{92+4*m+r}, v{P+4*m+r} row_shr:1 row_mask:0xf bank_mask:0xf bound_ctrl:0")
    A("s_waitcnt lgkmcnt(0)")
    A("s_barrier")
    stamp(A, 6)
    for m in range(5):
        A(f"ds_read_b128 v[{72+4*m}:{75+4*m}], v21 offset:{1280+64*m}")
    A("s_waitcnt lgkmcnt(0)")
    for m in range(5):
        for q in range(2):
            cmul_add(A, 92 + 4 * m + 2 * q, 32 + 8 * m + 4 * q, 72 + 4 * m + 2 * q, 92 + 4 * m + 2 * q)
    for n in range(4):
        for m in range(5):
            for q in range(2):
                u = ACC + (m * 4 + n) * 4 + 2 * q
                prev = (92 + 4 * m + 2 * q) if n == 0 else u - 4
                cmul_add(A, u, 32 + 8 * m + 4 * q + 2, prev, u)
    stamp(A, 7)
    L1 = A.label("ey1"); L2 = A.label("eyx")
    A("s_cmp_lg_u32 s52, 0")
    A(f"s_cbranch_scc1 {L1}")
    for parity in (0, 1):
        if parity == 1: A(f"{L1}:")
        cnt = 0
        for kind, tl, ks, half in frag_store_plan(5, parity):
            A(f"s_add_u32 s57, s65, {ks*8192}")
            for n in range(4):
                t = 32 + 4 * (cnt % 8); cnt += 1
                for x, m in enumerate(tl):
                    u = ACC + (m * 4 + n) * 4
                    A(f"v_cvt_pk_bf16_f32 v{t+2*x}, v{u}, v{u+1}")
                    A(f"v_cvt_pk_bf16_f32 v{t+2*x+1}, v{u+2}, v{u+3}")
                if kind == "pair":
                    A(f"buffer_store_dwordx4 v[{t}:{t+3}], v27, s[44:47], s57 offen offset:{1024*n} sc1")
                else:
                    if "nosingle" not in DBG: A(f"buffer_store_dwordx2 v[{t}:{t+1}], v27, s[44:47], s57 offen offset:{1024*n + 8*half} sc1")
        if parity == 0: A(f"s_branch {L2}")
    A(f"{L2}:")

K2_NR = 7
K2_R0 = 26112
K2_BOFF = K2_R0 + K2_NR * 10240
K2_NST = 47
NSF = 27

def p2_ids(A):
    A("s_lshl_b32 s57, s49, 7")
    A("s_lshl_b32 s58, s50, 3")
    A("s_add_u32 s57, s57, s58")
    A("s_add_u32 s57, s57, s51")
    A("s_lshl_b32 s57, s57, 7")
    A("s_lshl_b32 s58, s48, 3")
    A("s_add_u32 s57, s57, s58")
    A(f"s_add_u32 s77, s57, {WS_F2}")
    A("s_mov_b32 s78, s49")
    A("s_and_b32 s57, s2, 3")
    A("s_bfe_u32 s58, s2, 0x10002")
    A("s_lshr_b32 s59, s35, 2")
    A("s_lshl_b32 s50, s57, 2")
    A("s_lshr_b32 s57, s59, 1")
    A("s_add_u32 s50, s50, s57")
    A("s_and_b32 s49, s59, 1")
    A("s_lshl_b32 s51, s58, 2")
    A("s_and_b32 s57, s35, 3")
    A("s_add_u32 s51, s51, s57")
    A("v_lshlrev_b32 v10, 4, v0")

def spin_flags(A, loads, regs, vm=None, iters=400000, first_wait=None):
    Lp = A.label("sp"); Lx = A.label("spx")
    A(f"s_mov_b32 s70, {iters}")
    Lc = A.label("spc")
    if first_wait:
        first_wait()
        A(f"s_branch {Lc}")
    A(f"{Lp}:")
    for l in loads: A(l)
    A("s_waitcnt vmcnt(0)")
    A(f"{Lc}:")
    for i, r in enumerate(regs):
        A(f"v_cmp_ne_u64 {'vcc' if i == 0 else 's[72:73]'}, v[{r}:{r+1}], v[28:29]")
        if i: A("s_or_b64 vcc, vcc, s[72:73]")
    A("s_cmp_eq_u64 vcc, 0")
    A(f"s_cbranch_scc1 {Lx}")
    A("s_sleep 1")
    A("s_sub_u32 s70, s70, 1")
    A("s_cmp_lg_u32 s70, 0")
    A(f"s_cbranch_scc1 {Lp}")
    A(f"{Lx}:")
    if vm and not first_wait: vm.ops = []

def p2_loaders(A):
    stamp(A, 0)
    p2_ids(A)
    A("s_mul_i32 s57, s53, 5120")
    A(f"s_mul_i32 s62, s51, {20*10240}")
    A("s_add_u32 s62, s62, s57")
    A(f"s_add_u32 s62, s62, {WS_CP}")
    A(f"s_mul_i32 s63, s51, {27*10240}")
    A("s_add_u32 s63, s63, s57")
    A(f"s_add_u32 s63, s63, {WS_W2P}")
    A(f"s_add_u32 s57, s57, {K2_R0}")
    A("s_lshl_b32 s58, s53, 13")
    A("s_lshl_b32 s59, s49, 12")
    A("s_add_u32 s58, s58, s59")
    A(f"s_mul_i32 s64, s50, {40*8192}")
    A("s_add_u32 s64, s64, s58")
    A(f"s_add_u32 s64, s64, {WS_H1}")
    A(f"s_mul_i32 s66, s50, {54*8192}")
    A("s_add_u32 s66, s66, s58")
    A(f"s_add_u32 s66, s66, {WS_HF}")
    A("s_lshl_b32 s59, s53, 12")
    A(f"s_add_u32 s59, s59, {K2_BOFF}")
    A("s_cmp_lg_u32 s52, 0")
    A("s_cselect_b32 s62, s64, s62")
    A("s_cselect_b32 s63, s66, s63")
    A("s_cselect_b32 s58, s59, s57")
    A("s_cbranch_scc0 p2_lA")
    p2_loader(A, True)
    stamps_flush(A, 6, 1)
    A("s_branch k1_end")
    A("p2_lA:")
    p2_loader(A, False)
    stamps_flush(A, 6, 1)

def p2_loader(A, isB):
    vm = VM(A)
    nst = K2_NST
    nI = 4 if isB else 5
    sstr = 16384 if isB else 10240
    lstr = 8192 if isB else 10240
    if not isB:
        A("v_lshlrev_b32 v30, 4, v0")
        A(f"v_add_u32 v30, {WS_F1}, v30")
        wl = lambda o: [f"buffer_load_dwordx4 v[{32+4*k}:{35+4*k}], v30, s[44:47], 0 offen offset:{o + 1024*k} sc1" if o + 1024*k < 4096 else
                        f"buffer_load_dwordx4 v[{32+4*k}:{35+4*k}], v31, s[44:47], 0 offen offset:{o + 1024*k - 4096} sc1" for k in range(4)]
        A("v_add_u32 v31, 4096, v30")
    else:
        A("v_bfe_u32 v30, v0, 2, 3")
        A("v_and_b32 v31, 3, v0")
        A("v_lshlrev_b32 v30, 7, v30")
        A("v_lshl_add_u32 v30, v31, 3, v30")
        A("s_lshl_b32 s64, s50, 10")
        A(f"s_add_u32 s64, s64, {WS_F2}")
        A(f"s_add_u32 s66, s64, {128*128}")
        spin_flags(A, ["buffer_load_dwordx2 v[32:33], v30, s[44:47], s66 offen sc1"], [32])
    def dma(st):
        L2 = ["buffer_load_dwordx2 v[32:33], v30, s[44:47], s64 offen sc1"] if isB else wl(4096)
        R2 = [32] if isB else [32 + 2 * k for k in range(8)]
        if st == NSF - 3:
            for l in L2: vm(l, "f2")
        if st == NSF:
            spin_flags(A, L2, R2, vm, first_wait=lambda: vm.wait("f2"))
        bo = (st % K2_NR) * lstr
        src, so = (63, st * sstr) if st < NSF else (62, (st - NSF) * sstr)
        for q in range(nI):
            A(f"s_add_u32 m0, s58, {bo + 1024*q}")
            A(f"s_add_u32 s65, s{src}, {so + 1024*q}")
            vm("buffer_load_dwordx4 v10, s[44:47], s65 offen sc1 lds", f"d{st}")
    stamp(A, 1)
    n0 = 3 if isB else K2_NR
    if isB:
        for st in range(n0): dma(st)
    else:
        Lb = A.label("nox"); Lc = A.label("late"); Ld = A.label("done")
        A("s_cmp_lg_u32 s78, 0")
        A(f"s_cbranch_scc1 {Lb}")
        spin_flags(A, wl(0), [32 + 2 * k for k in range(8)], iters=2)
        A("s_cmp_eq_u32 s70, 0")
        A(f"s_cbranch_scc1 {Lc}")
        for st in range(n0): dma(st)
        A("s_barrier")
        A("s_barrier")
        A(f"s_branch {Ld}")
        A(f"{Lc}:")
        A("s_barrier")
        A("s_barrier")
        A(f"{Lb}:")
        spin_flags(A, wl(0), [32 + 2 * k for k in range(8)])
        vm.ops = []
        for st in range(n0): dma(st)
        A(f"{Ld}:")
    vm.wait("d0")
    stamp(A, 2)
    A("s_barrier")
    vm.wait("d1")
    A("s_barrier")
    for st in range(n0, K2_NR): dma(st)
    for j in range(nst - 2):
        vm.wait(f"d{j+2}")
        A("s_barrier")
        if j + K2_NR < nst: dma(j + K2_NR)
    for i in (3, 4, 5): stamp(A, i)

def p2_compute(A):
    stamp(A, 0)
    A("v_mov_b32 v26, 0")
    A(f"ds_read_b64 v[22:23], v26 offset:{K1_NONCE}")
    p2_ids(A)
    srd(A, 72, 4, T * D * 2)
    srd(A, 84 if not STAMPS else 68, 28, T * D * 4)
    A("v_cmp_eq_u32 vcc, 0, v0")
    A(f"v_mov_b32 v24, {OOB}")
    A("v_cndmask_b32 v24, v24, v26, vcc")
    L = A.label("nof")
    A("s_cmp_eq_u32 s78, 0")
    A(f"s_cbranch_scc1 {L}")
    A("s_waitcnt vmcnt(0) lgkmcnt(0)")
    A("buffer_store_dwordx2 v[22:23], v24, s[44:47], s77 offen sc1")
    A(f"{L}:")
    FRAG = 112
    ACCY = 28; ACCF = 48; XR = 68; SR = 78; DR = 82; PR = 92
    nst = K2_NST
    A("s_lshl_b32 s57, s50, 7")
    A("s_lshl_b32 s58, s49, 6")
    A("s_add_u32 s57, s57, s58")
    A("s_add_u32 s57, s57, s48")
    A("v_lshl_add_u32 v17, v6, 2, s57")
    A("v_mul_u32_u24 v18, 1280, v17")
    A("v_lshl_add_u32 v18, v5, 3, v18")
    A("s_mul_i32 s58, s51, 160")
    for m in range(5):
        A(f"buffer_load_dwordx2 v[{XR+2*m}:{XR+2*m+1}], v18, s[72:75], s58 offen offset:{32*m}")
    A("v_lshlrev_b32 v25, 4, v17")
    A(f"s_mov_b32 s62, {WS_STATS}")
    A("v_lshlrev_b32 v26, 3, v5")
    A("v_add_u32 v26, s58, v26")
    for m in range(5):
        A(f"global_load_dwordx2 v[{DR+2*m}:{DR+2*m+1}], v26, s[20:21] offset:{32*m}")
    A("s_lshl_b32 s57, s48, 10")
    A(f"s_add_u32 s57, s57, {K2_BOFF}")
    A("v_add_u32 v20, s57, v10")
    A(f"v_add_u32 v21, {K2_R0 + 3*10240}, v10")
    A(f"v_add_u32 v19, {K2_R0}, v10")
    for r in range(40):
        A(f"v_mov_b32 v{ACCY+r}, 0")
    plist = []
    P = plist.append
    mm, rs, sd = SR, SR + 1, SR + 2
    for m in range(5):
        x = XR + 2 * m; t = 2; du = 12; p = PR + 4 * m
        for hh in range(2):
            P(f"v_lshlrev_b32 v{t+2*hh}, 16, v{x+hh}")
            P(f"v_and_b32 v{t+2*hh+1}, 0xffff0000, v{x+hh}")
        for r in range(4): P(f"v_sub_f32 v{t+r}, v{t+r}, v{mm}")
        for hh in range(2):
            P(f"v_cvt_pk_bf16_f32 v{t+4+hh}, v{t+2*hh}, v{t+2*hh+1}")
        for hh in range(2):
            P(f"v_lshlrev_b32 v{t+2*hh}, 16, v{t+4+hh}")
            P(f"v_and_b32 v{t+2*hh+1}, 0xffff0000, v{t+4+hh}")
        for r in range(4): P(f"v_mul_f32 v{t+4+r}, v{t+r}, v{rs}")
        for r in range(4): P(f"v_fma_f32 v{t+r}, -v{t+4+r}, v{sd}, v{t+r}")
        for r in range(4): P(f"v_fma_f32 v{t+4+r}, v{t+r}, v{rs}, v{t+4+r}")
        for hh in range(2):
            P(f"v_cvt_pk_bf16_f32 v{t+hh}, v{t+4+2*hh}, v{t+4+2*hh+1}")
        for hh in range(2):
            P(f"v_lshlrev_b32 v{t+4+2*hh}, 16, v{t+hh}")
            P(f"v_and_b32 v{t+4+2*hh+1}, 0xffff0000, v{t+hh}")
        for hh in range(2):
            P(f"v_lshlrev_b32 v{du+2*hh}, 16, v{DR+2*m+hh}")
            P(f"v_and_b32 v{du+2*hh+1}, 0xffff0000, v{DR+2*m+hh}")
        for r in range(4): P(f"v_mul_f32 v{t+4+r}, v{t+4+r}, v{du+r}")
        for hh in range(2):
            P(f"v_cvt_pk_bf16_f32 v{t+hh}, v{t+4+2*hh}, v{t+4+2*hh+1}")
        for hh in range(2):
            P(f"v_lshlrev_b32 v{p+2*hh}, 16, v{t+hh}")
            P(f"v_and_b32 v{p+2*hh+1}, 0xffff0000, v{t+hh}")
    glist = []
    G = glist.append
    for m in range(5):
        a = ACCF + 4 * m; t = 2
        for hh in range(2):
            G(f"v_cvt_pk_bf16_f32 v{t+hh}, v{a+2*hh}, v{a+2*hh+1}")
        for hh in range(2):
            G(f"v_lshlrev_b32 v{a+2*hh}, 16, v{t+hh}")
            G(f"v_and_b32 v{a+2*hh+1}, 0xffff0000, v{t+hh}")
        for r in range(4): G(f"v_mul_f32 v{t+r}, {hexf(-LOG2E)}, v{a+r}")
        for r in range(4): G(f"v_exp_f32 v{t+r}, v{t+r}")
        for r in range(4): G(f"v_add_f32 v{t+r}, 1.0, v{t+r}")
        for r in range(4): G(f"v_rcp_f32 v{t+r}, v{t+r}")
        for r in range(4): G(f"v_mul_f32 v{t+r}, v{t+r}, v{a+r}")
        for hh in range(2):
            G(f"v_cvt_pk_bf16_f32 v{t+4+hh}, v{t+2*hh}, v{t+2*hh+1}")
        for hh in range(2):
            G(f"v_lshlrev_b32 v{a+2*hh}, 16, v{t+4+hh}")
            G(f"v_and_b32 v{a+2*hh+1}, 0xffff0000, v{t+4+hh}")
    fset = lambda stage, kk: FRAG + ((stage % 3) * 2 + kk) * 24
    def reads(stage, kk):
        sl = stage % K2_NR
        ra = 21 if sl >= 3 else 19
        oa = (sl - 3 if sl >= 3 else sl) * 10240
        f = fset(stage, kk)
        out = [f"ds_read_b128 {vr(f+20,4)}, v20 offset:{sl*8192 + kk*4096}"]
        out += [f"ds_read_b128 {vr(f+4*m,4)}, v{ra} offset:{oa + kk*5120 + m*1024}" for m in range(5)]
        return out
    def mfmas(stage, kk):
        f = fset(stage, kk); acc = ACCF if stage < NSF else ACCY
        return [f"v_mfma_f32_16x16x32_bf16 {vr(acc+4*m,4)}, {vr(f+4*m,4)}, {vr(f+20,4)}, {vr(acc+4*m,4)}" for m in range(5)]
    stamp(A, 1)
    A("s_barrier")
    stamp(A, 2)
    A(f"buffer_load_dwordx4 v[{SR}:{SR+3}], v25, s[44:47], s62 offen sc1")
    for kk in range(2):
        for r in reads(0, kk): A(r)
    A("s_barrier")
    for kk in range(2):
        for r in reads(1, kk): A(r)
    for j in range(nst):
        A(f"s_waitcnt lgkmcnt({12 if j < nst - 1 else 0})")
        mf = mfmas(j, 0) + mfmas(j, 1)
        if j < nst - 2:
            for m in mf[:2]: A(m)
            if j == 8:
                A("s_waitcnt vmcnt(0)")
                L = A.label("noy")
                A("s_cmp_lg_u32 s78, 0")
                A(f"s_cbranch_scc1 {L}")
                A("buffer_store_dwordx2 v[22:23], v24, s[44:47], s77 offen sc1")
                A(f"{L}:")
            A("s_barrier")
            rd = reads(j + 2, 0) + reads(j + 2, 1)
            rest = mf[2:]
            for i, m in enumerate(rest):
                for r in rd[(i * 12) // 8: ((i + 1) * 12) // 8]: A(r)
                A(m)
                if j >= 8:
                    for _ in range(2):
                        if plist: A(plist.pop(0))
                        elif j >= NSF + 2 and glist: A(glist.pop(0))
        else:
            for m in mf: A(m)
    assert not plist and not glist
    stamp(A, 3)
    A("v_lshlrev_b32 v18, 1, v18")
    A("s_lshl_b32 s58, s58, 1")
    so = 84 if not STAMPS else 68
    for m in range(5):
        t = 112 + 4 * m
        for hh in range(2):
            A(f"v_pk_add_f32 {vr(PR+4*m+2*hh,2)}, {vr(ACCY+4*m+2*hh,2)}, {vr(PR+4*m+2*hh,2)}")
        for hh in range(2):
            A(f"v_lshlrev_b32 v{t+2*hh}, 16, v{XR+2*m+hh}")
            A(f"v_and_b32 v{t+2*hh+1}, 0xffff0000, v{XR+2*m+hh}")
        for hh in range(2):
            A(f"v_pk_mul_f32 {vr(PR+4*m+2*hh,2)}, {vr(PR+4*m+2*hh,2)}, {vr(ACCF+4*m+2*hh,2)}")
        for hh in range(2):
            A(f"v_pk_add_f32 {vr(t+2*hh,2)}, {vr(t+2*hh,2)}, {vr(PR+4*m+2*hh,2)}")
        A(f"buffer_store_dwordx4 v[{t}:{t+3}], v18, s[{so}:{so+3}], s58 offen offset:{64*m}")
    stamp(A, 4); stamp(A, 5)

HEADER = open("recurrent_scan__ssm_conv_s5__dense_activation_relu__prompt.s.ref").read().split("; @launch")[0]

def kd(name, vgpr=256):
    return f""".p2align 6
.amdhsa_kernel {name}
  .amdhsa_next_free_vgpr {vgpr}
  .amdhsa_next_free_sgpr 102
  .amdhsa_accum_offset {vgpr}
  .amdhsa_group_segment_fixed_size 0
  .amdhsa_kernarg_size 120
  .amdhsa_user_sgpr_count 2
  .amdhsa_user_sgpr_kernarg_segment_ptr 1
  .amdhsa_system_sgpr_workgroup_id_x 1
.end_amdhsa_kernel
"""

def build():
    out = HEADER
    out += f"; @launch kernel=k1_kernel grid=(256,1,1) block=(512,1,1) lds={K1_LDS}\n"
    out += '.amdgcn_target "amdgcn-amd-amdhsa--gfx950"\n.text\n'
    for name, fn in (("k1_kernel", kernel1),):
        A = Asm(); A.nlabel = 0 if name == "k1_kernel" else 1000
        fn(A)
        lines = fix_hazards(A.lines, verbose=True)
        out += f".globl {name}\n.p2align 8\n.type {name},@function\n"
        out += "\n".join(("    " + l if not l.endswith(":") else l) for l in lines) + "\n"
    out += '.section .rodata,"a"\n' + kd("k1_kernel")
    return out

if __name__ == "__main__":
    if len(sys.argv) > 2: STAMPS = True; DBG = sys.argv[2]
    dst = sys.argv[1] if len(sys.argv) > 1 else "recurrent_scan__ssm_conv_s5__dense_activation_relu__prompt.s"
    txt = build()
    if os.environ.get("SINGLE", "1") == "1" and not STAMPS:
        KN = "recurrent_scan__ssm_conv_s5__dense_activation_relu__prompt_kernel"
        txt = txt.replace("; @launch kernel=k1_kernel grid", "; @launch grid").replace("k1_kernel", KN)
    open(dst, "w").write(txt)
    print("wrote", dst)
```

```python
import sys, struct
from asmlib import *

T, D, DFF = 2048, 640, 1728
WS_STATS = 0x000000
WS_E     = 0x010000
WS_WSP   = 0x0A0000
WS_WSYO  = 0x0E0000
WS_F3    = 0x0E8000
WS_F2    = 0x080000
WS_F1    = 0x090000
WS_CP    = 0x100000
WS_W2P   = 0x300000
WS_H1    = 0x600000
WS_HF    = 0xC00000
WS_S     = 0x1400000
WS_TS    = 0x1A00000
WS_SIZE  = 0x1B00000
OOB = 0x7ffffff0

import os
MAP = os.environ.get("MAP", "bp")
GI = int(os.environ.get("GI", 7))
STAMPS = False
DBG = "nopf"
def stamp(A, i):
    if STAMPS and i == 0:
        A("s_memrealtime s[96:97]")
    if STAMPS:
        A(f"s_memtime s[{80+2*i}:{81+2*i}]")
def stamps_flush(A, n, kidx, waitvm=True):
    if not STAMPS: return
    A("s_waitcnt lgkmcnt(0) vmcnt(0)" if waitvm else "s_waitcnt lgkmcnt(0)")
    A("s_memtime s[98:99]")
    A("s_memrealtime s[100:101]")
    A("s_waitcnt lgkmcnt(0)")
    A("s_lshl_b32 s57, s2, 3")
    A("s_add_u32 s57, s57, s34")
    A("s_lshl_b32 s57, s57, 6")
    A(f"s_add_u32 s57, s57, {WS_TS + kidx*131072}")
    A("v_mov_b32 v2, 0")
    for i in range(n):
        A(f"v_mov_b32 v3, s{80+2*i}")
        A(f"buffer_store_dword v3, v2, s[44:47], s57 offen offset:{4*i}")
    A(f"v_mov_b32 v3, s98")
    A(f"buffer_store_dword v3, v2, s[44:47], s57 offen offset:{4*n}")
    A(f"v_mov_b32 v3, s96")
    A(f"buffer_store_dword v3, v2, s[44:47], s57 offen offset:56")
    A(f"v_mov_b32 v3, s100")
    A(f"buffer_store_dword v3, v2, s[44:47], s57 offen offset:60")

def f2u(x): return struct.unpack("<I", struct.pack("<f", x))[0]
def hexf(x): return f"0x{f2u(x):08x}"
LOG2E = 1.4426950408889634
INV2PI = 0.15915494309189535

def divc(A, vq, vsrc, d, maxv):
    for sh in (16, 17, 18, 19, 20):
        mul = ((1 << sh) + d - 1) // d
        if all((c * mul) >> sh == c // d for c in range(maxv)) and maxv * mul < (1 << 32) and mul < (1 << 24):
            A(f"v_mul_u32_u24 {vr(vq)}, {mul}, {vr(vsrc)}")
            A(f"v_lshrrev_b32 {vr(vq)}, {sh}, {vr(vq)}")
            return
    raise Exception("no magic")

def srd(A, s, base, size):
    A(f"s_mov_b32 s{s}, s{base}")
    A(f"s_and_b32 s{s+1}, s{base+1}, 0xffff")
    A(f"s_mov_b32 s{s+2}, {size}")
    A(f"s_mov_b32 s{s+3}, 0x20000")

def cmul_add(A, dst, w, h, u):
    A(f"v_pk_fma_f32 {vr(dst,2)}, {vr(w,2)}, {vr(h,2)}, {vr(u,2)} op_sel:[0,0,0] op_sel_hi:[0,1,1]")
    A(f"v_pk_fma_f32 {vr(dst,2)}, {vr(w,2)}, {vr(h,2)}, {vr(dst,2)} op_sel:[1,1,0] op_sel_hi:[1,0,1] neg_lo:[1,0,0]")
def cmul(A, dst, w, h):
    A(f"v_pk_mul_f32 {vr(dst,2)}, {vr(w,2)}, {vr(h,2)} op_sel:[0,0] op_sel_hi:[0,1]")
    A(f"v_pk_fma_f32 {vr(dst,2)}, {vr(w,2)}, {vr(h,2)}, {vr(dst,2)} op_sel:[1,1,0] op_sel_hi:[1,0,1] neg_lo:[1,0,0]")

def wave_sum(A, regs):
    for mod in ("row_shr:1 row_mask:0xf bank_mask:0xf bound_ctrl:0", "row_shr:2 row_mask:0xf bank_mask:0xf bound_ctrl:0",
                "row_shr:4 row_mask:0xf bank_mask:0xf bound_ctrl:0", "row_shr:8 row_mask:0xf bank_mask:0xf bound_ctrl:0",
                "row_bcast:15 row_mask:0xa bank_mask:0xf", "row_bcast:31 row_mask:0xc bank_mask:0xf"):
        for r in regs:
            A(f"v_add_f32_dpp {vr(r)}, {vr(r)}, {vr(r)} {mod}")

def bf16r(A, r):
    A(f"v_cvt_pk_bf16_f32 {vr(r)}, {vr(r)}, {vr(r)}")
    A(f"v_lshlrev_b32 {vr(r)}, 16, {vr(r)}")

class VM:
    def __init__(s, A): s.A = A; s.ops = []
    def __call__(s, text, tag): s.A(text); s.ops.append(tag)
    def wait(s, tag, extra=""):
        idx = max([i for i, t in enumerate(s.ops) if t == tag], default=None)
        if idx is None:
            if extra: s.A(f"s_waitcnt {extra}")
            return
        n = len(s.ops) - 1 - idx
        assert n <= 63, n
        s.A(f"s_waitcnt vmcnt({n}) {extra}".strip())
        s.ops = s.ops[idx + 1:]
    def waitall(s, extra=""):
        s.A(f"s_waitcnt vmcnt(0) {extra}".strip()); s.ops = []

def common_ids(A):
    A("v_lshrrev_b32 v2, 6, v0")
    A("v_and_b32 v1, 255, v0")
    A("v_and_b32 v0, 63, v0")
    A("v_readfirstlane_b32 s34, v2")
    A("s_lshr_b32 s35, s2, 3")
    A("s_and_b32 s57, s2, 3")
    A("s_lshl_b32 s57, s57, 2")
    A("s_lshr_b32 s50, s35, 3")
    A("s_add_u32 s50, s50, s57")
    if MAP == "mixed":
        A("s_and_b32 s49, s35, 1")
        A("s_bfe_u32 s51, s35, 0x20001")
        A("s_and_b32 s57, s2, 4")
        A("s_add_u32 s51, s51, s57")
    else:
        A("s_bfe_u32 s49, s2, 0x10002")
        A("s_and_b32 s51, s35, 7")
    A("s_and_b32 s48, s34, 3")
    A("s_lshr_b32 s52, s48, 1")
    A("s_and_b32 s53, s48, 1")
    A("v_lshrrev_b32 v3, 3, v0")
    A("v_and_b32 v4, 7, v0")
    A("v_lshrrev_b32 v5, 4, v0")
    A("v_and_b32 v6, 15, v0")

def poll(A, load, stmp, scount, vtmp, target, iters=200000):
    L = A.label("poll"); Lx = A.label("pollx")
    A(f"s_mov_b32 s{scount}, {iters}")
    A(f"{L}:")
    A(load)
    A("s_waitcnt vmcnt(0)")
    A(f"v_readfirstlane_b32 s{stmp}, {vr(vtmp)}")
    A(f"s_cmp_eq_u32 s{stmp}, {target}")
    A(f"s_cbranch_scc1 {Lx}")
    A("s_sleep 1")
    A(f"s_sub_u32 s{scount}, s{scount}, 1")
    A(f"s_cmp_lg_u32 s{scount}, 0")
    A(f"s_cbranch_scc1 {L}")
    A(f"{Lx}:")

K1F_STAGE = 28672 + 16384
K1Y_STAGE = 20480 + 16384
K1_STATS = 0
K1_WS = 2048
K1_NONCE = 3008
K1F_RED = 3072
K1F_BUF = 10240
K1Y_T = 3072
K1Y_BUF = 26112
K1Y_SCR = K1Y_BUF + 3 * K1Y_STAGE
K1_LE = 157184
K1_LDS = 157184 + 4096

def kernel1(A):
    A("k1_kernel:")
    A("s_cmp_ge_u32 s2, 256")
    A("s_cbranch_scc1 k1_end")
    stamp(A, 0)
    A("s_load_dwordx16 s[4:19], s[0:1], 0")
    A("s_load_dwordx8 s[20:27], s[0:1], 64")
    A("s_load_dwordx4 s[28:31], s[0:1], 96")
    A("s_load_dwordx2 s[32:33], s[0:1], 112")
    common_ids(A)
    A("s_mul_i32 s54, s51, 14")
    A("s_cmp_eq_u32 s51, 7")
    A("s_cselect_b32 s54, 96, s54")
    A("s_waitcnt lgkmcnt(0)")
    srd(A, 36, 4, T * D * 2)
    srd(A, 44, 32, WS_SIZE)
    A("s_cmp_ge_u32 s34, 4")
    A("s_cbranch_scc1 k1_ld")
    A("s_cmp_lg_u32 s49, 0")
    A("s_cbranch_scc1 k1_cF")
    k1_compute(A, False)
    A("s_branch p2_comp")
    A("k1_cF:")
    k1_compute(A, True)
    A("p2_comp:")
    stamps_flush(A, 8, 0, False)
    p2_compute(A)
    stamps_flush(A, 6, 1)
    A("s_branch k1_end")
    A("k1_ld:")
    A("s_cmp_lg_u32 s49, 0")
    A("s_cbranch_scc1 k1_lF")
    k1_loader(A, False)
    A("s_branch p2_ld")
    A("k1_lF:")
    k1_loader(A, True)
    A("p2_ld:")
    stamps_flush(A, 8, 0, False)
    p2_loaders(A)
    A("k1_end:")
    A("s_endpgm")

def stats_compute(A, vm, SRC):
    for r in range(2):
        for i in range(5):
            A(f"v_lshlrev_b32 v{40+10*r+2*i}, 16, v{SRC+5*r+i}")
            A(f"v_and_b32 v{41+10*r+2*i}, 0xffff0000, v{SRC+5*r+i}")
    for r in range(2):
        b = 40 + 10 * r
        A(f"v_add_f32 v{60+r}, v{b}, v{b+1}")
        for i in range(2, 10):
            A(f"v_add_f32 v{60+r}, v{60+r}, v{b+i}")
    wave_sum(A, [60, 61])
    A("v_readlane_b32 s57, v60, 63")
    A("v_readlane_b32 s58, v61, 63")
    A(f"v_mov_b32 v62, {hexf(1.0/640)}")
    A("v_mul_f32 v60, s57, v62")
    A("v_mul_f32 v61, s58, v62")
    for r in range(2):
        b = 40 + 10 * r
        for i in range(10):
            A(f"v_sub_f32 v{b+i}, v{b+i}, v{60+r}")
    for r in range(2):
        b = 40 + 10 * r
        A(f"v_mul_f32 v{64+r}, v{b}, v{b}")
        for i in range(1, 10):
            A(f"v_fmac_f32 v{64+r}, v{b+i}, v{b+i}")
    wave_sum(A, [64, 65])
    A("v_readlane_b32 s57, v64, 63")
    A("v_readlane_b32 s58, v65, 63")
    A("v_mul_f32 v64, s57, v62")
    A("v_mul_f32 v65, s58, v62")
    A("v_and_b32 v66, 1, v0")
    A("v_cmp_eq_u32 vcc, 1, v66")
    A("v_cndmask_b32 v68, v60, v61, vcc")
    A("v_cndmask_b32 v70, v64, v65, vcc")
    bf16r(A, 68)
    bf16r(A, 70)
    A(f"v_add_f32 v70, {hexf(1e-5)}, v70")
    bf16r(A, 70)
    A("v_sqrt_f32 v70, v70")
    bf16r(A, 70)
    A("v_rcp_f32 v69, v70")
    A("v_fma_f32 v71, -v70, v69, 1.0")
    A("v_fma_f32 v69, v71, v69, v69")
    A("v_mov_b32 v71, 0")
    A("v_lshlrev_b32 v66, 4, v0")
    A(f"v_mov_b32 v67, {OOB}")
    A("v_cmp_gt_u32 vcc, 2, v0")
    A("v_cndmask_b32 v66, v67, v66, vcc")
    A("s_lshl_b32 s57, s63, 4")
    A(f"s_add_u32 s57, s57, {WS_STATS}")
    vm("buffer_store_dwordx4 v[68:71], v66, s[44:47], s57 offen sc1", "st")

def k1_loader(A, isF):
    vm = VM(A)
    STG = K1F_STAGE if isF else K1Y_STAGE
    BUF = K1F_BUF if isF else K1Y_BUF
    ASZ = 28672 if isF else 20480
    if not isF:
        L = A.label("nononce")
        A("s_or_b32 s57, s2, s48")
        A("s_cmp_lg_u32 s57, 0")
        A(f"s_cbranch_scc1 {L}")
        A("s_memrealtime s[70:71]")
        A("v_mov_b32 v18, 0")
        A("s_waitcnt lgkmcnt(0)")
        A("s_or_b32 s70, s70, 1")
        A("v_mov_b32 v20, s70")
        A("v_mov_b32 v21, s71")
        A("s_mov_b64 exec, 1")
        A("global_store_dwordx2 v18, v[20:21], s[30:31] sc1")
        A("s_mov_b64 exec, -1")
        A(f"{L}:")
    A("v_xor_b32 v17, v4, v3")
    A("v_mul_u32_u24 v19, 5120, v3")
    A("v_lshl_add_u32 v247, v17, 4, v19")
    A("s_lshl_b32 s60, s50, 7")
    A("s_lshl_b32 s59, s52, 6")
    A("s_add_u32 s60, s60, s59")
    A("s_lshl_b32 s59, s53, 1")
    A("s_add_u32 s60, s60, s59")
    A("s_mul_i32 s60, s60, 1280")
    A("s_lshl_b32 s62, s48, 12")
    A(f"s_add_u32 s62, s62, {ASZ+BUF}")
    def dmaX(st):
        bo = (st % 3) * STG
        for q in range(4):
            A(f"s_add_u32 m0, s62, {bo + 1024*q}")
            A(f"s_add_u32 s65, s60, {st*128 + (32*(q&1) + (q>>1))*1280}")
            vm(f"buffer_load_dwordx4 v247, s[36:39], s65 offen lds", f"d{st}")
    stamp(A, 5)
    dmaX(0)
    if isF:
        srd(A, 40, 24, D * DFF * 2)
        A("s_mul_i32 s59, s48, 55296")
        A("s_lshl_b32 s64, s54, 5")
        A("s_add_u32 s59, s59, s64")
        A("s_mul_i32 s61, s48, 7168")
        A(f"s_add_u32 s61, s61, {BUF}")
        for q in range(7):
            A(f"v_add_u32 v17, {64*q}, v0")
            divc(A, 18, 17, 28, 448)
            A("v_mul_u32_u24 v19, 28, v18")
            A("v_sub_u32 v19, v17, v19")
            A("v_lshrrev_b32 v17, 2, v18")
            A("v_and_b32 v17, 2, v17")
            A("v_xor_b32 v19, v19, v17")
            A("v_mul_u32_u24 v18, 3456, v18")
            A(f"v_lshl_add_u32 v{240+q}, v19, 4, v18")
            A(f"s_add_u32 m0, s61, {1024*q}")
            A("s_nop 0")
            vm(f"buffer_load_dwordx4 v{240+q}, s[40:43], s59 offen lds", "d0")
    else:
        A("s_cmp_lt_u32 s48, 2")
        A("s_cselect_b32 s64, s10, s12")
        A("s_cselect_b32 s65, s11, s13")
        srd(A, 40, 64, D * D * 2)
        A("v_xor_b32 v18, s52, v17")
        A("v_mul_u32_u24 v19, 1280, v3")
        A("v_lshl_add_u32 v240, v18, 4, v19")
        A("s_mul_i32 s59, s51, 80")
        A("s_mul_i32 s64, s53, 40")
        A("s_add_u32 s59, s59, s64")
        A("s_mul_i32 s59, s59, 1280")
        A("s_mul_i32 s61, s53, 10240")
        A("s_lshl_b32 s64, s52, 10")
        A("s_add_u32 s61, s61, s64")
        A(f"s_add_u32 s61, s61, {BUF}")
    def dmaA(st):
        bo = (st % 3) * STG
        tag = f"d{st}"
        if isF:
            A(f"s_add_u32 s65, s59, {st*64*3456}")
            for q in range(7):
                A(f"s_add_u32 m0, s61, {bo + 1024*q}")
                A("s_nop 0")
                vm(f"buffer_load_dwordx4 v{240+q}, s[40:43], s65 offen lds", tag)
        else:
            for q in range(5):
                A(f"s_add_u32 m0, s61, {bo + 2048*q}")
                A(f"s_add_u32 s65, s59, {st*128 + q*8*1280}")
                vm(f"buffer_load_dwordx4 v240, s[40:43], s65 offen lds", tag)
    def dma(st):
        dmaA(st); dmaX(st)
    if not isF: dmaA(0)
    stamp(A, 6)
    if "nodpf" not in DBG: A("s_barrier")
    dma(1)
    stamp(A, 7)
    A(f"v_mov_b32 v15, {OOB}")
    A("v_mov_b32 v26, 0")
    def s5():
        A("v_bfe_u32 v20, v0, 1, 4")
        A("v_and_b32 v21, 7, v20")
        A("s_lshl_b32 s57, s50, 3")
        A("v_add_u32 v21, s57, v21")
        A("s_lshl_b32 s57, s49, 7")
        A("s_add_u32 s57, s57, s51")
        A("v_lshl_add_u32 v22, v20, 3, s57")
        A("v_cmp_gt_u32 vcc, 32, v0")
        A("v_cndmask_b32 v25, v22, v21, vcc")
        A("v_lshlrev_b32 v25, 7, v25")
        A("v_and_b32 v20, 1, v0")
        A("v_lshl_add_u32 v25, v20, 4, v25")
        A(f"v_add_u32 v25, {WS_F3}, v25")
    def g1():
        vm("buffer_load_dwordx4 v[32:35], v25, s[44:47], 0 offen sc1", "fl")
    def g2():
        Lp = A.label("poll"); Lx = A.label("pollx"); Lc = A.label("pollc")
        A("s_mov_b32 s58, 200000")
        vm.wait("fl")
        A(f"s_branch {Lc}")
        A(f"{Lp}:")
        A("s_sleep 1")
        A("buffer_load_dwordx4 v[32:35], v25, s[44:47], 0 offen sc1")
        A("s_waitcnt vmcnt(0)")
        A(f"{Lc}:")
        A("v_cmp_ne_u64 vcc, v[32:33], v[28:29]")
        A("v_cmp_ne_u64 s[66:67], v[34:35], v[28:29]")
        A("s_or_b64 vcc, vcc, s[66:67]")
        A("s_cmp_eq_u64 vcc, 0")
        A(f"s_cbranch_scc1 {Lx}")
        A("s_sub_u32 s58, s58, 1")
        A("s_cmp_lg_u32 s58, 0")
        A(f"s_cbranch_scc1 {Lp}")
        A(f"{Lx}:")
        A("v_lshlrev_b32 v34, 4, v1")
        A("s_lshl_b32 s57, s50, 11")
        A(f"s_add_u32 s57, s57, {WS_STATS}")
        vm("buffer_load_dwordx4 v[36:39], v34, s[44:47], s57 offen sc1", "ga")
        A("v_lshlrev_b32 v35, 2, v1")
        if isF:
            A("s_mul_i32 s57, s51, 896")
            A(f"s_add_u32 s57, s57, {WS_WSP}")
            for sl_ in range(32):
                vm(f"buffer_load_dword v{40+sl_}, v35, s[44:47], s57 offen sc1", "ga")
                A(f"s_add_u32 s57, s57, {1792*4}")
        else:
            A("s_mul_i32 s57, s51, 640")
            A(f"s_add_u32 s57, s57, {WS_WSYO}")
            vm("buffer_load_dword v40, v35, s[44:47], s57 offen sc1", "ga")
    def g3():
        vm.wait("ga")
        A("v_cmp_gt_u32 vcc, 128, v1")
        A("s_and_saveexec_b64 s[66:67], vcc")
        A(f"ds_write_b128 v34, v[36:39] offset:{K1_STATS}")
        A("s_mov_b64 exec, s[66:67]")
        if isF:
            for sl_ in range(1, 32):
                A(f"v_add_f32 v40, v40, v{40+sl_}")
        A(f"v_cmp_gt_u32 vcc, {224 if isF else 160}, v1")
        A("s_and_saveexec_b64 s[66:67], vcc")
        A(f"ds_write_b32 v35, v40 offset:{K1_WS}")
        A("s_mov_b64 exec, s[66:67]")
    chunks = {}
    post = []
    if isF:
        def crep():
            Lq = A.label("cq")
            A("s_cmp_eq_u32 s52, 0")
            A(f"s_cbranch_scc1 {Lq}")
            srd(A, 68, 14, D * D * 2)
            sc = 80 if not STAMPS else 60
            srd(A, sc, 16, D * D * 2)
            for rd_ in range(2):
                R = 92 + 16 * rd_
                A("s_lshl_b32 s57, s50, 3")
                A("s_add_u32 s57, s57, s51")
                A("s_lshl_b32 s57, s57, 4")
                A("s_lshl_b32 s58, s53, 2")
                A("s_add_u32 s57, s57, s58")
                A(f"s_add_u32 s57, s57, {8*rd_}")
                A("v_add_u32 v10, s57, v5")
                divc(A, 11, 10, 40, 2048)
                A("v_mul_u32_u24 v12, 40, v11")
                A("v_sub_u32 v12, v10, v12")
                A("v_lshl_add_u32 v13, v11, 4, v6")
                A("v_mul_u32_u24 v13, 1280, v13")
                A("v_lshl_add_u32 v13, v12, 5, v13")
                A(f"buffer_load_dwordx4 v[{R}:{R+3}], v13, s[68:71], 0 offen")
                A(f"buffer_load_dwordx4 v[{R+4}:{R+7}], v13, s[68:71], 0 offen offset:16")
                A(f"buffer_load_dwordx4 v[{R+8}:{R+11}], v13, s[{sc}:{sc+3}], 0 offen")
                A(f"buffer_load_dwordx4 v[{R+12}:{R+15}], v13, s[{sc}:{sc+3}], 0 offen offset:16")
                divc(A, 14, 11, 5, 64)
                A("v_mul_u32_u24 v16, 5, v14")
                A("v_sub_u32 v16, v11, v16")
                A("v_mul_u32_u24 v14, 40, v14")
                A("v_add_u32 v14, v14, v12")
                A("v_mul_u32_u24 v14, 5120, v14")
                A("v_lshl_add_u32 v14, v16, 10, v14")
                A("v_lshl_add_u32 v14, v6, 4, v14")
                A("v_cmp_gt_u32 vcc, 1600, v10")
                A(f"v_cndmask_b32 v{17+rd_}, v15, v14, vcc")
            A("s_mov_b32 s57, 0x05040100")
            A("s_mov_b32 s58, 0x07060302")
            A(f"s_mov_b32 s65, {WS_CP}")
            A("s_waitcnt vmcnt(0)")
            for rd_ in range(2):
                R = 92 + 16 * rd_
                for c in range(8): A(f"v_xor_b32 v{R+8+c}, 0x80008000, v{R+8+c}")
                for g in range(4):
                    o = 40 + 16 * rd_ + 4 * g
                    A(f"v_perm_b32 v{o}, v{R+8+g}, v{R+g}, s57")
                    A(f"v_perm_b32 v{o+1}, v{R+8+g}, v{R+g}, s58")
                    A(f"v_perm_b32 v{o+2}, v{R+12+g}, v{R+4+g}, s57")
                    A(f"v_perm_b32 v{o+3}, v{R+12+g}, v{R+4+g}, s58")
                    A(f"buffer_store_dwordx4 v[{o}:{o+3}], v{17+rd_}, s[44:47], s65 offen offset:{256*g} sc1")
            A("s_waitcnt vmcnt(0)")
            A(f"{Lq}:")
            A("buffer_store_dwordx2 v[28:29], v27, s[44:47], s79 offen sc1")
        post = [lambda: A('s_barrier'), crep]
    else:
        def w2a():
            srd(A, 68, 26, D * DFF * 2)
            A("s_lshl_b32 s57, s50, 3")
            A("s_add_u32 s57, s57, s51")
            A("s_lshl_b32 s57, s57, 2")
            A("s_add_u32 s57, s57, s48")
            A("s_lshr_b32 s75, s57, 3")
            A("s_and_b32 s76, s57, 7")
            A("s_mul_i32 s58, s75, 40960")
            A("s_mul_i32 s57, s76, 160")
            A("s_add_u32 s58, s58, s57")
            A("s_mul_i32 s77, s48, 5120")
            A(f"s_add_u32 s77, s77, {K1Y_SCR}")
            for q in range(5):
                A(f"v_add_u32 v17, {64*q}, v0")
                divc(A, 18, 17, 10, 320)
                A("v_mul_u32_u24 v19, 10, v18")
                A("v_sub_u32 v19, v17, v19")
                A("v_mul_u32_u24 v18, 1280, v18")
                A("v_lshl_add_u32 v16, v19, 4, v18")
                A(f"s_add_u32 m0, s77, {1024*q}")
                A("s_nop 0")
                vm("buffer_load_dwordx4 v16, s[68:71], s58 offen lds", "w2")
        def w2b():
            A("v_lshrrev_b32 v17, 2, v6")
            A("v_lshl_add_u32 v17, v5, 2, v17")
            A("v_mul_u32_u24 v17, 160, v17")
            A("v_and_b32 v18, 3, v6")
            A("v_lshl_add_u32 v17, v18, 3, v17")
            A("v_add_u32 v17, s77, v17")
            vm.wait("w2")
            for m in range(5):
                for h in range(2):
                    A(f"ds_read_b64_tr_b16 v[{164+4*m+2*h}:{165+4*m+2*h}], v17 offset:{h*2560 + m*32}")
            A("s_mul_i32 s57, s76, 54")
            A("s_add_u32 s57, s57, s75")
            A("s_mul_i32 s57, s57, 5120")
            A(f"s_add_u32 s57, s57, {WS_W2P}")
            A("s_cmp_lt_u32 s75, 54")
            A(f"s_cselect_b32 s57, s57, {OOB}")
            A("v_lshlrev_b32 v18, 4, v0")
            A("v_add_u32 v19, 4096, v18")
            A("s_waitcnt lgkmcnt(0)")
            for m in range(5):
                vm(f"buffer_store_dwordx4 v[{164+4*m}:{167+4*m}], v18, s[44:47], s57 offen offset:{1024*m} sc1" if m < 4 else
                   f"buffer_store_dwordx4 v[{164+4*m}:{167+4*m}], v19, s[44:47], s57 offen sc1", "st2")
        def w2c():
            vm.wait("st2")
            vm("buffer_store_dwordx2 v[28:29], v27, s[44:47], s79 offen sc1", "fs")
        def lbk():
            Lq = A.label("lq")
            A("s_cmp_eq_u32 s52, 0")
            A(f"s_cbranch_scc1 {Lq}")
            A("v_min_u32 v8, 39, v0")
            A("s_mul_i32 s57, s53, 40")
            A("v_add_u32 v8, s57, v8")
            A("v_lshlrev_b32 v9, 3, v8")
            A(f"v_add_u32 v9, {K1_LE}, v9")
            A("v_mul_u32_u24 v10, 288, v8")
            A("s_mul_i32 s57, s51, 1280")
            A("v_lshlrev_b32 v11, 4, v8")
            A("v_add_u32 v11, s57, v11")
            A("s_mul_i32 s74, s50, 10240")
            A(f"s_add_u32 s74, s74, {WS_E}")
            A(f"ds_read_b64 v[72:73], v10 offset:{K1Y_T+128+8}")
            A(f"ds_read_b64 v[74:75], v10 offset:{K1Y_T+128+16}")
            A("s_barrier")
            Lp = A.label("lb"); Lx = A.label("lbx")
            A("ds_read_b64 v[64:65], v9")
            A("ds_read_b64 v[66:67], v9 offset:640")
            A("v_mov_b32 v82, v28")
            A("v_mov_b32 v83, v29")
            A("s_waitcnt lgkmcnt(0)")
            cmul_add(A, 80, 72, 64, 66)
            A("buffer_store_dwordx4 v[80:83], v11, s[44:47], s74 offen sc1")
            A("s_mov_b32 s75, 100000")
            A(f"{Lp}:")
            for i in range(15):
                A(f"s_sub_u32 s57, s50, {i+1}")
                A("s_mul_i32 s58, s57, 10240")
                A(f"s_add_u32 s58, s58, {WS_E}")
                A(f"s_cmp_gt_u32 s50, {i}")
                A(f"s_cselect_b32 s58, s58, {OOB}")
                A(f"buffer_load_dwordx4 v[{96+4*i}:{99+4*i}], v11, s[44:47], s58 offen sc1")
            A("s_waitcnt vmcnt(0)")
            A("s_mov_b64 vcc, 0")
            for i in range(15):
                A(f"v_cmp_ne_u64 s[70:71], v[{98+4*i}:{99+4*i}], v[28:29]")
                A(f"s_cmp_gt_u32 s50, {i}")
                A("s_cselect_b64 s[70:71], s[70:71], 0")
                A("s_or_b64 vcc, vcc, s[70:71]")
            A("s_cmp_eq_u64 vcc, 0")
            A(f"s_cbranch_scc1 {Lx}")
            A("s_sleep 1")
            A("s_sub_u32 s75, s75, 1")
            A("s_cmp_lg_u32 s75, 0")
            A(f"s_cbranch_scc1 {Lp}")
            A(f"{Lx}:")
            for i in range(13, -1, -1):
                cmul_add(A, 96 + 4 * i, 74, 96 + 4 * (i + 1), 96 + 4 * i)
            cmul_add(A, 84, 72, 96, 64)
            A("ds_write_b64 v9, v[96:97] offset:1280")
            A("ds_write_b64 v9, v[84:85] offset:1920")
            A("s_waitcnt lgkmcnt(0)")
            A("s_barrier")
            A(f"{Lq}:")
        chunks = {4: [w2a], 8: [w2b]}; post = [w2c, lbk]
    def n1():
        vm("global_load_dwordx2 v[28:29], v26, s[30:31] sc1", "nn")
    def n2():
        Lp = A.label("np"); Lx = A.label("npx"); Lc = A.label("npc")
        A("s_mov_b32 s58, 200000")
        vm.wait("nn")
        A(f"s_branch {Lc}")
        A(f"{Lp}:")
        A("s_sleep 1")
        A("global_load_dwordx2 v[28:29], v26, s[30:31] sc1")
        A("s_waitcnt vmcnt(0)")
        A(f"{Lc}:")
        A("v_readfirstlane_b32 s57, v28")
        A("s_cmp_lg_u32 s57, 0")
        A(f"s_cbranch_scc1 {Lx}")
        A("s_sub_u32 s58, s58, 1")
        A("s_cmp_lg_u32 s58, 0")
        A(f"s_cbranch_scc1 {Lp}")
        A(f"{Lx}:")
        A(f"ds_write_b64 v26, v[28:29] offset:{K1_NONCE}")
        A("s_lshl_b32 s57, s49, 7")
        A("s_lshl_b32 s58, s50, 3")
        A("s_add_u32 s57, s57, s58")
        A("s_add_u32 s57, s57, s51")
        A("s_lshl_b32 s57, s57, 5")
        A("s_lshl_b32 s58, s48, 3")
        A("s_add_u32 s57, s57, s58")
        A(f"s_add_u32 s79, s57, {WS_F1}")
        A("v_cmp_eq_u32 vcc, 0, v0")
        A("v_cndmask_b32 v27, v15, v26, vcc")
    sched = ((1, n1), (2, n2), (3, s5), (GI, g1), (GI + 1, g2))
    for k, f in sched:
        chunks.setdefault(k, []).append(f)
    vm.wait("d0")
    stamp(A, 1)
    A("s_barrier")
    for j in range(9):
        if j + 2 <= 9: dma(j + 2)
        for f in chunks.get(j, []): f()
        vm.wait(f"d{j+1}", "lgkmcnt(0)")
        A("s_barrier")
    stamp(A, 2)
    g3()
    A("s_waitcnt lgkmcnt(0)")
    stamp(A, 3)
    stamp(A, 4)
    A("s_barrier")
    for f in post: f()

def k1_side(A, isF):
    if isF:
        yield
    else:
        divc(A, 9, 1, 80, 256)
        A("v_mul_u32_u24 v10, 80, v9")
        A("v_sub_u32 v10, v1, v10")
        A("s_mul_i32 s57, s51, 80")
        A("v_add_u32 v11, s57, v10")
        A("v_lshlrev_b32 v11, 1, v11")
        A("global_load_ushort v92, v11, s[6:7]")
        A("global_load_ushort v93, v11, s[8:9]")
        A("global_load_ushort v94, v11, s[18:19]")
        yield
        A("s_waitcnt vmcnt(36)")
        for r in (92, 93, 94): A(f"v_lshlrev_b32 v{r}, 16, v{r}")
        A(f"v_mul_f32 v94, {hexf(LOG2E)}, v94")
        A("v_exp_f32 v94, v94")
        bf16r(A, 94)
        A("v_mul_f32 v95, v94, v92")
        A("v_mul_f32 v96, v94, v93")
        A(f"v_mul_f32 v95, {hexf(LOG2E)}, v95")
        A(f"v_mul_f32 v96, {hexf(INV2PI)}, v96")
        A("v_mul_u32_u24 v97, 288, v10")
        A("v_lshl_add_u32 v97, v9, 3, v97")
        A("v_cmp_gt_u32 vcc, 240, v1")
        A("s_and_saveexec_b64 s[66:67], vcc")
        for r in range(11):
            A(f"v_add_u32 v98, {3*r}, v9")
            A("v_lshlrev_b32 v99, 2, v98")
            A("v_lshlrev_b32 v100, 6, v98")
            A("v_subrev_u32 v100, 1024, v100")
            A("v_cmp_gt_u32 vcc, 16, v98")
            A("v_cndmask_b32 v99, v100, v99, vcc")
            A("v_cvt_f32_u32 v99, v99")
            A("v_mul_f32 v100, v99, v95")
            A("v_mul_f32 v101, v99, v96")
            A("v_exp_f32 v100, v100")
            A("v_fract_f32 v101, v101")
            A("v_cos_f32 v102, v101")
            A("v_sin_f32 v103, v101")
            A("v_mul_f32 v102, v100, v102")
            A("v_mul_f32 v103, v100, v103")
            A(f"ds_write_b64 v97, v[102:103] offset:{K1Y_T+24*r}")
        A("s_mov_b64 exec, s[66:67]")
        A("v_exp_f32 v100, v95")
        A("v_fract_f32 v101, v96")
        A("v_cos_f32 v102, v101")
        A("v_sin_f32 v103, v101")
        A("v_mul_f32 v102, v100, v102")
        A("v_mul_f32 v103, v100, v103")
        A("v_add_f32 v98, -1.0, v102")
        A("v_mul_f32 v99, v92, v92")
        A("v_fmac_f32 v99, v93, v93")
        A("v_rcp_f32 v100, v99")
        A("v_fma_f32 v101, -v99, v100, 1.0")
        A("v_fma_f32 v100, v101, v100, v100")
        A("v_add_f32 v100, v100, v100")
        A("v_mul_f32 v104, v98, v92")
        A("v_fmac_f32 v104, v103, v93")
        A("v_mul_f32 v105, v103, v92")
        A("v_fma_f32 v105, -v98, v93, v105")
        A("v_mul_f32 v104, v104, v100")
        A("v_mul_f32 v105, v105, v100")
        A("v_cmp_gt_u32 vcc, 80, v1")
        A("s_and_saveexec_b64 s[66:67], vcc")
        A(f"ds_write_b128 v97, v[102:105] offset:{K1Y_T+272}")
        A("s_mov_b64 exec, s[66:67]")
    A("s_waitcnt lgkmcnt(0)")
    yield

def k1_prefetch_setup(A, isF):
    A("s_and_b32 s57, s2, 3")
    A("s_lshl_b32 s57, s57, 9")
    A("s_lshl_b32 s59, s35, 4")
    A("s_add_u32 s57, s57, s59")
    A("s_mul_i32 s57, s57, 1280")
    A("v_lshrrev_b32 v10, 2, v0")
    A("v_and_b32 v11, 3, v0")
    A("v_mul_u32_u24 v10, 1280, v10")
    A("v_lshl_add_u32 v10, v11, 7, v10")
    A("s_mul_i32 s58, s53, 384")
    A("s_add_u32 s66, s57, s58")
    A("s_add_u32 s66, s66, 384")
    if isF:
        srd(A, 40, 24, D * DFF * 2)
        A("v_min_u32 v11, 53, v0")
        A("v_lshlrev_b32 v11, 7, v11")
        A("s_mul_i32 s67, s35, 6912")
        A("s_add_u32 s58, s48, 3")
        A(f"s_mul_i32 s58, s58, {64*3456}")
        A("s_add_u32 s67, s67, s58")
        A(f"s_add_u32 s68, s67, {4*64*3456}")
    else:
        A("s_cmp_lt_u32 s48, 2")
        A("s_cselect_b32 s64, s10, s12")
        A("s_cselect_b32 s65, s11, s13")
        srd(A, 40, 64, D * D * 2)
        divc(A, 12, 0, 20, 64)
        A("v_mul_u32_u24 v13, 20, v12")
        A("v_sub_u32 v13, v0, v13")
        A("v_min_u32 v12, 2, v12")
        A("v_mul_u32_u24 v13, 1280, v13")
        A("v_lshl_add_u32 v11, v12, 7, v13")
        A("s_mul_i32 s67, s35, 25600")
        A("s_mul_i32 s58, s53, 384")
        A("s_add_u32 s68, s67, 896")
        A("s_add_u32 s67, s67, s58")
        A("s_add_u32 s67, s67, 384")
def k1_prefetch(A, isF, batch):
    if "nopf" in DBG: return
    if batch == 0:
        A("buffer_load_dword v12, v11, s[40:43], s67 offen")
        A("buffer_load_dword v13, v10, s[36:39], s66 offen")
    else:
        A("buffer_load_dword v12, v11, s[40:43], s68 offen")

def k1_compute(A, isF):
    ACC = 128; FRAG = 32
    MT = 7 if isF else 5; NT = 4
    STG = K1F_STAGE if isF else K1Y_STAGE
    BUF = K1F_BUF if isF else K1Y_BUF
    ASZ = 28672 if isF else 20480
    side = k1_side(A, isF) if "noside" not in DBG else iter([0, 0])
    next(side)
    AB = 232; BB = 244
    if isF:
        A("v_lshrrev_b32 v17, 2, v6")
        A("v_lshl_add_u32 v17, v5, 3, v17")
        A("v_mul_u32_u24 v17, 448, v17")
        A("v_and_b32 v18, 3, v6")
        A("v_lshl_add_u32 v17, v18, 3, v17")
        A("s_mul_i32 s57, s52, 224")
        A(f"s_add_u32 s57, s57, {BUF}")
        A("v_add_u32 v17, s57, v17")
        A("v_and_b32 v18, 1, v5")
        A("v_lshlrev_b32 v18, 5, v18")
        A("v_add_u32 v19, v17, v18")
        A("v_sub_u32 v17, v17, v18")
        A("s_cmp_eq_u32 s52, 0")
        A("s_cselect_b64 vcc, -1, 0")
        AB = 240; BB = 246
        A(f"v_cndmask_b32 v{AB}, v17, v19, vcc")
        A(f"v_cndmask_b32 v{AB+1}, v19, v17, vcc")
    else:
        A("v_and_b32 v17, 1, v6")
        A("v_lshrrev_b32 v18, 1, v6")
        A("v_lshl_add_u32 v19, v17, 3, v18")
        A("v_xor_b32 v17, v17, v18")
        A("v_xor_b32 v17, v17, v5")
        A("v_lshlrev_b32 v19, 7, v19")
        A("v_lshl_add_u32 v19, v17, 4, v19")
        A("s_mul_i32 s57, s52, 10240")
        A(f"s_add_u32 s57, s57, {BUF}")
        AB = 240; BB = 246
        A(f"v_add_u32 v{AB}, s57, v19")
        A(f"v_xor_b32 v{AB+1}, 64, v{AB}")
    A("v_and_b32 v18, 7, v0")
    A("v_xor_b32 v18, v18, v5")
    A("v_lshlrev_b32 v17, 7, v6")
    A("s_lshl_b32 s57, s53, 13")
    A(f"s_add_u32 s57, s57, {ASZ+BUF}")
    A("v_add_u32 v17, s57, v17")
    A(f"v_lshl_add_u32 v{BB}, v18, 4, v17")
    A(f"v_xor_b32 v{BB+1}, 64, v{BB}")
    for b in (1, 2):
        for i in range(2):
            A(f"v_add_u32 v{AB+2*b+i}, {b*STG}, v{AB+i}")
            A(f"v_add_u32 v{BB+2*b+i}, {b*STG}, v{BB+i}")
    for r in range(MT * NT * 4):
        A(f"v_mov_b32 v{ACC+r}, 0")
    fA = lambda st, m: FRAG + st * (MT + NT) * 4 + m * 4
    fB = lambda st, n: FRAG + st * (MT + NT) * 4 + MT * 4 + n * 4
    accr = lambda m, n: ACC + (m * NT + n) * 4
    def reads(stage, kk):
        b = stage % 3; st = kk
        out = []
        for n in range(NT):
            out.append(f"ds_read_b128 {vr(fB(st,n),4)}, v{BB+2*b+kk} offset:{n*2048}")
        for m in range(MT):
            if isF:
                for h in range(2):
                    out.append(f"ds_read_b64_tr_b16 {vr(fA(st,m)+2*h,2)}, v{AB+2*b+(m&1)} offset:{(32*kk+4*h)*448 + m*32}")
            else:
                out.append(f"ds_read_b128 {vr(fA(st,m),4)}, v{AB+2*b+kk} offset:{m*2048}")
        return out
    def mfmas(st):
        return [f"v_mfma_f32_16x16x32_bf16 {vr(accr(m,n),4)}, {vr(fA(st,m),4)}, {vr(fB(st,n),4)}, {vr(accr(m,n),4)}"
                for m in range(MT) for n in range(NT)]
    vm = VM(A)
    A(f"v_mov_b32 v15, {OOB}")
    A("v_mov_b32 v26, 0")
    A("v_lshlrev_b32 v2, 2, v0")
    Lsk = A.label("sk")
    if isF:
        srd(A, 40, 24, D * DFF * 2)
        divc(A, 7, 0, 28, 64)
        A("v_mul_u32_u24 v8, 28, v7")
        A("v_sub_u32 v8, v0, v8")
        A("v_min_u32 v7, 1, v7")
        A("s_mov_b32 s57, 34560")
        A("v_mul_lo_u32 v12, v7, s57")
        A("v_lshl_add_u32 v12, v8, 4, v12")
        A("s_mul_i32 s57, s50, 138240")
        A("s_mul_i32 s58, s53, 69120")
        A("s_add_u32 s57, s57, s58")
        A("s_lshl_b32 s58, s54, 5")
        A("s_add_u32 s57, s57, s58")
        A("s_barrier")
        A("global_load_dwordx2 v[28:29], v26, s[30:31] sc1")
        A("s_cmp_lg_u32 s52, 0")
        A(f"s_cbranch_scc1 {Lsk}")
        for r in range(10):
            A(f"buffer_load_dwordx4 v[{40+4*r}:{43+4*r}], v12, s[40:43], s57 offen")
            A("s_add_u32 s57, s57, 3456")
        A("s_waitcnt vmcnt(0)")
        for c in range(4):
            A(f"v_lshlrev_b32 v{108+2*c}, 16, v{40+c}")
            A(f"v_and_b32 v{109+2*c}, 0xffff0000, v{40+c}")
        for r in range(1, 10):
            for c in range(4):
                A(f"v_lshlrev_b32 v116, 16, v{40+4*r+c}")
                A(f"v_and_b32 v117, 0xffff0000, v{40+4*r+c}")
                A(f"v_add_f32 v{108+2*c}, v{108+2*c}, v116")
                A(f"v_add_f32 v{109+2*c}, v{109+2*c}, v117")
        A("s_lshl_b32 s57, s53, 11")
        A("v_lshlrev_b32 v12, 5, v0")
        A("v_add_u32 v12, s57, v12")
        A(f"ds_write_b128 v12, v[108:111] offset:{K1F_RED}")
        A(f"ds_write_b128 v12, v[112:115] offset:{K1F_RED+16}")
        A("v_lshlrev_b32 v13, 4, v0")
        A("v_add_u32 v12, s57, v13")
        A("s_waitcnt lgkmcnt(0)")
        A(f"ds_read_b128 v[108:111], v12 offset:{K1F_RED}")
        A(f"ds_read_b128 v[112:115], v12 offset:{K1F_RED+896}")
        A("v_cmp_gt_u32 vcc, 56, v0")
        A("v_cndmask_b32 v13, v15, v13, vcc")
        A("s_lshl_b32 s57, s50, 1")
        A("s_add_u32 s57, s57, s53")
        A("s_mul_i32 s57, s57, 1792")
        A("s_mul_i32 s58, s51, 224")
        A("s_add_u32 s57, s57, s58")
        A("s_lshl_b32 s57, s57, 2")
        A(f"s_add_u32 s57, s57, {WS_WSP}")
        A("s_waitcnt lgkmcnt(0)")
        A("v_pk_add_f32 v[108:109], v[108:109], v[112:113]")
        A("v_pk_add_f32 v[110:111], v[110:111], v[114:115]")
        A("buffer_store_dwordx4 v[108:111], v13, s[44:47], s57 offen sc1")
        A(f"{Lsk}:")

    else:
        A("s_cmp_lt_u32 s48, 2")
        A("s_cselect_b32 s64, s10, s12")
        A("s_cselect_b32 s65, s11, s13")
        srd(A, 40, 64, D * D * 2)
        A("s_mul_i32 s57, s51, 80")
        A("s_mul_i32 s58, s50, 5")
        A("s_add_u32 s57, s57, s58")
        A("s_mul_i32 s58, s53, 3")
        A("s_add_u32 s72, s57, s58")
        A("s_lshl_b32 s59, s51, 4")
        A("s_lshl_b32 s58, s50, 7")
        A("s_add_u32 s59, s59, s58")
        A("s_lshl_b32 s58, s48, 2")
        A("s_add_u32 s63, s59, s58")
        A("s_mul_i32 s59, s63, 1280")
        A("s_barrier")
        for r in range(4):
            for i in range(5): A(f"buffer_load_dword v{208+5*r+i}, v2, s[36:39], s59 offen offset:{256*i}")
            A("s_add_u32 s59, s59, 1280")
        A("s_mul_i32 s57, s72, 1280")
        for r in range(3):
            for i in range(5): A(f"buffer_load_dword v{72+5*r+i}, v2, s[40:43], s57 offen offset:{256*i}")
            A("s_add_u32 s57, s57, 1280")
        A("global_load_dwordx2 v[28:29], v26, s[30:31] sc1")
    next(side)
    if not isF:
        A("s_waitcnt vmcnt(0)")
        stats_compute(A, vm, 208)
        A("s_add_u32 s63, s63, 2")
        stats_compute(A, vm, 218)
        A("s_mov_b32 s57, 0x3f803f80")
        for r in range(3): A(f"v_mov_b32 v{108+r}, 0")
        for i in range(5):
            for r in range(3): A(f"v_dot2_f32_bf16 v{108+r}, v{72+5*r+i}, s57, v{108+r}")
        A("s_nop 3")
        wave_sum(A, [108, 109, 110])
        A("v_cmp_eq_u32 vcc, 63, v0")
        A("v_cndmask_b32 v12, v15, v26, vcc")
        A("s_lshl_b32 s57, s72, 1")
        A("s_add_u32 s57, s57, s52")
        A("s_lshl_b32 s57, s57, 2")
        A(f"s_add_u32 s57, s57, {WS_WSYO}")
        A("buffer_store_dword v108, v12, s[44:47], s57 offen sc1")
        A("buffer_store_dword v109, v12, s[44:47], s57 offen offset:8 sc1")
        A("s_cmp_eq_u32 s53, 0")
        A(f"s_cselect_b32 s57, s57, {OOB}")
        A("buffer_store_dword v110, v12, s[44:47], s57 offen offset:16 sc1")
    A("v_cmp_eq_u32 vcc, 0, v0")
    A("v_cndmask_b32 v16, v15, v26, vcc")
    A("s_lshl_b32 s57, s49, 7")
    A("s_lshl_b32 s58, s50, 3")
    A("s_add_u32 s57, s57, s58")
    A("s_add_u32 s57, s57, s51")
    A("s_lshl_b32 s57, s57, 7")
    A("s_lshl_b32 s58, s48, 3")
    A("s_add_u32 s57, s57, s58")
    A(f"s_add_u32 s76, s57, {WS_F3}")
    stamp(A, 1)
    A("s_barrier")
    stamp(A, 2)
    for r in reads(0, 0): A(r)
    PRE = 3
    for j in range(10):
        A("s_waitcnt lgkmcnt(0)")
        mf = mfmas(0); rd = reads(j, 1)
        for i, m in enumerate(mf):
            A(m)
            if i < len(rd): A(rd[i])
        A("s_waitcnt lgkmcnt(0)")
        mf = mfmas(1)
        if j < 9:
            rd = reads(j + 1, 0)
            for m in mf[:PRE]: A(m)
            if j == 1:
                A("s_waitcnt vmcnt(0)")
                Lp = A.label("np"); Lx = A.label("npx")
                A("s_mov_b32 s58, 200000")
                A(f"{Lp}:")
                A("v_readfirstlane_b32 s57, v28")
                A("s_cmp_lg_u32 s57, 0")
                A(f"s_cbranch_scc1 {Lx}")
                A("s_sleep 1")
                A("global_load_dwordx2 v[28:29], v26, s[30:31] sc1")
                A("s_waitcnt vmcnt(0)")
                A("s_sub_u32 s58, s58, 1")
                A("s_cmp_lg_u32 s58, 0")
                A(f"s_cbranch_scc1 {Lp}")
                A(f"{Lx}:")
                A("buffer_store_dwordx2 v[28:29], v16, s[44:47], s76 offen sc1")
            A("s_barrier")
            for i, m in enumerate(mf[PRE:]):
                if i < len(rd): A(rd[i])
                A(m)
        else:
            for m in mf: A(m)
    stamp(A, 3)
    A("s_waitcnt vmcnt(0)")
    A("s_barrier")
    stamp(A, 4)
    if isF: k1F_epilogue(A, ACC)
    else: k1Y_epilogue(A, ACC)

def frag_store_plan(ntiles, parity):
    plan = []
    t = 0
    if parity == 1:
        plan.append(("single", [0], 0, 1)); t = 1
    while t + 1 < ntiles:
        plan.append(("pair", [t, t + 1], (t + parity) // 2, 0)); t += 2
    if t < ntiles:
        plan.append(("single", [t], (t + parity) // 2, 0))
    return plan

def k1F_epilogue(A, ACC):
    A("s_lshl_b32 s57, s53, 10")
    A("v_lshlrev_b32 v17, 6, v6")
    A("v_add_u32 v17, s57, v17")
    for n in range(4):
        A(f"ds_read_b64 v[{32+2*n}:{33+2*n}], v17 offset:{K1_STATS+16*n}")
    A("s_mul_i32 s57, s52, 448")
    A("v_lshlrev_b32 v18, 4, v5")
    A("v_add_u32 v18, s57, v18")
    for m in range(7):
        A(f"ds_read_b128 v[{40+4*m}:{43+4*m}], v18 offset:{K1_WS+64*m}")
    A("s_lshr_b32 s57, s54, 1")
    A("s_mul_i32 s58, s50, 54")
    A("s_add_u32 s57, s57, s58")
    A("s_lshl_b32 s57, s57, 3")
    A("s_lshl_b32 s58, s53, 2")
    A("s_add_u32 s57, s57, s58")
    A("s_lshl_b32 s57, s57, 10")
    A(f"s_add_u32 s65, s57, {WS_HF}")
    A("v_lshlrev_b32 v17, 4, v0")
    A("s_lshl_b32 s57, s53, 11")
    A(f"s_add_u32 s57, s57, {K1_LE}")
    A("v_lshlrev_b32 v19, 3, v0")
    A("v_add_u32 v19, s57, v19")
    A("s_waitcnt lgkmcnt(0)")
    def conv(m, n, dst):
        a = ACC + (m * 4 + n) * 4
        w = 40 + 4 * m; st = 32 + 2 * n
        for hh in range(2):
            A(f"v_pk_fma_f32 {vr(a+2*hh,2)}, {vr(w+2*hh,2)}, {vr(st,2)}, {vr(a+2*hh,2)} op_sel:[0,0,0] op_sel_hi:[1,0,1] neg_lo:[1,0,0] neg_hi:[1,0,0]")
        for hh in range(2):
            A(f"v_pk_mul_f32 {vr(a+2*hh,2)}, {vr(a+2*hh,2)}, {vr(st,2)} op_sel:[0,1] op_sel_hi:[1,1]")
        for hh in range(2):
            A(f"v_cvt_pk_bf16_f32 v{dst+hh}, v{a+2*hh}, v{a+2*hh+1}")
        for hh in range(2):
            A(f"v_pk_max_i16 v{dst+hh}, v{dst+hh}, 0")
    L1 = A.label("ep1"); L2 = A.label("epx")
    A("s_cmp_lg_u32 s52, 0")
    A(f"s_cbranch_scc1 {L1}")
    for n in range(4):
        conv(6, n, 72 + 2 * n)
        A(f"ds_write_b64 v19, v[{72+2*n}:{73+2*n}] offset:{512*n}")
    A("s_waitcnt lgkmcnt(0)")
    A("s_barrier")
    cnt = 0
    for p in range(3):
        A(f"s_add_u32 s57, s65, {p*8192}")
        for n in range(4):
            t = 80 + 4 * (cnt % 4); cnt += 1
            conv(2 * p, n, t); conv(2 * p + 1, n, t + 2)
            A(f"buffer_store_dwordx4 v[{t}:{t+3}], v17, s[44:47], s57 offen offset:{1024*n} sc1")
    A(f"s_branch {L2}")
    A(f"{L1}:")
    for n in range(4): conv(0, n, 98 + 4 * n)
    A("s_barrier")
    for n in range(4): A(f"ds_read_b64 v[{96+4*n}:{97+4*n}], v19 offset:{512*n}")
    for p in range(3):
        A(f"s_add_u32 s57, s65, {(4+p)*8192}")
        if p == 2:
            A("s_cmp_lt_u32 s51, 6")
            A(f"s_cselect_b32 s57, s57, {OOB}")
        for n in range(4):
            t = 80 + 4 * (cnt % 4); cnt += 1
            conv(2 * p + 1, n, t); conv(2 * p + 2, n, t + 2)
            A(f"buffer_store_dwordx4 v[{t}:{t+3}], v17, s[44:47], s57 offen offset:{1024*n} sc1")
        if p == 0:
            A(f"s_add_u32 s57, s65, {3*8192}")
            A("s_waitcnt lgkmcnt(0)")
            for n in range(4):
                A(f"buffer_store_dwordx4 v[{96+4*n}:{99+4*n}], v17, s[44:47], s57 offen offset:{1024*n} sc1")
    A(f"{L2}:")
    for i in (5, 6, 7): stamp(A, i)

def k1Y_epilogue(A, ACC):
    ST = 32; WSR = 40; P = 208; TB = 60
    A("s_lshl_b32 s57, s53, 10")
    A("v_lshlrev_b32 v17, 6, v6")
    A("v_add_u32 v17, s57, v17")
    for n in range(4):
        A(f"ds_read_b64 v[{ST+2*n}:{ST+2*n+1}], v17 offset:{K1_STATS+16*n}")
    A("v_mov_b32 v17, 0")
    A(f"ds_read_b64 v[30:31], v17 offset:{K1_NONCE}")
    A("s_mul_i32 s57, s52, 320")
    A("v_lshlrev_b32 v18, 4, v5")
    A("v_add_u32 v18, s57, v18")
    for m in range(5):
        A(f"ds_read_b128 v[{WSR+4*m}:{WSR+4*m+3}], v18 offset:{K1_WS+64*m}")
    A("s_mul_i32 s57, s52, 11520")
    A("v_mul_u32_u24 v19, 576, v5")
    A("v_add_u32 v19, s57, v19")
    A("v_lshl_add_u32 v20, v6, 3, v19")
    A("s_mul_i32 s57, s53, 640")
    A("s_mul_i32 s58, s52, 320")
    A("s_add_u32 s57, s57, s58")
    A(f"s_add_u32 s57, s57, {K1_LE}")
    A("v_lshlrev_b32 v21, 4, v5")
    A("v_add_u32 v21, s57, v21")
    A("v_lshlrev_b32 v22, 4, v0")
    A(f"v_add_u32 v22, {K1_LE+2560}, v22")
    A("v_cmp_eq_u32 vcc, 15, v6")
    A("v_cndmask_b32 v22, v22, v21, vcc")
    A("v_sub_u32 v23, 15, v6")
    A("v_lshl_add_u32 v23, v23, 3, v19")
    ta = lambda m, q: 60 + 8 * m + 4 * q
    for m in range(5):
        for q in range(2):
            o = K1Y_T + (8 * m + q) * 288
            A(f"ds_read_b64 v[{ta(m,q)}:{ta(m,q)+1}], v19 offset:{o+272}")
            A(f"ds_read_b64 v[{ta(m,q)+2}:{ta(m,q)+3}], v23 offset:{o}")
        if m == 1: A("s_waitcnt lgkmcnt(8)")
    for m in range(5):
        for n in range(4):
            for q in range(2):
                u = ACC + (m * 4 + n) * 4 + 2 * q; w = WSR + 4 * m + 2 * q; st = ST + 2 * n
                A(f"v_pk_fma_f32 {vr(u,2)}, {vr(w,2)}, {vr(st,2)}, {vr(u,2)} op_sel:[0,0,0] op_sel_hi:[1,0,1] neg_lo:[1,0,0] neg_hi:[1,0,0]")
            for q in range(2):
                u = ACC + (m * 4 + n) * 4 + 2 * q; st = ST + 2 * n
                A(f"v_pk_mul_f32 {vr(u,2)}, {vr(u,2)}, {vr(st,2)} op_sel:[0,1] op_sel_hi:[1,1]")
    A("s_waitcnt lgkmcnt(0)")
    Z = 100
    for n in range(1, 4):
        for m in range(5):
            for q in range(2):
                e = P + 4 * m + 2 * q; z = Z + 4 * m + 2 * q
                prev = (ACC + (m * 4) * 4 + 2 * q) if n == 1 else (e if n == 2 else z)
                dst = e if n in (1, 3) else z
                cmul_add(A, dst, ta(m, q), prev, ACC + (m * 4 + n) * 4 + 2 * q)
    for m in range(5):
        for q in range(2):
            cmul(A, Z + 4 * m + 2 * q, ta(m, q) + 2, P + 4 * m + 2 * q)
    for k in (8, 4, 2, 1):
        for r in range(20):
            A(f"v_add_f32_dpp v{Z+r}, v{Z+r}, v{Z+r} row_ror:{k} row_mask:0xf bank_mask:0xf")
    for m in range(5):
        A(f"ds_write_b128 v22, v[{Z+4*m}:{Z+4*m+3}] offset:{64*m}")
    A("s_waitcnt lgkmcnt(0)")
    stamp(A, 5)
    A("s_barrier")
    tbb = lambda m, q: (100 if (m & 1) == 0 else 228) + 12 * q
    def load_tabB(m):
        for q in range(2):
            o = K1Y_T + (8 * m + q) * 288; b = tbb(m, q)
            A(f"ds_read_b64 v[{b}:{b+1}], v19 offset:{o+280}")
            A(f"ds_read_b64 v[{b+2}:{b+3}], v19 offset:{o+8}")
            A(f"ds_read_b64 v[{b+4}:{b+5}], v19 offset:{o+16}")
            A(f"ds_read_b64 v[{b+6}:{b+7}], v19 offset:{o+32}")
            A(f"ds_read_b64 v[{b+8}:{b+9}], v19 offset:{o+64}")
            A(f"ds_read_b64 v[{b+10}:{b+11}], v20 offset:{o}")
    load_tabB(0)
    A("s_mul_i32 s57, s51, 5")
    A("s_lshl_b32 s58, s52, 1")
    A("s_add_u32 s57, s57, s58")
    A("s_mul_i32 s58, s50, 40")
    A("s_add_u32 s57, s57, s58")
    A("s_lshl_b32 s57, s57, 3")
    A("s_lshl_b32 s58, s53, 2")
    A("s_add_u32 s57, s57, s58")
    A("s_lshl_b32 s57, s57, 10")
    A(f"s_add_u32 s65, s57, {WS_H1}")
    A("v_lshlrev_b32 v27, 4, v0")
    TMP = 124
    for m in range(5):
        A("s_waitcnt lgkmcnt(0)")
        if m < 4: load_tabB(m + 1)
        for ki, k in enumerate((1, 2, 4, 8)):
            for q in range(2):
                e = P + 4 * m + 2 * q; t0 = TMP + 2 * q
                A(f"v_mov_b32_dpp v{t0}, v{e} row_shr:{k} row_mask:0xf bank_mask:0xf bound_ctrl:0")
                A(f"v_mov_b32_dpp v{t0+1}, v{e+1} row_shr:{k} row_mask:0xf bank_mask:0xf bound_ctrl:0")
            for q in range(2):
                e = P + 4 * m + 2 * q; t0 = TMP + 2 * q
                cmul_add(A, e, tbb(m, q) + 2 + 2 * ki, t0, e)
        for q in range(2):
            e = P + 4 * m + 2 * q; t0 = TMP + 2 * q
            A(f"v_mov_b32_dpp v{t0}, v{e} row_shr:1 row_mask:0xf bank_mask:0xf bound_ctrl:0")
            A(f"v_mov_b32_dpp v{t0+1}, v{e+1} row_shr:1 row_mask:0xf bank_mask:0xf bound_ctrl:0")
        for q in range(2):
            cmul(A, P + 4 * m + 2 * q, tbb(m, q), TMP + 2 * q)
            cmul(A, ta(m, q) + 2, tbb(m, q), tbb(m, q) + 10)
        for n in range(4):
            for q in range(2):
                u = ACC + (m * 4 + n) * 4 + 2 * q; t0 = TMP + 2 * q
                A(f"v_pk_mul_f32 {vr(t0,2)}, {vr(tbb(m,q),2)}, {vr(u,2)} op_sel:[0,0] op_sel_hi:[0,1]")
                A(f"v_pk_fma_f32 {vr(u,2)}, {vr(tbb(m,q),2)}, {vr(u,2)}, {vr(t0,2)} op_sel:[1,1,0] op_sel_hi:[1,0,1] neg_lo:[1,0,0]")
    A("s_waitcnt lgkmcnt(0)")
    A("s_barrier")
    stamp(A, 6)
    for m in range(5):
        A(f"ds_read_b128 v[{100+4*m}:{103+4*m}], v21 offset:{1280+64*m}")
    A("s_waitcnt lgkmcnt(0)")
    for m in range(5):
        for q in range(2):
            cmul_add(A, P + 4 * m + 2 * q, ta(m, q) + 2, 100 + 4 * m + 2 * q, P + 4 * m + 2 * q)
    for n in range(4):
        for m in range(5):
            for q in range(2):
                u = ACC + (m * 4 + n) * 4 + 2 * q
                prev = (P + 4 * m + 2 * q) if n == 0 else u - 4
                cmul_add(A, u, ta(m, q), prev, u)
    stamp(A, 7)
    L1 = A.label("ey1"); L2 = A.label("eyx")
    A("s_cmp_lg_u32 s52, 0")
    A(f"s_cbranch_scc1 {L1}")
    for parity in (0, 1):
        if parity == 1: A(f"{L1}:")
        cnt = 0
        for kind, tl, ks, half in frag_store_plan(5, parity):
            A(f"s_add_u32 s57, s65, {ks*8192}")
            for n in range(4):
                t = 32 + 4 * (cnt % 8); cnt += 1
                for x, m in enumerate(tl):
                    u = ACC + (m * 4 + n) * 4
                    A(f"v_cvt_pk_bf16_f32 v{t+2*x}, v{u}, v{u+1}")
                    A(f"v_cvt_pk_bf16_f32 v{t+2*x+1}, v{u+2}, v{u+3}")
                if kind == "pair":
                    A(f"buffer_store_dwordx4 v[{t}:{t+3}], v27, s[44:47], s57 offen offset:{1024*n} sc1")
                else:
                    if "nosingle" not in DBG: A(f"buffer_store_dwordx2 v[{t}:{t+1}], v27, s[44:47], s57 offen offset:{1024*n + 8*half} sc1")
        if parity == 0: A(f"s_branch {L2}")
    A(f"{L2}:")

K2_NR = 7
K2_R0 = 26112
K2_BOFF = K2_R0 + K2_NR * 10240
K2_NST = 47
NSF = 27

def p2_ids(A):
    A("s_lshl_b32 s57, s49, 7")
    A("s_lshl_b32 s58, s50, 3")
    A("s_add_u32 s57, s57, s58")
    A("s_add_u32 s57, s57, s51")
    A("s_lshl_b32 s57, s57, 7")
    A("s_lshl_b32 s58, s48, 3")
    A("s_add_u32 s57, s57, s58")
    A(f"s_add_u32 s77, s57, {WS_F2}")
    A("s_mov_b32 s78, s49")
    A("s_and_b32 s57, s2, 3")
    A("s_bfe_u32 s58, s2, 0x10002")
    A("s_lshr_b32 s59, s35, 2")
    A("s_lshl_b32 s50, s57, 2")
    A("s_lshr_b32 s57, s59, 1")
    A("s_add_u32 s50, s50, s57")
    A("s_and_b32 s49, s59, 1")
    A("s_lshl_b32 s51, s58, 2")
    A("s_and_b32 s57, s35, 3")
    A("s_add_u32 s51, s51, s57")
    A("v_lshlrev_b32 v10, 4, v0")

def spin_flags(A, loads, regs, vm=None, iters=400000, first_wait=None):
    Lp = A.label("sp"); Lx = A.label("spx")
    A(f"s_mov_b32 s70, {iters}")
    Lc = A.label("spc")
    if first_wait:
        first_wait()
        A(f"s_branch {Lc}")
    A(f"{Lp}:")
    for l in loads: A(l)
    A("s_waitcnt vmcnt(0)")
    A(f"{Lc}:")
    for i, r in enumerate(regs):
        A(f"v_cmp_ne_u64 {'vcc' if i == 0 else 's[72:73]'}, v[{r}:{r+1}], v[28:29]")
        if i: A("s_or_b64 vcc, vcc, s[72:73]")
    A("s_cmp_eq_u64 vcc, 0")
    A(f"s_cbranch_scc1 {Lx}")
    A("s_sleep 1")
    A("s_sub_u32 s70, s70, 1")
    A("s_cmp_lg_u32 s70, 0")
    A(f"s_cbranch_scc1 {Lp}")
    A(f"{Lx}:")
    if vm and not first_wait: vm.ops = []

def p2_loaders(A):
    stamp(A, 0)
    p2_ids(A)
    A("s_mul_i32 s57, s53, 5120")
    A(f"s_mul_i32 s62, s51, {20*10240}")
    A("s_add_u32 s62, s62, s57")
    A(f"s_add_u32 s62, s62, {WS_CP}")
    A(f"s_mul_i32 s63, s51, {27*10240}")
    A("s_add_u32 s63, s63, s57")
    A(f"s_add_u32 s63, s63, {WS_W2P}")
    A(f"s_add_u32 s57, s57, {K2_R0}")
    A("s_lshl_b32 s58, s53, 13")
    A("s_lshl_b32 s59, s49, 12")
    A("s_add_u32 s58, s58, s59")
    A(f"s_mul_i32 s64, s50, {40*8192}")
    A("s_add_u32 s64, s64, s58")
    A(f"s_add_u32 s64, s64, {WS_H1}")
    A(f"s_mul_i32 s66, s50, {54*8192}")
    A("s_add_u32 s66, s66, s58")
    A(f"s_add_u32 s66, s66, {WS_HF}")
    A("s_lshl_b32 s59, s53, 12")
    A(f"s_add_u32 s59, s59, {K2_BOFF}")
    A("s_cmp_lg_u32 s52, 0")
    A("s_cselect_b32 s62, s64, s62")
    A("s_cselect_b32 s63, s66, s63")
    A("s_cselect_b32 s58, s59, s57")
    A("s_cbranch_scc0 p2_lA")
    p2_loader(A, True)
    stamps_flush(A, 6, 1)
    A("s_branch k1_end")
    A("p2_lA:")
    p2_loader(A, False)
    stamps_flush(A, 6, 1)

def p2_loader(A, isB):
    vm = VM(A)
    nst = K2_NST
    nI = 4 if isB else 5
    sstr = 16384 if isB else 10240
    lstr = 8192 if isB else 10240
    if not isB:
        A("v_lshlrev_b32 v30, 4, v0")
        A(f"v_add_u32 v30, {WS_F1}, v30")
        wl = lambda o: [f"buffer_load_dwordx4 v[{32+4*k}:{35+4*k}], v30, s[44:47], 0 offen offset:{o + 1024*k} sc1" if o + 1024*k < 4096 else
                        f"buffer_load_dwordx4 v[{32+4*k}:{35+4*k}], v31, s[44:47], 0 offen offset:{o + 1024*k - 4096} sc1" for k in range(4)]
        A("v_add_u32 v31, 4096, v30")
    else:
        A("v_bfe_u32 v30, v0, 2, 3")
        A("v_and_b32 v31, 3, v0")
        A("v_lshlrev_b32 v30, 7, v30")
        A("v_lshl_add_u32 v30, v31, 3, v30")
        A("s_lshl_b32 s64, s50, 10")
        A(f"s_add_u32 s64, s64, {WS_F2}")
        A(f"s_add_u32 s66, s64, {128*128}")
        spin_flags(A, ["buffer_load_dwordx2 v[32:33], v30, s[44:47], s66 offen sc1"], [32])
    def dma(st):
        L2 = ["buffer_load_dwordx2 v[32:33], v30, s[44:47], s64 offen sc1"] if isB else wl(4096)
        R2 = [32] if isB else [32 + 2 * k for k in range(8)]
        if st == NSF - 3:
            for l in L2: vm(l, "f2")
        if st == NSF:
            spin_flags(A, L2, R2, vm, first_wait=lambda: vm.wait("f2"))
        bo = (st % K2_NR) * lstr
        src, so = (63, st * sstr) if st < NSF else (62, (st - NSF) * sstr)
        for q in range(nI):
            A(f"s_add_u32 m0, s58, {bo + 1024*q}")
            A(f"s_add_u32 s65, s{src}, {so + 1024*q}")
            vm("buffer_load_dwordx4 v10, s[44:47], s65 offen sc1 lds", f"d{st}")
    stamp(A, 1)
    n0 = 3 if isB else K2_NR
    if isB:
        for st in range(n0): dma(st)
    else:
        Lb = A.label("nox"); Lc = A.label("late"); Ld = A.label("done")
        A("s_cmp_lg_u32 s78, 0")
        A(f"s_cbranch_scc1 {Lb}")
        A("s_barrier")
        spin_flags(A, wl(0), [32 + 2 * k for k in range(8)], iters=2)
        A("s_cmp_eq_u32 s70, 0")
        A(f"s_cbranch_scc1 {Lc}")
        for st in range(n0): dma(st)
        A("s_barrier")
        A(f"s_branch {Ld}")
        A(f"{Lc}:")
        A("s_barrier")
        A(f"{Lb}:")
        spin_flags(A, wl(0), [32 + 2 * k for k in range(8)])
        vm.ops = []
        for st in range(n0): dma(st)
        A(f"{Ld}:")
    vm.wait("d0")
    stamp(A, 2)
    A("s_barrier")
    vm.wait("d1")
    A("s_barrier")
    for st in range(n0, K2_NR): dma(st)
    for j in range(nst - 2):
        vm.wait(f"d{j+2}")
        A("s_barrier")
        if j + K2_NR < nst: dma(j + K2_NR)
    for i in (3, 4, 5): stamp(A, i)

def p2_compute(A):
    stamp(A, 0)
    A("v_mov_b32 v26, 0")
    A(f"ds_read_b64 v[22:23], v26 offset:{K1_NONCE}")
    p2_ids(A)
    srd(A, 72, 4, T * D * 2)
    srd(A, 84 if not STAMPS else 68, 28, T * D * 4)
    A("v_cmp_eq_u32 vcc, 0, v0")
    A(f"v_mov_b32 v24, {OOB}")
    A("v_cndmask_b32 v24, v24, v26, vcc")
    L = A.label("nof")
    A("s_cmp_eq_u32 s78, 0")
    A(f"s_cbranch_scc1 {L}")
    A("s_waitcnt vmcnt(0) lgkmcnt(0)")
    A("buffer_store_dwordx2 v[22:23], v24, s[44:47], s77 offen sc1")
    A(f"{L}:")
    FRAG = 112
    ACCY = 28; ACCF = 48; XR = 68; SR = 78; DR = 82; PR = 92
    nst = K2_NST
    A("s_lshl_b32 s57, s50, 7")
    A("s_lshl_b32 s58, s49, 6")
    A("s_add_u32 s57, s57, s58")
    A("s_add_u32 s57, s57, s48")
    A("v_lshl_add_u32 v17, v6, 2, s57")
    A("v_mul_u32_u24 v18, 1280, v17")
    A("v_lshl_add_u32 v18, v5, 3, v18")
    A("s_mul_i32 s58, s51, 160")
    for m in range(5):
        A(f"buffer_load_dwordx2 v[{XR+2*m}:{XR+2*m+1}], v18, s[72:75], s58 offen offset:{32*m}")
    A("v_lshlrev_b32 v25, 4, v17")
    A(f"s_mov_b32 s62, {WS_STATS}")
    A("v_lshlrev_b32 v26, 3, v5")
    A("v_add_u32 v26, s58, v26")
    for m in range(5):
        A(f"global_load_dwordx2 v[{DR+2*m}:{DR+2*m+1}], v26, s[20:21] offset:{32*m}")
    A("s_lshl_b32 s57, s48, 10")
    A(f"s_add_u32 s57, s57, {K2_BOFF}")
    A("v_add_u32 v20, s57, v10")
    A(f"v_add_u32 v21, {K2_R0 + 3*10240}, v10")
    A(f"v_add_u32 v19, {K2_R0}, v10")
    for r in range(40):
        A(f"v_mov_b32 v{ACCY+r}, 0")
    plist = []
    P = plist.append
    mm, rs, sd = SR, SR + 1, SR + 2
    for m in range(5):
        x = XR + 2 * m; t = 2; du = 12; p = PR + 4 * m
        for hh in range(2):
            P(f"v_lshlrev_b32 v{t+2*hh}, 16, v{x+hh}")
            P(f"v_and_b32 v{t+2*hh+1}, 0xffff0000, v{x+hh}")
        for r in range(4): P(f"v_sub_f32 v{t+r}, v{t+r}, v{mm}")
        for hh in range(2):
            P(f"v_cvt_pk_bf16_f32 v{t+4+hh}, v{t+2*hh}, v{t+2*hh+1}")
        for hh in range(2):
            P(f"v_lshlrev_b32 v{t+2*hh}, 16, v{t+4+hh}")
            P(f"v_and_b32 v{t+2*hh+1}, 0xffff0000, v{t+4+hh}")
        for r in range(4): P(f"v_mul_f32 v{t+4+r}, v{t+r}, v{rs}")
        for r in range(4): P(f"v_fma_f32 v{t+r}, -v{t+4+r}, v{sd}, v{t+r}")
        for r in range(4): P(f"v_fma_f32 v{t+4+r}, v{t+r}, v{rs}, v{t+4+r}")
        for hh in range(2):
            P(f"v_cvt_pk_bf16_f32 v{t+hh}, v{t+4+2*hh}, v{t+4+2*hh+1}")
        for hh in range(2):
            P(f"v_lshlrev_b32 v{t+4+2*hh}, 16, v{t+hh}")
            P(f"v_and_b32 v{t+4+2*hh+1}, 0xffff0000, v{t+hh}")
        for hh in range(2):
            P(f"v_lshlrev_b32 v{du+2*hh}, 16, v{DR+2*m+hh}")
            P(f"v_and_b32 v{du+2*hh+1}, 0xffff0000, v{DR+2*m+hh}")
        for r in range(4): P(f"v_mul_f32 v{t+4+r}, v{t+4+r}, v{du+r}")
        for hh in range(2):
            P(f"v_cvt_pk_bf16_f32 v{t+hh}, v{t+4+2*hh}, v{t+4+2*hh+1}")
        for hh in range(2):
            P(f"v_lshlrev_b32 v{p+2*hh}, 16, v{t+hh}")
            P(f"v_and_b32 v{p+2*hh+1}, 0xffff0000, v{t+hh}")
    glist = []
    G = glist.append
    for m in range(5):
        a = ACCF + 4 * m; t = 2
        for hh in range(2):
            G(f"v_cvt_pk_bf16_f32 v{t+hh}, v{a+2*hh}, v{a+2*hh+1}")
        for hh in range(2):
            G(f"v_lshlrev_b32 v{a+2*hh}, 16, v{t+hh}")
            G(f"v_and_b32 v{a+2*hh+1}, 0xffff0000, v{t+hh}")
        for r in range(4): G(f"v_mul_f32 v{t+r}, {hexf(-LOG2E)}, v{a+r}")
        for r in range(4): G(f"v_exp_f32 v{t+r}, v{t+r}")
        for r in range(4): G(f"v_add_f32 v{t+r}, 1.0, v{t+r}")
        for r in range(4): G(f"v_rcp_f32 v{t+r}, v{t+r}")
        for r in range(4): G(f"v_mul_f32 v{t+r}, v{t+r}, v{a+r}")
        for hh in range(2):
            G(f"v_cvt_pk_bf16_f32 v{t+4+hh}, v{t+2*hh}, v{t+2*hh+1}")
        for hh in range(2):
            G(f"v_lshlrev_b32 v{a+2*hh}, 16, v{t+4+hh}")
            G(f"v_and_b32 v{a+2*hh+1}, 0xffff0000, v{t+4+hh}")
    fset = lambda stage, kk: FRAG + ((stage % 3) * 2 + kk) * 24
    def reads(stage, kk):
        sl = stage % K2_NR
        ra = 21 if sl >= 3 else 19
        oa = (sl - 3 if sl >= 3 else sl) * 10240
        f = fset(stage, kk)
        out = [f"ds_read_b128 {vr(f+20,4)}, v20 offset:{sl*8192 + kk*4096}"]
        out += [f"ds_read_b128 {vr(f+4*m,4)}, v{ra} offset:{oa + kk*5120 + m*1024}" for m in range(5)]
        return out
    def mfmas(stage, kk):
        f = fset(stage, kk); acc = ACCF if stage < NSF else ACCY
        return [f"v_mfma_f32_16x16x32_bf16 {vr(acc+4*m,4)}, {vr(f+4*m,4)}, {vr(f+20,4)}, {vr(acc+4*m,4)}" for m in range(5)]
    stamp(A, 1)
    A("s_barrier")
    stamp(A, 2)
    A(f"buffer_load_dwordx4 v[{SR}:{SR+3}], v25, s[44:47], s62 offen sc1")
    for kk in range(2):
        for r in reads(0, kk): A(r)
    A("s_barrier")
    for kk in range(2):
        for r in reads(1, kk): A(r)
    for j in range(nst):
        A(f"s_waitcnt lgkmcnt({12 if j < nst - 1 else 0})")
        mf = mfmas(j, 0) + mfmas(j, 1)
        if j < nst - 2:
            for m in mf[:2]: A(m)
            if j == 8:
                A("s_waitcnt vmcnt(0)")
                L = A.label("noy")
                A("s_cmp_lg_u32 s78, 0")
                A(f"s_cbranch_scc1 {L}")
                A("buffer_store_dwordx2 v[22:23], v24, s[44:47], s77 offen sc1")
                A(f"{L}:")
            A("s_barrier")
            rd = reads(j + 2, 0) + reads(j + 2, 1)
            rest = mf[2:]
            for i, m in enumerate(rest):
                for r in rd[(i * 12) // 8: ((i + 1) * 12) // 8]: A(r)
                A(m)
                if j >= 8:
                    for _ in range(2):
                        if plist: A(plist.pop(0))
                        elif j >= NSF + 2 and glist: A(glist.pop(0))
        else:
            for m in mf: A(m)
    assert not plist and not glist
    stamp(A, 3)
    A("v_lshlrev_b32 v18, 1, v18")
    A("s_lshl_b32 s58, s58, 1")
    so = 84 if not STAMPS else 68
    for m in range(5):
        t = 112 + 4 * m
        for hh in range(2):
            A(f"v_pk_add_f32 {vr(PR+4*m+2*hh,2)}, {vr(ACCY+4*m+2*hh,2)}, {vr(PR+4*m+2*hh,2)}")
        for hh in range(2):
            A(f"v_lshlrev_b32 v{t+2*hh}, 16, v{XR+2*m+hh}")
            A(f"v_and_b32 v{t+2*hh+1}, 0xffff0000, v{XR+2*m+hh}")
        for hh in range(2):
            A(f"v_pk_mul_f32 {vr(PR+4*m+2*hh,2)}, {vr(PR+4*m+2*hh,2)}, {vr(ACCF+4*m+2*hh,2)}")
        for hh in range(2):
            A(f"v_pk_add_f32 {vr(t+2*hh,2)}, {vr(t+2*hh,2)}, {vr(PR+4*m+2*hh,2)}")
        A(f"buffer_store_dwordx4 v[{t}:{t+3}], v18, s[{so}:{so+3}], s58 offen offset:{64*m}")
    stamp(A, 4); stamp(A, 5)

HEADER = open("recurrent_scan__ssm_conv_s5__dense_activation_relu__prompt.s.ref").read().split("; @launch")[0]

def kd(name, vgpr=256):
    return f""".p2align 6
.amdhsa_kernel {name}
  .amdhsa_next_free_vgpr {vgpr}
  .amdhsa_next_free_sgpr 102
  .amdhsa_accum_offset {vgpr}
  .amdhsa_group_segment_fixed_size 0
  .amdhsa_kernarg_size 120
  .amdhsa_user_sgpr_count 2
  .amdhsa_user_sgpr_kernarg_segment_ptr 1
  .amdhsa_system_sgpr_workgroup_id_x 1
.end_amdhsa_kernel
"""

def build():
    out = HEADER
    out += f"; @launch kernel=k1_kernel grid=(256,1,1) block=(512,1,1) lds={K1_LDS}\n"
    out += '.amdgcn_target "amdgcn-amd-amdhsa--gfx950"\n.text\n'
    for name, fn in (("k1_kernel", kernel1),):
        A = Asm(); A.nlabel = 0 if name == "k1_kernel" else 1000
        fn(A)
        lines = fix_hazards(A.lines, verbose=True)
        out += f".globl {name}\n.p2align 8\n.type {name},@function\n"
        out += "\n".join(("    " + l if not l.endswith(":") else l) for l in lines) + "\n"
    out += '.section .rodata,"a"\n' + kd("k1_kernel")
    return out

if __name__ == "__main__":
    if len(sys.argv) > 2: STAMPS = True; DBG = sys.argv[2]
    dst = sys.argv[1] if len(sys.argv) > 1 else "recurrent_scan__ssm_conv_s5__dense_activation_relu__prompt.s"
    txt = build()
    if os.environ.get("SINGLE", "1") == "1" and not STAMPS:
        KN = "recurrent_scan__ssm_conv_s5__dense_activation_relu__prompt_kernel"
        txt = txt.replace("; @launch kernel=k1_kernel grid", "; @launch grid").replace("k1_kernel", KN)
    open(dst, "w").write(txt)
    print("wrote", dst)
```

```python
import sys, struct
from asmlib import *

T, D, DFF = 2048, 640, 1728
WS_STATS = 0x000000
WS_E     = 0x010000
WS_WSP   = 0x0A0000
WS_WSYO  = 0x0E0000
WS_F3    = 0x0E8000
WS_F2    = 0x080000
WS_F1    = 0x090000
WS_CP    = 0x100000
WS_W2P   = 0x300000
WS_H1    = 0x600000
WS_HF    = 0xC00000
WS_S     = 0x1400000
WS_TS    = 0x1A00000
WS_SIZE  = 0x1B00000
OOB = 0x7ffffff0

import os
MAP = os.environ.get("MAP", "bp")
GI = int(os.environ.get("GI", 7))
STAMPS = False
DBG = "nopf"
def stamp(A, i):
    if STAMPS and i == 0:
        A("s_memrealtime s[96:97]")
    if STAMPS:
        A(f"s_memtime s[{80+2*i}:{81+2*i}]")
def stamps_flush(A, n, kidx, waitvm=True):
    if not STAMPS: return
    A("s_waitcnt lgkmcnt(0) vmcnt(0)" if waitvm else "s_waitcnt lgkmcnt(0)")
    A("s_memtime s[98:99]")
    A("s_memrealtime s[100:101]")
    A("s_waitcnt lgkmcnt(0)")
    A("s_lshl_b32 s57, s2, 3")
    A("s_add_u32 s57, s57, s34")
    A("s_lshl_b32 s57, s57, 6")
    A(f"s_add_u32 s57, s57, {WS_TS + kidx*131072}")
    A("v_mov_b32 v2, 0")
    for i in range(n):
        A(f"v_mov_b32 v3, s{80+2*i}")
        A(f"buffer_store_dword v3, v2, s[44:47], s57 offen offset:{4*i}")
    A(f"v_mov_b32 v3, s98")
    A(f"buffer_store_dword v3, v2, s[44:47], s57 offen offset:{4*n}")
    A(f"v_mov_b32 v3, s96")
    A(f"buffer_store_dword v3, v2, s[44:47], s57 offen offset:56")
    A(f"v_mov_b32 v3, s100")
    A(f"buffer_store_dword v3, v2, s[44:47], s57 offen offset:60")

def f2u(x): return struct.unpack("<I", struct.pack("<f", x))[0]
def hexf(x): return f"0x{f2u(x):08x}"
LOG2E = 1.4426950408889634
INV2PI = 0.15915494309189535

def divc(A, vq, vsrc, d, maxv):
    for sh in (16, 17, 18, 19, 20):
        mul = ((1 << sh) + d - 1) // d
        if all((c * mul) >> sh == c // d for c in range(maxv)) and maxv * mul < (1 << 32) and mul < (1 << 24):
            A(f"v_mul_u32_u24 {vr(vq)}, {mul}, {vr(vsrc)}")
            A(f"v_lshrrev_b32 {vr(vq)}, {sh}, {vr(vq)}")
            return
    raise Exception("no magic")

def srd(A, s, base, size):
    A(f"s_mov_b32 s{s}, s{base}")
    A(f"s_and_b32 s{s+1}, s{base+1}, 0xffff")
    A(f"s_mov_b32 s{s+2}, {size}")
    A(f"s_mov_b32 s{s+3}, 0x20000")

def cmul_add(A, dst, w, h, u):
    A(f"v_pk_fma_f32 {vr(dst,2)}, {vr(w,2)}, {vr(h,2)}, {vr(u,2)} op_sel:[0,0,0] op_sel_hi:[0,1,1]")
    A(f"v_pk_fma_f32 {vr(dst,2)}, {vr(w,2)}, {vr(h,2)}, {vr(dst,2)} op_sel:[1,1,0] op_sel_hi:[1,0,1] neg_lo:[1,0,0]")
def cmul(A, dst, w, h):
    A(f"v_pk_mul_f32 {vr(dst,2)}, {vr(w,2)}, {vr(h,2)} op_sel:[0,0] op_sel_hi:[0,1]")
    A(f"v_pk_fma_f32 {vr(dst,2)}, {vr(w,2)}, {vr(h,2)}, {vr(dst,2)} op_sel:[1,1,0] op_sel_hi:[1,0,1] neg_lo:[1,0,0]")

def wave_sum(A, regs):
    for mod in ("row_shr:1 row_mask:0xf bank_mask:0xf bound_ctrl:0", "row_shr:2 row_mask:0xf bank_mask:0xf bound_ctrl:0",
                "row_shr:4 row_mask:0xf bank_mask:0xf bound_ctrl:0", "row_shr:8 row_mask:0xf bank_mask:0xf bound_ctrl:0",
                "row_bcast:15 row_mask:0xa bank_mask:0xf", "row_bcast:31 row_mask:0xc bank_mask:0xf"):
        for r in regs:
            A(f"v_add_f32_dpp {vr(r)}, {vr(r)}, {vr(r)} {mod}")

def bf16r(A, r):
    A(f"v_cvt_pk_bf16_f32 {vr(r)}, {vr(r)}, {vr(r)}")
    A(f"v_lshlrev_b32 {vr(r)}, 16, {vr(r)}")

class VM:
    def __init__(s, A): s.A = A; s.ops = []
    def __call__(s, text, tag): s.A(text); s.ops.append(tag)
    def wait(s, tag, extra=""):
        idx = max([i for i, t in enumerate(s.ops) if t == tag], default=None)
        if idx is None:
            if extra: s.A(f"s_waitcnt {extra}")
            return
        n = len(s.ops) - 1 - idx
        assert n <= 63, n
        s.A(f"s_waitcnt vmcnt({n}) {extra}".strip())
        s.ops = s.ops[idx + 1:]
    def waitall(s, extra=""):
        s.A(f"s_waitcnt vmcnt(0) {extra}".strip()); s.ops = []

def common_ids(A):
    A("v_lshrrev_b32 v2, 6, v0")
    A("v_and_b32 v1, 255, v0")
    A("v_and_b32 v0, 63, v0")
    A("v_readfirstlane_b32 s34, v2")
    A("s_lshr_b32 s35, s2, 3")
    A("s_and_b32 s57, s2, 3")
    A("s_lshl_b32 s57, s57, 2")
    A("s_lshr_b32 s50, s35, 3")
    A("s_add_u32 s50, s50, s57")
    if MAP == "mixed":
        A("s_and_b32 s49, s35, 1")
        A("s_bfe_u32 s51, s35, 0x20001")
        A("s_and_b32 s57, s2, 4")
        A("s_add_u32 s51, s51, s57")
    else:
        A("s_bfe_u32 s49, s2, 0x10002")
        A("s_and_b32 s51, s35, 7")
    A("s_and_b32 s48, s34, 3")
    A("s_lshr_b32 s52, s48, 1")
    A("s_and_b32 s53, s48, 1")
    A("v_lshrrev_b32 v3, 3, v0")
    A("v_and_b32 v4, 7, v0")
    A("v_lshrrev_b32 v5, 4, v0")
    A("v_and_b32 v6, 15, v0")

def poll(A, load, stmp, scount, vtmp, target, iters=200000):
    L = A.label("poll"); Lx = A.label("pollx")
    A(f"s_mov_b32 s{scount}, {iters}")
    A(f"{L}:")
    A(load)
    A("s_waitcnt vmcnt(0)")
    A(f"v_readfirstlane_b32 s{stmp}, {vr(vtmp)}")
    A(f"s_cmp_eq_u32 s{stmp}, {target}")
    A(f"s_cbranch_scc1 {Lx}")
    A("s_sleep 1")
    A(f"s_sub_u32 s{scount}, s{scount}, 1")
    A(f"s_cmp_lg_u32 s{scount}, 0")
    A(f"s_cbranch_scc1 {L}")
    A(f"{Lx}:")

K1F_STAGE = 28672 + 16384
K1Y_STAGE = 20480 + 16384
K1_STATS = 0
K1_WS = 2048
K1_NONCE = 3008
K1F_RED = 3072
K1F_BUF = 10240
K1Y_T = 3072
K1Y_BUF = 26112
K1Y_SCR = K1Y_BUF + 3 * K1Y_STAGE
K1_LE = 157184
K1F_SL = 145408
K1_LDS = 163840

def kernel1(A):
    A("k1_kernel:")
    A("s_cmp_ge_u32 s2, 256")
    A("s_cbranch_scc1 k1_end")
    stamp(A, 0)
    A("s_load_dwordx16 s[4:19], s[0:1], 0")
    A("s_load_dwordx8 s[20:27], s[0:1], 64")
    A("s_load_dwordx4 s[28:31], s[0:1], 96")
    A("s_load_dwordx2 s[32:33], s[0:1], 112")
    common_ids(A)
    A("s_mul_i32 s54, s51, 14")
    A("s_cmp_eq_u32 s51, 7")
    A("s_cselect_b32 s54, 96, s54")
    A("s_waitcnt lgkmcnt(0)")
    srd(A, 36, 4, T * D * 2)
    srd(A, 44, 32, WS_SIZE)
    A("s_cmp_ge_u32 s34, 4")
    A("s_cbranch_scc1 k1_ld")
    A("s_cmp_lg_u32 s49, 0")
    A("s_cbranch_scc1 k1_cF")
    k1_compute(A, False)
    A("s_branch p2_comp")
    A("k1_cF:")
    k1_compute(A, True)
    A("p2_comp:")
    stamps_flush(A, 8, 0, False)
    p2_compute(A)
    stamps_flush(A, 6, 1)
    A("s_branch k1_end")
    A("k1_ld:")
    A("s_cmp_lg_u32 s49, 0")
    A("s_cbranch_scc1 k1_lF")
    k1_loader(A, False)
    A("s_branch p2_ld")
    A("k1_lF:")
    k1_loader(A, True)
    A("p2_ld:")
    stamps_flush(A, 8, 0, False)
    p2_loaders(A)
    A("k1_end:")
    A("s_endpgm")

def stats_compute(A, vm, SRC):
    for r in range(2):
        for i in range(5):
            A(f"v_lshlrev_b32 v{40+10*r+2*i}, 16, v{SRC+5*r+i}")
            A(f"v_and_b32 v{41+10*r+2*i}, 0xffff0000, v{SRC+5*r+i}")
    for r in range(2):
        b = 40 + 10 * r
        A(f"v_add_f32 v{60+r}, v{b}, v{b+1}")
        for i in range(2, 10):
            A(f"v_add_f32 v{60+r}, v{60+r}, v{b+i}")
    wave_sum(A, [60, 61])
    A("v_readlane_b32 s57, v60, 63")
    A("v_readlane_b32 s58, v61, 63")
    A(f"v_mov_b32 v62, {hexf(1.0/640)}")
    A("v_mul_f32 v60, s57, v62")
    A("v_mul_f32 v61, s58, v62")
    for r in range(2):
        b = 40 + 10 * r
        for i in range(10):
            A(f"v_sub_f32 v{b+i}, v{b+i}, v{60+r}")
    for r in range(2):
        b = 40 + 10 * r
        A(f"v_mul_f32 v{64+r}, v{b}, v{b}")
        for i in range(1, 10):
            A(f"v_fmac_f32 v{64+r}, v{b+i}, v{b+i}")
    wave_sum(A, [64, 65])
    A("v_readlane_b32 s57, v64, 63")
    A("v_readlane_b32 s58, v65, 63")
    A("v_mul_f32 v64, s57, v62")
    A("v_mul_f32 v65, s58, v62")
    A("v_and_b32 v66, 1, v0")
    A("v_cmp_eq_u32 vcc, 1, v66")
    A("v_cndmask_b32 v68, v60, v61, vcc")
    A("v_cndmask_b32 v70, v64, v65, vcc")
    bf16r(A, 68)
    bf16r(A, 70)
    A(f"v_add_f32 v70, {hexf(1e-5)}, v70")
    bf16r(A, 70)
    A("v_sqrt_f32 v70, v70")
    bf16r(A, 70)
    A("v_rcp_f32 v69, v70")
    A("v_fma_f32 v71, -v70, v69, 1.0")
    A("v_fma_f32 v69, v71, v69, v69")
    A("v_mov_b32 v71, 0")
    A("v_lshlrev_b32 v66, 4, v0")
    A(f"v_mov_b32 v67, {OOB}")
    A("v_cmp_gt_u32 vcc, 2, v0")
    A("v_cndmask_b32 v66, v67, v66, vcc")
    A("s_lshl_b32 s57, s63, 4")
    A(f"s_add_u32 s57, s57, {WS_STATS}")
    vm("buffer_store_dwordx4 v[68:71], v66, s[44:47], s57 offen sc1", "st")

def k1_loader(A, isF):
    vm = VM(A)
    STG = K1F_STAGE if isF else K1Y_STAGE
    BUF = K1F_BUF if isF else K1Y_BUF
    ASZ = 28672 if isF else 20480
    if not isF:
        L = A.label("nononce")
        A("s_or_b32 s57, s2, s48")
        A("s_cmp_lg_u32 s57, 0")
        A(f"s_cbranch_scc1 {L}")
        A("s_memrealtime s[70:71]")
        A("v_mov_b32 v18, 0")
        A("s_waitcnt lgkmcnt(0)")
        A("s_or_b32 s70, s70, 1")
        A("v_mov_b32 v20, s70")
        A("v_mov_b32 v21, s71")
        A("s_mov_b64 exec, 1")
        A("global_store_dwordx2 v18, v[20:21], s[30:31] sc1")
        A("s_mov_b64 exec, -1")
        A(f"{L}:")
    A("v_xor_b32 v17, v4, v3")
    A("v_mul_u32_u24 v19, 5120, v3")
    A("v_lshl_add_u32 v247, v17, 4, v19")
    A("s_lshl_b32 s60, s50, 7")
    A("s_lshl_b32 s59, s52, 6")
    A("s_add_u32 s60, s60, s59")
    A("s_lshl_b32 s59, s53, 1")
    A("s_add_u32 s60, s60, s59")
    A("s_mul_i32 s60, s60, 1280")
    A("s_lshl_b32 s62, s48, 12")
    A(f"s_add_u32 s62, s62, {ASZ+BUF}")
    def dmaX(st):
        bo = (st % 3) * STG
        for q in range(4):
            A(f"s_add_u32 m0, s62, {bo + 1024*q}")
            A(f"s_add_u32 s65, s60, {st*128 + (32*(q&1) + (q>>1))*1280}")
            vm(f"buffer_load_dwordx4 v247, s[36:39], s65 offen lds", f"d{st}")
    stamp(A, 5)
    dmaX(0)
    if isF:
        srd(A, 40, 24, D * DFF * 2)
        A("s_mul_i32 s59, s48, 55296")
        A("s_lshl_b32 s64, s54, 5")
        A("s_add_u32 s59, s59, s64")
        A("s_mul_i32 s61, s48, 7168")
        A(f"s_add_u32 s61, s61, {BUF}")
        for q in range(7):
            A(f"v_add_u32 v17, {64*q}, v0")
            divc(A, 18, 17, 28, 448)
            A("v_mul_u32_u24 v19, 28, v18")
            A("v_sub_u32 v19, v17, v19")
            A("v_lshrrev_b32 v17, 2, v18")
            A("v_and_b32 v17, 2, v17")
            A("v_xor_b32 v19, v19, v17")
            A("v_mul_u32_u24 v18, 3456, v18")
            A(f"v_lshl_add_u32 v{240+q}, v19, 4, v18")
            A(f"s_add_u32 m0, s61, {1024*q}")
            A("s_nop 0")
            vm(f"buffer_load_dwordx4 v{240+q}, s[40:43], s59 offen lds", "d0")
    else:
        A("s_cmp_lt_u32 s48, 2")
        A("s_cselect_b32 s64, s10, s12")
        A("s_cselect_b32 s65, s11, s13")
        srd(A, 40, 64, D * D * 2)
        A("v_xor_b32 v18, s52, v17")
        A("v_mul_u32_u24 v19, 1280, v3")
        A("v_lshl_add_u32 v240, v18, 4, v19")
        A("s_mul_i32 s59, s51, 80")
        A("s_mul_i32 s64, s53, 40")
        A("s_add_u32 s59, s59, s64")
        A("s_mul_i32 s59, s59, 1280")
        A("s_mul_i32 s61, s53, 10240")
        A("s_lshl_b32 s64, s52, 10")
        A("s_add_u32 s61, s61, s64")
        A(f"s_add_u32 s61, s61, {BUF}")
    def dmaA(st):
        bo = (st % 3) * STG
        tag = f"d{st}"
        if isF:
            A(f"s_add_u32 s65, s59, {st*64*3456}")
            for q in range(7):
                A(f"s_add_u32 m0, s61, {bo + 1024*q}")
                A("s_nop 0")
                vm(f"buffer_load_dwordx4 v{240+q}, s[40:43], s65 offen lds", tag)
        else:
            for q in range(5):
                A(f"s_add_u32 m0, s61, {bo + 2048*q}")
                A(f"s_add_u32 s65, s59, {st*128 + q*8*1280}")
                vm(f"buffer_load_dwordx4 v240, s[40:43], s65 offen lds", tag)
    def dma(st):
        dmaA(st); dmaX(st)
    if not isF: dmaA(0)
    stamp(A, 6)
    if "nodpf" not in DBG: A("s_barrier")
    dma(1)
    stamp(A, 7)
    A(f"v_mov_b32 v15, {OOB}")
    A("v_mov_b32 v26, 0")
    def s5():
        A("v_bfe_u32 v20, v0, 1, 4")
        A("v_and_b32 v21, 7, v20")
        A("s_lshl_b32 s57, s50, 3")
        A("s_add_u32 s57, s57, 128")
        A("v_add_u32 v21, s57, v21")
        A("s_lshl_b32 s57, s49, 7")
        A("s_add_u32 s57, s57, s51")
        A("v_lshl_add_u32 v22, v20, 3, s57")
        A("v_cmp_gt_u32 vcc, 32, v0")
        A("v_cndmask_b32 v25, v22, v21, vcc")
        A("v_lshlrev_b32 v25, 7, v25")
        A("v_add_u32 v21, 32, v25")
        A("v_cndmask_b32 v25, v25, v21, vcc")
        A("v_and_b32 v20, 1, v0")
        A("v_lshl_add_u32 v25, v20, 4, v25")
        A(f"v_add_u32 v25, {WS_F3}, v25")
    def g1():
        vm("buffer_load_dwordx4 v[32:35], v25, s[44:47], 0 offen sc1", "fl")
    def g2():
        Lp = A.label("poll"); Lx = A.label("pollx"); Lc = A.label("pollc")
        A("s_mov_b32 s58, 200000")
        vm.wait("fl")
        A(f"s_branch {Lc}")
        A(f"{Lp}:")
        A("s_sleep 1")
        A("buffer_load_dwordx4 v[32:35], v25, s[44:47], 0 offen sc1")
        A("s_waitcnt vmcnt(0)")
        A(f"{Lc}:")
        A("v_cmp_ne_u64 vcc, v[32:33], v[28:29]")
        A("v_cmp_ne_u64 s[66:67], v[34:35], v[28:29]")
        A("s_or_b64 vcc, vcc, s[66:67]")
        A("s_cmp_eq_u64 vcc, 0")
        A(f"s_cbranch_scc1 {Lx}")
        A("s_sub_u32 s58, s58, 1")
        A("s_cmp_lg_u32 s58, 0")
        A(f"s_cbranch_scc1 {Lp}")
        A(f"{Lx}:")
        A("v_lshlrev_b32 v34, 4, v1")
        A("s_lshl_b32 s57, s50, 11")
        A(f"s_add_u32 s57, s57, {WS_STATS}")
        vm("buffer_load_dwordx4 v[36:39], v34, s[44:47], s57 offen sc1", "ga")
        A("v_lshlrev_b32 v35, 2, v1")
        if isF:
            A("s_mul_i32 s57, s51, 896")
            A(f"s_add_u32 s57, s57, {WS_WSP}")
            for sl_ in range(16):
                vm(f"buffer_load_dword v{40+sl_}, v35, s[44:47], s57 offen sc1", "ga")
                A(f"s_add_u32 s57, s57, {1792*4}")
        else:
            A("s_mul_i32 s57, s51, 640")
            A(f"s_add_u32 s57, s57, {WS_WSYO}")
            vm("buffer_load_dword v40, v35, s[44:47], s57 offen sc1", "ga")
    def g3():
        vm.wait("ga")
        A("v_cmp_gt_u32 vcc, 128, v1")
        A("s_and_saveexec_b64 s[66:67], vcc")
        A(f"ds_write_b128 v34, v[36:39] offset:{K1_STATS}")
        A("s_mov_b64 exec, s[66:67]")
        if isF:
            for sl_ in range(1, 16):
                A(f"v_add_f32 v40, v40, v{40+sl_}")
        A(f"v_cmp_gt_u32 vcc, {224 if isF else 160}, v1")
        A("s_and_saveexec_b64 s[66:67], vcc")
        A(f"ds_write_b32 v35, v40 offset:{K1_WS}")
        A("s_mov_b64 exec, s[66:67]")
    chunks = {}
    post = []
    if isF:
        A("s_mul_i32 s57, s50, 138240")
        A("s_mul_i32 s58, s48, 34560")
        A("s_add_u32 s57, s57, s58")
        A("s_add_u32 s57, s57, s64")
        A("s_mul_i32 s72, s48, 4480")
        A(f"s_add_u32 s72, s72, {K1F_SL}")
        for q in range(5):
            A(f"v_add_u32 v17, {64*q}, v0")
            divc(A, 18, 17, 28, 448)
            A("v_mul_u32_u24 v19, 28, v18")
            A("v_sub_u32 v19, v17, v19")
            A("v_mul_u32_u24 v18, 3456, v18")
            A("v_lshl_add_u32 v16, v19, 4, v18")
            A(f"s_add_u32 m0, s72, {1024*q}")
            if q == 4: A("s_mov_b64 exec, 0xffffff")
            else: A("s_nop 0")
            vm("buffer_load_dwordx4 v16, s[40:43], s57 offen lds", "sl")
            if q == 4: A("s_mov_b64 exec, -1")
        def ws1():
            divc(A, 7, 0, 28, 64)
            A("v_mul_u32_u24 v8, 28, v7")
            A("v_sub_u32 v8, v0, v8")
            A("v_min_u32 v7, 1, v7")
            A("v_mul_u32_u24 v9, 2240, v7")
            A("v_lshl_add_u32 v9, v8, 4, v9")
            A("v_add_u32 v9, s72, v9")
            vm.wait("sl")
            for r in range(5): A(f"ds_read_b128 v[{72+4*r}:{75+4*r}], v9 offset:{448*r}")
            A("s_waitcnt lgkmcnt(0)")
            for c in range(4):
                A(f"v_lshlrev_b32 v{108+2*c}, 16, v{72+c}")
                A(f"v_and_b32 v{109+2*c}, 0xffff0000, v{72+c}")
            for r in range(1, 5):
                for c in range(4):
                    A(f"v_lshlrev_b32 v116, 16, v{72+4*r+c}")
                    A(f"v_and_b32 v117, 0xffff0000, v{72+4*r+c}")
                    A(f"v_add_f32 v{108+2*c}, v{108+2*c}, v116")
                    A(f"v_add_f32 v{109+2*c}, v{109+2*c}, v117")
            A("s_mul_i32 s57, s48, 1792")
            A("v_lshlrev_b32 v9, 5, v0")
            A("v_add_u32 v9, s57, v9")
            A("v_cmp_gt_u32 vcc, 56, v0")
            A("s_and_saveexec_b64 s[66:67], vcc")
            A(f"ds_write_b128 v9, v[108:111] offset:{K1F_RED}")
            A(f"ds_write_b128 v9, v[112:115] offset:{K1F_RED+16}")
            A("s_mov_b64 exec, s[66:67]")
        def ws2():
            A("v_lshlrev_b32 v9, 2, v1")
            for r in range(8): A(f"ds_read_b32 v{108+r}, v9 offset:{K1F_RED+896*r}")
            A("s_waitcnt lgkmcnt(0)")
            for r in range(1, 8): A(f"v_add_f32 v108, v108, v{108+r}")
            A("v_cmp_gt_u32 vcc, 224, v1")
            A("s_and_saveexec_b64 s[66:67], vcc")
            A(f"ds_write_b32 v9, v108 offset:{K1_WS}")
            A("s_mov_b64 exec, s[66:67]")
        chunks = {0: [ws1], 1: [ws2]}
        def crep():
            Lq = A.label("cq")
            A("s_cmp_eq_u32 s52, 0")
            A(f"s_cbranch_scc1 {Lq}")
            srd(A, 68, 14, D * D * 2)
            sc = 80 if not STAMPS else 60
            srd(A, sc, 16, D * D * 2)
            for rd_ in range(2):
                R = 92 + 16 * rd_
                A("s_lshl_b32 s57, s50, 3")
                A("s_add_u32 s57, s57, s51")
                A("s_lshl_b32 s57, s57, 4")
                A("s_lshl_b32 s58, s53, 2")
                A("s_add_u32 s57, s57, s58")
                A(f"s_add_u32 s57, s57, {8*rd_}")
                A("v_add_u32 v10, s57, v5")
                divc(A, 11, 10, 40, 2048)
                A("v_mul_u32_u24 v12, 40, v11")
                A("v_sub_u32 v12, v10, v12")
                A("v_lshl_add_u32 v13, v11, 4, v6")
                A("v_mul_u32_u24 v13, 1280, v13")
                A("v_lshl_add_u32 v13, v12, 5, v13")
                A(f"buffer_load_dwordx4 v[{R}:{R+3}], v13, s[68:71], 0 offen")
                A(f"buffer_load_dwordx4 v[{R+4}:{R+7}], v13, s[68:71], 0 offen offset:16")
                A(f"buffer_load_dwordx4 v[{R+8}:{R+11}], v13, s[{sc}:{sc+3}], 0 offen")
                A(f"buffer_load_dwordx4 v[{R+12}:{R+15}], v13, s[{sc}:{sc+3}], 0 offen offset:16")
                divc(A, 14, 11, 5, 64)
                A("v_mul_u32_u24 v16, 5, v14")
                A("v_sub_u32 v16, v11, v16")
                A("v_mul_u32_u24 v14, 40, v14")
                A("v_add_u32 v14, v14, v12")
                A("v_mul_u32_u24 v14, 5120, v14")
                A("v_lshl_add_u32 v14, v16, 10, v14")
                A("v_lshl_add_u32 v14, v6, 4, v14")
                A("v_cmp_gt_u32 vcc, 1600, v10")
                A(f"v_cndmask_b32 v{17+rd_}, v15, v14, vcc")
            A("s_mov_b32 s57, 0x05040100")
            A("s_mov_b32 s58, 0x07060302")
            A(f"s_mov_b32 s65, {WS_CP}")
            A("s_waitcnt vmcnt(0)")
            for rd_ in range(2):
                R = 92 + 16 * rd_
                for c in range(8): A(f"v_xor_b32 v{R+8+c}, 0x80008000, v{R+8+c}")
                for g in range(4):
                    o = 40 + 16 * rd_ + 4 * g
                    A(f"v_perm_b32 v{o}, v{R+8+g}, v{R+g}, s57")
                    A(f"v_perm_b32 v{o+1}, v{R+8+g}, v{R+g}, s58")
                    A(f"v_perm_b32 v{o+2}, v{R+12+g}, v{R+4+g}, s57")
                    A(f"v_perm_b32 v{o+3}, v{R+12+g}, v{R+4+g}, s58")
                    A(f"buffer_store_dwordx4 v[{o}:{o+3}], v{17+rd_}, s[44:47], s65 offen offset:{256*g} sc1")
            A("s_waitcnt vmcnt(0)")
            A(f"{Lq}:")
            A("buffer_store_dwordx2 v[28:29], v27, s[44:47], s79 offen sc1")
        post = [lambda: A('s_barrier'), crep]
    else:
        def w2a():
            srd(A, 68, 26, D * DFF * 2)
            A("s_lshl_b32 s57, s50, 3")
            A("s_add_u32 s57, s57, s51")
            A("s_lshl_b32 s57, s57, 2")
            A("s_add_u32 s57, s57, s48")
            A("s_lshr_b32 s75, s57, 3")
            A("s_and_b32 s76, s57, 7")
            A("s_mul_i32 s58, s75, 40960")
            A("s_mul_i32 s57, s76, 160")
            A("s_add_u32 s58, s58, s57")
            A("s_mul_i32 s77, s48, 5120")
            A(f"s_add_u32 s77, s77, {K1Y_SCR}")
            for q in range(5):
                A(f"v_add_u32 v17, {64*q}, v0")
                divc(A, 18, 17, 10, 320)
                A("v_mul_u32_u24 v19, 10, v18")
                A("v_sub_u32 v19, v17, v19")
                A("v_mul_u32_u24 v18, 1280, v18")
                A("v_lshl_add_u32 v16, v19, 4, v18")
                A(f"s_add_u32 m0, s77, {1024*q}")
                A("s_nop 0")
                vm("buffer_load_dwordx4 v16, s[68:71], s58 offen lds", "w2")
        def w2b():
            A("v_lshrrev_b32 v17, 2, v6")
            A("v_lshl_add_u32 v17, v5, 2, v17")
            A("v_mul_u32_u24 v17, 160, v17")
            A("v_and_b32 v18, 3, v6")
            A("v_lshl_add_u32 v17, v18, 3, v17")
            A("v_add_u32 v17, s77, v17")
            vm.wait("w2")
            for m in range(5):
                for h in range(2):
                    A(f"ds_read_b64_tr_b16 v[{164+4*m+2*h}:{165+4*m+2*h}], v17 offset:{h*2560 + m*32}")
            A("s_mul_i32 s57, s76, 54")
            A("s_add_u32 s57, s57, s75")
            A("s_mul_i32 s57, s57, 5120")
            A(f"s_add_u32 s57, s57, {WS_W2P}")
            A("s_cmp_lt_u32 s75, 54")
            A(f"s_cselect_b32 s57, s57, {OOB}")
            A("v_lshlrev_b32 v18, 4, v0")
            A("v_add_u32 v19, 4096, v18")
            A("s_waitcnt lgkmcnt(0)")
            for m in range(5):
                vm(f"buffer_store_dwordx4 v[{164+4*m}:{167+4*m}], v18, s[44:47], s57 offen offset:{1024*m} sc1" if m < 4 else
                   f"buffer_store_dwordx4 v[{164+4*m}:{167+4*m}], v19, s[44:47], s57 offen sc1", "st2")
        def w2c():
            vm.wait("st2")
            vm("buffer_store_dwordx2 v[28:29], v27, s[44:47], s79 offen sc1", "fs")
        def lbk():
            Lq = A.label("lq")
            A("s_cmp_eq_u32 s52, 0")
            A(f"s_cbranch_scc1 {Lq}")
            A("v_min_u32 v8, 39, v0")
            A("s_mul_i32 s57, s53, 40")
            A("v_add_u32 v8, s57, v8")
            A("v_lshlrev_b32 v9, 3, v8")
            A(f"v_add_u32 v9, {K1_LE}, v9")
            A("v_mul_u32_u24 v10, 288, v8")
            A("s_mul_i32 s57, s51, 1280")
            A("v_lshlrev_b32 v11, 4, v8")
            A("v_add_u32 v11, s57, v11")
            A("s_mul_i32 s74, s50, 10240")
            A(f"s_add_u32 s74, s74, {WS_E}")
            A(f"ds_read_b64 v[72:73], v10 offset:{K1Y_T+128+8}")
            A(f"ds_read_b64 v[74:75], v10 offset:{K1Y_T+128+16}")
            A("s_barrier")
            Lp = A.label("lb"); Lx = A.label("lbx")
            A("ds_read_b64 v[64:65], v9")
            A("ds_read_b64 v[66:67], v9 offset:640")
            A("v_mov_b32 v82, v28")
            A("v_mov_b32 v83, v29")
            A("s_waitcnt lgkmcnt(0)")
            cmul_add(A, 80, 72, 64, 66)
            A("buffer_store_dwordx4 v[80:83], v11, s[44:47], s74 offen sc1")
            A("s_mov_b32 s75, 100000")
            A(f"{Lp}:")
            for i in range(15):
                A(f"s_sub_u32 s57, s50, {i+1}")
                A("s_mul_i32 s58, s57, 10240")
                A(f"s_add_u32 s58, s58, {WS_E}")
                A(f"s_cmp_gt_u32 s50, {i}")
                A(f"s_cselect_b32 s58, s58, {OOB}")
                A(f"buffer_load_dwordx4 v[{96+4*i}:{99+4*i}], v11, s[44:47], s58 offen sc1")
            A("s_waitcnt vmcnt(0)")
            A("s_mov_b64 vcc, 0")
            for i in range(15):
                A(f"v_cmp_ne_u64 s[70:71], v[{98+4*i}:{99+4*i}], v[28:29]")
                A(f"s_cmp_gt_u32 s50, {i}")
                A("s_cselect_b64 s[70:71], s[70:71], 0")
                A("s_or_b64 vcc, vcc, s[70:71]")
            A("s_cmp_eq_u64 vcc, 0")
            A(f"s_cbranch_scc1 {Lx}")
            A("s_sleep 1")
            A("s_sub_u32 s75, s75, 1")
            A("s_cmp_lg_u32 s75, 0")
            A(f"s_cbranch_scc1 {Lp}")
            A(f"{Lx}:")
            for i in range(13, -1, -1):
                cmul_add(A, 96 + 4 * i, 74, 96 + 4 * (i + 1), 96 + 4 * i)
            cmul_add(A, 84, 72, 96, 64)
            A("ds_write_b64 v9, v[96:97] offset:1280")
            A("ds_write_b64 v9, v[84:85] offset:1920")
            A("s_waitcnt lgkmcnt(0)")
            A("s_barrier")
            A(f"{Lq}:")
        chunks = {4: [w2a], 8: [w2b]}; post = [w2c, lbk]
    def n1():
        vm("global_load_dwordx2 v[28:29], v26, s[30:31] sc1", "nn")
    def n2():
        Lp = A.label("np"); Lx = A.label("npx"); Lc = A.label("npc")
        A("s_mov_b32 s58, 200000")
        vm.wait("nn")
        A(f"s_branch {Lc}")
        A(f"{Lp}:")
        A("s_sleep 1")
        A("global_load_dwordx2 v[28:29], v26, s[30:31] sc1")
        A("s_waitcnt vmcnt(0)")
        A(f"{Lc}:")
        A("v_readfirstlane_b32 s57, v28")
        A("s_cmp_lg_u32 s57, 0")
        A(f"s_cbranch_scc1 {Lx}")
        A("s_sub_u32 s58, s58, 1")
        A("s_cmp_lg_u32 s58, 0")
        A(f"s_cbranch_scc1 {Lp}")
        A(f"{Lx}:")
        A(f"ds_write_b64 v26, v[28:29] offset:{K1_NONCE}")
        A("s_lshl_b32 s57, s49, 7")
        A("s_lshl_b32 s58, s50, 3")
        A("s_add_u32 s57, s57, s58")
        A("s_add_u32 s57, s57, s51")
        A("s_lshl_b32 s57, s57, 5")
        A("s_lshl_b32 s58, s48, 3")
        A("s_add_u32 s57, s57, s58")
        A(f"s_add_u32 s79, s57, {WS_F1}")
        A("v_cmp_eq_u32 vcc, 0, v0")
        A("v_cndmask_b32 v27, v15, v26, vcc")
    sched = ((1, n1), (2, n2), (3, s5), (GI, g1), (GI + 1, g2))
    for k, f in sched:
        chunks.setdefault(k, []).append(f)
    vm.wait("d0")
    stamp(A, 1)
    A("s_barrier")
    for j in range(9):
        if j + 2 <= 9: dma(j + 2)
        for f in chunks.get(j, []): f()
        vm.wait(f"d{j+1}", "lgkmcnt(0)")
        A("s_barrier")
    stamp(A, 2)
    g3()
    A("s_waitcnt lgkmcnt(0)")
    stamp(A, 3)
    stamp(A, 4)
    A("s_barrier")
    for f in post: f()

def k1_side(A, isF):
    if isF:
        yield
    else:
        divc(A, 9, 1, 80, 256)
        A("v_mul_u32_u24 v10, 80, v9")
        A("v_sub_u32 v10, v1, v10")
        A("s_mul_i32 s57, s51, 80")
        A("v_add_u32 v11, s57, v10")
        A("v_lshlrev_b32 v11, 1, v11")
        A("global_load_ushort v92, v11, s[6:7]")
        A("global_load_ushort v93, v11, s[8:9]")
        A("global_load_ushort v94, v11, s[18:19]")
        yield
        A("s_waitcnt vmcnt(16)")
        for r in (92, 93, 94): A(f"v_lshlrev_b32 v{r}, 16, v{r}")
        A(f"v_mul_f32 v94, {hexf(LOG2E)}, v94")
        A("v_exp_f32 v94, v94")
        bf16r(A, 94)
        A("v_mul_f32 v95, v94, v92")
        A("v_mul_f32 v96, v94, v93")
        A(f"v_mul_f32 v95, {hexf(LOG2E)}, v95")
        A(f"v_mul_f32 v96, {hexf(INV2PI)}, v96")
        A("v_mul_u32_u24 v97, 288, v10")
        A("v_lshl_add_u32 v97, v9, 3, v97")
        A("v_cmp_gt_u32 vcc, 240, v1")
        A("s_and_saveexec_b64 s[66:67], vcc")
        for r in range(11):
            A(f"v_add_u32 v98, {3*r}, v9")
            A("v_lshlrev_b32 v99, 2, v98")
            A("v_lshlrev_b32 v100, 6, v98")
            A("v_subrev_u32 v100, 1024, v100")
            A("v_cmp_gt_u32 vcc, 16, v98")
            A("v_cndmask_b32 v99, v100, v99, vcc")
            A("v_cvt_f32_u32 v99, v99")
            A("v_mul_f32 v100, v99, v95")
            A("v_mul_f32 v101, v99, v96")
            A("v_exp_f32 v100, v100")
            A("v_fract_f32 v101, v101")
            A("v_cos_f32 v102, v101")
            A("v_sin_f32 v103, v101")
            A("v_mul_f32 v102, v100, v102")
            A("v_mul_f32 v103, v100, v103")
            A(f"ds_write_b64 v97, v[102:103] offset:{K1Y_T+24*r}")
        A("s_mov_b64 exec, s[66:67]")
        A("v_exp_f32 v100, v95")
        A("v_fract_f32 v101, v96")
        A("v_cos_f32 v102, v101")
        A("v_sin_f32 v103, v101")
        A("v_mul_f32 v102, v100, v102")
        A("v_mul_f32 v103, v100, v103")
        A("v_add_f32 v98, -1.0, v102")
        A("v_mul_f32 v99, v92, v92")
        A("v_fmac_f32 v99, v93, v93")
        A("v_rcp_f32 v100, v99")
        A("v_fma_f32 v101, -v99, v100, 1.0")
        A("v_fma_f32 v100, v101, v100, v100")
        A("v_add_f32 v100, v100, v100")
        A("v_mul_f32 v104, v98, v92")
        A("v_fmac_f32 v104, v103, v93")
        A("v_mul_f32 v105, v103, v92")
        A("v_fma_f32 v105, -v98, v93, v105")
        A("v_mul_f32 v104, v104, v100")
        A("v_mul_f32 v105, v105, v100")
        A("v_cmp_gt_u32 vcc, 80, v1")
        A("s_and_saveexec_b64 s[66:67], vcc")
        A(f"ds_write_b128 v97, v[102:105] offset:{K1Y_T+272}")
        A("s_mov_b64 exec, s[66:67]")
    A("s_waitcnt lgkmcnt(0)")
    yield

def k1_prefetch_setup(A, isF):
    A("s_and_b32 s57, s2, 3")
    A("s_lshl_b32 s57, s57, 9")
    A("s_lshl_b32 s59, s35, 4")
    A("s_add_u32 s57, s57, s59")
    A("s_mul_i32 s57, s57, 1280")
    A("v_lshrrev_b32 v10, 2, v0")
    A("v_and_b32 v11, 3, v0")
    A("v_mul_u32_u24 v10, 1280, v10")
    A("v_lshl_add_u32 v10, v11, 7, v10")
    A("s_mul_i32 s58, s53, 384")
    A("s_add_u32 s66, s57, s58")
    A("s_add_u32 s66, s66, 384")
    if isF:
        srd(A, 40, 24, D * DFF * 2)
        A("v_min_u32 v11, 53, v0")
        A("v_lshlrev_b32 v11, 7, v11")
        A("s_mul_i32 s67, s35, 6912")
        A("s_add_u32 s58, s48, 3")
        A(f"s_mul_i32 s58, s58, {64*3456}")
        A("s_add_u32 s67, s67, s58")
        A(f"s_add_u32 s68, s67, {4*64*3456}")
    else:
        A("s_cmp_lt_u32 s48, 2")
        A("s_cselect_b32 s64, s10, s12")
        A("s_cselect_b32 s65, s11, s13")
        srd(A, 40, 64, D * D * 2)
        divc(A, 12, 0, 20, 64)
        A("v_mul_u32_u24 v13, 20, v12")
        A("v_sub_u32 v13, v0, v13")
        A("v_min_u32 v12, 2, v12")
        A("v_mul_u32_u24 v13, 1280, v13")
        A("v_lshl_add_u32 v11, v12, 7, v13")
        A("s_mul_i32 s67, s35, 25600")
        A("s_mul_i32 s58, s53, 384")
        A("s_add_u32 s68, s67, 896")
        A("s_add_u32 s67, s67, s58")
        A("s_add_u32 s67, s67, 384")
def k1_prefetch(A, isF, batch):
    if "nopf" in DBG: return
    if batch == 0:
        A("buffer_load_dword v12, v11, s[40:43], s67 offen")
        A("buffer_load_dword v13, v10, s[36:39], s66 offen")
    else:
        A("buffer_load_dword v12, v11, s[40:43], s68 offen")

def k1_compute(A, isF):
    ACC = 128; FRAG = 32
    MT = 7 if isF else 5; NT = 4
    STG = K1F_STAGE if isF else K1Y_STAGE
    BUF = K1F_BUF if isF else K1Y_BUF
    ASZ = 28672 if isF else 20480
    side = k1_side(A, isF) if "noside" not in DBG else iter([0, 0])
    next(side)
    AB = 232; BB = 244
    if isF:
        A("v_lshrrev_b32 v17, 2, v6")
        A("v_lshl_add_u32 v17, v5, 3, v17")
        A("v_mul_u32_u24 v17, 448, v17")
        A("v_and_b32 v18, 3, v6")
        A("v_lshl_add_u32 v17, v18, 3, v17")
        A("s_mul_i32 s57, s52, 224")
        A(f"s_add_u32 s57, s57, {BUF}")
        A("v_add_u32 v17, s57, v17")
        A("v_and_b32 v18, 1, v5")
        A("v_lshlrev_b32 v18, 5, v18")
        A("v_add_u32 v19, v17, v18")
        A("v_sub_u32 v17, v17, v18")
        A("s_cmp_eq_u32 s52, 0")
        A("s_cselect_b64 vcc, -1, 0")
        AB = 240; BB = 246
        A(f"v_cndmask_b32 v{AB}, v17, v19, vcc")
        A(f"v_cndmask_b32 v{AB+1}, v19, v17, vcc")
    else:
        A("v_and_b32 v17, 1, v6")
        A("v_lshrrev_b32 v18, 1, v6")
        A("v_lshl_add_u32 v19, v17, 3, v18")
        A("v_xor_b32 v17, v17, v18")
        A("v_xor_b32 v17, v17, v5")
        A("v_lshlrev_b32 v19, 7, v19")
        A("v_lshl_add_u32 v19, v17, 4, v19")
        A("s_mul_i32 s57, s52, 10240")
        A(f"s_add_u32 s57, s57, {BUF}")
        AB = 240; BB = 246
        A(f"v_add_u32 v{AB}, s57, v19")
        A(f"v_xor_b32 v{AB+1}, 64, v{AB}")
    A("v_and_b32 v18, 7, v0")
    A("v_xor_b32 v18, v18, v5")
    A("v_lshlrev_b32 v17, 7, v6")
    A("s_lshl_b32 s57, s53, 13")
    A(f"s_add_u32 s57, s57, {ASZ+BUF}")
    A("v_add_u32 v17, s57, v17")
    A(f"v_lshl_add_u32 v{BB}, v18, 4, v17")
    A(f"v_xor_b32 v{BB+1}, 64, v{BB}")
    for b in (1, 2):
        for i in range(2):
            A(f"v_add_u32 v{AB+2*b+i}, {b*STG}, v{AB+i}")
            A(f"v_add_u32 v{BB+2*b+i}, {b*STG}, v{BB+i}")
    for r in range(MT * NT * 4):
        A(f"v_mov_b32 v{ACC+r}, 0")
    fA = lambda st, m: FRAG + st * (MT + NT) * 4 + m * 4
    fB = lambda st, n: FRAG + st * (MT + NT) * 4 + MT * 4 + n * 4
    accr = lambda m, n: ACC + (m * NT + n) * 4
    def reads(stage, kk):
        b = stage % 3; st = kk
        out = []
        for n in range(NT):
            out.append(f"ds_read_b128 {vr(fB(st,n),4)}, v{BB+2*b+kk} offset:{n*2048}")
        for m in range(MT):
            if isF:
                for h in range(2):
                    out.append(f"ds_read_b64_tr_b16 {vr(fA(st,m)+2*h,2)}, v{AB+2*b+(m&1)} offset:{(32*kk+4*h)*448 + m*32}")
            else:
                out.append(f"ds_read_b128 {vr(fA(st,m),4)}, v{AB+2*b+kk} offset:{m*2048}")
        return out
    def mfmas(st):
        return [f"v_mfma_f32_16x16x32_bf16 {vr(accr(m,n),4)}, {vr(fA(st,m),4)}, {vr(fB(st,n),4)}, {vr(accr(m,n),4)}"
                for m in range(MT) for n in range(NT)]
    vm = VM(A)
    A(f"v_mov_b32 v15, {OOB}")
    A("v_mov_b32 v26, 0")
    A("v_lshlrev_b32 v2, 2, v0")
    Lsk = A.label("sk")
    if isF:
        A("v_lshlrev_b32 v13, 4, v0")
        A("v_cmp_gt_u32 vcc, 56, v1")
        A("v_cndmask_b32 v12, v15, v13, vcc")
        A("s_mul_i32 s57, s50, 1792")
        A("s_mul_i32 s58, s51, 224")
        A("s_add_u32 s57, s57, s58")
        A("s_lshl_b32 s57, s57, 2")
        A(f"s_add_u32 s62, s57, {WS_WSP}")
        A("s_lshl_b32 s59, s51, 4")
        A("s_lshl_b32 s58, s50, 7")
        A("s_add_u32 s59, s59, s58")
        A("s_lshl_b32 s58, s48, 2")
        A("s_add_u32 s63, s59, s58")
        A("s_mul_i32 s59, s63, 1280")
        A("s_barrier")
        for r in range(4):
            for i in range(5): A(f"buffer_load_dword v{80+5*r+i}, v2, s[36:39], s59 offen offset:{256*i}")
            A("s_add_u32 s59, s59, 1280")
        A("global_load_dwordx2 v[28:29], v26, s[30:31] sc1")
        A("s_waitcnt vmcnt(11)")
        stats_compute(A, vm, 80)
        A("s_add_u32 s63, s63, 2")
        A("s_waitcnt vmcnt(2)")
        stats_compute(A, vm, 90)
    else:
        A("s_cmp_lt_u32 s48, 2")
        A("s_cselect_b32 s64, s10, s12")
        A("s_cselect_b32 s65, s11, s13")
        srd(A, 40, 64, D * D * 2)
        A("s_mul_i32 s57, s51, 80")
        A("s_mul_i32 s58, s50, 5")
        A("s_add_u32 s57, s57, s58")
        A("s_mul_i32 s58, s53, 3")
        A("s_add_u32 s72, s57, s58")
        A("s_barrier")
        A("s_mul_i32 s57, s72, 1280")
        for r in range(3):
            for i in range(5): A(f"buffer_load_dword v{72+5*r+i}, v2, s[40:43], s57 offen offset:{256*i}")
            A("s_add_u32 s57, s57, 1280")
        A("global_load_dwordx2 v[28:29], v26, s[30:31] sc1")
    next(side)
    if not isF:
        A("s_waitcnt vmcnt(0)")
        A("s_mov_b32 s57, 0x3f803f80")
        for r in range(3): A(f"v_mov_b32 v{108+r}, 0")
        for i in range(5):
            for r in range(3): A(f"v_dot2_f32_bf16 v{108+r}, v{72+5*r+i}, s57, v{108+r}")
        A("s_nop 3")
        wave_sum(A, [108, 109, 110])
        A("v_cmp_eq_u32 vcc, 63, v0")
        A("v_cndmask_b32 v12, v15, v26, vcc")
        A("s_lshl_b32 s57, s72, 1")
        A("s_add_u32 s57, s57, s52")
        A("s_lshl_b32 s57, s57, 2")
        A(f"s_add_u32 s57, s57, {WS_WSYO}")
        A("buffer_store_dword v108, v12, s[44:47], s57 offen sc1")
        A("buffer_store_dword v109, v12, s[44:47], s57 offen offset:8 sc1")
        A("s_cmp_eq_u32 s53, 0")
        A(f"s_cselect_b32 s57, s57, {OOB}")
        A("buffer_store_dword v110, v12, s[44:47], s57 offen offset:16 sc1")
    A("v_cmp_eq_u32 vcc, 0, v0")
    A("v_cndmask_b32 v16, v15, v26, vcc")
    A("s_lshl_b32 s57, s49, 7")
    A("s_lshl_b32 s58, s50, 3")
    A("s_add_u32 s57, s57, s58")
    A("s_add_u32 s57, s57, s51")
    A("s_lshl_b32 s57, s57, 7")
    A("s_lshl_b32 s58, s48, 3")
    A("s_add_u32 s57, s57, s58")
    A(f"s_add_u32 s76, s57, {WS_F3}")
    stamp(A, 1)
    A("s_barrier")
    stamp(A, 2)
    for r in reads(0, 0): A(r)
    PRE = 3
    for j in range(10):
        A("s_waitcnt lgkmcnt(0)")
        mf = mfmas(0); rd = reads(j, 1)
        for i, m in enumerate(mf):
            A(m)
            if i < len(rd): A(rd[i])
        A("s_waitcnt lgkmcnt(0)")
        mf = mfmas(1)
        if j < 9:
            rd = reads(j + 1, 0)
            for m in mf[:PRE]: A(m)
            if j == 2 and isF:
                A(f"ds_read_b128 v[120:123], v13 offset:{K1_WS}")
                A("s_waitcnt lgkmcnt(0)")
                A("buffer_store_dwordx4 v[120:123], v12, s[44:47], s62 offen sc1")
            if j == 4 and isF:
                A("s_waitcnt vmcnt(0)")
                A("buffer_store_dwordx2 v[28:29], v16, s[44:47], s76 offen sc1")
            if j == 1:
                A("s_waitcnt vmcnt(0)")
                Lp = A.label("np"); Lx = A.label("npx")
                A("s_mov_b32 s58, 200000")
                A(f"{Lp}:")
                A("v_readfirstlane_b32 s57, v28")
                A("s_cmp_lg_u32 s57, 0")
                A(f"s_cbranch_scc1 {Lx}")
                A("s_sleep 1")
                A("global_load_dwordx2 v[28:29], v26, s[30:31] sc1")
                A("s_waitcnt vmcnt(0)")
                A("s_sub_u32 s58, s58, 1")
                A("s_cmp_lg_u32 s58, 0")
                A(f"s_cbranch_scc1 {Lp}")
                A(f"{Lx}:")
                A(f"buffer_store_dwordx2 v[28:29], v16, s[44:47], s76 offen offset:{32 if isF else 0} sc1")
            A("s_barrier")
            for i, m in enumerate(mf[PRE:]):
                if i < len(rd): A(rd[i])
                A(m)
        else:
            for m in mf: A(m)
    stamp(A, 3)
    A("s_waitcnt vmcnt(0)")
    A("s_barrier")
    stamp(A, 4)
    if isF: k1F_epilogue(A, ACC)
    else: k1Y_epilogue(A, ACC)

def frag_store_plan(ntiles, parity):
    plan = []
    t = 0
    if parity == 1:
        plan.append(("single", [0], 0, 1)); t = 1
    while t + 1 < ntiles:
        plan.append(("pair", [t, t + 1], (t + parity) // 2, 0)); t += 2
    if t < ntiles:
        plan.append(("single", [t], (t + parity) // 2, 0))
    return plan

def k1F_epilogue(A, ACC):
    A("s_lshl_b32 s57, s53, 10")
    A("v_lshlrev_b32 v17, 6, v6")
    A("v_add_u32 v17, s57, v17")
    for n in range(4):
        A(f"ds_read_b64 v[{32+2*n}:{33+2*n}], v17 offset:{K1_STATS+16*n}")
    A("s_mul_i32 s57, s52, 448")
    A("v_lshlrev_b32 v18, 4, v5")
    A("v_add_u32 v18, s57, v18")
    for m in range(7):
        A(f"ds_read_b128 v[{40+4*m}:{43+4*m}], v18 offset:{K1_WS+64*m}")
    A("s_lshr_b32 s57, s54, 1")
    A("s_mul_i32 s58, s50, 54")
    A("s_add_u32 s57, s57, s58")
    A("s_lshl_b32 s57, s57, 3")
    A("s_lshl_b32 s58, s53, 2")
    A("s_add_u32 s57, s57, s58")
    A("s_lshl_b32 s57, s57, 10")
    A(f"s_add_u32 s65, s57, {WS_HF}")
    A("v_lshlrev_b32 v17, 4, v0")
    A("s_lshl_b32 s57, s53, 11")
    A(f"s_add_u32 s57, s57, {K1_LE}")
    A("v_lshlrev_b32 v19, 3, v0")
    A("v_add_u32 v19, s57, v19")
    A("s_waitcnt lgkmcnt(0)")
    def conv(m, n, dst):
        a = ACC + (m * 4 + n) * 4
        w = 40 + 4 * m; st = 32 + 2 * n
        for hh in range(2):
            A(f"v_pk_fma_f32 {vr(a+2*hh,2)}, {vr(w+2*hh,2)}, {vr(st,2)}, {vr(a+2*hh,2)} op_sel:[0,0,0] op_sel_hi:[1,0,1] neg_lo:[1,0,0] neg_hi:[1,0,0]")
        for hh in range(2):
            A(f"v_pk_mul_f32 {vr(a+2*hh,2)}, {vr(a+2*hh,2)}, {vr(st,2)} op_sel:[0,1] op_sel_hi:[1,1]")
        for hh in range(2):
            A(f"v_cvt_pk_bf16_f32 v{dst+hh}, v{a+2*hh}, v{a+2*hh+1}")
        for hh in range(2):
            A(f"v_pk_max_i16 v{dst+hh}, v{dst+hh}, 0")
    L1 = A.label("ep1"); L2 = A.label("epx")
    A("s_cmp_lg_u32 s52, 0")
    A(f"s_cbranch_scc1 {L1}")
    for n in range(4):
        conv(6, n, 72 + 2 * n)
        A(f"ds_write_b64 v19, v[{72+2*n}:{73+2*n}] offset:{512*n}")
    A("s_waitcnt lgkmcnt(0)")
    A("s_barrier")
    cnt = 0
    for p in range(3):
        A(f"s_add_u32 s57, s65, {p*8192}")
        for n in range(4):
            t = 80 + 4 * (cnt % 4); cnt += 1
            conv(2 * p, n, t); conv(2 * p + 1, n, t + 2)
            A(f"buffer_store_dwordx4 v[{t}:{t+3}], v17, s[44:47], s57 offen offset:{1024*n} sc1")
    A(f"s_branch {L2}")
    A(f"{L1}:")
    for n in range(4): conv(0, n, 98 + 4 * n)
    A("s_barrier")
    for n in range(4): A(f"ds_read_b64 v[{96+4*n}:{97+4*n}], v19 offset:{512*n}")
    for p in range(3):
        A(f"s_add_u32 s57, s65, {(4+p)*8192}")
        if p == 2:
            A("s_cmp_lt_u32 s51, 6")
            A(f"s_cselect_b32 s57, s57, {OOB}")
        for n in range(4):
            t = 80 + 4 * (cnt % 4); cnt += 1
            conv(2 * p + 1, n, t); conv(2 * p + 2, n, t + 2)
            A(f"buffer_store_dwordx4 v[{t}:{t+3}], v17, s[44:47], s57 offen offset:{1024*n} sc1")
        if p == 0:
            A(f"s_add_u32 s57, s65, {3*8192}")
            A("s_waitcnt lgkmcnt(0)")
            for n in range(4):
                A(f"buffer_store_dwordx4 v[{96+4*n}:{99+4*n}], v17, s[44:47], s57 offen offset:{1024*n} sc1")
    A(f"{L2}:")
    for i in (5, 6, 7): stamp(A, i)

def k1Y_epilogue(A, ACC):
    ST = 32; WSR = 40; P = 208; TB = 60
    A("s_lshl_b32 s57, s53, 10")
    A("v_lshlrev_b32 v17, 6, v6")
    A("v_add_u32 v17, s57, v17")
    for n in range(4):
        A(f"ds_read_b64 v[{ST+2*n}:{ST+2*n+1}], v17 offset:{K1_STATS+16*n}")
    A("v_mov_b32 v17, 0")
    A(f"ds_read_b64 v[30:31], v17 offset:{K1_NONCE}")
    A("s_mul_i32 s57, s52, 320")
    A("v_lshlrev_b32 v18, 4, v5")
    A("v_add_u32 v18, s57, v18")
    for m in range(5):
        A(f"ds_read_b128 v[{WSR+4*m}:{WSR+4*m+3}], v18 offset:{K1_WS+64*m}")
    A("s_mul_i32 s57, s52, 11520")
    A("v_mul_u32_u24 v19, 576, v5")
    A("v_add_u32 v19, s57, v19")
    A("v_lshl_add_u32 v20, v6, 3, v19")
    A("s_mul_i32 s57, s53, 640")
    A("s_mul_i32 s58, s52, 320")
    A("s_add_u32 s57, s57, s58")
    A(f"s_add_u32 s57, s57, {K1_LE}")
    A("v_lshlrev_b32 v21, 4, v5")
    A("v_add_u32 v21, s57, v21")
    A("v_lshlrev_b32 v22, 4, v0")
    A(f"v_add_u32 v22, {K1_LE+2560}, v22")
    A("v_cmp_eq_u32 vcc, 15, v6")
    A("v_cndmask_b32 v22, v22, v21, vcc")
    A("v_sub_u32 v23, 15, v6")
    A("v_lshl_add_u32 v23, v23, 3, v19")
    ta = lambda m, q: 60 + 8 * m + 4 * q
    for m in range(5):
        for q in range(2):
            o = K1Y_T + (8 * m + q) * 288
            A(f"ds_read_b64 v[{ta(m,q)}:{ta(m,q)+1}], v19 offset:{o+272}")
            A(f"ds_read_b64 v[{ta(m,q)+2}:{ta(m,q)+3}], v23 offset:{o}")
        if m == 1: A("s_waitcnt lgkmcnt(8)")
    for m in range(5):
        for n in range(4):
            for q in range(2):
                u = ACC + (m * 4 + n) * 4 + 2 * q; w = WSR + 4 * m + 2 * q; st = ST + 2 * n
                A(f"v_pk_fma_f32 {vr(u,2)}, {vr(w,2)}, {vr(st,2)}, {vr(u,2)} op_sel:[0,0,0] op_sel_hi:[1,0,1] neg_lo:[1,0,0] neg_hi:[1,0,0]")
            for q in range(2):
                u = ACC + (m * 4 + n) * 4 + 2 * q; st = ST + 2 * n
                A(f"v_pk_mul_f32 {vr(u,2)}, {vr(u,2)}, {vr(st,2)} op_sel:[0,1] op_sel_hi:[1,1]")
    A("s_waitcnt lgkmcnt(0)")
    Z = 100
    for n in range(1, 4):
        for m in range(5):
            for q in range(2):
                e = P + 4 * m + 2 * q; z = Z + 4 * m + 2 * q
                prev = (ACC + (m * 4) * 4 + 2 * q) if n == 1 else (e if n == 2 else z)
                dst = e if n in (1, 3) else z
                cmul_add(A, dst, ta(m, q), prev, ACC + (m * 4 + n) * 4 + 2 * q)
    for m in range(5):
        for q in range(2):
            cmul(A, Z + 4 * m + 2 * q, ta(m, q) + 2, P + 4 * m + 2 * q)
    for k in (8, 4, 2, 1):
        for r in range(20):
            A(f"v_add_f32_dpp v{Z+r}, v{Z+r}, v{Z+r} row_ror:{k} row_mask:0xf bank_mask:0xf")
    for m in range(5):
        A(f"ds_write_b128 v22, v[{Z+4*m}:{Z+4*m+3}] offset:{64*m}")
    A("s_waitcnt lgkmcnt(0)")
    stamp(A, 5)
    A("s_barrier")
    tbb = lambda m, q: (100 if (m & 1) == 0 else 228) + 12 * q
    def load_tabB(m):
        for q in range(2):
            o = K1Y_T + (8 * m + q) * 288; b = tbb(m, q)
            A(f"ds_read_b64 v[{b}:{b+1}], v19 offset:{o+280}")
            A(f"ds_read_b64 v[{b+2}:{b+3}], v19 offset:{o+8}")
            A(f"ds_read_b64 v[{b+4}:{b+5}], v19 offset:{o+16}")
            A(f"ds_read_b64 v[{b+6}:{b+7}], v19 offset:{o+32}")
            A(f"ds_read_b64 v[{b+8}:{b+9}], v19 offset:{o+64}")
            A(f"ds_read_b64 v[{b+10}:{b+11}], v20 offset:{o}")
    load_tabB(0)
    A("s_mul_i32 s57, s51, 5")
    A("s_lshl_b32 s58, s52, 1")
    A("s_add_u32 s57, s57, s58")
    A("s_mul_i32 s58, s50, 40")
    A("s_add_u32 s57, s57, s58")
    A("s_lshl_b32 s57, s57, 3")
    A("s_lshl_b32 s58, s53, 2")
    A("s_add_u32 s57, s57, s58")
    A("s_lshl_b32 s57, s57, 10")
    A(f"s_add_u32 s65, s57, {WS_H1}")
    A("v_lshlrev_b32 v27, 4, v0")
    TMP = 124
    for m in range(5):
        A("s_waitcnt lgkmcnt(0)")
        if m < 4: load_tabB(m + 1)
        for ki, k in enumerate((1, 2, 4, 8)):
            for q in range(2):
                e = P + 4 * m + 2 * q; t0 = TMP + 2 * q
                A(f"v_mov_b32_dpp v{t0}, v{e} row_shr:{k} row_mask:0xf bank_mask:0xf bound_ctrl:0")
                A(f"v_mov_b32_dpp v{t0+1}, v{e+1} row_shr:{k} row_mask:0xf bank_mask:0xf bound_ctrl:0")
            for q in range(2):
                e = P + 4 * m + 2 * q; t0 = TMP + 2 * q
                cmul_add(A, e, tbb(m, q) + 2 + 2 * ki, t0, e)
        for q in range(2):
            e = P + 4 * m + 2 * q; t0 = TMP + 2 * q
            A(f"v_mov_b32_dpp v{t0}, v{e} row_shr:1 row_mask:0xf bank_mask:0xf bound_ctrl:0")
            A(f"v_mov_b32_dpp v{t0+1}, v{e+1} row_shr:1 row_mask:0xf bank_mask:0xf bound_ctrl:0")
        for q in range(2):
            cmul(A, P + 4 * m + 2 * q, tbb(m, q), TMP + 2 * q)
            cmul(A, ta(m, q) + 2, tbb(m, q), tbb(m, q) + 10)
        for n in range(4):
            for q in range(2):
                u = ACC + (m * 4 + n) * 4 + 2 * q; t0 = TMP + 2 * q
                A(f"v_pk_mul_f32 {vr(t0,2)}, {vr(tbb(m,q),2)}, {vr(u,2)} op_sel:[0,0] op_sel_hi:[0,1]")
                A(f"v_pk_fma_f32 {vr(u,2)}, {vr(tbb(m,q),2)}, {vr(u,2)}, {vr(t0,2)} op_sel:[1,1,0] op_sel_hi:[1,0,1] neg_lo:[1,0,0]")
    A("s_waitcnt lgkmcnt(0)")
    A("s_barrier")
    stamp(A, 6)
    for m in range(5):
        A(f"ds_read_b128 v[{100+4*m}:{103+4*m}], v21 offset:{1280+64*m}")
    A("s_waitcnt lgkmcnt(0)")
    for m in range(5):
        for q in range(2):
            cmul_add(A, P + 4 * m + 2 * q, ta(m, q) + 2, 100 + 4 * m + 2 * q, P + 4 * m + 2 * q)
    for n in range(4):
        for m in range(5):
            for q in range(2):
                u = ACC + (m * 4 + n) * 4 + 2 * q
                prev = (P + 4 * m + 2 * q) if n == 0 else u - 4
                cmul_add(A, u, ta(m, q), prev, u)
    stamp(A, 7)
    L1 = A.label("ey1"); L2 = A.label("eyx")
    A("s_cmp_lg_u32 s52, 0")
    A(f"s_cbranch_scc1 {L1}")
    for parity in (0, 1):
        if parity == 1: A(f"{L1}:")
        cnt = 0
        for kind, tl, ks, half in frag_store_plan(5, parity):
            A(f"s_add_u32 s57, s65, {ks*8192}")
            for n in range(4):
                t = 32 + 4 * (cnt % 8); cnt += 1
                for x, m in enumerate(tl):
                    u = ACC + (m * 4 + n) * 4
                    A(f"v_cvt_pk_bf16_f32 v{t+2*x}, v{u}, v{u+1}")
                    A(f"v_cvt_pk_bf16_f32 v{t+2*x+1}, v{u+2}, v{u+3}")
                if kind == "pair":
                    A(f"buffer_store_dwordx4 v[{t}:{t+3}], v27, s[44:47], s57 offen offset:{1024*n} sc1")
                else:
                    if "nosingle" not in DBG: A(f"buffer_store_dwordx2 v[{t}:{t+1}], v27, s[44:47], s57 offen offset:{1024*n + 8*half} sc1")
        if parity == 0: A(f"s_branch {L2}")
    A(f"{L2}:")

K2_NR = 7
K2_R0 = 26112
K2_BOFF = K2_R0 + K2_NR * 10240
K2_NST = 47
NSF = 27

def p2_ids(A):
    A("s_lshl_b32 s57, s49, 7")
    A("s_lshl_b32 s58, s50, 3")
    A("s_add_u32 s57, s57, s58")
    A("s_add_u32 s57, s57, s51")
    A("s_lshl_b32 s57, s57, 7")
    A("s_lshl_b32 s58, s48, 3")
    A("s_add_u32 s57, s57, s58")
    A(f"s_add_u32 s77, s57, {WS_F2}")
    A("s_mov_b32 s78, s49")
    A("s_and_b32 s57, s2, 3")
    A("s_bfe_u32 s58, s2, 0x10002")
    A("s_lshr_b32 s59, s35, 2")
    A("s_lshl_b32 s50, s57, 2")
    A("s_lshr_b32 s57, s59, 1")
    A("s_add_u32 s50, s50, s57")
    A("s_and_b32 s49, s59, 1")
    A("s_lshl_b32 s51, s58, 2")
    A("s_and_b32 s57, s35, 3")
    A("s_add_u32 s51, s51, s57")
    A("v_lshlrev_b32 v10, 4, v0")

def spin_flags(A, loads, regs, vm=None, iters=400000, first_wait=None):
    Lp = A.label("sp"); Lx = A.label("spx")
    A(f"s_mov_b32 s70, {iters}")
    Lc = A.label("spc")
    if first_wait:
        first_wait()
        A(f"s_branch {Lc}")
    A(f"{Lp}:")
    for l in loads: A(l)
    A("s_waitcnt vmcnt(0)")
    A(f"{Lc}:")
    for i, r in enumerate(regs):
        A(f"v_cmp_ne_u64 {'vcc' if i == 0 else 's[72:73]'}, v[{r}:{r+1}], v[28:29]")
        if i: A("s_or_b64 vcc, vcc, s[72:73]")
    A("s_cmp_eq_u64 vcc, 0")
    A(f"s_cbranch_scc1 {Lx}")
    A("s_sleep 1")
    A("s_sub_u32 s70, s70, 1")
    A("s_cmp_lg_u32 s70, 0")
    A(f"s_cbranch_scc1 {Lp}")
    A(f"{Lx}:")
    if vm and not first_wait: vm.ops = []

def p2_loaders(A):
    stamp(A, 0)
    p2_ids(A)
    A("s_mul_i32 s57, s53, 5120")
    A(f"s_mul_i32 s62, s51, {20*10240}")
    A("s_add_u32 s62, s62, s57")
    A(f"s_add_u32 s62, s62, {WS_CP}")
    A(f"s_mul_i32 s63, s51, {27*10240}")
    A("s_add_u32 s63, s63, s57")
    A(f"s_add_u32 s63, s63, {WS_W2P}")
    A(f"s_add_u32 s57, s57, {K2_R0}")
    A("s_lshl_b32 s58, s53, 13")
    A("s_lshl_b32 s59, s49, 12")
    A("s_add_u32 s58, s58, s59")
    A(f"s_mul_i32 s64, s50, {40*8192}")
    A("s_add_u32 s64, s64, s58")
    A(f"s_add_u32 s64, s64, {WS_H1}")
    A(f"s_mul_i32 s66, s50, {54*8192}")
    A("s_add_u32 s66, s66, s58")
    A(f"s_add_u32 s66, s66, {WS_HF}")
    A("s_lshl_b32 s59, s53, 12")
    A(f"s_add_u32 s59, s59, {K2_BOFF}")
    A("s_cmp_lg_u32 s52, 0")
    A("s_cselect_b32 s62, s64, s62")
    A("s_cselect_b32 s63, s66, s63")
    A("s_cselect_b32 s58, s59, s57")
    A("s_cbranch_scc0 p2_lA")
    p2_loader(A, True)
    stamps_flush(A, 6, 1)
    A("s_branch k1_end")
    A("p2_lA:")
    p2_loader(A, False)
    stamps_flush(A, 6, 1)

def p2_loader(A, isB):
    vm = VM(A)
    nst = K2_NST
    nI = 4 if isB else 5
    sstr = 16384 if isB else 10240
    lstr = 8192 if isB else 10240
    if not isB:
        A("v_lshlrev_b32 v30, 4, v0")
        A(f"v_add_u32 v30, {WS_F1}, v30")
        wl = lambda o: [f"buffer_load_dwordx4 v[{32+4*k}:{35+4*k}], v30, s[44:47], 0 offen offset:{o + 1024*k} sc1" if o + 1024*k < 4096 else
                        f"buffer_load_dwordx4 v[{32+4*k}:{35+4*k}], v31, s[44:47], 0 offen offset:{o + 1024*k - 4096} sc1" for k in range(4)]
        A("v_add_u32 v31, 4096, v30")
    else:
        A("v_bfe_u32 v30, v0, 2, 3")
        A("v_and_b32 v31, 3, v0")
        A("v_lshlrev_b32 v30, 7, v30")
        A("v_lshl_add_u32 v30, v31, 3, v30")
        A("s_lshl_b32 s64, s50, 10")
        A(f"s_add_u32 s64, s64, {WS_F2}")
        A(f"s_add_u32 s66, s64, {128*128}")
        spin_flags(A, ["buffer_load_dwordx2 v[32:33], v30, s[44:47], s66 offen sc1"], [32])
    def dma(st):
        L2 = ["buffer_load_dwordx2 v[32:33], v30, s[44:47], s64 offen sc1"] if isB else wl(4096)
        R2 = [32] if isB else [32 + 2 * k for k in range(8)]
        if st == NSF - 3:
            for l in L2: vm(l, "f2")
        if st == NSF:
            spin_flags(A, L2, R2, vm, first_wait=lambda: vm.wait("f2"))
        bo = (st % K2_NR) * lstr
        src, so = (63, st * sstr) if st < NSF else (62, (st - NSF) * sstr)
        for q in range(nI):
            A(f"s_add_u32 m0, s58, {bo + 1024*q}")
            A(f"s_add_u32 s65, s{src}, {so + 1024*q}")
            vm("buffer_load_dwordx4 v10, s[44:47], s65 offen sc1 lds", f"d{st}")
    stamp(A, 1)
    n0 = 3 if isB else K2_NR
    if isB:
        for st in range(n0): dma(st)
    else:
        Lb = A.label("nox"); Lc = A.label("late"); Ld = A.label("done")
        A("s_cmp_lg_u32 s78, 0")
        A(f"s_cbranch_scc1 {Lb}")
        A("s_barrier")
        spin_flags(A, wl(0), [32 + 2 * k for k in range(8)], iters=2)
        A("s_cmp_eq_u32 s70, 0")
        A(f"s_cbranch_scc1 {Lc}")
        for st in range(n0): dma(st)
        A("s_barrier")
        A(f"s_branch {Ld}")
        A(f"{Lc}:")
        A("s_barrier")
        A(f"{Lb}:")
        spin_flags(A, wl(0), [32 + 2 * k for k in range(8)])
        vm.ops = []
        for st in range(n0): dma(st)
        A(f"{Ld}:")
    vm.wait("d0")
    stamp(A, 2)
    A("s_barrier")
    vm.wait("d1")
    A("s_barrier")
    for st in range(n0, K2_NR): dma(st)
    for j in range(nst - 2):
        vm.wait(f"d{j+2}")
        A("s_barrier")
        if j + K2_NR < nst: dma(j + K2_NR)
    for i in (3, 4, 5): stamp(A, i)

def p2_compute(A):
    stamp(A, 0)
    A("v_mov_b32 v26, 0")
    A(f"ds_read_b64 v[22:23], v26 offset:{K1_NONCE}")
    p2_ids(A)
    srd(A, 72, 4, T * D * 2)
    srd(A, 84 if not STAMPS else 68, 28, T * D * 4)
    A("v_cmp_eq_u32 vcc, 0, v0")
    A(f"v_mov_b32 v24, {OOB}")
    A("v_cndmask_b32 v24, v24, v26, vcc")
    L = A.label("nof")
    A("s_cmp_eq_u32 s78, 0")
    A(f"s_cbranch_scc1 {L}")
    A("s_waitcnt vmcnt(0) lgkmcnt(0)")
    A("buffer_store_dwordx2 v[22:23], v24, s[44:47], s77 offen sc1")
    A(f"{L}:")
    FRAG = 112
    ACCY = 28; ACCF = 48; XR = 68; SR = 78; DR = 82; PR = 92
    nst = K2_NST
    A("s_lshl_b32 s57, s50, 7")
    A("s_lshl_b32 s58, s49, 6")
    A("s_add_u32 s57, s57, s58")
    A("s_add_u32 s57, s57, s48")
    A("v_lshl_add_u32 v17, v6, 2, s57")
    A("v_mul_u32_u24 v18, 1280, v17")
    A("v_lshl_add_u32 v18, v5, 3, v18")
    A("s_mul_i32 s58, s51, 160")
    for m in range(5):
        A(f"buffer_load_dwordx2 v[{XR+2*m}:{XR+2*m+1}], v18, s[72:75], s58 offen offset:{32*m}")
    A("v_lshlrev_b32 v25, 4, v17")
    A(f"s_mov_b32 s62, {WS_STATS}")
    A("v_lshlrev_b32 v26, 3, v5")
    A("v_add_u32 v26, s58, v26")
    for m in range(5):
        A(f"global_load_dwordx2 v[{DR+2*m}:{DR+2*m+1}], v26, s[20:21] offset:{32*m}")
    A("s_lshl_b32 s57, s48, 10")
    A(f"s_add_u32 s57, s57, {K2_BOFF}")
    A("v_add_u32 v20, s57, v10")
    A(f"v_add_u32 v21, {K2_R0 + 3*10240}, v10")
    A(f"v_add_u32 v19, {K2_R0}, v10")
    for r in range(40):
        A(f"v_mov_b32 v{ACCY+r}, 0")
    plist = []
    P = plist.append
    mm, rs, sd = SR, SR + 1, SR + 2
    for m in range(5):
        x = XR + 2 * m; t = 2; du = 12; p = PR + 4 * m
        for hh in range(2):
            P(f"v_lshlrev_b32 v{t+2*hh}, 16, v{x+hh}")
            P(f"v_and_b32 v{t+2*hh+1}, 0xffff0000, v{x+hh}")
        for r in range(4): P(f"v_sub_f32 v{t+r}, v{t+r}, v{mm}")
        for hh in range(2):
            P(f"v_cvt_pk_bf16_f32 v{t+4+hh}, v{t+2*hh}, v{t+2*hh+1}")
        for hh in range(2):
            P(f"v_lshlrev_b32 v{t+2*hh}, 16, v{t+4+hh}")
            P(f"v_and_b32 v{t+2*hh+1}, 0xffff0000, v{t+4+hh}")
        for r in range(4): P(f"v_mul_f32 v{t+4+r}, v{t+r}, v{rs}")
        for r in range(4): P(f"v_fma_f32 v{t+r}, -v{t+4+r}, v{sd}, v{t+r}")
        for r in range(4): P(f"v_fma_f32 v{t+4+r}, v{t+r}, v{rs}, v{t+4+r}")
        for hh in range(2):
            P(f"v_cvt_pk_bf16_f32 v{t+hh}, v{t+4+2*hh}, v{t+4+2*hh+1}")
        for hh in range(2):
            P(f"v_lshlrev_b32 v{t+4+2*hh}, 16, v{t+hh}")
            P(f"v_and_b32 v{t+4+2*hh+1}, 0xffff0000, v{t+hh}")
        for hh in range(2):
            P(f"v_lshlrev_b32 v{du+2*hh}, 16, v{DR+2*m+hh}")
            P(f"v_and_b32 v{du+2*hh+1}, 0xffff0000, v{DR+2*m+hh}")
        for r in range(4): P(f"v_mul_f32 v{t+4+r}, v{t+4+r}, v{du+r}")
        for hh in range(2):
            P(f"v_cvt_pk_bf16_f32 v{t+hh}, v{t+4+2*hh}, v{t+4+2*hh+1}")
        for hh in range(2):
            P(f"v_lshlrev_b32 v{p+2*hh}, 16, v{t+hh}")
            P(f"v_and_b32 v{p+2*hh+1}, 0xffff0000, v{t+hh}")
    glist = []
    G = glist.append
    for m in range(5):
        a = ACCF + 4 * m; t = 2
        for hh in range(2):
            G(f"v_cvt_pk_bf16_f32 v{t+hh}, v{a+2*hh}, v{a+2*hh+1}")
        for hh in range(2):
            G(f"v_lshlrev_b32 v{a+2*hh}, 16, v{t+hh}")
            G(f"v_and_b32 v{a+2*hh+1}, 0xffff0000, v{t+hh}")
        for r in range(4): G(f"v_mul_f32 v{t+r}, {hexf(-LOG2E)}, v{a+r}")
        for r in range(4): G(f"v_exp_f32 v{t+r}, v{t+r}")
        for r in range(4): G(f"v_add_f32 v{t+r}, 1.0, v{t+r}")
        for r in range(4): G(f"v_rcp_f32 v{t+r}, v{t+r}")
        for r in range(4): G(f"v_mul_f32 v{t+r}, v{t+r}, v{a+r}")
        for hh in range(2):
            G(f"v_cvt_pk_bf16_f32 v{t+4+hh}, v{t+2*hh}, v{t+2*hh+1}")
        for hh in range(2):
            G(f"v_lshlrev_b32 v{a+2*hh}, 16, v{t+4+hh}")
            G(f"v_and_b32 v{a+2*hh+1}, 0xffff0000, v{t+4+hh}")
    fset = lambda stage, kk: FRAG + ((stage % 3) * 2 + kk) * 24
    def reads(stage, kk):
        sl = stage % K2_NR
        ra = 21 if sl >= 3 else 19
        oa = (sl - 3 if sl >= 3 else sl) * 10240
        f = fset(stage, kk)
        out = [f"ds_read_b128 {vr(f+20,4)}, v20 offset:{sl*8192 + kk*4096}"]
        out += [f"ds_read_b128 {vr(f+4*m,4)}, v{ra} offset:{oa + kk*5120 + m*1024}" for m in range(5)]
        return out
    def mfmas(stage, kk):
        f = fset(stage, kk); acc = ACCF if stage < NSF else ACCY
        return [f"v_mfma_f32_16x16x32_bf16 {vr(acc+4*m,4)}, {vr(f+4*m,4)}, {vr(f+20,4)}, {vr(acc+4*m,4)}" for m in range(5)]
    stamp(A, 1)
    A("s_barrier")
    stamp(A, 2)
    A(f"buffer_load_dwordx4 v[{SR}:{SR+3}], v25, s[44:47], s62 offen sc1")
    for kk in range(2):
        for r in reads(0, kk): A(r)
    A("s_barrier")
    for kk in range(2):
        for r in reads(1, kk): A(r)
    for j in range(nst):
        A(f"s_waitcnt lgkmcnt({12 if j < nst - 1 else 0})")
        mf = mfmas(j, 0) + mfmas(j, 1)
        if j < nst - 2:
            for m in mf[:2]: A(m)
            if j == 8:
                A("s_waitcnt vmcnt(0)")
                L = A.label("noy")
                A("s_cmp_lg_u32 s78, 0")
                A(f"s_cbranch_scc1 {L}")
                A("buffer_store_dwordx2 v[22:23], v24, s[44:47], s77 offen sc1")
                A(f"{L}:")
            A("s_barrier")
            rd = reads(j + 2, 0) + reads(j + 2, 1)
            rest = mf[2:]
            for i, m in enumerate(rest):
                for r in rd[(i * 12) // 8: ((i + 1) * 12) // 8]: A(r)
                A(m)
                if j >= 8:
                    for _ in range(2):
                        if plist: A(plist.pop(0))
                        elif j >= NSF + 2 and glist: A(glist.pop(0))
        else:
            for m in mf: A(m)
    assert not plist and not glist
    stamp(A, 3)
    A("v_lshlrev_b32 v18, 1, v18")
    A("s_lshl_b32 s58, s58, 1")
    so = 84 if not STAMPS else 68
    for m in range(5):
        t = 112 + 4 * m
        for hh in range(2):
            A(f"v_pk_add_f32 {vr(PR+4*m+2*hh,2)}, {vr(ACCY+4*m+2*hh,2)}, {vr(PR+4*m+2*hh,2)}")
        for hh in range(2):
            A(f"v_lshlrev_b32 v{t+2*hh}, 16, v{XR+2*m+hh}")
            A(f"v_and_b32 v{t+2*hh+1}, 0xffff0000, v{XR+2*m+hh}")
        for hh in range(2):
            A(f"v_pk_mul_f32 {vr(PR+4*m+2*hh,2)}, {vr(PR+4*m+2*hh,2)}, {vr(ACCF+4*m+2*hh,2)}")
        for hh in range(2):
            A(f"v_pk_add_f32 {vr(t+2*hh,2)}, {vr(t+2*hh,2)}, {vr(PR+4*m+2*hh,2)}")
        A(f"buffer_store_dwordx4 v[{t}:{t+3}], v18, s[{so}:{so+3}], s58 offen offset:{64*m}")
    stamp(A, 4); stamp(A, 5)

HEADER = open("recurrent_scan__ssm_conv_s5__dense_activation_relu__prompt.s.ref").read().split("; @launch")[0]

def kd(name, vgpr=256):
    return f""".p2align 6
.amdhsa_kernel {name}
  .amdhsa_next_free_vgpr {vgpr}
  .amdhsa_next_free_sgpr 102
  .amdhsa_accum_offset {vgpr}
  .amdhsa_group_segment_fixed_size 0
  .amdhsa_kernarg_size 120
  .amdhsa_user_sgpr_count 2
  .amdhsa_user_sgpr_kernarg_segment_ptr 1
  .amdhsa_system_sgpr_workgroup_id_x 1
.end_amdhsa_kernel
"""

def build():
    out = HEADER
    out += f"; @launch kernel=k1_kernel grid=(256,1,1) block=(512,1,1) lds={K1_LDS}\n"
    out += '.amdgcn_target "amdgcn-amd-amdhsa--gfx950"\n.text\n'
    for name, fn in (("k1_kernel", kernel1),):
        A = Asm(); A.nlabel = 0 if name == "k1_kernel" else 1000
        fn(A)
        lines = fix_hazards(A.lines, verbose=True)
        out += f".globl {name}\n.p2align 8\n.type {name},@function\n"
        out += "\n".join(("    " + l if not l.endswith(":") else l) for l in lines) + "\n"
    out += '.section .rodata,"a"\n' + kd("k1_kernel")
    return out

if __name__ == "__main__":
    if len(sys.argv) > 2: STAMPS = True; DBG = sys.argv[2]
    dst = sys.argv[1] if len(sys.argv) > 1 else "recurrent_scan__ssm_conv_s5__dense_activation_relu__prompt.s"
    txt = build()
    if os.environ.get("SINGLE", "1") == "1" and not STAMPS:
        KN = "recurrent_scan__ssm_conv_s5__dense_activation_relu__prompt_kernel"
        txt = txt.replace("; @launch kernel=k1_kernel grid", "; @launch grid").replace("k1_kernel", KN)
    open(dst, "w").write(txt)
    print("wrote", dst)
```

```python
import sys, struct
from asmlib import *

T, D, DFF = 2048, 640, 1728
WS_STATS = 0x000000
WS_E     = 0x010000
WS_WSP   = 0x0A0000
WS_WSYO  = 0x0E0000
WS_F3    = 0x0E8000
WS_F2    = 0x080000
WS_F1    = 0x090000
WS_CP    = 0x100000
WS_W2P   = 0x300000
WS_H1    = 0x600000
WS_HF    = 0xC00000
WS_S     = 0x1400000
WS_TS    = 0x1A00000
WS_SIZE  = 0x1B00000
OOB = 0x7ffffff0

import os
MAP = os.environ.get("MAP", "bp")
GI = int(os.environ.get("GI", 7))
CPF = int(os.environ.get("CPF", 1))
STAMPS = False
DBG = "nopf"
def stamp(A, i):
    if STAMPS and i == 0:
        A("s_memrealtime s[96:97]")
    if STAMPS:
        A(f"s_memtime s[{80+2*i}:{81+2*i}]")
def stamps_flush(A, n, kidx, waitvm=True):
    if not STAMPS: return
    A("s_waitcnt lgkmcnt(0) vmcnt(0)" if waitvm else "s_waitcnt lgkmcnt(0)")
    A("s_memtime s[98:99]")
    A("s_memrealtime s[100:101]")
    A("s_waitcnt lgkmcnt(0)")
    A("s_lshl_b32 s57, s2, 3")
    A("s_add_u32 s57, s57, s34")
    A("s_lshl_b32 s57, s57, 6")
    A(f"s_add_u32 s57, s57, {WS_TS + kidx*131072}")
    A("v_mov_b32 v2, 0")
    for i in range(n):
        A(f"v_mov_b32 v3, s{80+2*i}")
        A(f"buffer_store_dword v3, v2, s[44:47], s57 offen offset:{4*i}")
    A(f"v_mov_b32 v3, s98")
    A(f"buffer_store_dword v3, v2, s[44:47], s57 offen offset:{4*n}")
    A(f"v_mov_b32 v3, s96")
    A(f"buffer_store_dword v3, v2, s[44:47], s57 offen offset:56")
    A(f"v_mov_b32 v3, s100")
    A(f"buffer_store_dword v3, v2, s[44:47], s57 offen offset:60")

def f2u(x): return struct.unpack("<I", struct.pack("<f", x))[0]
def hexf(x): return f"0x{f2u(x):08x}"
LOG2E = 1.4426950408889634
INV2PI = 0.15915494309189535

def divc(A, vq, vsrc, d, maxv):
    for sh in (16, 17, 18, 19, 20):
        mul = ((1 << sh) + d - 1) // d
        if all((c * mul) >> sh == c // d for c in range(maxv)) and maxv * mul < (1 << 32) and mul < (1 << 24):
            A(f"v_mul_u32_u24 {vr(vq)}, {mul}, {vr(vsrc)}")
            A(f"v_lshrrev_b32 {vr(vq)}, {sh}, {vr(vq)}")
            return
    raise Exception("no magic")

def srd(A, s, base, size):
    A(f"s_mov_b32 s{s}, s{base}")
    A(f"s_and_b32 s{s+1}, s{base+1}, 0xffff")
    A(f"s_mov_b32 s{s+2}, {size}")
    A(f"s_mov_b32 s{s+3}, 0x20000")

def cmul_add(A, dst, w, h, u):
    A(f"v_pk_fma_f32 {vr(dst,2)}, {vr(w,2)}, {vr(h,2)}, {vr(u,2)} op_sel:[0,0,0] op_sel_hi:[0,1,1]")
    A(f"v_pk_fma_f32 {vr(dst,2)}, {vr(w,2)}, {vr(h,2)}, {vr(dst,2)} op_sel:[1,1,0] op_sel_hi:[1,0,1] neg_lo:[1,0,0]")
def cmul(A, dst, w, h):
    A(f"v_pk_mul_f32 {vr(dst,2)}, {vr(w,2)}, {vr(h,2)} op_sel:[0,0] op_sel_hi:[0,1]")
    A(f"v_pk_fma_f32 {vr(dst,2)}, {vr(w,2)}, {vr(h,2)}, {vr(dst,2)} op_sel:[1,1,0] op_sel_hi:[1,0,1] neg_lo:[1,0,0]")

def wave_sum(A, regs):
    for mod in ("row_shr:1 row_mask:0xf bank_mask:0xf bound_ctrl:0", "row_shr:2 row_mask:0xf bank_mask:0xf bound_ctrl:0",
                "row_shr:4 row_mask:0xf bank_mask:0xf bound_ctrl:0", "row_shr:8 row_mask:0xf bank_mask:0xf bound_ctrl:0",
                "row_bcast:15 row_mask:0xa bank_mask:0xf", "row_bcast:31 row_mask:0xc bank_mask:0xf"):
        for r in regs:
            A(f"v_add_f32_dpp {vr(r)}, {vr(r)}, {vr(r)} {mod}")

def bf16r(A, r):
    A(f"v_cvt_pk_bf16_f32 {vr(r)}, {vr(r)}, {vr(r)}")
    A(f"v_lshlrev_b32 {vr(r)}, 16, {vr(r)}")

class VM:
    def __init__(s, A): s.A = A; s.ops = []
    def __call__(s, text, tag): s.A(text); s.ops.append(tag)
    def wait(s, tag, extra=""):
        idx = max([i for i, t in enumerate(s.ops) if t == tag], default=None)
        if idx is None:
            if extra: s.A(f"s_waitcnt {extra}")
            return
        n = len(s.ops) - 1 - idx
        assert n <= 63, n
        s.A(f"s_waitcnt vmcnt({n}) {extra}".strip())
        s.ops = s.ops[idx + 1:]
    def waitall(s, extra=""):
        s.A(f"s_waitcnt vmcnt(0) {extra}".strip()); s.ops = []

def common_ids(A):
    A("v_lshrrev_b32 v2, 6, v0")
    A("v_and_b32 v1, 255, v0")
    A("v_and_b32 v0, 63, v0")
    A("v_readfirstlane_b32 s34, v2")
    A("s_lshr_b32 s35, s2, 3")
    A("s_and_b32 s57, s2, 3")
    A("s_lshl_b32 s57, s57, 2")
    A("s_lshr_b32 s50, s35, 3")
    A("s_add_u32 s50, s50, s57")
    if MAP == "mixed":
        A("s_and_b32 s49, s35, 1")
        A("s_bfe_u32 s51, s35, 0x20001")
        A("s_and_b32 s57, s2, 4")
        A("s_add_u32 s51, s51, s57")
    else:
        A("s_bfe_u32 s49, s2, 0x10002")
        A("s_and_b32 s51, s35, 7")
    A("s_and_b32 s48, s34, 3")
    A("s_lshr_b32 s52, s48, 1")
    A("s_and_b32 s53, s48, 1")
    A("v_lshrrev_b32 v3, 3, v0")
    A("v_and_b32 v4, 7, v0")
    A("v_lshrrev_b32 v5, 4, v0")
    A("v_and_b32 v6, 15, v0")

def poll(A, load, stmp, scount, vtmp, target, iters=200000):
    L = A.label("poll"); Lx = A.label("pollx")
    A(f"s_mov_b32 s{scount}, {iters}")
    A(f"{L}:")
    A(load)
    A("s_waitcnt vmcnt(0)")
    A(f"v_readfirstlane_b32 s{stmp}, {vr(vtmp)}")
    A(f"s_cmp_eq_u32 s{stmp}, {target}")
    A(f"s_cbranch_scc1 {Lx}")
    A("s_sleep 1")
    A(f"s_sub_u32 s{scount}, s{scount}, 1")
    A(f"s_cmp_lg_u32 s{scount}, 0")
    A(f"s_cbranch_scc1 {L}")
    A(f"{Lx}:")

K1F_STAGE = 28672 + 16384
K1Y_STAGE = 20480 + 16384
K1_STATS = 0
K1_WS = 2048
K1_NONCE = 3008
K1F_RED = 3072
K1F_BUF = 10240
K1Y_T = 3072
K1Y_BUF = 26112
K1Y_SCR = K1Y_BUF + 3 * K1Y_STAGE
K1_LE = 157184
K1F_SL = 145408
K1_LDS = 163840

def kernel1(A):
    A("k1_kernel:")
    A("s_cmp_ge_u32 s2, 256")
    A("s_cbranch_scc1 k1_end")
    stamp(A, 0)
    A("s_load_dwordx16 s[4:19], s[0:1], 0")
    A("s_load_dwordx8 s[20:27], s[0:1], 64")
    A("s_load_dwordx4 s[28:31], s[0:1], 96")
    A("s_load_dwordx2 s[32:33], s[0:1], 112")
    common_ids(A)
    A("s_mul_i32 s54, s51, 14")
    A("s_cmp_eq_u32 s51, 7")
    A("s_cselect_b32 s54, 96, s54")
    A("s_waitcnt lgkmcnt(0)")
    srd(A, 36, 4, T * D * 2)
    srd(A, 44, 32, WS_SIZE)
    A("s_cmp_ge_u32 s34, 4")
    A("s_cbranch_scc1 k1_ld")
    A("s_cmp_lg_u32 s49, 0")
    A("s_cbranch_scc1 k1_cF")
    k1_compute(A, False)
    A("s_branch p2_comp")
    A("k1_cF:")
    k1_compute(A, True)
    A("p2_comp:")
    stamps_flush(A, 8, 0, False)
    p2_compute(A)
    stamps_flush(A, 6, 1)
    A("s_branch k1_end")
    A("k1_ld:")
    A("s_cmp_lg_u32 s49, 0")
    A("s_cbranch_scc1 k1_lF")
    k1_loader(A, False)
    A("s_branch p2_ld")
    A("k1_lF:")
    k1_loader(A, True)
    A("p2_ld:")
    stamps_flush(A, 8, 0, False)
    p2_loaders(A)
    A("k1_end:")
    A("s_endpgm")
    A("k1_codeend:")

def stats_compute(A, vm, SRC):
    for r in range(2):
        for i in range(5):
            A(f"v_lshlrev_b32 v{40+10*r+2*i}, 16, v{SRC+5*r+i}")
            A(f"v_and_b32 v{41+10*r+2*i}, 0xffff0000, v{SRC+5*r+i}")
    for r in range(2):
        b = 40 + 10 * r
        A(f"v_add_f32 v{60+r}, v{b}, v{b+1}")
        for i in range(2, 10):
            A(f"v_add_f32 v{60+r}, v{60+r}, v{b+i}")
    wave_sum(A, [60, 61])
    A("v_readlane_b32 s57, v60, 63")
    A("v_readlane_b32 s58, v61, 63")
    A(f"v_mov_b32 v62, {hexf(1.0/640)}")
    A("v_mul_f32 v60, s57, v62")
    A("v_mul_f32 v61, s58, v62")
    for r in range(2):
        b = 40 + 10 * r
        for i in range(10):
            A(f"v_sub_f32 v{b+i}, v{b+i}, v{60+r}")
    for r in range(2):
        b = 40 + 10 * r
        A(f"v_mul_f32 v{64+r}, v{b}, v{b}")
        for i in range(1, 10):
            A(f"v_fmac_f32 v{64+r}, v{b+i}, v{b+i}")
    wave_sum(A, [64, 65])
    A("v_readlane_b32 s57, v64, 63")
    A("v_readlane_b32 s58, v65, 63")
    A("v_mul_f32 v64, s57, v62")
    A("v_mul_f32 v65, s58, v62")
    A("v_and_b32 v66, 1, v0")
    A("v_cmp_eq_u32 vcc, 1, v66")
    A("v_cndmask_b32 v68, v60, v61, vcc")
    A("v_cndmask_b32 v70, v64, v65, vcc")
    bf16r(A, 68)
    bf16r(A, 70)
    A(f"v_add_f32 v70, {hexf(1e-5)}, v70")
    bf16r(A, 70)
    A("v_sqrt_f32 v70, v70")
    bf16r(A, 70)
    A("v_rcp_f32 v69, v70")
    A("v_fma_f32 v71, -v70, v69, 1.0")
    A("v_fma_f32 v69, v71, v69, v69")
    A("v_mov_b32 v71, 0")
    A("v_lshlrev_b32 v66, 4, v0")
    A(f"v_mov_b32 v67, {OOB}")
    A("v_cmp_gt_u32 vcc, 2, v0")
    A("v_cndmask_b32 v66, v67, v66, vcc")
    A("s_lshl_b32 s57, s63, 4")
    A(f"s_add_u32 s57, s57, {WS_STATS}")
    vm("buffer_store_dwordx4 v[68:71], v66, s[44:47], s57 offen sc1", "st")

def k1_loader(A, isF):
    vm = VM(A)
    STG = K1F_STAGE if isF else K1Y_STAGE
    BUF = K1F_BUF if isF else K1Y_BUF
    ASZ = 28672 if isF else 20480
    if not isF:
        L = A.label("nononce")
        A("s_or_b32 s57, s2, s48")
        A("s_cmp_lg_u32 s57, 0")
        A(f"s_cbranch_scc1 {L}")
        A("s_memrealtime s[70:71]")
        A("v_mov_b32 v18, 0")
        A("s_waitcnt lgkmcnt(0)")
        A("s_or_b32 s70, s70, 1")
        A("v_mov_b32 v20, s70")
        A("v_mov_b32 v21, s71")
        A("s_mov_b64 exec, 1")
        A("global_store_dwordx2 v18, v[20:21], s[30:31] sc1")
        A("s_mov_b64 exec, -1")
        A(f"{L}:")
    A("v_xor_b32 v17, v4, v3")
    A("v_mul_u32_u24 v19, 5120, v3")
    A("v_lshl_add_u32 v247, v17, 4, v19")
    A("s_lshl_b32 s60, s50, 7")
    A("s_lshl_b32 s59, s52, 6")
    A("s_add_u32 s60, s60, s59")
    A("s_lshl_b32 s59, s53, 1")
    A("s_add_u32 s60, s60, s59")
    A("s_mul_i32 s60, s60, 1280")
    A("s_lshl_b32 s62, s48, 12")
    A(f"s_add_u32 s62, s62, {ASZ+BUF}")
    def dmaX(st):
        bo = (st % 3) * STG
        for q in range(4):
            A(f"s_add_u32 m0, s62, {bo + 1024*q}")
            A(f"s_add_u32 s65, s60, {st*128 + (32*(q&1) + (q>>1))*1280}")
            vm(f"buffer_load_dwordx4 v247, s[36:39], s65 offen lds", f"d{st}")
    stamp(A, 5)
    dmaX(0)
    if isF:
        srd(A, 40, 24, D * DFF * 2)
        A("s_mul_i32 s59, s48, 55296")
        A("s_lshl_b32 s64, s54, 5")
        A("s_add_u32 s59, s59, s64")
        A("s_mul_i32 s61, s48, 7168")
        A(f"s_add_u32 s61, s61, {BUF}")
        for q in range(7):
            A(f"v_add_u32 v17, {64*q}, v0")
            divc(A, 18, 17, 28, 448)
            A("v_mul_u32_u24 v19, 28, v18")
            A("v_sub_u32 v19, v17, v19")
            A("v_lshrrev_b32 v17, 2, v18")
            A("v_and_b32 v17, 2, v17")
            A("v_xor_b32 v19, v19, v17")
            A("v_mul_u32_u24 v18, 3456, v18")
            A(f"v_lshl_add_u32 v{240+q}, v19, 4, v18")
            A(f"s_add_u32 m0, s61, {1024*q}")
            A("s_nop 0")
            vm(f"buffer_load_dwordx4 v{240+q}, s[40:43], s59 offen lds", "d0")
    else:
        A("s_cmp_lt_u32 s48, 2")
        A("s_cselect_b32 s64, s10, s12")
        A("s_cselect_b32 s65, s11, s13")
        srd(A, 40, 64, D * D * 2)
        A("v_xor_b32 v18, s52, v17")
        A("v_mul_u32_u24 v19, 1280, v3")
        A("v_lshl_add_u32 v240, v18, 4, v19")
        A("s_mul_i32 s59, s51, 80")
        A("s_mul_i32 s64, s53, 40")
        A("s_add_u32 s59, s59, s64")
        A("s_mul_i32 s59, s59, 1280")
        A("s_mul_i32 s61, s53, 10240")
        A("s_lshl_b32 s64, s52, 10")
        A("s_add_u32 s61, s61, s64")
        A(f"s_add_u32 s61, s61, {BUF}")
    def dmaA(st):
        bo = (st % 3) * STG
        tag = f"d{st}"
        if isF:
            A(f"s_add_u32 s65, s59, {st*64*3456}")
            for q in range(7):
                A(f"s_add_u32 m0, s61, {bo + 1024*q}")
                A("s_nop 0")
                vm(f"buffer_load_dwordx4 v{240+q}, s[40:43], s65 offen lds", tag)
        else:
            for q in range(5):
                A(f"s_add_u32 m0, s61, {bo + 2048*q}")
                A(f"s_add_u32 s65, s59, {st*128 + q*8*1280}")
                vm(f"buffer_load_dwordx4 v240, s[40:43], s65 offen lds", tag)
    def dma(st):
        dmaA(st); dmaX(st)
    if not isF: dmaA(0)
    stamp(A, 6)
    if "nodpf" not in DBG: A("s_barrier")
    dma(1)
    stamp(A, 7)
    A(f"v_mov_b32 v15, {OOB}")
    A("v_mov_b32 v26, 0")
    def s5():
        A("v_bfe_u32 v20, v0, 1, 4")
        A("v_and_b32 v21, 7, v20")
        A("s_lshl_b32 s57, s50, 3")
        A("s_add_u32 s57, s57, 128")
        A("v_add_u32 v21, s57, v21")
        A("s_lshl_b32 s57, s49, 7")
        A("s_add_u32 s57, s57, s51")
        A("v_lshl_add_u32 v22, v20, 3, s57")
        A("v_cmp_gt_u32 vcc, 32, v0")
        A("v_cndmask_b32 v25, v22, v21, vcc")
        A("v_lshlrev_b32 v25, 7, v25")
        A("v_add_u32 v21, 32, v25")
        A("v_cndmask_b32 v25, v25, v21, vcc")
        A("v_and_b32 v20, 1, v0")
        A("v_lshl_add_u32 v25, v20, 4, v25")
        A(f"v_add_u32 v25, {WS_F3}, v25")
    def g1():
        vm("buffer_load_dwordx4 v[32:35], v25, s[44:47], 0 offen sc1", "fl")
    def g2():
        Lp = A.label("poll"); Lx = A.label("pollx"); Lc = A.label("pollc")
        A("s_mov_b32 s58, 200000")
        vm.wait("fl")
        A(f"s_branch {Lc}")
        A(f"{Lp}:")
        A("s_sleep 1")
        A("buffer_load_dwordx4 v[32:35], v25, s[44:47], 0 offen sc1")
        A("s_waitcnt vmcnt(0)")
        A(f"{Lc}:")
        A("v_cmp_ne_u64 vcc, v[32:33], v[28:29]")
        A("v_cmp_ne_u64 s[66:67], v[34:35], v[28:29]")
        A("s_or_b64 vcc, vcc, s[66:67]")
        A("s_cmp_eq_u64 vcc, 0")
        A(f"s_cbranch_scc1 {Lx}")
        A("s_sub_u32 s58, s58, 1")
        A("s_cmp_lg_u32 s58, 0")
        A(f"s_cbranch_scc1 {Lp}")
        A(f"{Lx}:")
        A("v_lshlrev_b32 v34, 4, v1")
        A("s_lshl_b32 s57, s50, 11")
        A(f"s_add_u32 s57, s57, {WS_STATS}")
        vm("buffer_load_dwordx4 v[36:39], v34, s[44:47], s57 offen sc1", "ga")
        A("v_lshlrev_b32 v35, 2, v1")
        if isF:
            A("s_mul_i32 s57, s51, 896")
            A(f"s_add_u32 s57, s57, {WS_WSP}")
            for sl_ in range(16):
                vm(f"buffer_load_dword v{40+sl_}, v35, s[44:47], s57 offen sc1", "ga")
                A(f"s_add_u32 s57, s57, {1792*4}")
        else:
            A("s_mul_i32 s57, s51, 640")
            A(f"s_add_u32 s57, s57, {WS_WSYO}")
            vm("buffer_load_dword v40, v35, s[44:47], s57 offen sc1", "ga")
    def g3():
        vm.wait("ga")
        A("v_cmp_gt_u32 vcc, 128, v1")
        A("s_and_saveexec_b64 s[66:67], vcc")
        A(f"ds_write_b128 v34, v[36:39] offset:{K1_STATS}")
        A("s_mov_b64 exec, s[66:67]")
        if isF:
            for sl_ in range(1, 16):
                A(f"v_add_f32 v40, v40, v{40+sl_}")
        A(f"v_cmp_gt_u32 vcc, {224 if isF else 160}, v1")
        A("s_and_saveexec_b64 s[66:67], vcc")
        A(f"ds_write_b32 v35, v40 offset:{K1_WS}")
        A("s_mov_b64 exec, s[66:67]")
    chunks = {}
    post = []
    if isF:
        A("s_mul_i32 s57, s50, 138240")
        A("s_mul_i32 s58, s48, 34560")
        A("s_add_u32 s57, s57, s58")
        A("s_add_u32 s57, s57, s64")
        A("s_mul_i32 s72, s48, 4480")
        A(f"s_add_u32 s72, s72, {K1F_SL}")
        for q in range(5):
            A(f"v_add_u32 v17, {64*q}, v0")
            divc(A, 18, 17, 28, 448)
            A("v_mul_u32_u24 v19, 28, v18")
            A("v_sub_u32 v19, v17, v19")
            A("v_mul_u32_u24 v18, 3456, v18")
            A("v_lshl_add_u32 v16, v19, 4, v18")
            A(f"s_add_u32 m0, s72, {1024*q}")
            if q == 4: A("s_mov_b64 exec, 0xffffff")
            else: A("s_nop 0")
            vm("buffer_load_dwordx4 v16, s[40:43], s57 offen lds", "sl")
            if q == 4: A("s_mov_b64 exec, -1")
        def ws1():
            divc(A, 7, 0, 28, 64)
            A("v_mul_u32_u24 v8, 28, v7")
            A("v_sub_u32 v8, v0, v8")
            A("v_min_u32 v7, 1, v7")
            A("v_mul_u32_u24 v9, 2240, v7")
            A("v_lshl_add_u32 v9, v8, 4, v9")
            A("v_add_u32 v9, s72, v9")
            vm.wait("sl")
            for r in range(5): A(f"ds_read_b128 v[{72+4*r}:{75+4*r}], v9 offset:{448*r}")
            A("s_waitcnt lgkmcnt(0)")
            for c in range(4):
                A(f"v_lshlrev_b32 v{108+2*c}, 16, v{72+c}")
                A(f"v_and_b32 v{109+2*c}, 0xffff0000, v{72+c}")
            for r in range(1, 5):
                for c in range(4):
                    A(f"v_lshlrev_b32 v116, 16, v{72+4*r+c}")
                    A(f"v_and_b32 v117, 0xffff0000, v{72+4*r+c}")
                    A(f"v_add_f32 v{108+2*c}, v{108+2*c}, v116")
                    A(f"v_add_f32 v{109+2*c}, v{109+2*c}, v117")
            A("s_mul_i32 s57, s48, 1792")
            A("v_lshlrev_b32 v9, 5, v0")
            A("v_add_u32 v9, s57, v9")
            A("v_cmp_gt_u32 vcc, 56, v0")
            A("s_and_saveexec_b64 s[66:67], vcc")
            A(f"ds_write_b128 v9, v[108:111] offset:{K1F_RED}")
            A(f"ds_write_b128 v9, v[112:115] offset:{K1F_RED+16}")
            A("s_mov_b64 exec, s[66:67]")
        def ws2():
            A("v_lshlrev_b32 v9, 2, v1")
            for r in range(8): A(f"ds_read_b32 v{108+r}, v9 offset:{K1F_RED+896*r}")
            A("s_waitcnt lgkmcnt(0)")
            for r in range(1, 8): A(f"v_add_f32 v108, v108, v{108+r}")
            A("v_cmp_gt_u32 vcc, 224, v1")
            A("s_and_saveexec_b64 s[66:67], vcc")
            A(f"ds_write_b32 v9, v108 offset:{K1_WS}")
            A("s_mov_b64 exec, s[66:67]")
        chunks = {0: [ws1], 1: [ws2]}
        def crep():
            Lq = A.label("cq")
            A("s_cmp_eq_u32 s52, 0")
            A(f"s_cbranch_scc1 {Lq}")
            srd(A, 68, 14, D * D * 2)
            sc = 80 if not STAMPS else 60
            srd(A, sc, 16, D * D * 2)
            for rd_ in range(2):
                R = 92 + 16 * rd_
                A("s_lshl_b32 s57, s50, 3")
                A("s_add_u32 s57, s57, s51")
                A("s_lshl_b32 s57, s57, 4")
                A("s_lshl_b32 s58, s53, 2")
                A("s_add_u32 s57, s57, s58")
                A(f"s_add_u32 s57, s57, {8*rd_}")
                A("v_add_u32 v10, s57, v5")
                divc(A, 11, 10, 40, 2048)
                A("v_mul_u32_u24 v12, 40, v11")
                A("v_sub_u32 v12, v10, v12")
                A("v_lshl_add_u32 v13, v11, 4, v6")
                A("v_mul_u32_u24 v13, 1280, v13")
                A("v_lshl_add_u32 v13, v12, 5, v13")
                A(f"buffer_load_dwordx4 v[{R}:{R+3}], v13, s[68:71], 0 offen")
                A(f"buffer_load_dwordx4 v[{R+4}:{R+7}], v13, s[68:71], 0 offen offset:16")
                A(f"buffer_load_dwordx4 v[{R+8}:{R+11}], v13, s[{sc}:{sc+3}], 0 offen")
                A(f"buffer_load_dwordx4 v[{R+12}:{R+15}], v13, s[{sc}:{sc+3}], 0 offen offset:16")
                divc(A, 14, 11, 5, 64)
                A("v_mul_u32_u24 v16, 5, v14")
                A("v_sub_u32 v16, v11, v16")
                A("v_mul_u32_u24 v14, 40, v14")
                A("v_add_u32 v14, v14, v12")
                A("v_mul_u32_u24 v14, 5120, v14")
                A("v_lshl_add_u32 v14, v16, 10, v14")
                A("v_lshl_add_u32 v14, v6, 4, v14")
                A("v_cmp_gt_u32 vcc, 1600, v10")
                A(f"v_cndmask_b32 v{17+rd_}, v15, v14, vcc")
            A("s_mov_b32 s57, 0x05040100")
            A("s_mov_b32 s58, 0x07060302")
            A(f"s_mov_b32 s65, {WS_CP}")
            A("s_waitcnt vmcnt(0)")
            for rd_ in range(2):
                R = 92 + 16 * rd_
                for c in range(8): A(f"v_xor_b32 v{R+8+c}, 0x80008000, v{R+8+c}")
                for g in range(4):
                    o = 40 + 16 * rd_ + 4 * g
                    A(f"v_perm_b32 v{o}, v{R+8+g}, v{R+g}, s57")
                    A(f"v_perm_b32 v{o+1}, v{R+8+g}, v{R+g}, s58")
                    A(f"v_perm_b32 v{o+2}, v{R+12+g}, v{R+4+g}, s57")
                    A(f"v_perm_b32 v{o+3}, v{R+12+g}, v{R+4+g}, s58")
                    A(f"buffer_store_dwordx4 v[{o}:{o+3}], v{17+rd_}, s[44:47], s65 offen offset:{256*g} sc1")
            A("s_waitcnt vmcnt(0)")
            A(f"{Lq}:")
            A("buffer_store_dwordx2 v[28:29], v27, s[44:47], s79 offen sc1")
        post = [lambda: A('s_barrier'), crep]
    else:
        def w2a():
            srd(A, 68, 26, D * DFF * 2)
            A("s_lshl_b32 s57, s50, 3")
            A("s_add_u32 s57, s57, s51")
            A("s_lshl_b32 s57, s57, 2")
            A("s_add_u32 s57, s57, s48")
            A("s_lshr_b32 s75, s57, 3")
            A("s_and_b32 s76, s57, 7")
            A("s_mul_i32 s58, s75, 40960")
            A("s_mul_i32 s57, s76, 160")
            A("s_add_u32 s58, s58, s57")
            A("s_mul_i32 s77, s48, 5120")
            A(f"s_add_u32 s77, s77, {K1Y_SCR}")
            for q in range(5):
                A(f"v_add_u32 v17, {64*q}, v0")
                divc(A, 18, 17, 10, 320)
                A("v_mul_u32_u24 v19, 10, v18")
                A("v_sub_u32 v19, v17, v19")
                A("v_mul_u32_u24 v18, 1280, v18")
                A("v_lshl_add_u32 v16, v19, 4, v18")
                A(f"s_add_u32 m0, s77, {1024*q}")
                A("s_nop 0")
                vm("buffer_load_dwordx4 v16, s[68:71], s58 offen lds", "w2")
        def w2b():
            A("v_lshrrev_b32 v17, 2, v6")
            A("v_lshl_add_u32 v17, v5, 2, v17")
            A("v_mul_u32_u24 v17, 160, v17")
            A("v_and_b32 v18, 3, v6")
            A("v_lshl_add_u32 v17, v18, 3, v17")
            A("v_add_u32 v17, s77, v17")
            vm.wait("w2")
            for m in range(5):
                for h in range(2):
                    A(f"ds_read_b64_tr_b16 v[{164+4*m+2*h}:{165+4*m+2*h}], v17 offset:{h*2560 + m*32}")
            A("s_mul_i32 s57, s76, 54")
            A("s_add_u32 s57, s57, s75")
            A("s_mul_i32 s57, s57, 5120")
            A(f"s_add_u32 s57, s57, {WS_W2P}")
            A("s_cmp_lt_u32 s75, 54")
            A(f"s_cselect_b32 s57, s57, {OOB}")
            A("v_lshlrev_b32 v18, 4, v0")
            A("v_add_u32 v19, 4096, v18")
            A("s_waitcnt lgkmcnt(0)")
            for m in range(5):
                vm(f"buffer_store_dwordx4 v[{164+4*m}:{167+4*m}], v18, s[44:47], s57 offen offset:{1024*m} sc1" if m < 4 else
                   f"buffer_store_dwordx4 v[{164+4*m}:{167+4*m}], v19, s[44:47], s57 offen sc1", "st2")
        def w2c():
            vm.wait("st2")
            vm("buffer_store_dwordx2 v[28:29], v27, s[44:47], s79 offen sc1", "fs")
        def lbk():
            Lq = A.label("lq")
            A("s_cmp_eq_u32 s52, 0")
            A(f"s_cbranch_scc1 {Lq}")
            A("v_min_u32 v8, 39, v0")
            A("s_mul_i32 s57, s53, 40")
            A("v_add_u32 v8, s57, v8")
            A("v_lshlrev_b32 v9, 3, v8")
            A(f"v_add_u32 v9, {K1_LE}, v9")
            A("v_mul_u32_u24 v10, 288, v8")
            A("s_mul_i32 s57, s51, 1280")
            A("v_lshlrev_b32 v11, 4, v8")
            A("v_add_u32 v11, s57, v11")
            A("s_mul_i32 s74, s50, 10240")
            A(f"s_add_u32 s74, s74, {WS_E}")
            A(f"ds_read_b64 v[72:73], v10 offset:{K1Y_T+128+8}")
            A(f"ds_read_b64 v[74:75], v10 offset:{K1Y_T+128+16}")
            A("s_barrier")
            Lp = A.label("lb"); Lx = A.label("lbx")
            A("ds_read_b64 v[64:65], v9")
            A("ds_read_b64 v[66:67], v9 offset:640")
            A("v_mov_b32 v82, v28")
            A("v_mov_b32 v83, v29")
            A("s_waitcnt lgkmcnt(0)")
            cmul_add(A, 80, 72, 64, 66)
            A("buffer_store_dwordx4 v[80:83], v11, s[44:47], s74 offen sc1")
            A("s_mov_b32 s75, 100000")
            A(f"{Lp}:")
            for i in range(15):
                A(f"s_sub_u32 s57, s50, {i+1}")
                A("s_mul_i32 s58, s57, 10240")
                A(f"s_add_u32 s58, s58, {WS_E}")
                A(f"s_cmp_gt_u32 s50, {i}")
                A(f"s_cselect_b32 s58, s58, {OOB}")
                A(f"buffer_load_dwordx4 v[{96+4*i}:{99+4*i}], v11, s[44:47], s58 offen sc1")
            A("s_waitcnt vmcnt(0)")
            A("s_mov_b64 vcc, 0")
            for i in range(15):
                A(f"v_cmp_ne_u64 s[70:71], v[{98+4*i}:{99+4*i}], v[28:29]")
                A(f"s_cmp_gt_u32 s50, {i}")
                A("s_cselect_b64 s[70:71], s[70:71], 0")
                A("s_or_b64 vcc, vcc, s[70:71]")
            A("s_cmp_eq_u64 vcc, 0")
            A(f"s_cbranch_scc1 {Lx}")
            A("s_sleep 1")
            A("s_sub_u32 s75, s75, 1")
            A("s_cmp_lg_u32 s75, 0")
            A(f"s_cbranch_scc1 {Lp}")
            A(f"{Lx}:")
            for i in range(13, -1, -1):
                cmul_add(A, 96 + 4 * i, 74, 96 + 4 * (i + 1), 96 + 4 * i)
            cmul_add(A, 84, 72, 96, 64)
            A("ds_write_b64 v9, v[96:97] offset:1280")
            A("ds_write_b64 v9, v[84:85] offset:1920")
            A("s_waitcnt lgkmcnt(0)")
            A("s_barrier")
            A(f"{Lq}:")
        chunks = {4: [w2a], 8: [w2b]}; post = [w2c, lbk]
    def n1():
        vm("global_load_dwordx2 v[28:29], v26, s[30:31] sc1", "nn")
    def n2():
        Lp = A.label("np"); Lx = A.label("npx"); Lc = A.label("npc")
        A("s_mov_b32 s58, 200000")
        vm.wait("nn")
        A(f"s_branch {Lc}")
        A(f"{Lp}:")
        A("s_sleep 1")
        A("global_load_dwordx2 v[28:29], v26, s[30:31] sc1")
        A("s_waitcnt vmcnt(0)")
        A(f"{Lc}:")
        A("v_readfirstlane_b32 s57, v28")
        A("s_cmp_lg_u32 s57, 0")
        A(f"s_cbranch_scc1 {Lx}")
        A("s_sub_u32 s58, s58, 1")
        A("s_cmp_lg_u32 s58, 0")
        A(f"s_cbranch_scc1 {Lp}")
        A(f"{Lx}:")
        A(f"ds_write_b64 v26, v[28:29] offset:{K1_NONCE}")
        A("s_lshl_b32 s57, s49, 7")
        A("s_lshl_b32 s58, s50, 3")
        A("s_add_u32 s57, s57, s58")
        A("s_add_u32 s57, s57, s51")
        A("s_lshl_b32 s57, s57, 5")
        A("s_lshl_b32 s58, s48, 3")
        A("s_add_u32 s57, s57, s58")
        A(f"s_add_u32 s79, s57, {WS_F1}")
        A("v_cmp_eq_u32 vcc, 0, v0")
        A("v_cndmask_b32 v27, v15, v26, vcc")
    sched = ((1, n1), (2, n2), (3, s5), (GI, g1), (GI + 1, g2))
    for k, f in sched:
        chunks.setdefault(k, []).append(f)
    vm.wait("d0")
    stamp(A, 1)
    A("s_barrier")
    for j in range(9):
        if j + 2 <= 9: dma(j + 2)
        for f in chunks.get(j, []): f()
        vm.wait(f"d{j+1}", "lgkmcnt(0)")
        A("s_barrier")
    stamp(A, 2)
    g3()
    A("s_waitcnt lgkmcnt(0)")
    stamp(A, 3)
    stamp(A, 4)
    A("s_barrier")
    for f in post: f()

def k1_side(A, isF):
    if isF:
        yield
    else:
        divc(A, 9, 1, 80, 256)
        A("v_mul_u32_u24 v10, 80, v9")
        A("v_sub_u32 v10, v1, v10")
        A("s_mul_i32 s57, s51, 80")
        A("v_add_u32 v11, s57, v10")
        A("v_lshlrev_b32 v11, 1, v11")
        A("global_load_ushort v92, v11, s[6:7]")
        A("global_load_ushort v93, v11, s[8:9]")
        A("global_load_ushort v94, v11, s[18:19]")
        yield
        A("s_waitcnt vmcnt(16)")
        for r in (92, 93, 94): A(f"v_lshlrev_b32 v{r}, 16, v{r}")
        A(f"v_mul_f32 v94, {hexf(LOG2E)}, v94")
        A("v_exp_f32 v94, v94")
        bf16r(A, 94)
        A("v_mul_f32 v95, v94, v92")
        A("v_mul_f32 v96, v94, v93")
        A(f"v_mul_f32 v95, {hexf(LOG2E)}, v95")
        A(f"v_mul_f32 v96, {hexf(INV2PI)}, v96")
        A("v_mul_u32_u24 v97, 288, v10")
        A("v_lshl_add_u32 v97, v9, 3, v97")
        A("v_cmp_gt_u32 vcc, 240, v1")
        A("s_and_saveexec_b64 s[66:67], vcc")
        for r in range(11):
            A(f"v_add_u32 v98, {3*r}, v9")
            A("v_lshlrev_b32 v99, 2, v98")
            A("v_lshlrev_b32 v100, 6, v98")
            A("v_subrev_u32 v100, 1024, v100")
            A("v_cmp_gt_u32 vcc, 16, v98")
            A("v_cndmask_b32 v99, v100, v99, vcc")
            A("v_cvt_f32_u32 v99, v99")
            A("v_mul_f32 v100, v99, v95")
            A("v_mul_f32 v101, v99, v96")
            A("v_exp_f32 v100, v100")
            A("v_fract_f32 v101, v101")
            A("v_cos_f32 v102, v101")
            A("v_sin_f32 v103, v101")
            A("v_mul_f32 v102, v100, v102")
            A("v_mul_f32 v103, v100, v103")
            A(f"ds_write_b64 v97, v[102:103] offset:{K1Y_T+24*r}")
        A("s_mov_b64 exec, s[66:67]")
        A("v_exp_f32 v100, v95")
        A("v_fract_f32 v101, v96")
        A("v_cos_f32 v102, v101")
        A("v_sin_f32 v103, v101")
        A("v_mul_f32 v102, v100, v102")
        A("v_mul_f32 v103, v100, v103")
        A("v_add_f32 v98, -1.0, v102")
        A("v_mul_f32 v99, v92, v92")
        A("v_fmac_f32 v99, v93, v93")
        A("v_rcp_f32 v100, v99")
        A("v_fma_f32 v101, -v99, v100, 1.0")
        A("v_fma_f32 v100, v101, v100, v100")
        A("v_add_f32 v100, v100, v100")
        A("v_mul_f32 v104, v98, v92")
        A("v_fmac_f32 v104, v103, v93")
        A("v_mul_f32 v105, v103, v92")
        A("v_fma_f32 v105, -v98, v93, v105")
        A("v_mul_f32 v104, v104, v100")
        A("v_mul_f32 v105, v105, v100")
        A("v_cmp_gt_u32 vcc, 80, v1")
        A("s_and_saveexec_b64 s[66:67], vcc")
        A(f"ds_write_b128 v97, v[102:105] offset:{K1Y_T+272}")
        A("s_mov_b64 exec, s[66:67]")
    A("s_waitcnt lgkmcnt(0)")
    yield

def k1_prefetch_setup(A, isF):
    A("s_and_b32 s57, s2, 3")
    A("s_lshl_b32 s57, s57, 9")
    A("s_lshl_b32 s59, s35, 4")
    A("s_add_u32 s57, s57, s59")
    A("s_mul_i32 s57, s57, 1280")
    A("v_lshrrev_b32 v10, 2, v0")
    A("v_and_b32 v11, 3, v0")
    A("v_mul_u32_u24 v10, 1280, v10")
    A("v_lshl_add_u32 v10, v11, 7, v10")
    A("s_mul_i32 s58, s53, 384")
    A("s_add_u32 s66, s57, s58")
    A("s_add_u32 s66, s66, 384")
    if isF:
        srd(A, 40, 24, D * DFF * 2)
        A("v_min_u32 v11, 53, v0")
        A("v_lshlrev_b32 v11, 7, v11")
        A("s_mul_i32 s67, s35, 6912")
        A("s_add_u32 s58, s48, 3")
        A(f"s_mul_i32 s58, s58, {64*3456}")
        A("s_add_u32 s67, s67, s58")
        A(f"s_add_u32 s68, s67, {4*64*3456}")
    else:
        A("s_cmp_lt_u32 s48, 2")
        A("s_cselect_b32 s64, s10, s12")
        A("s_cselect_b32 s65, s11, s13")
        srd(A, 40, 64, D * D * 2)
        divc(A, 12, 0, 20, 64)
        A("v_mul_u32_u24 v13, 20, v12")
        A("v_sub_u32 v13, v0, v13")
        A("v_min_u32 v12, 2, v12")
        A("v_mul_u32_u24 v13, 1280, v13")
        A("v_lshl_add_u32 v11, v12, 7, v13")
        A("s_mul_i32 s67, s35, 25600")
        A("s_mul_i32 s58, s53, 384")
        A("s_add_u32 s68, s67, 896")
        A("s_add_u32 s67, s67, s58")
        A("s_add_u32 s67, s67, 384")
def k1_prefetch(A, isF, batch):
    if "nopf" in DBG: return
    if batch == 0:
        A("buffer_load_dword v12, v11, s[40:43], s67 offen")
        A("buffer_load_dword v13, v10, s[36:39], s66 offen")
    else:
        A("buffer_load_dword v12, v11, s[40:43], s68 offen")

def k1_compute(A, isF):
    ACC = 128; FRAG = 32
    MT = 7 if isF else 5; NT = 4
    STG = K1F_STAGE if isF else K1Y_STAGE
    BUF = K1F_BUF if isF else K1Y_BUF
    ASZ = 28672 if isF else 20480
    if CPF:
        A("s_getpc_b64 s[66:67]")
        Lpc = A.label("pc")
        A(f"{Lpc}:")
        A(f"s_sub_u32 s66, s66, {Lpc}-k1_kernel")
        A("s_subb_u32 s67, s67, 0")
        A("s_lshl_b32 s57, s35, 2")
        A("s_add_u32 s57, s57, s48")
        A("s_lshl_b32 s57, s57, 10")
        A("s_min_u32 s57, s57, k1_codeend-k1_kernel-1024")
        A("v_lshlrev_b32 v7, 4, v0")
        A("v_add_u32 v7, s57, v7")
        A("global_load_dwordx4 v[120:123], v7, s[66:67]")
    side = k1_side(A, isF) if "noside" not in DBG else iter([0, 0])
    next(side)
    AB = 232; BB = 244
    if isF:
        A("v_lshrrev_b32 v17, 2, v6")
        A("v_lshl_add_u32 v17, v5, 3, v17")
        A("v_mul_u32_u24 v17, 448, v17")
        A("v_and_b32 v18, 3, v6")
        A("v_lshl_add_u32 v17, v18, 3, v17")
        A("s_mul_i32 s57, s52, 224")
        A(f"s_add_u32 s57, s57, {BUF}")
        A("v_add_u32 v17, s57, v17")
        A("v_and_b32 v18, 1, v5")
        A("v_lshlrev_b32 v18, 5, v18")
        A("v_add_u32 v19, v17, v18")
        A("v_sub_u32 v17, v17, v18")
        A("s_cmp_eq_u32 s52, 0")
        A("s_cselect_b64 vcc, -1, 0")
        AB = 240; BB = 246
        A(f"v_cndmask_b32 v{AB}, v17, v19, vcc")
        A(f"v_cndmask_b32 v{AB+1}, v19, v17, vcc")
    else:
        A("v_and_b32 v17, 1, v6")
        A("v_lshrrev_b32 v18, 1, v6")
        A("v_lshl_add_u32 v19, v17, 3, v18")
        A("v_xor_b32 v17, v17, v18")
        A("v_xor_b32 v17, v17, v5")
        A("v_lshlrev_b32 v19, 7, v19")
        A("v_lshl_add_u32 v19, v17, 4, v19")
        A("s_mul_i32 s57, s52, 10240")
        A(f"s_add_u32 s57, s57, {BUF}")
        AB = 240; BB = 246
        A(f"v_add_u32 v{AB}, s57, v19")
        A(f"v_xor_b32 v{AB+1}, 64, v{AB}")
    A("v_and_b32 v18, 7, v0")
    A("v_xor_b32 v18, v18, v5")
    A("v_lshlrev_b32 v17, 7, v6")
    A("s_lshl_b32 s57, s53, 13")
    A(f"s_add_u32 s57, s57, {ASZ+BUF}")
    A("v_add_u32 v17, s57, v17")
    A(f"v_lshl_add_u32 v{BB}, v18, 4, v17")
    A(f"v_xor_b32 v{BB+1}, 64, v{BB}")
    for b in (1, 2):
        for i in range(2):
            A(f"v_add_u32 v{AB+2*b+i}, {b*STG}, v{AB+i}")
            A(f"v_add_u32 v{BB+2*b+i}, {b*STG}, v{BB+i}")
    for r in range(MT * NT * 4):
        A(f"v_mov_b32 v{ACC+r}, 0")
    fA = lambda st, m: FRAG + st * (MT + NT) * 4 + m * 4
    fB = lambda st, n: FRAG + st * (MT + NT) * 4 + MT * 4 + n * 4
    accr = lambda m, n: ACC + (m * NT + n) * 4
    def reads(stage, kk):
        b = stage % 3; st = kk
        out = []
        for n in range(NT):
            out.append(f"ds_read_b128 {vr(fB(st,n),4)}, v{BB+2*b+kk} offset:{n*2048}")
        for m in range(MT):
            if isF:
                for h in range(2):
                    out.append(f"ds_read_b64_tr_b16 {vr(fA(st,m)+2*h,2)}, v{AB+2*b+(m&1)} offset:{(32*kk+4*h)*448 + m*32}")
            else:
                out.append(f"ds_read_b128 {vr(fA(st,m),4)}, v{AB+2*b+kk} offset:{m*2048}")
        return out
    def mfmas(st):
        return [f"v_mfma_f32_16x16x32_bf16 {vr(accr(m,n),4)}, {vr(fA(st,m),4)}, {vr(fB(st,n),4)}, {vr(accr(m,n),4)}"
                for m in range(MT) for n in range(NT)]
    vm = VM(A)
    A(f"v_mov_b32 v15, {OOB}")
    A("v_mov_b32 v26, 0")
    A("v_lshlrev_b32 v2, 2, v0")
    Lsk = A.label("sk")
    if isF:
        A("v_lshlrev_b32 v13, 4, v0")
        A("v_cmp_gt_u32 vcc, 56, v1")
        A("v_cndmask_b32 v12, v15, v13, vcc")
        A("s_mul_i32 s57, s50, 1792")
        A("s_mul_i32 s58, s51, 224")
        A("s_add_u32 s57, s57, s58")
        A("s_lshl_b32 s57, s57, 2")
        A(f"s_add_u32 s62, s57, {WS_WSP}")
        A("s_lshl_b32 s59, s51, 4")
        A("s_lshl_b32 s58, s50, 7")
        A("s_add_u32 s59, s59, s58")
        A("s_lshl_b32 s58, s48, 2")
        A("s_add_u32 s63, s59, s58")
        A("s_mul_i32 s59, s63, 1280")
        A("s_barrier")
        for r in range(4):
            for i in range(5): A(f"buffer_load_dword v{80+5*r+i}, v2, s[36:39], s59 offen offset:{256*i}")
            A("s_add_u32 s59, s59, 1280")
        A("global_load_dwordx2 v[28:29], v26, s[30:31] sc1")
        A("s_waitcnt vmcnt(11)")
        stats_compute(A, vm, 80)
        A("s_add_u32 s63, s63, 2")
        A("s_waitcnt vmcnt(2)")
        stats_compute(A, vm, 90)
    else:
        A("s_cmp_lt_u32 s48, 2")
        A("s_cselect_b32 s64, s10, s12")
        A("s_cselect_b32 s65, s11, s13")
        srd(A, 40, 64, D * D * 2)
        A("s_mul_i32 s57, s51, 80")
        A("s_mul_i32 s58, s50, 5")
        A("s_add_u32 s57, s57, s58")
        A("s_mul_i32 s58, s53, 3")
        A("s_add_u32 s72, s57, s58")
        A("s_barrier")
        A("s_mul_i32 s57, s72, 1280")
        for r in range(3):
            for i in range(5): A(f"buffer_load_dword v{72+5*r+i}, v2, s[40:43], s57 offen offset:{256*i}")
            A("s_add_u32 s57, s57, 1280")
        A("global_load_dwordx2 v[28:29], v26, s[30:31] sc1")
    next(side)
    if not isF:
        A("s_waitcnt vmcnt(0)")
        A("s_mov_b32 s57, 0x3f803f80")
        for r in range(3): A(f"v_mov_b32 v{108+r}, 0")
        for i in range(5):
            for r in range(3): A(f"v_dot2_f32_bf16 v{108+r}, v{72+5*r+i}, s57, v{108+r}")
        A("s_nop 3")
        wave_sum(A, [108, 109, 110])
        A("v_cmp_eq_u32 vcc, 63, v0")
        A("v_cndmask_b32 v12, v15, v26, vcc")
        A("s_lshl_b32 s57, s72, 1")
        A("s_add_u32 s57, s57, s52")
        A("s_lshl_b32 s57, s57, 2")
        A(f"s_add_u32 s57, s57, {WS_WSYO}")
        A("buffer_store_dword v108, v12, s[44:47], s57 offen sc1")
        A("buffer_store_dword v109, v12, s[44:47], s57 offen offset:8 sc1")
        A("s_cmp_eq_u32 s53, 0")
        A(f"s_cselect_b32 s57, s57, {OOB}")
        A("buffer_store_dword v110, v12, s[44:47], s57 offen offset:16 sc1")
    A("v_cmp_eq_u32 vcc, 0, v0")
    A("v_cndmask_b32 v16, v15, v26, vcc")
    A("s_lshl_b32 s57, s49, 7")
    A("s_lshl_b32 s58, s50, 3")
    A("s_add_u32 s57, s57, s58")
    A("s_add_u32 s57, s57, s51")
    A("s_lshl_b32 s57, s57, 7")
    A("s_lshl_b32 s58, s48, 3")
    A("s_add_u32 s57, s57, s58")
    A(f"s_add_u32 s76, s57, {WS_F3}")
    stamp(A, 1)
    A("s_barrier")
    stamp(A, 2)
    for r in reads(0, 0): A(r)
    PRE = 3
    for j in range(10):
        A("s_waitcnt lgkmcnt(0)")
        mf = mfmas(0); rd = reads(j, 1)
        for i, m in enumerate(mf):
            A(m)
            if i < len(rd): A(rd[i])
        A("s_waitcnt lgkmcnt(0)")
        mf = mfmas(1)
        if j < 9:
            rd = reads(j + 1, 0)
            for m in mf[:PRE]: A(m)
            if j == 2 and isF:
                A(f"ds_read_b128 v[120:123], v13 offset:{K1_WS}")
                A("s_waitcnt lgkmcnt(0)")
                A("buffer_store_dwordx4 v[120:123], v12, s[44:47], s62 offen sc1")
            if j == 4 and isF:
                A("s_waitcnt vmcnt(0)")
                A("buffer_store_dwordx2 v[28:29], v16, s[44:47], s76 offen sc1")
            if j == 1:
                A("s_waitcnt vmcnt(0)")
                Lp = A.label("np"); Lx = A.label("npx")
                A("s_mov_b32 s58, 200000")
                A(f"{Lp}:")
                A("v_readfirstlane_b32 s57, v28")
                A("s_cmp_lg_u32 s57, 0")
                A(f"s_cbranch_scc1 {Lx}")
                A("s_sleep 1")
                A("global_load_dwordx2 v[28:29], v26, s[30:31] sc1")
                A("s_waitcnt vmcnt(0)")
                A("s_sub_u32 s58, s58, 1")
                A("s_cmp_lg_u32 s58, 0")
                A(f"s_cbranch_scc1 {Lp}")
                A(f"{Lx}:")
                A(f"buffer_store_dwordx2 v[28:29], v16, s[44:47], s76 offen offset:{32 if isF else 0} sc1")
            A("s_barrier")
            for i, m in enumerate(mf[PRE:]):
                if i < len(rd): A(rd[i])
                A(m)
        else:
            for m in mf: A(m)
    stamp(A, 3)
    A("s_waitcnt vmcnt(0)")
    A("s_barrier")
    stamp(A, 4)
    if isF: k1F_epilogue(A, ACC)
    else: k1Y_epilogue(A, ACC)

def frag_store_plan(ntiles, parity):
    plan = []
    t = 0
    if parity == 1:
        plan.append(("single", [0], 0, 1)); t = 1
    while t + 1 < ntiles:
        plan.append(("pair", [t, t + 1], (t + parity) // 2, 0)); t += 2
    if t < ntiles:
        plan.append(("single", [t], (t + parity) // 2, 0))
    return plan

def k1F_epilogue(A, ACC):
    A("s_lshl_b32 s57, s53, 10")
    A("v_lshlrev_b32 v17, 6, v6")
    A("v_add_u32 v17, s57, v17")
    for n in range(4):
        A(f"ds_read_b64 v[{32+2*n}:{33+2*n}], v17 offset:{K1_STATS+16*n}")
    A("s_mul_i32 s57, s52, 448")
    A("v_lshlrev_b32 v18, 4, v5")
    A("v_add_u32 v18, s57, v18")
    for m in range(7):
        A(f"ds_read_b128 v[{40+4*m}:{43+4*m}], v18 offset:{K1_WS+64*m}")
    A("s_lshr_b32 s57, s54, 1")
    A("s_mul_i32 s58, s50, 54")
    A("s_add_u32 s57, s57, s58")
    A("s_lshl_b32 s57, s57, 3")
    A("s_lshl_b32 s58, s53, 2")
    A("s_add_u32 s57, s57, s58")
    A("s_lshl_b32 s57, s57, 10")
    A(f"s_add_u32 s65, s57, {WS_HF}")
    A("v_lshlrev_b32 v17, 4, v0")
    A("s_lshl_b32 s57, s53, 11")
    A(f"s_add_u32 s57, s57, {K1_LE}")
    A("v_lshlrev_b32 v19, 3, v0")
    A("v_add_u32 v19, s57, v19")
    A("s_waitcnt lgkmcnt(0)")
    def conv(m, n, dst):
        a = ACC + (m * 4 + n) * 4
        w = 40 + 4 * m; st = 32 + 2 * n
        for hh in range(2):
            A(f"v_pk_fma_f32 {vr(a+2*hh,2)}, {vr(w+2*hh,2)}, {vr(st,2)}, {vr(a+2*hh,2)} op_sel:[0,0,0] op_sel_hi:[1,0,1] neg_lo:[1,0,0] neg_hi:[1,0,0]")
        for hh in range(2):
            A(f"v_pk_mul_f32 {vr(a+2*hh,2)}, {vr(a+2*hh,2)}, {vr(st,2)} op_sel:[0,1] op_sel_hi:[1,1]")
        for hh in range(2):
            A(f"v_cvt_pk_bf16_f32 v{dst+hh}, v{a+2*hh}, v{a+2*hh+1}")
        for hh in range(2):
            A(f"v_pk_max_i16 v{dst+hh}, v{dst+hh}, 0")
    L1 = A.label("ep1"); L2 = A.label("epx")
    A("s_cmp_lg_u32 s52, 0")
    A(f"s_cbranch_scc1 {L1}")
    for n in range(4):
        conv(6, n, 72 + 2 * n)
        A(f"ds_write_b64 v19, v[{72+2*n}:{73+2*n}] offset:{512*n}")
    A("s_waitcnt lgkmcnt(0)")
    A("s_barrier")
    cnt = 0
    for p in range(3):
        A(f"s_add_u32 s57, s65, {p*8192}")
        for n in range(4):
            t = 80 + 4 * (cnt % 4); cnt += 1
            conv(2 * p, n, t); conv(2 * p + 1, n, t + 2)
            A(f"buffer_store_dwordx4 v[{t}:{t+3}], v17, s[44:47], s57 offen offset:{1024*n} sc1")
    A(f"s_branch {L2}")
    A(f"{L1}:")
    for n in range(4): conv(0, n, 98 + 4 * n)
    A("s_barrier")
    for n in range(4): A(f"ds_read_b64 v[{96+4*n}:{97+4*n}], v19 offset:{512*n}")
    for p in range(3):
        A(f"s_add_u32 s57, s65, {(4+p)*8192}")
        if p == 2:
            A("s_cmp_lt_u32 s51, 6")
            A(f"s_cselect_b32 s57, s57, {OOB}")
        for n in range(4):
            t = 80 + 4 * (cnt % 4); cnt += 1
            conv(2 * p + 1, n, t); conv(2 * p + 2, n, t + 2)
            A(f"buffer_store_dwordx4 v[{t}:{t+3}], v17, s[44:47], s57 offen offset:{1024*n} sc1")
        if p == 0:
            A(f"s_add_u32 s57, s65, {3*8192}")
            A("s_waitcnt lgkmcnt(0)")
            for n in range(4):
                A(f"buffer_store_dwordx4 v[{96+4*n}:{99+4*n}], v17, s[44:47], s57 offen offset:{1024*n} sc1")
    A(f"{L2}:")
    for i in (5, 6, 7): stamp(A, i)

def k1Y_epilogue(A, ACC):
    ST = 32; WSR = 40; P = 208; TB = 60
    A("s_lshl_b32 s57, s53, 10")
    A("v_lshlrev_b32 v17, 6, v6")
    A("v_add_u32 v17, s57, v17")
    for n in range(4):
        A(f"ds_read_b64 v[{ST+2*n}:{ST+2*n+1}], v17 offset:{K1_STATS+16*n}")
    A("v_mov_b32 v17, 0")
    A(f"ds_read_b64 v[30:31], v17 offset:{K1_NONCE}")
    A("s_mul_i32 s57, s52, 320")
    A("v_lshlrev_b32 v18, 4, v5")
    A("v_add_u32 v18, s57, v18")
    for m in range(5):
        A(f"ds_read_b128 v[{WSR+4*m}:{WSR+4*m+3}], v18 offset:{K1_WS+64*m}")
    A("s_mul_i32 s57, s52, 11520")
    A("v_mul_u32_u24 v19, 576, v5")
    A("v_add_u32 v19, s57, v19")
    A("v_lshl_add_u32 v20, v6, 3, v19")
    A("s_mul_i32 s57, s53, 640")
    A("s_mul_i32 s58, s52, 320")
    A("s_add_u32 s57, s57, s58")
    A(f"s_add_u32 s57, s57, {K1_LE}")
    A("v_lshlrev_b32 v21, 4, v5")
    A("v_add_u32 v21, s57, v21")
    A("v_lshlrev_b32 v22, 4, v0")
    A(f"v_add_u32 v22, {K1_LE+2560}, v22")
    A("v_cmp_eq_u32 vcc, 15, v6")
    A("v_cndmask_b32 v22, v22, v21, vcc")
    A("v_sub_u32 v23, 15, v6")
    A("v_lshl_add_u32 v23, v23, 3, v19")
    ta = lambda m, q: 60 + 8 * m + 4 * q
    for m in range(5):
        for q in range(2):
            o = K1Y_T + (8 * m + q) * 288
            A(f"ds_read_b64 v[{ta(m,q)}:{ta(m,q)+1}], v19 offset:{o+272}")
            A(f"ds_read_b64 v[{ta(m,q)+2}:{ta(m,q)+3}], v23 offset:{o}")
        if m == 1: A("s_waitcnt lgkmcnt(8)")
    for m in range(5):
        for n in range(4):
            for q in range(2):
                u = ACC + (m * 4 + n) * 4 + 2 * q; w = WSR + 4 * m + 2 * q; st = ST + 2 * n
                A(f"v_pk_fma_f32 {vr(u,2)}, {vr(w,2)}, {vr(st,2)}, {vr(u,2)} op_sel:[0,0,0] op_sel_hi:[1,0,1] neg_lo:[1,0,0] neg_hi:[1,0,0]")
            for q in range(2):
                u = ACC + (m * 4 + n) * 4 + 2 * q; st = ST + 2 * n
                A(f"v_pk_mul_f32 {vr(u,2)}, {vr(u,2)}, {vr(st,2)} op_sel:[0,1] op_sel_hi:[1,1]")
    A("s_waitcnt lgkmcnt(0)")
    Z = 100
    for n in range(1, 4):
        for m in range(5):
            for q in range(2):
                e = P + 4 * m + 2 * q; z = Z + 4 * m + 2 * q
                prev = (ACC + (m * 4) * 4 + 2 * q) if n == 1 else (e if n == 2 else z)
                dst = e if n in (1, 3) else z
                cmul_add(A, dst, ta(m, q), prev, ACC + (m * 4 + n) * 4 + 2 * q)
    for m in range(5):
        for q in range(2):
            cmul(A, Z + 4 * m + 2 * q, ta(m, q) + 2, P + 4 * m + 2 * q)
    for k in (8, 4, 2, 1):
        for r in range(20):
            A(f"v_add_f32_dpp v{Z+r}, v{Z+r}, v{Z+r} row_ror:{k} row_mask:0xf bank_mask:0xf")
    for m in range(5):
        A(f"ds_write_b128 v22, v[{Z+4*m}:{Z+4*m+3}] offset:{64*m}")
    A("s_waitcnt lgkmcnt(0)")
    stamp(A, 5)
    A("s_barrier")
    tbb = lambda m, q: (100 if (m & 1) == 0 else 228) + 12 * q
    def load_tabB(m):
        for q in range(2):
            o = K1Y_T + (8 * m + q) * 288; b = tbb(m, q)
            A(f"ds_read_b64 v[{b}:{b+1}], v19 offset:{o+280}")
            A(f"ds_read_b64 v[{b+2}:{b+3}], v19 offset:{o+8}")
            A(f"ds_read_b64 v[{b+4}:{b+5}], v19 offset:{o+16}")
            A(f"ds_read_b64 v[{b+6}:{b+7}], v19 offset:{o+32}")
            A(f"ds_read_b64 v[{b+8}:{b+9}], v19 offset:{o+64}")
            A(f"ds_read_b64 v[{b+10}:{b+11}], v20 offset:{o}")
    load_tabB(0)
    A("s_mul_i32 s57, s51, 5")
    A("s_lshl_b32 s58, s52, 1")
    A("s_add_u32 s57, s57, s58")
    A("s_mul_i32 s58, s50, 40")
    A("s_add_u32 s57, s57, s58")
    A("s_lshl_b32 s57, s57, 3")
    A("s_lshl_b32 s58, s53, 2")
    A("s_add_u32 s57, s57, s58")
    A("s_lshl_b32 s57, s57, 10")
    A(f"s_add_u32 s65, s57, {WS_H1}")
    A("v_lshlrev_b32 v27, 4, v0")
    TMP = 124
    for m in range(5):
        A("s_waitcnt lgkmcnt(0)")
        if m < 4: load_tabB(m + 1)
        for ki, k in enumerate((1, 2, 4, 8)):
            for q in range(2):
                e = P + 4 * m + 2 * q; t0 = TMP + 2 * q
                A(f"v_mov_b32_dpp v{t0}, v{e} row_shr:{k} row_mask:0xf bank_mask:0xf bound_ctrl:0")
                A(f"v_mov_b32_dpp v{t0+1}, v{e+1} row_shr:{k} row_mask:0xf bank_mask:0xf bound_ctrl:0")
            for q in range(2):
                e = P + 4 * m + 2 * q; t0 = TMP + 2 * q
                cmul_add(A, e, tbb(m, q) + 2 + 2 * ki, t0, e)
        for q in range(2):
            e = P + 4 * m + 2 * q; t0 = TMP + 2 * q
            A(f"v_mov_b32_dpp v{t0}, v{e} row_shr:1 row_mask:0xf bank_mask:0xf bound_ctrl:0")
            A(f"v_mov_b32_dpp v{t0+1}, v{e+1} row_shr:1 row_mask:0xf bank_mask:0xf bound_ctrl:0")
        for q in range(2):
            cmul(A, P + 4 * m + 2 * q, tbb(m, q), TMP + 2 * q)
            cmul(A, ta(m, q) + 2, tbb(m, q), tbb(m, q) + 10)
        for n in range(4):
            for q in range(2):
                u = ACC + (m * 4 + n) * 4 + 2 * q; t0 = TMP + 2 * q
                A(f"v_pk_mul_f32 {vr(t0,2)}, {vr(tbb(m,q),2)}, {vr(u,2)} op_sel:[0,0] op_sel_hi:[0,1]")
                A(f"v_pk_fma_f32 {vr(u,2)}, {vr(tbb(m,q),2)}, {vr(u,2)}, {vr(t0,2)} op_sel:[1,1,0] op_sel_hi:[1,0,1] neg_lo:[1,0,0]")
    A("s_waitcnt lgkmcnt(0)")
    A("s_barrier")
    stamp(A, 6)
    for m in range(5):
        A(f"ds_read_b128 v[{100+4*m}:{103+4*m}], v21 offset:{1280+64*m}")
    A("s_waitcnt lgkmcnt(0)")
    for m in range(5):
        for q in range(2):
            cmul_add(A, P + 4 * m + 2 * q, ta(m, q) + 2, 100 + 4 * m + 2 * q, P + 4 * m + 2 * q)
    for n in range(4):
        for m in range(5):
            for q in range(2):
                u = ACC + (m * 4 + n) * 4 + 2 * q
                prev = (P + 4 * m + 2 * q) if n == 0 else u - 4
                cmul_add(A, u, ta(m, q), prev, u)
    stamp(A, 7)
    L1 = A.label("ey1"); L2 = A.label("eyx")
    A("s_cmp_lg_u32 s52, 0")
    A(f"s_cbranch_scc1 {L1}")
    for parity in (0, 1):
        if parity == 1: A(f"{L1}:")
        cnt = 0
        for kind, tl, ks, half in frag_store_plan(5, parity):
            A(f"s_add_u32 s57, s65, {ks*8192}")
            for n in range(4):
                t = 32 + 4 * (cnt % 8); cnt += 1
                for x, m in enumerate(tl):
                    u = ACC + (m * 4 + n) * 4
                    A(f"v_cvt_pk_bf16_f32 v{t+2*x}, v{u}, v{u+1}")
                    A(f"v_cvt_pk_bf16_f32 v{t+2*x+1}, v{u+2}, v{u+3}")
                if kind == "pair":
                    A(f"buffer_store_dwordx4 v[{t}:{t+3}], v27, s[44:47], s57 offen offset:{1024*n} sc1")
                else:
                    if "nosingle" not in DBG: A(f"buffer_store_dwordx2 v[{t}:{t+1}], v27, s[44:47], s57 offen offset:{1024*n + 8*half} sc1")
        if parity == 0: A(f"s_branch {L2}")
    A(f"{L2}:")

K2_NR = 7
K2_R0 = 26112
K2_BOFF = K2_R0 + K2_NR * 10240
K2_NST = 47
NSF = 27

def p2_ids(A):
    A("s_lshl_b32 s57, s49, 7")
    A("s_lshl_b32 s58, s50, 3")
    A("s_add_u32 s57, s57, s58")
    A("s_add_u32 s57, s57, s51")
    A("s_lshl_b32 s57, s57, 7")
    A("s_lshl_b32 s58, s48, 3")
    A("s_add_u32 s57, s57, s58")
    A(f"s_add_u32 s77, s57, {WS_F2}")
    A("s_mov_b32 s78, s49")
    A("s_and_b32 s57, s2, 3")
    A("s_bfe_u32 s58, s2, 0x10002")
    A("s_lshr_b32 s59, s35, 2")
    A("s_lshl_b32 s50, s57, 2")
    A("s_lshr_b32 s57, s59, 1")
    A("s_add_u32 s50, s50, s57")
    A("s_and_b32 s49, s59, 1")
    A("s_lshl_b32 s51, s58, 2")
    A("s_and_b32 s57, s35, 3")
    A("s_add_u32 s51, s51, s57")
    A("v_lshlrev_b32 v10, 4, v0")

def spin_flags(A, loads, regs, vm=None, iters=400000, first_wait=None):
    Lp = A.label("sp"); Lx = A.label("spx")
    A(f"s_mov_b32 s70, {iters}")
    Lc = A.label("spc")
    if first_wait:
        first_wait()
        A(f"s_branch {Lc}")
    A(f"{Lp}:")
    for l in loads: A(l)
    A("s_waitcnt vmcnt(0)")
    A(f"{Lc}:")
    for i, r in enumerate(regs):
        A(f"v_cmp_ne_u64 {'vcc' if i == 0 else 's[72:73]'}, v[{r}:{r+1}], v[28:29]")
        if i: A("s_or_b64 vcc, vcc, s[72:73]")
    A("s_cmp_eq_u64 vcc, 0")
    A(f"s_cbranch_scc1 {Lx}")
    A("s_sleep 1")
    A("s_sub_u32 s70, s70, 1")
    A("s_cmp_lg_u32 s70, 0")
    A(f"s_cbranch_scc1 {Lp}")
    A(f"{Lx}:")
    if vm and not first_wait: vm.ops = []

def p2_loaders(A):
    stamp(A, 0)
    p2_ids(A)
    A("s_mul_i32 s57, s53, 5120")
    A(f"s_mul_i32 s62, s51, {20*10240}")
    A("s_add_u32 s62, s62, s57")
    A(f"s_add_u32 s62, s62, {WS_CP}")
    A(f"s_mul_i32 s63, s51, {27*10240}")
    A("s_add_u32 s63, s63, s57")
    A(f"s_add_u32 s63, s63, {WS_W2P}")
    A(f"s_add_u32 s57, s57, {K2_R0}")
    A("s_lshl_b32 s58, s53, 13")
    A("s_lshl_b32 s59, s49, 12")
    A("s_add_u32 s58, s58, s59")
    A(f"s_mul_i32 s64, s50, {40*8192}")
    A("s_add_u32 s64, s64, s58")
    A(f"s_add_u32 s64, s64, {WS_H1}")
    A(f"s_mul_i32 s66, s50, {54*8192}")
    A("s_add_u32 s66, s66, s58")
    A(f"s_add_u32 s66, s66, {WS_HF}")
    A("s_lshl_b32 s59, s53, 12")
    A(f"s_add_u32 s59, s59, {K2_BOFF}")
    A("s_cmp_lg_u32 s52, 0")
    A("s_cselect_b32 s62, s64, s62")
    A("s_cselect_b32 s63, s66, s63")
    A("s_cselect_b32 s58, s59, s57")
    A("s_cbranch_scc0 p2_lA")
    p2_loader(A, True)
    stamps_flush(A, 6, 1)
    A("s_branch k1_end")
    A("p2_lA:")
    p2_loader(A, False)
    stamps_flush(A, 6, 1)

def p2_loader(A, isB):
    vm = VM(A)
    nst = K2_NST
    nI = 4 if isB else 5
    sstr = 16384 if isB else 10240
    lstr = 8192 if isB else 10240
    if not isB:
        A("v_lshlrev_b32 v30, 4, v0")
        A(f"v_add_u32 v30, {WS_F1}, v30")
        wl = lambda o: [f"buffer_load_dwordx4 v[{32+4*k}:{35+4*k}], v30, s[44:47], 0 offen offset:{o + 1024*k} sc1" if o + 1024*k < 4096 else
                        f"buffer_load_dwordx4 v[{32+4*k}:{35+4*k}], v31, s[44:47], 0 offen offset:{o + 1024*k - 4096} sc1" for k in range(4)]
        A("v_add_u32 v31, 4096, v30")
    else:
        A("v_bfe_u32 v30, v0, 2, 3")
        A("v_and_b32 v31, 3, v0")
        A("v_lshlrev_b32 v30, 7, v30")
        A("v_lshl_add_u32 v30, v31, 3, v30")
        A("s_lshl_b32 s64, s50, 10")
        A(f"s_add_u32 s64, s64, {WS_F2}")
        A(f"s_add_u32 s66, s64, {128*128}")
        spin_flags(A, ["buffer_load_dwordx2 v[32:33], v30, s[44:47], s66 offen sc1"], [32])
    def dma(st):
        L2 = ["buffer_load_dwordx2 v[32:33], v30, s[44:47], s64 offen sc1"] if isB else wl(4096)
        R2 = [32] if isB else [32 + 2 * k for k in range(8)]
        if st == NSF - 3:
            for l in L2: vm(l, "f2")
        if st == NSF:
            spin_flags(A, L2, R2, vm, first_wait=lambda: vm.wait("f2"))
        bo = (st % K2_NR) * lstr
        src, so = (63, st * sstr) if st < NSF else (62, (st - NSF) * sstr)
        for q in range(nI):
            A(f"s_add_u32 m0, s58, {bo + 1024*q}")
            A(f"s_add_u32 s65, s{src}, {so + 1024*q}")
            vm("buffer_load_dwordx4 v10, s[44:47], s65 offen sc1 lds", f"d{st}")
    stamp(A, 1)
    n0 = 3 if isB else K2_NR
    if isB:
        for st in range(n0): dma(st)
    else:
        Lb = A.label("nox"); Lc = A.label("late"); Ld = A.label("done")
        A("s_cmp_lg_u32 s78, 0")
        A(f"s_cbranch_scc1 {Lb}")
        A("s_barrier")
        spin_flags(A, wl(0), [32 + 2 * k for k in range(8)], iters=2)
        A("s_cmp_eq_u32 s70, 0")
        A(f"s_cbranch_scc1 {Lc}")
        for st in range(n0): dma(st)
        A("s_barrier")
        A(f"s_branch {Ld}")
        A(f"{Lc}:")
        A("s_barrier")
        A(f"{Lb}:")
        spin_flags(A, wl(0), [32 + 2 * k for k in range(8)])
        vm.ops = []
        for st in range(n0): dma(st)
        A(f"{Ld}:")
    vm.wait("d0")
    stamp(A, 2)
    A("s_barrier")
    vm.wait("d1")
    A("s_barrier")
    for st in range(n0, K2_NR): dma(st)
    for j in range(nst - 2):
        vm.wait(f"d{j+2}")
        A("s_barrier")
        if j + K2_NR < nst: dma(j + K2_NR)
    for i in (3, 4, 5): stamp(A, i)

def p2_compute(A):
    stamp(A, 0)
    A("v_mov_b32 v26, 0")
    A(f"ds_read_b64 v[22:23], v26 offset:{K1_NONCE}")
    p2_ids(A)
    srd(A, 72, 4, T * D * 2)
    srd(A, 84 if not STAMPS else 68, 28, T * D * 4)
    A("v_cmp_eq_u32 vcc, 0, v0")
    A(f"v_mov_b32 v24, {OOB}")
    A("v_cndmask_b32 v24, v24, v26, vcc")
    L = A.label("nof")
    A("s_cmp_eq_u32 s78, 0")
    A(f"s_cbranch_scc1 {L}")
    A("s_waitcnt vmcnt(0) lgkmcnt(0)")
    A("buffer_store_dwordx2 v[22:23], v24, s[44:47], s77 offen sc1")
    A(f"{L}:")
    FRAG = 112
    ACCY = 28; ACCF = 48; XR = 68; SR = 78; DR = 82; PR = 92
    nst = K2_NST
    A("s_lshl_b32 s57, s50, 7")
    A("s_lshl_b32 s58, s49, 6")
    A("s_add_u32 s57, s57, s58")
    A("s_add_u32 s57, s57, s48")
    A("v_lshl_add_u32 v17, v6, 2, s57")
    A("v_mul_u32_u24 v18, 1280, v17")
    A("v_lshl_add_u32 v18, v5, 3, v18")
    A("s_mul_i32 s58, s51, 160")
    for m in range(5):
        A(f"buffer_load_dwordx2 v[{XR+2*m}:{XR+2*m+1}], v18, s[72:75], s58 offen offset:{32*m}")
    A("v_lshlrev_b32 v25, 4, v17")
    A(f"s_mov_b32 s62, {WS_STATS}")
    A("v_lshlrev_b32 v26, 3, v5")
    A("v_add_u32 v26, s58, v26")
    for m in range(5):
        A(f"global_load_dwordx2 v[{DR+2*m}:{DR+2*m+1}], v26, s[20:21] offset:{32*m}")
    A("s_lshl_b32 s57, s48, 10")
    A(f"s_add_u32 s57, s57, {K2_BOFF}")
    A("v_add_u32 v20, s57, v10")
    A(f"v_add_u32 v21, {K2_R0 + 3*10240}, v10")
    A(f"v_add_u32 v19, {K2_R0}, v10")
    for r in range(40):
        A(f"v_mov_b32 v{ACCY+r}, 0")
    plist = []
    P = plist.append
    mm, rs, sd = SR, SR + 1, SR + 2
    for m in range(5):
        x = XR + 2 * m; t = 2; du = 12; p = PR + 4 * m
        for hh in range(2):
            P(f"v_lshlrev_b32 v{t+2*hh}, 16, v{x+hh}")
            P(f"v_and_b32 v{t+2*hh+1}, 0xffff0000, v{x+hh}")
        for r in range(4): P(f"v_sub_f32 v{t+r}, v{t+r}, v{mm}")
        for hh in range(2):
            P(f"v_cvt_pk_bf16_f32 v{t+4+hh}, v{t+2*hh}, v{t+2*hh+1}")
        for hh in range(2):
            P(f"v_lshlrev_b32 v{t+2*hh}, 16, v{t+4+hh}")
            P(f"v_and_b32 v{t+2*hh+1}, 0xffff0000, v{t+4+hh}")
        for r in range(4): P(f"v_mul_f32 v{t+4+r}, v{t+r}, v{rs}")
        for r in range(4): P(f"v_fma_f32 v{t+r}, -v{t+4+r}, v{sd}, v{t+r}")
        for r in range(4): P(f"v_fma_f32 v{t+4+r}, v{t+r}, v{rs}, v{t+4+r}")
        for hh in range(2):
            P(f"v_cvt_pk_bf16_f32 v{t+hh}, v{t+4+2*hh}, v{t+4+2*hh+1}")
        for hh in range(2):
            P(f"v_lshlrev_b32 v{t+4+2*hh}, 16, v{t+hh}")
            P(f"v_and_b32 v{t+4+2*hh+1}, 0xffff0000, v{t+hh}")
        for hh in range(2):
            P(f"v_lshlrev_b32 v{du+2*hh}, 16, v{DR+2*m+hh}")
            P(f"v_and_b32 v{du+2*hh+1}, 0xffff0000, v{DR+2*m+hh}")
        for r in range(4): P(f"v_mul_f32 v{t+4+r}, v{t+4+r}, v{du+r}")
        for hh in range(2):
            P(f"v_cvt_pk_bf16_f32 v{t+hh}, v{t+4+2*hh}, v{t+4+2*hh+1}")
        for hh in range(2):
            P(f"v_lshlrev_b32 v{p+2*hh}, 16, v{t+hh}")
            P(f"v_and_b32 v{p+2*hh+1}, 0xffff0000, v{t+hh}")
    glist = []
    G = glist.append
    for m in range(5):
        a = ACCF + 4 * m; t = 2
        for hh in range(2):
            G(f"v_cvt_pk_bf16_f32 v{t+hh}, v{a+2*hh}, v{a+2*hh+1}")
        for hh in range(2):
            G(f"v_lshlrev_b32 v{a+2*hh}, 16, v{t+hh}")
            G(f"v_and_b32 v{a+2*hh+1}, 0xffff0000, v{t+hh}")
        for r in range(4): G(f"v_mul_f32 v{t+r}, {hexf(-LOG2E)}, v{a+r}")
        for r in range(4): G(f"v_exp_f32 v{t+r}, v{t+r}")
        for r in range(4): G(f"v_add_f32 v{t+r}, 1.0, v{t+r}")
        for r in range(4): G(f"v_rcp_f32 v{t+r}, v{t+r}")
        for r in range(4): G(f"v_mul_f32 v{t+r}, v{t+r}, v{a+r}")
        for hh in range(2):
            G(f"v_cvt_pk_bf16_f32 v{t+4+hh}, v{t+2*hh}, v{t+2*hh+1}")
        for hh in range(2):
            G(f"v_lshlrev_b32 v{a+2*hh}, 16, v{t+4+hh}")
            G(f"v_and_b32 v{a+2*hh+1}, 0xffff0000, v{t+4+hh}")
    fset = lambda stage, kk: FRAG + ((stage % 3) * 2 + kk) * 24
    def reads(stage, kk):
        sl = stage % K2_NR
        ra = 21 if sl >= 3 else 19
        oa = (sl - 3 if sl >= 3 else sl) * 10240
        f = fset(stage, kk)
        out = [f"ds_read_b128 {vr(f+20,4)}, v20 offset:{sl*8192 + kk*4096}"]
        out += [f"ds_read_b128 {vr(f+4*m,4)}, v{ra} offset:{oa + kk*5120 + m*1024}" for m in range(5)]
        return out
    def mfmas(stage, kk):
        f = fset(stage, kk); acc = ACCF if stage < NSF else ACCY
        return [f"v_mfma_f32_16x16x32_bf16 {vr(acc+4*m,4)}, {vr(f+4*m,4)}, {vr(f+20,4)}, {vr(acc+4*m,4)}" for m in range(5)]
    stamp(A, 1)
    A("s_barrier")
    stamp(A, 2)
    A(f"buffer_load_dwordx4 v[{SR}:{SR+3}], v25, s[44:47], s62 offen sc1")
    for kk in range(2):
        for r in reads(0, kk): A(r)
    A("s_barrier")
    for kk in range(2):
        for r in reads(1, kk): A(r)
    for j in range(nst):
        A(f"s_waitcnt lgkmcnt({12 if j < nst - 1 else 0})")
        mf = mfmas(j, 0) + mfmas(j, 1)
        if j < nst - 2:
            for m in mf[:2]: A(m)
            if j == 8:
                A("s_waitcnt vmcnt(0)")
                L = A.label("noy")
                A("s_cmp_lg_u32 s78, 0")
                A(f"s_cbranch_scc1 {L}")
                A("buffer_store_dwordx2 v[22:23], v24, s[44:47], s77 offen sc1")
                A(f"{L}:")
            A("s_barrier")
            rd = reads(j + 2, 0) + reads(j + 2, 1)
            rest = mf[2:]
            for i, m in enumerate(rest):
                for r in rd[(i * 12) // 8: ((i + 1) * 12) // 8]: A(r)
                A(m)
                if j >= 8:
                    for _ in range(2):
                        if plist: A(plist.pop(0))
                        elif j >= NSF + 2 and glist: A(glist.pop(0))
        else:
            for m in mf: A(m)
    assert not plist and not glist
    stamp(A, 3)
    A("v_lshlrev_b32 v18, 1, v18")
    A("s_lshl_b32 s58, s58, 1")
    so = 84 if not STAMPS else 68
    for m in range(5):
        t = 112 + 4 * m
        for hh in range(2):
            A(f"v_pk_add_f32 {vr(PR+4*m+2*hh,2)}, {vr(ACCY+4*m+2*hh,2)}, {vr(PR+4*m+2*hh,2)}")
        for hh in range(2):
            A(f"v_lshlrev_b32 v{t+2*hh}, 16, v{XR+2*m+hh}")
            A(f"v_and_b32 v{t+2*hh+1}, 0xffff0000, v{XR+2*m+hh}")
        for hh in range(2):
            A(f"v_pk_mul_f32 {vr(PR+4*m+2*hh,2)}, {vr(PR+4*m+2*hh,2)}, {vr(ACCF+4*m+2*hh,2)}")
        for hh in range(2):
            A(f"v_pk_add_f32 {vr(t+2*hh,2)}, {vr(t+2*hh,2)}, {vr(PR+4*m+2*hh,2)}")
        A(f"buffer_store_dwordx4 v[{t}:{t+3}], v18, s[{so}:{so+3}], s58 offen offset:{64*m}")
    stamp(A, 4); stamp(A, 5)

HEADER = open("recurrent_scan__ssm_conv_s5__dense_activation_relu__prompt.s.ref").read().split("; @launch")[0]

def kd(name, vgpr=256):
    return f""".p2align 6
.amdhsa_kernel {name}
  .amdhsa_next_free_vgpr {vgpr}
  .amdhsa_next_free_sgpr 102
  .amdhsa_accum_offset {vgpr}
  .amdhsa_group_segment_fixed_size 0
  .amdhsa_kernarg_size 120
  .amdhsa_user_sgpr_count 2
  .amdhsa_user_sgpr_kernarg_segment_ptr 1
  .amdhsa_system_sgpr_workgroup_id_x 1
.end_amdhsa_kernel
"""

def build():
    out = HEADER
    out += f"; @launch kernel=k1_kernel grid=(256,1,1) block=(512,1,1) lds={K1_LDS}\n"
    out += '.amdgcn_target "amdgcn-amd-amdhsa--gfx950"\n.text\n'
    for name, fn in (("k1_kernel", kernel1),):
        A = Asm(); A.nlabel = 0 if name == "k1_kernel" else 1000
        fn(A)
        lines = fix_hazards(A.lines, verbose=True)
        out += f".globl {name}\n.p2align 8\n.type {name},@function\n"
        out += "\n".join(("    " + l if not l.endswith(":") else l) for l in lines) + "\n"
    out += '.section .rodata,"a"\n' + kd("k1_kernel")
    return out

if __name__ == "__main__":
    if len(sys.argv) > 2: STAMPS = True; DBG = sys.argv[2]
    dst = sys.argv[1] if len(sys.argv) > 1 else "recurrent_scan__ssm_conv_s5__dense_activation_relu__prompt.s"
    txt = build()
    if os.environ.get("SINGLE", "1") == "1" and not STAMPS:
        KN = "recurrent_scan__ssm_conv_s5__dense_activation_relu__prompt_kernel"
        txt = txt.replace("; @launch kernel=k1_kernel grid", "; @launch grid").replace("k1_kernel", KN)
    open(dst, "w").write(txt)
    print("wrote", dst)
```

```python
import sys, struct
from asmlib import *

T, D, DFF = 2048, 640, 1728
WS_STATS = 0x000000
WS_E     = 0x010000
WS_WSP   = 0x0A0000
WS_WSYO  = 0x0E0000
WS_F3    = 0x0E8000
WS_F2    = 0x080000
WS_F1    = 0x090000
WS_CP    = 0x100000
WS_W2P   = 0x300000
WS_H1    = 0x600000
WS_HF    = 0xC00000
WS_S     = 0x1400000
WS_TS    = 0x1A00000
WS_SIZE  = 0x1B00000
OOB = 0x7ffffff0

import os
MAP = os.environ.get("MAP", "bp")
GI = int(os.environ.get("GI", 7))
CPF = int(os.environ.get("CPF", 1))
TLB = int(os.environ.get("TLB", 0))
STAMPS = False
DBG = "nopf"
def stamp(A, i):
    if STAMPS and i == 0:
        A("s_memrealtime s[96:97]")
    if STAMPS:
        A(f"s_memtime s[{80+2*i}:{81+2*i}]")
def stamps_flush(A, n, kidx, waitvm=True):
    if not STAMPS: return
    A("s_waitcnt lgkmcnt(0) vmcnt(0)" if waitvm else "s_waitcnt lgkmcnt(0)")
    A("s_memtime s[98:99]")
    A("s_memrealtime s[100:101]")
    A("s_waitcnt lgkmcnt(0)")
    A("s_lshl_b32 s57, s2, 3")
    A("s_add_u32 s57, s57, s34")
    A("s_lshl_b32 s57, s57, 6")
    A(f"s_add_u32 s57, s57, {WS_TS + kidx*131072}")
    A("v_mov_b32 v2, 0")
    for i in range(n):
        A(f"v_mov_b32 v3, s{80+2*i}")
        A(f"buffer_store_dword v3, v2, s[44:47], s57 offen offset:{4*i}")
    A(f"v_mov_b32 v3, s98")
    A(f"buffer_store_dword v3, v2, s[44:47], s57 offen offset:{4*n}")
    A(f"v_mov_b32 v3, s96")
    A(f"buffer_store_dword v3, v2, s[44:47], s57 offen offset:56")
    A(f"v_mov_b32 v3, s100")
    A(f"buffer_store_dword v3, v2, s[44:47], s57 offen offset:60")

def f2u(x): return struct.unpack("<I", struct.pack("<f", x))[0]
def hexf(x): return f"0x{f2u(x):08x}"
LOG2E = 1.4426950408889634
INV2PI = 0.15915494309189535

def divc(A, vq, vsrc, d, maxv):
    for sh in (16, 17, 18, 19, 20):
        mul = ((1 << sh) + d - 1) // d
        if all((c * mul) >> sh == c // d for c in range(maxv)) and maxv * mul < (1 << 32) and mul < (1 << 24):
            A(f"v_mul_u32_u24 {vr(vq)}, {mul}, {vr(vsrc)}")
            A(f"v_lshrrev_b32 {vr(vq)}, {sh}, {vr(vq)}")
            return
    raise Exception("no magic")

def srd(A, s, base, size):
    A(f"s_mov_b32 s{s}, s{base}")
    A(f"s_and_b32 s{s+1}, s{base+1}, 0xffff")
    A(f"s_mov_b32 s{s+2}, {size}")
    A(f"s_mov_b32 s{s+3}, 0x20000")

def cmul_add(A, dst, w, h, u):
    A(f"v_pk_fma_f32 {vr(dst,2)}, {vr(w,2)}, {vr(h,2)}, {vr(u,2)} op_sel:[0,0,0] op_sel_hi:[0,1,1]")
    A(f"v_pk_fma_f32 {vr(dst,2)}, {vr(w,2)}, {vr(h,2)}, {vr(dst,2)} op_sel:[1,1,0] op_sel_hi:[1,0,1] neg_lo:[1,0,0]")
def cmul(A, dst, w, h):
    A(f"v_pk_mul_f32 {vr(dst,2)}, {vr(w,2)}, {vr(h,2)} op_sel:[0,0] op_sel_hi:[0,1]")
    A(f"v_pk_fma_f32 {vr(dst,2)}, {vr(w,2)}, {vr(h,2)}, {vr(dst,2)} op_sel:[1,1,0] op_sel_hi:[1,0,1] neg_lo:[1,0,0]")

def wave_sum(A, regs):
    for mod in ("row_shr:1 row_mask:0xf bank_mask:0xf bound_ctrl:0", "row_shr:2 row_mask:0xf bank_mask:0xf bound_ctrl:0",
                "row_shr:4 row_mask:0xf bank_mask:0xf bound_ctrl:0", "row_shr:8 row_mask:0xf bank_mask:0xf bound_ctrl:0",
                "row_bcast:15 row_mask:0xa bank_mask:0xf", "row_bcast:31 row_mask:0xc bank_mask:0xf"):
        for r in regs:
            A(f"v_add_f32_dpp {vr(r)}, {vr(r)}, {vr(r)} {mod}")

def bf16r(A, r):
    A(f"v_cvt_pk_bf16_f32 {vr(r)}, {vr(r)}, {vr(r)}")
    A(f"v_lshlrev_b32 {vr(r)}, 16, {vr(r)}")

class VM:
    def __init__(s, A): s.A = A; s.ops = []
    def __call__(s, text, tag): s.A(text); s.ops.append(tag)
    def wait(s, tag, extra=""):
        idx = max([i for i, t in enumerate(s.ops) if t == tag], default=None)
        if idx is None:
            if extra: s.A(f"s_waitcnt {extra}")
            return
        n = len(s.ops) - 1 - idx
        assert n <= 63, n
        s.A(f"s_waitcnt vmcnt({n}) {extra}".strip())
        s.ops = s.ops[idx + 1:]
    def waitall(s, extra=""):
        s.A(f"s_waitcnt vmcnt(0) {extra}".strip()); s.ops = []

def common_ids(A):
    A("v_lshrrev_b32 v2, 6, v0")
    A("v_and_b32 v1, 255, v0")
    A("v_and_b32 v0, 63, v0")
    A("v_readfirstlane_b32 s34, v2")
    A("s_lshr_b32 s35, s2, 3")
    A("s_and_b32 s57, s2, 3")
    A("s_lshl_b32 s57, s57, 2")
    A("s_lshr_b32 s50, s35, 3")
    A("s_add_u32 s50, s50, s57")
    if MAP == "mixed":
        A("s_and_b32 s49, s35, 1")
        A("s_bfe_u32 s51, s35, 0x20001")
        A("s_and_b32 s57, s2, 4")
        A("s_add_u32 s51, s51, s57")
    else:
        A("s_bfe_u32 s49, s2, 0x10002")
        A("s_and_b32 s51, s35, 7")
    A("s_and_b32 s48, s34, 3")
    A("s_lshr_b32 s52, s48, 1")
    A("s_and_b32 s53, s48, 1")
    A("v_lshrrev_b32 v3, 3, v0")
    A("v_and_b32 v4, 7, v0")
    A("v_lshrrev_b32 v5, 4, v0")
    A("v_and_b32 v6, 15, v0")

def poll(A, load, stmp, scount, vtmp, target, iters=200000):
    L = A.label("poll"); Lx = A.label("pollx")
    A(f"s_mov_b32 s{scount}, {iters}")
    A(f"{L}:")
    A(load)
    A("s_waitcnt vmcnt(0)")
    A(f"v_readfirstlane_b32 s{stmp}, {vr(vtmp)}")
    A(f"s_cmp_eq_u32 s{stmp}, {target}")
    A(f"s_cbranch_scc1 {Lx}")
    A("s_sleep 1")
    A(f"s_sub_u32 s{scount}, s{scount}, 1")
    A(f"s_cmp_lg_u32 s{scount}, 0")
    A(f"s_cbranch_scc1 {L}")
    A(f"{Lx}:")

K1F_STAGE = 28672 + 16384
K1Y_STAGE = 20480 + 16384
K1_STATS = 0
K1_WS = 2048
K1_NONCE = 3008
K1F_RED = 3072
K1F_BUF = 10240
K1Y_T = 3072
K1Y_BUF = 26112
K1Y_SCR = K1Y_BUF + 3 * K1Y_STAGE
K1_LE = 157184
K1F_SL = 145408
K1_LDS = 163840

def kernel1(A):
    A("k1_kernel:")
    A("s_cmp_ge_u32 s2, 256")
    A("s_cbranch_scc1 k1_end")
    stamp(A, 0)
    A("s_load_dwordx16 s[4:19], s[0:1], 0")
    A("s_load_dwordx8 s[20:27], s[0:1], 64")
    A("s_load_dwordx4 s[28:31], s[0:1], 96")
    A("s_load_dwordx2 s[32:33], s[0:1], 112")
    common_ids(A)
    if CPF:
        Lq = A.label("nopf")
        A("s_cmp_ge_u32 s34, 4")
        A(f"s_cbranch_scc1 {Lq}")
        A("s_getpc_b64 s[66:67]")
        Lpc = A.label("pc")
        A(f"{Lpc}:")
        A(f"s_sub_u32 s66, s66, {Lpc}-k1_kernel")
        A("s_subb_u32 s67, s67, 0")
        A("s_lshl_b32 s57, s35, 2")
        A("s_add_u32 s57, s57, s48")
        A("s_lshl_b32 s57, s57, 10")
        A("s_min_u32 s57, s57, k1_codeend-k1_kernel-1024")
        A("v_lshlrev_b32 v7, 4, v0")
        A("v_add_u32 v7, s57, v7")
        A("global_load_dwordx4 v[120:123], v7, s[66:67]")
        A(f"{Lq}:")
    A("s_mul_i32 s54, s51, 14")
    A("s_cmp_eq_u32 s51, 7")
    A("s_cselect_b32 s54, 96, s54")
    A("s_waitcnt lgkmcnt(0)")
    srd(A, 36, 4, T * D * 2)
    srd(A, 44, 32, WS_SIZE)
    A("s_cmp_ge_u32 s34, 4")
    A("s_cbranch_scc1 k1_ld")
    A("s_cmp_lg_u32 s49, 0")
    A("s_cbranch_scc1 k1_cF")
    k1_compute(A, False)
    A("s_branch p2_comp")
    A("k1_cF:")
    k1_compute(A, True)
    A("p2_comp:")
    stamps_flush(A, 8, 0, False)
    p2_compute(A)
    stamps_flush(A, 6, 1)
    A("s_branch k1_end")
    A("k1_ld:")
    A("s_cmp_lg_u32 s49, 0")
    A("s_cbranch_scc1 k1_lF")
    k1_loader(A, False)
    A("s_branch p2_ld")
    A("k1_lF:")
    k1_loader(A, True)
    A("p2_ld:")
    stamps_flush(A, 8, 0, False)
    p2_loaders(A)
    A("k1_end:")
    A("s_endpgm")
    A("k1_codeend:")

def stats_compute(A, vm, SRC):
    for r in range(2):
        for i in range(5):
            A(f"v_lshlrev_b32 v{40+10*r+2*i}, 16, v{SRC+5*r+i}")
            A(f"v_and_b32 v{41+10*r+2*i}, 0xffff0000, v{SRC+5*r+i}")
    for r in range(2):
        b = 40 + 10 * r
        A(f"v_add_f32 v{60+r}, v{b}, v{b+1}")
        for i in range(2, 10):
            A(f"v_add_f32 v{60+r}, v{60+r}, v{b+i}")
    wave_sum(A, [60, 61])
    A("v_readlane_b32 s57, v60, 63")
    A("v_readlane_b32 s58, v61, 63")
    A(f"v_mov_b32 v62, {hexf(1.0/640)}")
    A("v_mul_f32 v60, s57, v62")
    A("v_mul_f32 v61, s58, v62")
    for r in range(2):
        b = 40 + 10 * r
        for i in range(10):
            A(f"v_sub_f32 v{b+i}, v{b+i}, v{60+r}")
    for r in range(2):
        b = 40 + 10 * r
        A(f"v_mul_f32 v{64+r}, v{b}, v{b}")
        for i in range(1, 10):
            A(f"v_fmac_f32 v{64+r}, v{b+i}, v{b+i}")
    wave_sum(A, [64, 65])
    A("v_readlane_b32 s57, v64, 63")
    A("v_readlane_b32 s58, v65, 63")
    A("v_mul_f32 v64, s57, v62")
    A("v_mul_f32 v65, s58, v62")
    A("v_and_b32 v66, 1, v0")
    A("v_cmp_eq_u32 vcc, 1, v66")
    A("v_cndmask_b32 v68, v60, v61, vcc")
    A("v_cndmask_b32 v70, v64, v65, vcc")
    bf16r(A, 68)
    bf16r(A, 70)
    A(f"v_add_f32 v70, {hexf(1e-5)}, v70")
    bf16r(A, 70)
    A("v_sqrt_f32 v70, v70")
    bf16r(A, 70)
    A("v_rcp_f32 v69, v70")
    A("v_fma_f32 v71, -v70, v69, 1.0")
    A("v_fma_f32 v69, v71, v69, v69")
    A("v_mov_b32 v71, 0")
    A("v_lshlrev_b32 v66, 4, v0")
    A(f"v_mov_b32 v67, {OOB}")
    A("v_cmp_gt_u32 vcc, 2, v0")
    A("v_cndmask_b32 v66, v67, v66, vcc")
    A("s_lshl_b32 s57, s63, 4")
    A(f"s_add_u32 s57, s57, {WS_STATS}")
    vm("buffer_store_dwordx4 v[68:71], v66, s[44:47], s57 offen sc1", "st")

def k1_loader(A, isF):
    vm = VM(A)
    STG = K1F_STAGE if isF else K1Y_STAGE
    BUF = K1F_BUF if isF else K1Y_BUF
    ASZ = 28672 if isF else 20480
    if not isF:
        L = A.label("nononce")
        A("s_or_b32 s57, s2, s48")
        A("s_cmp_lg_u32 s57, 0")
        A(f"s_cbranch_scc1 {L}")
        A("s_memrealtime s[70:71]")
        A("v_mov_b32 v18, 0")
        A("s_waitcnt lgkmcnt(0)")
        A("s_or_b32 s70, s70, 1")
        A("v_mov_b32 v20, s70")
        A("v_mov_b32 v21, s71")
        A("s_mov_b64 exec, 1")
        A("global_store_dwordx2 v18, v[20:21], s[30:31] sc1")
        A("s_mov_b64 exec, -1")
        A(f"{L}:")
    A("v_xor_b32 v17, v4, v3")
    A("v_mul_u32_u24 v19, 5120, v3")
    A("v_lshl_add_u32 v247, v17, 4, v19")
    A("s_lshl_b32 s60, s50, 7")
    A("s_lshl_b32 s59, s52, 6")
    A("s_add_u32 s60, s60, s59")
    A("s_lshl_b32 s59, s53, 1")
    A("s_add_u32 s60, s60, s59")
    A("s_mul_i32 s60, s60, 1280")
    A("s_lshl_b32 s62, s48, 12")
    A(f"s_add_u32 s62, s62, {ASZ+BUF}")
    def dmaX(st):
        bo = (st % 3) * STG
        for q in range(4):
            A(f"s_add_u32 m0, s62, {bo + 1024*q}")
            A(f"s_add_u32 s65, s60, {st*128 + (32*(q&1) + (q>>1))*1280}")
            vm(f"buffer_load_dwordx4 v247, s[36:39], s65 offen lds", f"d{st}")
    stamp(A, 5)
    dmaX(0)
    if isF:
        srd(A, 40, 24, D * DFF * 2)
        A("s_mul_i32 s59, s48, 55296")
        A("s_lshl_b32 s64, s54, 5")
        A("s_add_u32 s59, s59, s64")
        A("s_mul_i32 s61, s48, 7168")
        A(f"s_add_u32 s61, s61, {BUF}")
        for q in range(7):
            A(f"v_add_u32 v17, {64*q}, v0")
            divc(A, 18, 17, 28, 448)
            A("v_mul_u32_u24 v19, 28, v18")
            A("v_sub_u32 v19, v17, v19")
            A("v_lshrrev_b32 v17, 2, v18")
            A("v_and_b32 v17, 2, v17")
            A("v_xor_b32 v19, v19, v17")
            A("v_mul_u32_u24 v18, 3456, v18")
            A(f"v_lshl_add_u32 v{240+q}, v19, 4, v18")
            A(f"s_add_u32 m0, s61, {1024*q}")
            A("s_nop 0")
            vm(f"buffer_load_dwordx4 v{240+q}, s[40:43], s59 offen lds", "d0")
    else:
        A("s_cmp_lt_u32 s48, 2")
        A("s_cselect_b32 s64, s10, s12")
        A("s_cselect_b32 s65, s11, s13")
        srd(A, 40, 64, D * D * 2)
        A("v_xor_b32 v18, s52, v17")
        A("v_mul_u32_u24 v19, 1280, v3")
        A("v_lshl_add_u32 v240, v18, 4, v19")
        A("s_mul_i32 s59, s51, 80")
        A("s_mul_i32 s64, s53, 40")
        A("s_add_u32 s59, s59, s64")
        A("s_mul_i32 s59, s59, 1280")
        A("s_mul_i32 s61, s53, 10240")
        A("s_lshl_b32 s64, s52, 10")
        A("s_add_u32 s61, s61, s64")
        A(f"s_add_u32 s61, s61, {BUF}")
    def dmaA(st):
        bo = (st % 3) * STG
        tag = f"d{st}"
        if isF:
            A(f"s_add_u32 s65, s59, {st*64*3456}")
            for q in range(7):
                A(f"s_add_u32 m0, s61, {bo + 1024*q}")
                A("s_nop 0")
                vm(f"buffer_load_dwordx4 v{240+q}, s[40:43], s65 offen lds", tag)
        else:
            for q in range(5):
                A(f"s_add_u32 m0, s61, {bo + 2048*q}")
                A(f"s_add_u32 s65, s59, {st*128 + q*8*1280}")
                vm(f"buffer_load_dwordx4 v240, s[40:43], s65 offen lds", tag)
    def dma(st):
        dmaA(st); dmaX(st)
    if not isF: dmaA(0)
    stamp(A, 6)
    if "nodpf" not in DBG: A("s_barrier")
    dma(1)
    stamp(A, 7)
    A(f"v_mov_b32 v15, {OOB}")
    A("v_mov_b32 v26, 0")
    def s5():
        A("v_bfe_u32 v20, v0, 1, 4")
        A("v_and_b32 v21, 7, v20")
        A("s_lshl_b32 s57, s50, 3")
        A("s_add_u32 s57, s57, 128")
        A("v_add_u32 v21, s57, v21")
        A("s_lshl_b32 s57, s49, 7")
        A("s_add_u32 s57, s57, s51")
        A("v_lshl_add_u32 v22, v20, 3, s57")
        A("v_cmp_gt_u32 vcc, 32, v0")
        A("v_cndmask_b32 v25, v22, v21, vcc")
        A("v_lshlrev_b32 v25, 7, v25")
        A("v_add_u32 v21, 32, v25")
        A("v_cndmask_b32 v25, v25, v21, vcc")
        A("v_and_b32 v20, 1, v0")
        A("v_lshl_add_u32 v25, v20, 4, v25")
        A(f"v_add_u32 v25, {WS_F3}, v25")
    def g1():
        vm("buffer_load_dwordx4 v[32:35], v25, s[44:47], 0 offen sc1", "fl")
    def g2():
        Lp = A.label("poll"); Lx = A.label("pollx"); Lc = A.label("pollc")
        A("s_mov_b32 s58, 200000")
        vm.wait("fl")
        A(f"s_branch {Lc}")
        A(f"{Lp}:")
        A("s_sleep 1")
        A("buffer_load_dwordx4 v[32:35], v25, s[44:47], 0 offen sc1")
        A("s_waitcnt vmcnt(0)")
        A(f"{Lc}:")
        A("v_cmp_ne_u64 vcc, v[32:33], v[28:29]")
        A("v_cmp_ne_u64 s[66:67], v[34:35], v[28:29]")
        A("s_or_b64 vcc, vcc, s[66:67]")
        A("s_cmp_eq_u64 vcc, 0")
        A(f"s_cbranch_scc1 {Lx}")
        A("s_sub_u32 s58, s58, 1")
        A("s_cmp_lg_u32 s58, 0")
        A(f"s_cbranch_scc1 {Lp}")
        A(f"{Lx}:")
        A("v_lshlrev_b32 v34, 4, v1")
        A("s_lshl_b32 s57, s50, 11")
        A(f"s_add_u32 s57, s57, {WS_STATS}")
        vm("buffer_load_dwordx4 v[36:39], v34, s[44:47], s57 offen sc1", "ga")
        A("v_lshlrev_b32 v35, 2, v1")
        if isF:
            A("s_mul_i32 s57, s51, 896")
            A(f"s_add_u32 s57, s57, {WS_WSP}")
            for sl_ in range(16):
                vm(f"buffer_load_dword v{40+sl_}, v35, s[44:47], s57 offen sc1", "ga")
                A(f"s_add_u32 s57, s57, {1792*4}")
        else:
            A("s_mul_i32 s57, s51, 640")
            A(f"s_add_u32 s57, s57, {WS_WSYO}")
            vm("buffer_load_dword v40, v35, s[44:47], s57 offen sc1", "ga")
    def g3():
        vm.wait("ga")
        A("v_cmp_gt_u32 vcc, 128, v1")
        A("s_and_saveexec_b64 s[66:67], vcc")
        A(f"ds_write_b128 v34, v[36:39] offset:{K1_STATS}")
        A("s_mov_b64 exec, s[66:67]")
        if isF:
            for sl_ in range(1, 16):
                A(f"v_add_f32 v40, v40, v{40+sl_}")
        A(f"v_cmp_gt_u32 vcc, {224 if isF else 160}, v1")
        A("s_and_saveexec_b64 s[66:67], vcc")
        A(f"ds_write_b32 v35, v40 offset:{K1_WS}")
        A("s_mov_b64 exec, s[66:67]")
    chunks = {}
    post = []
    if isF:
        A("s_mul_i32 s57, s50, 138240")
        A("s_mul_i32 s58, s48, 34560")
        A("s_add_u32 s57, s57, s58")
        A("s_add_u32 s57, s57, s64")
        A("s_mul_i32 s72, s48, 4480")
        A(f"s_add_u32 s72, s72, {K1F_SL}")
        for q in range(5):
            A(f"v_add_u32 v17, {64*q}, v0")
            divc(A, 18, 17, 28, 448)
            A("v_mul_u32_u24 v19, 28, v18")
            A("v_sub_u32 v19, v17, v19")
            A("v_mul_u32_u24 v18, 3456, v18")
            A("v_lshl_add_u32 v16, v19, 4, v18")
            A(f"s_add_u32 m0, s72, {1024*q}")
            if q == 4: A("s_mov_b64 exec, 0xffffff")
            else: A("s_nop 0")
            vm("buffer_load_dwordx4 v16, s[40:43], s57 offen lds", "sl")
            if q == 4: A("s_mov_b64 exec, -1")
        def ws1():
            divc(A, 7, 0, 28, 64)
            A("v_mul_u32_u24 v8, 28, v7")
            A("v_sub_u32 v8, v0, v8")
            A("v_min_u32 v7, 1, v7")
            A("v_mul_u32_u24 v9, 2240, v7")
            A("v_lshl_add_u32 v9, v8, 4, v9")
            A("v_add_u32 v9, s72, v9")
            vm.wait("sl")
            for r in range(5): A(f"ds_read_b128 v[{72+4*r}:{75+4*r}], v9 offset:{448*r}")
            A("s_waitcnt lgkmcnt(0)")
            for c in range(4):
                A(f"v_lshlrev_b32 v{108+2*c}, 16, v{72+c}")
                A(f"v_and_b32 v{109+2*c}, 0xffff0000, v{72+c}")
            for r in range(1, 5):
                for c in range(4):
                    A(f"v_lshlrev_b32 v116, 16, v{72+4*r+c}")
                    A(f"v_and_b32 v117, 0xffff0000, v{72+4*r+c}")
                    A(f"v_add_f32 v{108+2*c}, v{108+2*c}, v116")
                    A(f"v_add_f32 v{109+2*c}, v{109+2*c}, v117")
            A("s_mul_i32 s57, s48, 1792")
            A("v_lshlrev_b32 v9, 5, v0")
            A("v_add_u32 v9, s57, v9")
            A("v_cmp_gt_u32 vcc, 56, v0")
            A("s_and_saveexec_b64 s[66:67], vcc")
            A(f"ds_write_b128 v9, v[108:111] offset:{K1F_RED}")
            A(f"ds_write_b128 v9, v[112:115] offset:{K1F_RED+16}")
            A("s_mov_b64 exec, s[66:67]")
        def ws2():
            A("v_lshlrev_b32 v9, 2, v1")
            for r in range(8): A(f"ds_read_b32 v{108+r}, v9 offset:{K1F_RED+896*r}")
            A("s_waitcnt lgkmcnt(0)")
            for r in range(1, 8): A(f"v_add_f32 v108, v108, v{108+r}")
            A("v_cmp_gt_u32 vcc, 224, v1")
            A("s_and_saveexec_b64 s[66:67], vcc")
            A(f"ds_write_b32 v9, v108 offset:{K1_WS}")
            A("s_mov_b64 exec, s[66:67]")
        chunks = {0: [ws1], 1: [ws2]}
        def crep():
            Lq = A.label("cq")
            A("s_cmp_eq_u32 s52, 0")
            A(f"s_cbranch_scc1 {Lq}")
            srd(A, 68, 14, D * D * 2)
            sc = 80 if not STAMPS else 60
            srd(A, sc, 16, D * D * 2)
            for rd_ in range(2):
                R = 92 + 16 * rd_
                A("s_lshl_b32 s57, s50, 3")
                A("s_add_u32 s57, s57, s51")
                A("s_lshl_b32 s57, s57, 4")
                A("s_lshl_b32 s58, s53, 2")
                A("s_add_u32 s57, s57, s58")
                A(f"s_add_u32 s57, s57, {8*rd_}")
                A("v_add_u32 v10, s57, v5")
                divc(A, 11, 10, 40, 2048)
                A("v_mul_u32_u24 v12, 40, v11")
                A("v_sub_u32 v12, v10, v12")
                A("v_lshl_add_u32 v13, v11, 4, v6")
                A("v_mul_u32_u24 v13, 1280, v13")
                A("v_lshl_add_u32 v13, v12, 5, v13")
                A(f"buffer_load_dwordx4 v[{R}:{R+3}], v13, s[68:71], 0 offen")
                A(f"buffer_load_dwordx4 v[{R+4}:{R+7}], v13, s[68:71], 0 offen offset:16")
                A(f"buffer_load_dwordx4 v[{R+8}:{R+11}], v13, s[{sc}:{sc+3}], 0 offen")
                A(f"buffer_load_dwordx4 v[{R+12}:{R+15}], v13, s[{sc}:{sc+3}], 0 offen offset:16")
                divc(A, 14, 11, 5, 64)
                A("v_mul_u32_u24 v16, 5, v14")
                A("v_sub_u32 v16, v11, v16")
                A("v_mul_u32_u24 v14, 40, v14")
                A("v_add_u32 v14, v14, v12")
                A("v_mul_u32_u24 v14, 5120, v14")
                A("v_lshl_add_u32 v14, v16, 10, v14")
                A("v_lshl_add_u32 v14, v6, 4, v14")
                A("v_cmp_gt_u32 vcc, 1600, v10")
                A(f"v_cndmask_b32 v{17+rd_}, v15, v14, vcc")
            A("s_mov_b32 s57, 0x05040100")
            A("s_mov_b32 s58, 0x07060302")
            A(f"s_mov_b32 s65, {WS_CP}")
            A("s_waitcnt vmcnt(0)")
            for rd_ in range(2):
                R = 92 + 16 * rd_
                for c in range(8): A(f"v_xor_b32 v{R+8+c}, 0x80008000, v{R+8+c}")
                for g in range(4):
                    o = 40 + 16 * rd_ + 4 * g
                    A(f"v_perm_b32 v{o}, v{R+8+g}, v{R+g}, s57")
                    A(f"v_perm_b32 v{o+1}, v{R+8+g}, v{R+g}, s58")
                    A(f"v_perm_b32 v{o+2}, v{R+12+g}, v{R+4+g}, s57")
                    A(f"v_perm_b32 v{o+3}, v{R+12+g}, v{R+4+g}, s58")
                    A(f"buffer_store_dwordx4 v[{o}:{o+3}], v{17+rd_}, s[44:47], s65 offen offset:{256*g} sc1")
            A("s_waitcnt vmcnt(0)")
            A(f"{Lq}:")
            A("buffer_store_dwordx2 v[28:29], v27, s[44:47], s79 offen sc1")
        post = [lambda: A('s_barrier'), crep]
    else:
        def w2a():
            srd(A, 68, 26, D * DFF * 2)
            A("s_lshl_b32 s57, s50, 3")
            A("s_add_u32 s57, s57, s51")
            A("s_lshl_b32 s57, s57, 2")
            A("s_add_u32 s57, s57, s48")
            A("s_lshr_b32 s75, s57, 3")
            A("s_and_b32 s76, s57, 7")
            A("s_mul_i32 s58, s75, 40960")
            A("s_mul_i32 s57, s76, 160")
            A("s_add_u32 s58, s58, s57")
            A("s_mul_i32 s77, s48, 5120")
            A(f"s_add_u32 s77, s77, {K1Y_SCR}")
            for q in range(5):
                A(f"v_add_u32 v17, {64*q}, v0")
                divc(A, 18, 17, 10, 320)
                A("v_mul_u32_u24 v19, 10, v18")
                A("v_sub_u32 v19, v17, v19")
                A("v_mul_u32_u24 v18, 1280, v18")
                A("v_lshl_add_u32 v16, v19, 4, v18")
                A(f"s_add_u32 m0, s77, {1024*q}")
                A("s_nop 0")
                vm("buffer_load_dwordx4 v16, s[68:71], s58 offen lds", "w2")
        def w2b():
            A("v_lshrrev_b32 v17, 2, v6")
            A("v_lshl_add_u32 v17, v5, 2, v17")
            A("v_mul_u32_u24 v17, 160, v17")
            A("v_and_b32 v18, 3, v6")
            A("v_lshl_add_u32 v17, v18, 3, v17")
            A("v_add_u32 v17, s77, v17")
            vm.wait("w2")
            for m in range(5):
                for h in range(2):
                    A(f"ds_read_b64_tr_b16 v[{164+4*m+2*h}:{165+4*m+2*h}], v17 offset:{h*2560 + m*32}")
            A("s_mul_i32 s57, s76, 54")
            A("s_add_u32 s57, s57, s75")
            A("s_mul_i32 s57, s57, 5120")
            A(f"s_add_u32 s57, s57, {WS_W2P}")
            A("s_cmp_lt_u32 s75, 54")
            A(f"s_cselect_b32 s57, s57, {OOB}")
            A("v_lshlrev_b32 v18, 4, v0")
            A("v_add_u32 v19, 4096, v18")
            A("s_waitcnt lgkmcnt(0)")
            for m in range(5):
                vm(f"buffer_store_dwordx4 v[{164+4*m}:{167+4*m}], v18, s[44:47], s57 offen offset:{1024*m} sc1" if m < 4 else
                   f"buffer_store_dwordx4 v[{164+4*m}:{167+4*m}], v19, s[44:47], s57 offen sc1", "st2")
        def w2c():
            vm.wait("st2")
            vm("buffer_store_dwordx2 v[28:29], v27, s[44:47], s79 offen sc1", "fs")
        def lbk():
            Lq = A.label("lq")
            A("s_cmp_eq_u32 s52, 0")
            A(f"s_cbranch_scc1 {Lq}")
            A("v_min_u32 v8, 39, v0")
            A("s_mul_i32 s57, s53, 40")
            A("v_add_u32 v8, s57, v8")
            A("v_lshlrev_b32 v9, 3, v8")
            A(f"v_add_u32 v9, {K1_LE}, v9")
            A("v_mul_u32_u24 v10, 288, v8")
            A("s_mul_i32 s57, s51, 1280")
            A("v_lshlrev_b32 v11, 4, v8")
            A("v_add_u32 v11, s57, v11")
            A("s_mul_i32 s74, s50, 10240")
            A(f"s_add_u32 s74, s74, {WS_E}")
            A(f"ds_read_b64 v[72:73], v10 offset:{K1Y_T+128+8}")
            A(f"ds_read_b64 v[74:75], v10 offset:{K1Y_T+128+16}")
            A("s_barrier")
            Lp = A.label("lb"); Lx = A.label("lbx")
            A("ds_read_b64 v[64:65], v9")
            A("ds_read_b64 v[66:67], v9 offset:640")
            A("v_mov_b32 v82, v28")
            A("v_mov_b32 v83, v29")
            A("s_waitcnt lgkmcnt(0)")
            cmul_add(A, 80, 72, 64, 66)
            A("buffer_store_dwordx4 v[80:83], v11, s[44:47], s74 offen sc1")
            A("s_mov_b32 s75, 100000")
            A(f"{Lp}:")
            for i in range(15):
                A(f"s_sub_u32 s57, s50, {i+1}")
                A("s_mul_i32 s58, s57, 10240")
                A(f"s_add_u32 s58, s58, {WS_E}")
                A(f"s_cmp_gt_u32 s50, {i}")
                A(f"s_cselect_b32 s58, s58, {OOB}")
                A(f"buffer_load_dwordx4 v[{96+4*i}:{99+4*i}], v11, s[44:47], s58 offen sc1")
            A("s_waitcnt vmcnt(0)")
            A("s_mov_b64 vcc, 0")
            for i in range(15):
                A(f"v_cmp_ne_u64 s[70:71], v[{98+4*i}:{99+4*i}], v[28:29]")
                A(f"s_cmp_gt_u32 s50, {i}")
                A("s_cselect_b64 s[70:71], s[70:71], 0")
                A("s_or_b64 vcc, vcc, s[70:71]")
            A("s_cmp_eq_u64 vcc, 0")
            A(f"s_cbranch_scc1 {Lx}")
            A("s_sleep 1")
            A("s_sub_u32 s75, s75, 1")
            A("s_cmp_lg_u32 s75, 0")
            A(f"s_cbranch_scc1 {Lp}")
            A(f"{Lx}:")
            for i in range(13, -1, -1):
                cmul_add(A, 96 + 4 * i, 74, 96 + 4 * (i + 1), 96 + 4 * i)
            cmul_add(A, 84, 72, 96, 64)
            A("ds_write_b64 v9, v[96:97] offset:1280")
            A("ds_write_b64 v9, v[84:85] offset:1920")
            A("s_waitcnt lgkmcnt(0)")
            A("s_barrier")
            A(f"{Lq}:")
        chunks = {4: [w2a], 8: [w2b]}; post = [w2c, lbk]
    def n1():
        vm("global_load_dwordx2 v[28:29], v26, s[30:31] sc1", "nn")
    def n2():
        Lp = A.label("np"); Lx = A.label("npx"); Lc = A.label("npc")
        A("s_mov_b32 s58, 200000")
        vm.wait("nn")
        A(f"s_branch {Lc}")
        A(f"{Lp}:")
        A("s_sleep 1")
        A("global_load_dwordx2 v[28:29], v26, s[30:31] sc1")
        A("s_waitcnt vmcnt(0)")
        A(f"{Lc}:")
        A("v_readfirstlane_b32 s57, v28")
        A("s_cmp_lg_u32 s57, 0")
        A(f"s_cbranch_scc1 {Lx}")
        A("s_sub_u32 s58, s58, 1")
        A("s_cmp_lg_u32 s58, 0")
        A(f"s_cbranch_scc1 {Lp}")
        A(f"{Lx}:")
        A(f"ds_write_b64 v26, v[28:29] offset:{K1_NONCE}")
        A("s_lshl_b32 s57, s49, 7")
        A("s_lshl_b32 s58, s50, 3")
        A("s_add_u32 s57, s57, s58")
        A("s_add_u32 s57, s57, s51")
        A("s_lshl_b32 s57, s57, 5")
        A("s_lshl_b32 s58, s48, 3")
        A("s_add_u32 s57, s57, s58")
        A(f"s_add_u32 s79, s57, {WS_F1}")
        A("v_cmp_eq_u32 vcc, 0, v0")
        A("v_cndmask_b32 v27, v15, v26, vcc")
    sched = ((1, n1), (2, n2), (3, s5), (GI, g1), (GI + 1, g2))
    for k, f in sched:
        chunks.setdefault(k, []).append(f)
    vm.wait("d0")
    stamp(A, 1)
    A("s_barrier")
    for j in range(9):
        if j + 2 <= 9: dma(j + 2)
        for f in chunks.get(j, []): f()
        vm.wait(f"d{j+1}", "lgkmcnt(0)")
        A("s_barrier")
    stamp(A, 2)
    g3()
    A("s_waitcnt lgkmcnt(0)")
    stamp(A, 3)
    stamp(A, 4)
    A("s_barrier")
    for f in post: f()

def k1_side(A, isF):
    if isF:
        yield
    else:
        divc(A, 9, 1, 80, 256)
        A("v_mul_u32_u24 v10, 80, v9")
        A("v_sub_u32 v10, v1, v10")
        A("s_mul_i32 s57, s51, 80")
        A("v_add_u32 v11, s57, v10")
        A("v_lshlrev_b32 v11, 1, v11")
        A("global_load_ushort v92, v11, s[6:7]")
        A("global_load_ushort v93, v11, s[8:9]")
        A("global_load_ushort v94, v11, s[18:19]")
        yield
        A("s_waitcnt vmcnt(16)")
        for r in (92, 93, 94): A(f"v_lshlrev_b32 v{r}, 16, v{r}")
        A(f"v_mul_f32 v94, {hexf(LOG2E)}, v94")
        A("v_exp_f32 v94, v94")
        bf16r(A, 94)
        A("v_mul_f32 v95, v94, v92")
        A("v_mul_f32 v96, v94, v93")
        A(f"v_mul_f32 v95, {hexf(LOG2E)}, v95")
        A(f"v_mul_f32 v96, {hexf(INV2PI)}, v96")
        A("v_mul_u32_u24 v97, 288, v10")
        A("v_lshl_add_u32 v97, v9, 3, v97")
        A("v_cmp_gt_u32 vcc, 240, v1")
        A("s_and_saveexec_b64 s[66:67], vcc")
        for r in range(11):
            A(f"v_add_u32 v98, {3*r}, v9")
            A("v_lshlrev_b32 v99, 2, v98")
            A("v_lshlrev_b32 v100, 6, v98")
            A("v_subrev_u32 v100, 1024, v100")
            A("v_cmp_gt_u32 vcc, 16, v98")
            A("v_cndmask_b32 v99, v100, v99, vcc")
            A("v_cvt_f32_u32 v99, v99")
            A("v_mul_f32 v100, v99, v95")
            A("v_mul_f32 v101, v99, v96")
            A("v_exp_f32 v100, v100")
            A("v_fract_f32 v101, v101")
            A("v_cos_f32 v102, v101")
            A("v_sin_f32 v103, v101")
            A("v_mul_f32 v102, v100, v102")
            A("v_mul_f32 v103, v100, v103")
            A(f"ds_write_b64 v97, v[102:103] offset:{K1Y_T+24*r}")
        A("s_mov_b64 exec, s[66:67]")
        A("v_exp_f32 v100, v95")
        A("v_fract_f32 v101, v96")
        A("v_cos_f32 v102, v101")
        A("v_sin_f32 v103, v101")
        A("v_mul_f32 v102, v100, v102")
        A("v_mul_f32 v103, v100, v103")
        A("v_add_f32 v98, -1.0, v102")
        A("v_mul_f32 v99, v92, v92")
        A("v_fmac_f32 v99, v93, v93")
        A("v_rcp_f32 v100, v99")
        A("v_fma_f32 v101, -v99, v100, 1.0")
        A("v_fma_f32 v100, v101, v100, v100")
        A("v_add_f32 v100, v100, v100")
        A("v_mul_f32 v104, v98, v92")
        A("v_fmac_f32 v104, v103, v93")
        A("v_mul_f32 v105, v103, v92")
        A("v_fma_f32 v105, -v98, v93, v105")
        A("v_mul_f32 v104, v104, v100")
        A("v_mul_f32 v105, v105, v100")
        A("v_cmp_gt_u32 vcc, 80, v1")
        A("s_and_saveexec_b64 s[66:67], vcc")
        A(f"ds_write_b128 v97, v[102:105] offset:{K1Y_T+272}")
        A("s_mov_b64 exec, s[66:67]")
    A("s_waitcnt lgkmcnt(0)")
    yield

def k1_prefetch_setup(A, isF):
    A("s_and_b32 s57, s2, 3")
    A("s_lshl_b32 s57, s57, 9")
    A("s_lshl_b32 s59, s35, 4")
    A("s_add_u32 s57, s57, s59")
    A("s_mul_i32 s57, s57, 1280")
    A("v_lshrrev_b32 v10, 2, v0")
    A("v_and_b32 v11, 3, v0")
    A("v_mul_u32_u24 v10, 1280, v10")
    A("v_lshl_add_u32 v10, v11, 7, v10")
    A("s_mul_i32 s58, s53, 384")
    A("s_add_u32 s66, s57, s58")
    A("s_add_u32 s66, s66, 384")
    if isF:
        srd(A, 40, 24, D * DFF * 2)
        A("v_min_u32 v11, 53, v0")
        A("v_lshlrev_b32 v11, 7, v11")
        A("s_mul_i32 s67, s35, 6912")
        A("s_add_u32 s58, s48, 3")
        A(f"s_mul_i32 s58, s58, {64*3456}")
        A("s_add_u32 s67, s67, s58")
        A(f"s_add_u32 s68, s67, {4*64*3456}")
    else:
        A("s_cmp_lt_u32 s48, 2")
        A("s_cselect_b32 s64, s10, s12")
        A("s_cselect_b32 s65, s11, s13")
        srd(A, 40, 64, D * D * 2)
        divc(A, 12, 0, 20, 64)
        A("v_mul_u32_u24 v13, 20, v12")
        A("v_sub_u32 v13, v0, v13")
        A("v_min_u32 v12, 2, v12")
        A("v_mul_u32_u24 v13, 1280, v13")
        A("v_lshl_add_u32 v11, v12, 7, v13")
        A("s_mul_i32 s67, s35, 25600")
        A("s_mul_i32 s58, s53, 384")
        A("s_add_u32 s68, s67, 896")
        A("s_add_u32 s67, s67, s58")
        A("s_add_u32 s67, s67, 384")
def k1_prefetch(A, isF, batch):
    if "nopf" in DBG: return
    if batch == 0:
        A("buffer_load_dword v12, v11, s[40:43], s67 offen")
        A("buffer_load_dword v13, v10, s[36:39], s66 offen")
    else:
        A("buffer_load_dword v12, v11, s[40:43], s68 offen")

def k1_compute(A, isF):
    ACC = 128; FRAG = 32
    MT = 7 if isF else 5; NT = 4
    STG = K1F_STAGE if isF else K1Y_STAGE
    BUF = K1F_BUF if isF else K1Y_BUF
    ASZ = 28672 if isF else 20480
    if TLB:
        srd(A, 68, 28, T * D * 4)
        A("v_lshlrev_b32 v7, 19, v0")
        A("v_lshlrev_b32 v8, 17, v0")
        Lt = A.label("tlb")
        A("s_cmp_lg_u32 s48, 3")
        A(f"s_cbranch_scc1 {Lt}")
        A("buffer_load_dword v124, v7, s[44:47], 0 offen")
        A("buffer_load_dword v125, v8, s[68:71], 0 offen")
        A(f"{Lt}:")
    side = k1_side(A, isF) if "noside" not in DBG else iter([0, 0])
    next(side)
    AB = 232; BB = 244
    if isF:
        A("v_lshrrev_b32 v17, 2, v6")
        A("v_lshl_add_u32 v17, v5, 3, v17")
        A("v_mul_u32_u24 v17, 448, v17")
        A("v_and_b32 v18, 3, v6")
        A("v_lshl_add_u32 v17, v18, 3, v17")
        A("s_mul_i32 s57, s52, 224")
        A(f"s_add_u32 s57, s57, {BUF}")
        A("v_add_u32 v17, s57, v17")
        A("v_and_b32 v18, 1, v5")
        A("v_lshlrev_b32 v18, 5, v18")
        A("v_add_u32 v19, v17, v18")
        A("v_sub_u32 v17, v17, v18")
        A("s_cmp_eq_u32 s52, 0")
        A("s_cselect_b64 vcc, -1, 0")
        AB = 240; BB = 246
        A(f"v_cndmask_b32 v{AB}, v17, v19, vcc")
        A(f"v_cndmask_b32 v{AB+1}, v19, v17, vcc")
    else:
        A("v_and_b32 v17, 1, v6")
        A("v_lshrrev_b32 v18, 1, v6")
        A("v_lshl_add_u32 v19, v17, 3, v18")
        A("v_xor_b32 v17, v17, v18")
        A("v_xor_b32 v17, v17, v5")
        A("v_lshlrev_b32 v19, 7, v19")
        A("v_lshl_add_u32 v19, v17, 4, v19")
        A("s_mul_i32 s57, s52, 10240")
        A(f"s_add_u32 s57, s57, {BUF}")
        AB = 240; BB = 246
        A(f"v_add_u32 v{AB}, s57, v19")
        A(f"v_xor_b32 v{AB+1}, 64, v{AB}")
    A("v_and_b32 v18, 7, v0")
    A("v_xor_b32 v18, v18, v5")
    A("v_lshlrev_b32 v17, 7, v6")
    A("s_lshl_b32 s57, s53, 13")
    A(f"s_add_u32 s57, s57, {ASZ+BUF}")
    A("v_add_u32 v17, s57, v17")
    A(f"v_lshl_add_u32 v{BB}, v18, 4, v17")
    A(f"v_xor_b32 v{BB+1}, 64, v{BB}")
    for b in (1, 2):
        for i in range(2):
            A(f"v_add_u32 v{AB+2*b+i}, {b*STG}, v{AB+i}")
            A(f"v_add_u32 v{BB+2*b+i}, {b*STG}, v{BB+i}")
    for r in range(MT * NT * 4):
        A(f"v_mov_b32 v{ACC+r}, 0")
    fA = lambda st, m: FRAG + st * (MT + NT) * 4 + m * 4
    fB = lambda st, n: FRAG + st * (MT + NT) * 4 + MT * 4 + n * 4
    accr = lambda m, n: ACC + (m * NT + n) * 4
    def reads(stage, kk):
        b = stage % 3; st = kk
        out = []
        for n in range(NT):
            out.append(f"ds_read_b128 {vr(fB(st,n),4)}, v{BB+2*b+kk} offset:{n*2048}")
        for m in range(MT):
            if isF:
                for h in range(2):
                    out.append(f"ds_read_b64_tr_b16 {vr(fA(st,m)+2*h,2)}, v{AB+2*b+(m&1)} offset:{(32*kk+4*h)*448 + m*32}")
            else:
                out.append(f"ds_read_b128 {vr(fA(st,m),4)}, v{AB+2*b+kk} offset:{m*2048}")
        return out
    def mfmas(st):
        return [f"v_mfma_f32_16x16x32_bf16 {vr(accr(m,n),4)}, {vr(fA(st,m),4)}, {vr(fB(st,n),4)}, {vr(accr(m,n),4)}"
                for m in range(MT) for n in range(NT)]
    vm = VM(A)
    A(f"v_mov_b32 v15, {OOB}")
    A("v_mov_b32 v26, 0")
    A("v_lshlrev_b32 v2, 2, v0")
    Lsk = A.label("sk")
    if isF:
        A("v_lshlrev_b32 v13, 4, v0")
        A("v_cmp_gt_u32 vcc, 56, v1")
        A("v_cndmask_b32 v12, v15, v13, vcc")
        A("s_mul_i32 s57, s50, 1792")
        A("s_mul_i32 s58, s51, 224")
        A("s_add_u32 s57, s57, s58")
        A("s_lshl_b32 s57, s57, 2")
        A(f"s_add_u32 s62, s57, {WS_WSP}")
        A("s_lshl_b32 s59, s51, 4")
        A("s_lshl_b32 s58, s50, 7")
        A("s_add_u32 s59, s59, s58")
        A("s_lshl_b32 s58, s48, 2")
        A("s_add_u32 s63, s59, s58")
        A("s_mul_i32 s59, s63, 1280")
        A("s_barrier")
        for r in range(4):
            for i in range(5): A(f"buffer_load_dword v{80+5*r+i}, v2, s[36:39], s59 offen offset:{256*i}")
            A("s_add_u32 s59, s59, 1280")
        A("global_load_dwordx2 v[28:29], v26, s[30:31] sc1")
        A("s_waitcnt vmcnt(11)")
        stats_compute(A, vm, 80)
        A("s_add_u32 s63, s63, 2")
        A("s_waitcnt vmcnt(2)")
        stats_compute(A, vm, 90)
    else:
        A("s_cmp_lt_u32 s48, 2")
        A("s_cselect_b32 s64, s10, s12")
        A("s_cselect_b32 s65, s11, s13")
        srd(A, 40, 64, D * D * 2)
        A("s_mul_i32 s57, s51, 80")
        A("s_mul_i32 s58, s50, 5")
        A("s_add_u32 s57, s57, s58")
        A("s_mul_i32 s58, s53, 3")
        A("s_add_u32 s72, s57, s58")
        A("s_barrier")
        A("s_mul_i32 s57, s72, 1280")
        for r in range(3):
            for i in range(5): A(f"buffer_load_dword v{72+5*r+i}, v2, s[40:43], s57 offen offset:{256*i}")
            A("s_add_u32 s57, s57, 1280")
        A("global_load_dwordx2 v[28:29], v26, s[30:31] sc1")
    next(side)
    if not isF:
        A("s_waitcnt vmcnt(0)")
        A("s_mov_b32 s57, 0x3f803f80")
        for r in range(3): A(f"v_mov_b32 v{108+r}, 0")
        for i in range(5):
            for r in range(3): A(f"v_dot2_f32_bf16 v{108+r}, v{72+5*r+i}, s57, v{108+r}")
        A("s_nop 3")
        wave_sum(A, [108, 109, 110])
        A("v_cmp_eq_u32 vcc, 63, v0")
        A("v_cndmask_b32 v12, v15, v26, vcc")
        A("s_lshl_b32 s57, s72, 1")
        A("s_add_u32 s57, s57, s52")
        A("s_lshl_b32 s57, s57, 2")
        A(f"s_add_u32 s57, s57, {WS_WSYO}")
        A("buffer_store_dword v108, v12, s[44:47], s57 offen sc1")
        A("buffer_store_dword v109, v12, s[44:47], s57 offen offset:8 sc1")
        A("s_cmp_eq_u32 s53, 0")
        A(f"s_cselect_b32 s57, s57, {OOB}")
        A("buffer_store_dword v110, v12, s[44:47], s57 offen offset:16 sc1")
    A("v_cmp_eq_u32 vcc, 0, v0")
    A("v_cndmask_b32 v16, v15, v26, vcc")
    A("s_lshl_b32 s57, s49, 7")
    A("s_lshl_b32 s58, s50, 3")
    A("s_add_u32 s57, s57, s58")
    A("s_add_u32 s57, s57, s51")
    A("s_lshl_b32 s57, s57, 7")
    A("s_lshl_b32 s58, s48, 3")
    A("s_add_u32 s57, s57, s58")
    A(f"s_add_u32 s76, s57, {WS_F3}")
    stamp(A, 1)
    A("s_barrier")
    stamp(A, 2)
    for r in reads(0, 0): A(r)
    PRE = 3
    for j in range(10):
        A("s_waitcnt lgkmcnt(0)")
        mf = mfmas(0); rd = reads(j, 1)
        for i, m in enumerate(mf):
            A(m)
            if i < len(rd): A(rd[i])
        A("s_waitcnt lgkmcnt(0)")
        mf = mfmas(1)
        if j < 9:
            rd = reads(j + 1, 0)
            for m in mf[:PRE]: A(m)
            if j == 2 and isF:
                A(f"ds_read_b128 v[120:123], v13 offset:{K1_WS}")
                A("s_waitcnt lgkmcnt(0)")
                A("buffer_store_dwordx4 v[120:123], v12, s[44:47], s62 offen sc1")
            if j == 4 and isF:
                A("s_waitcnt vmcnt(0)")
                A("buffer_store_dwordx2 v[28:29], v16, s[44:47], s76 offen sc1")
            if j == 1:
                A("s_waitcnt vmcnt(0)")
                Lp = A.label("np"); Lx = A.label("npx")
                A("s_mov_b32 s58, 200000")
                A(f"{Lp}:")
                A("v_readfirstlane_b32 s57, v28")
                A("s_cmp_lg_u32 s57, 0")
                A(f"s_cbranch_scc1 {Lx}")
                A("s_sleep 1")
                A("global_load_dwordx2 v[28:29], v26, s[30:31] sc1")
                A("s_waitcnt vmcnt(0)")
                A("s_sub_u32 s58, s58, 1")
                A("s_cmp_lg_u32 s58, 0")
                A(f"s_cbranch_scc1 {Lp}")
                A(f"{Lx}:")
                A(f"buffer_store_dwordx2 v[28:29], v16, s[44:47], s76 offen offset:{32 if isF else 0} sc1")
            A("s_barrier")
            for i, m in enumerate(mf[PRE:]):
                if i < len(rd): A(rd[i])
                A(m)
        else:
            for m in mf: A(m)
    stamp(A, 3)
    A("s_waitcnt vmcnt(0)")
    A("s_barrier")
    stamp(A, 4)
    if isF: k1F_epilogue(A, ACC)
    else: k1Y_epilogue(A, ACC)

def frag_store_plan(ntiles, parity):
    plan = []
    t = 0
    if parity == 1:
        plan.append(("single", [0], 0, 1)); t = 1
    while t + 1 < ntiles:
        plan.append(("pair", [t, t + 1], (t + parity) // 2, 0)); t += 2
    if t < ntiles:
        plan.append(("single", [t], (t + parity) // 2, 0))
    return plan

def k1F_epilogue(A, ACC):
    A("s_lshl_b32 s57, s53, 10")
    A("v_lshlrev_b32 v17, 6, v6")
    A("v_add_u32 v17, s57, v17")
    for n in range(4):
        A(f"ds_read_b64 v[{32+2*n}:{33+2*n}], v17 offset:{K1_STATS+16*n}")
    A("s_mul_i32 s57, s52, 448")
    A("v_lshlrev_b32 v18, 4, v5")
    A("v_add_u32 v18, s57, v18")
    for m in range(7):
        A(f"ds_read_b128 v[{40+4*m}:{43+4*m}], v18 offset:{K1_WS+64*m}")
    A("s_lshr_b32 s57, s54, 1")
    A("s_mul_i32 s58, s50, 54")
    A("s_add_u32 s57, s57, s58")
    A("s_lshl_b32 s57, s57, 3")
    A("s_lshl_b32 s58, s53, 2")
    A("s_add_u32 s57, s57, s58")
    A("s_lshl_b32 s57, s57, 10")
    A(f"s_add_u32 s65, s57, {WS_HF}")
    A("v_lshlrev_b32 v17, 4, v0")
    A("s_lshl_b32 s57, s53, 11")
    A(f"s_add_u32 s57, s57, {K1_LE}")
    A("v_lshlrev_b32 v19, 3, v0")
    A("v_add_u32 v19, s57, v19")
    A("s_waitcnt lgkmcnt(0)")
    def conv(m, n, dst):
        a = ACC + (m * 4 + n) * 4
        w = 40 + 4 * m; st = 32 + 2 * n
        for hh in range(2):
            A(f"v_pk_fma_f32 {vr(a+2*hh,2)}, {vr(w+2*hh,2)}, {vr(st,2)}, {vr(a+2*hh,2)} op_sel:[0,0,0] op_sel_hi:[1,0,1] neg_lo:[1,0,0] neg_hi:[1,0,0]")
        for hh in range(2):
            A(f"v_pk_mul_f32 {vr(a+2*hh,2)}, {vr(a+2*hh,2)}, {vr(st,2)} op_sel:[0,1] op_sel_hi:[1,1]")
        for hh in range(2):
            A(f"v_cvt_pk_bf16_f32 v{dst+hh}, v{a+2*hh}, v{a+2*hh+1}")
        for hh in range(2):
            A(f"v_pk_max_i16 v{dst+hh}, v{dst+hh}, 0")
    L1 = A.label("ep1"); L2 = A.label("epx")
    A("s_cmp_lg_u32 s52, 0")
    A(f"s_cbranch_scc1 {L1}")
    for n in range(4):
        conv(6, n, 72 + 2 * n)
        A(f"ds_write_b64 v19, v[{72+2*n}:{73+2*n}] offset:{512*n}")
    A("s_waitcnt lgkmcnt(0)")
    A("s_barrier")
    cnt = 0
    for p in range(3):
        A(f"s_add_u32 s57, s65, {p*8192}")
        for n in range(4):
            t = 80 + 4 * (cnt % 4); cnt += 1
            conv(2 * p, n, t); conv(2 * p + 1, n, t + 2)
            A(f"buffer_store_dwordx4 v[{t}:{t+3}], v17, s[44:47], s57 offen offset:{1024*n} sc1")
    A(f"s_branch {L2}")
    A(f"{L1}:")
    for n in range(4): conv(0, n, 98 + 4 * n)
    A("s_barrier")
    for n in range(4): A(f"ds_read_b64 v[{96+4*n}:{97+4*n}], v19 offset:{512*n}")
    for p in range(3):
        A(f"s_add_u32 s57, s65, {(4+p)*8192}")
        if p == 2:
            A("s_cmp_lt_u32 s51, 6")
            A(f"s_cselect_b32 s57, s57, {OOB}")
        for n in range(4):
            t = 80 + 4 * (cnt % 4); cnt += 1
            conv(2 * p + 1, n, t); conv(2 * p + 2, n, t + 2)
            A(f"buffer_store_dwordx4 v[{t}:{t+3}], v17, s[44:47], s57 offen offset:{1024*n} sc1")
        if p == 0:
            A(f"s_add_u32 s57, s65, {3*8192}")
            A("s_waitcnt lgkmcnt(0)")
            for n in range(4):
                A(f"buffer_store_dwordx4 v[{96+4*n}:{99+4*n}], v17, s[44:47], s57 offen offset:{1024*n} sc1")
    A(f"{L2}:")
    for i in (5, 6, 7): stamp(A, i)

def k1Y_epilogue(A, ACC):
    ST = 32; WSR = 40; P = 208; TB = 60
    A("s_lshl_b32 s57, s53, 10")
    A("v_lshlrev_b32 v17, 6, v6")
    A("v_add_u32 v17, s57, v17")
    for n in range(4):
        A(f"ds_read_b64 v[{ST+2*n}:{ST+2*n+1}], v17 offset:{K1_STATS+16*n}")
    A("v_mov_b32 v17, 0")
    A(f"ds_read_b64 v[30:31], v17 offset:{K1_NONCE}")
    A("s_mul_i32 s57, s52, 320")
    A("v_lshlrev_b32 v18, 4, v5")
    A("v_add_u32 v18, s57, v18")
    for m in range(5):
        A(f"ds_read_b128 v[{WSR+4*m}:{WSR+4*m+3}], v18 offset:{K1_WS+64*m}")
    A("s_mul_i32 s57, s52, 11520")
    A("v_mul_u32_u24 v19, 576, v5")
    A("v_add_u32 v19, s57, v19")
    A("v_lshl_add_u32 v20, v6, 3, v19")
    A("s_mul_i32 s57, s53, 640")
    A("s_mul_i32 s58, s52, 320")
    A("s_add_u32 s57, s57, s58")
    A(f"s_add_u32 s57, s57, {K1_LE}")
    A("v_lshlrev_b32 v21, 4, v5")
    A("v_add_u32 v21, s57, v21")
    A("v_lshlrev_b32 v22, 4, v0")
    A(f"v_add_u32 v22, {K1_LE+2560}, v22")
    A("v_cmp_eq_u32 vcc, 15, v6")
    A("v_cndmask_b32 v22, v22, v21, vcc")
    A("v_sub_u32 v23, 15, v6")
    A("v_lshl_add_u32 v23, v23, 3, v19")
    ta = lambda m, q: 60 + 8 * m + 4 * q
    for m in range(5):
        for q in range(2):
            o = K1Y_T + (8 * m + q) * 288
            A(f"ds_read_b64 v[{ta(m,q)}:{ta(m,q)+1}], v19 offset:{o+272}")
            A(f"ds_read_b64 v[{ta(m,q)+2}:{ta(m,q)+3}], v23 offset:{o}")
        if m == 1: A("s_waitcnt lgkmcnt(8)")
    for m in range(5):
        for n in range(4):
            for q in range(2):
                u = ACC + (m * 4 + n) * 4 + 2 * q; w = WSR + 4 * m + 2 * q; st = ST + 2 * n
                A(f"v_pk_fma_f32 {vr(u,2)}, {vr(w,2)}, {vr(st,2)}, {vr(u,2)} op_sel:[0,0,0] op_sel_hi:[1,0,1] neg_lo:[1,0,0] neg_hi:[1,0,0]")
            for q in range(2):
                u = ACC + (m * 4 + n) * 4 + 2 * q; st = ST + 2 * n
                A(f"v_pk_mul_f32 {vr(u,2)}, {vr(u,2)}, {vr(st,2)} op_sel:[0,1] op_sel_hi:[1,1]")
    A("s_waitcnt lgkmcnt(0)")
    Z = 100
    for n in range(1, 4):
        for m in range(5):
            for q in range(2):
                e = P + 4 * m + 2 * q; z = Z + 4 * m + 2 * q
                prev = (ACC + (m * 4) * 4 + 2 * q) if n == 1 else (e if n == 2 else z)
                dst = e if n in (1, 3) else z
                cmul_add(A, dst, ta(m, q), prev, ACC + (m * 4 + n) * 4 + 2 * q)
    for m in range(5):
        for q in range(2):
            cmul(A, Z + 4 * m + 2 * q, ta(m, q) + 2, P + 4 * m + 2 * q)
    for k in (8, 4, 2, 1):
        for r in range(20):
            A(f"v_add_f32_dpp v{Z+r}, v{Z+r}, v{Z+r} row_ror:{k} row_mask:0xf bank_mask:0xf")
    for m in range(5):
        A(f"ds_write_b128 v22, v[{Z+4*m}:{Z+4*m+3}] offset:{64*m}")
    A("s_waitcnt lgkmcnt(0)")
    stamp(A, 5)
    A("s_barrier")
    tbb = lambda m, q: (100 if (m & 1) == 0 else 228) + 12 * q
    def load_tabB(m):
        for q in range(2):
            o = K1Y_T + (8 * m + q) * 288; b = tbb(m, q)
            A(f"ds_read_b64 v[{b}:{b+1}], v19 offset:{o+280}")
            A(f"ds_read_b64 v[{b+2}:{b+3}], v19 offset:{o+8}")
            A(f"ds_read_b64 v[{b+4}:{b+5}], v19 offset:{o+16}")
            A(f"ds_read_b64 v[{b+6}:{b+7}], v19 offset:{o+32}")
            A(f"ds_read_b64 v[{b+8}:{b+9}], v19 offset:{o+64}")
            A(f"ds_read_b64 v[{b+10}:{b+11}], v20 offset:{o}")
    load_tabB(0)
    A("s_mul_i32 s57, s51, 5")
    A("s_lshl_b32 s58, s52, 1")
    A("s_add_u32 s57, s57, s58")
    A("s_mul_i32 s58, s50, 40")
    A("s_add_u32 s57, s57, s58")
    A("s_lshl_b32 s57, s57, 3")
    A("s_lshl_b32 s58, s53, 2")
    A("s_add_u32 s57, s57, s58")
    A("s_lshl_b32 s57, s57, 10")
    A(f"s_add_u32 s65, s57, {WS_H1}")
    A("v_lshlrev_b32 v27, 4, v0")
    TMP = 124
    for m in range(5):
        A("s_waitcnt lgkmcnt(0)")
        if m < 4: load_tabB(m + 1)
        for ki, k in enumerate((1, 2, 4, 8)):
            for q in range(2):
                e = P + 4 * m + 2 * q; t0 = TMP + 2 * q
                A(f"v_mov_b32_dpp v{t0}, v{e} row_shr:{k} row_mask:0xf bank_mask:0xf bound_ctrl:0")
                A(f"v_mov_b32_dpp v{t0+1}, v{e+1} row_shr:{k} row_mask:0xf bank_mask:0xf bound_ctrl:0")
            for q in range(2):
                e = P + 4 * m + 2 * q; t0 = TMP + 2 * q
                cmul_add(A, e, tbb(m, q) + 2 + 2 * ki, t0, e)
        for q in range(2):
            e = P + 4 * m + 2 * q; t0 = TMP + 2 * q
            A(f"v_mov_b32_dpp v{t0}, v{e} row_shr:1 row_mask:0xf bank_mask:0xf bound_ctrl:0")
            A(f"v_mov_b32_dpp v{t0+1}, v{e+1} row_shr:1 row_mask:0xf bank_mask:0xf bound_ctrl:0")
        for q in range(2):
            cmul(A, P + 4 * m + 2 * q, tbb(m, q), TMP + 2 * q)
            cmul(A, ta(m, q) + 2, tbb(m, q), tbb(m, q) + 10)
        for n in range(4):
            for q in range(2):
                u = ACC + (m * 4 + n) * 4 + 2 * q; t0 = TMP + 2 * q
                A(f"v_pk_mul_f32 {vr(t0,2)}, {vr(tbb(m,q),2)}, {vr(u,2)} op_sel:[0,0] op_sel_hi:[0,1]")
                A(f"v_pk_fma_f32 {vr(u,2)}, {vr(tbb(m,q),2)}, {vr(u,2)}, {vr(t0,2)} op_sel:[1,1,0] op_sel_hi:[1,0,1] neg_lo:[1,0,0]")
    A("s_waitcnt lgkmcnt(0)")
    A("s_barrier")
    stamp(A, 6)
    for m in range(5):
        A(f"ds_read_b128 v[{100+4*m}:{103+4*m}], v21 offset:{1280+64*m}")
    A("s_waitcnt lgkmcnt(0)")
    for m in range(5):
        for q in range(2):
            cmul_add(A, P + 4 * m + 2 * q, ta(m, q) + 2, 100 + 4 * m + 2 * q, P + 4 * m + 2 * q)
    for n in range(4):
        for m in range(5):
            for q in range(2):
                u = ACC + (m * 4 + n) * 4 + 2 * q
                prev = (P + 4 * m + 2 * q) if n == 0 else u - 4
                cmul_add(A, u, ta(m, q), prev, u)
    stamp(A, 7)
    L1 = A.label("ey1"); L2 = A.label("eyx")
    A("s_cmp_lg_u32 s52, 0")
    A(f"s_cbranch_scc1 {L1}")
    for parity in (0, 1):
        if parity == 1: A(f"{L1}:")
        cnt = 0
        for kind, tl, ks, half in frag_store_plan(5, parity):
            A(f"s_add_u32 s57, s65, {ks*8192}")
            for n in range(4):
                t = 32 + 4 * (cnt % 8); cnt += 1
                for x, m in enumerate(tl):
                    u = ACC + (m * 4 + n) * 4
                    A(f"v_cvt_pk_bf16_f32 v{t+2*x}, v{u}, v{u+1}")
                    A(f"v_cvt_pk_bf16_f32 v{t+2*x+1}, v{u+2}, v{u+3}")
                if kind == "pair":
                    A(f"buffer_store_dwordx4 v[{t}:{t+3}], v27, s[44:47], s57 offen offset:{1024*n} sc1")
                else:
                    if "nosingle" not in DBG: A(f"buffer_store_dwordx2 v[{t}:{t+1}], v27, s[44:47], s57 offen offset:{1024*n + 8*half} sc1")
        if parity == 0: A(f"s_branch {L2}")
    A(f"{L2}:")

K2_NR = 7
K2_R0 = 26112
K2_BOFF = K2_R0 + K2_NR * 10240
K2_NST = 47
NSF = 27

def p2_ids(A):
    A("s_lshl_b32 s57, s49, 7")
    A("s_lshl_b32 s58, s50, 3")
    A("s_add_u32 s57, s57, s58")
    A("s_add_u32 s57, s57, s51")
    A("s_lshl_b32 s57, s57, 7")
    A("s_lshl_b32 s58, s48, 3")
    A("s_add_u32 s57, s57, s58")
    A(f"s_add_u32 s77, s57, {WS_F2}")
    A("s_mov_b32 s78, s49")
    A("s_and_b32 s57, s2, 3")
    A("s_bfe_u32 s58, s2, 0x10002")
    A("s_lshr_b32 s59, s35, 2")
    A("s_lshl_b32 s50, s57, 2")
    A("s_lshr_b32 s57, s59, 1")
    A("s_add_u32 s50, s50, s57")
    A("s_and_b32 s49, s59, 1")
    A("s_lshl_b32 s51, s58, 2")
    A("s_and_b32 s57, s35, 3")
    A("s_add_u32 s51, s51, s57")
    A("v_lshlrev_b32 v10, 4, v0")

def spin_flags(A, loads, regs, vm=None, iters=400000, first_wait=None):
    Lp = A.label("sp"); Lx = A.label("spx")
    A(f"s_mov_b32 s70, {iters}")
    Lc = A.label("spc")
    if first_wait:
        first_wait()
        A(f"s_branch {Lc}")
    A(f"{Lp}:")
    for l in loads: A(l)
    A("s_waitcnt vmcnt(0)")
    A(f"{Lc}:")
    for i, r in enumerate(regs):
        A(f"v_cmp_ne_u64 {'vcc' if i == 0 else 's[72:73]'}, v[{r}:{r+1}], v[28:29]")
        if i: A("s_or_b64 vcc, vcc, s[72:73]")
    A("s_cmp_eq_u64 vcc, 0")
    A(f"s_cbranch_scc1 {Lx}")
    A("s_sleep 1")
    A("s_sub_u32 s70, s70, 1")
    A("s_cmp_lg_u32 s70, 0")
    A(f"s_cbranch_scc1 {Lp}")
    A(f"{Lx}:")
    if vm and not first_wait: vm.ops = []

def p2_loaders(A):
    stamp(A, 0)
    p2_ids(A)
    A("s_mul_i32 s57, s53, 5120")
    A(f"s_mul_i32 s62, s51, {20*10240}")
    A("s_add_u32 s62, s62, s57")
    A(f"s_add_u32 s62, s62, {WS_CP}")
    A(f"s_mul_i32 s63, s51, {27*10240}")
    A("s_add_u32 s63, s63, s57")
    A(f"s_add_u32 s63, s63, {WS_W2P}")
    A(f"s_add_u32 s57, s57, {K2_R0}")
    A("s_lshl_b32 s58, s53, 13")
    A("s_lshl_b32 s59, s49, 12")
    A("s_add_u32 s58, s58, s59")
    A(f"s_mul_i32 s64, s50, {40*8192}")
    A("s_add_u32 s64, s64, s58")
    A(f"s_add_u32 s64, s64, {WS_H1}")
    A(f"s_mul_i32 s66, s50, {54*8192}")
    A("s_add_u32 s66, s66, s58")
    A(f"s_add_u32 s66, s66, {WS_HF}")
    A("s_lshl_b32 s59, s53, 12")
    A(f"s_add_u32 s59, s59, {K2_BOFF}")
    A("s_cmp_lg_u32 s52, 0")
    A("s_cselect_b32 s62, s64, s62")
    A("s_cselect_b32 s63, s66, s63")
    A("s_cselect_b32 s58, s59, s57")
    A("s_cbranch_scc0 p2_lA")
    p2_loader(A, True)
    stamps_flush(A, 6, 1)
    A("s_branch k1_end")
    A("p2_lA:")
    p2_loader(A, False)
    stamps_flush(A, 6, 1)

def p2_loader(A, isB):
    vm = VM(A)
    nst = K2_NST
    nI = 4 if isB else 5
    sstr = 16384 if isB else 10240
    lstr = 8192 if isB else 10240
    if not isB:
        A("v_lshlrev_b32 v30, 4, v0")
        A(f"v_add_u32 v30, {WS_F1}, v30")
        wl = lambda o: [f"buffer_load_dwordx4 v[{32+4*k}:{35+4*k}], v30, s[44:47], 0 offen offset:{o + 1024*k} sc1" if o + 1024*k < 4096 else
                        f"buffer_load_dwordx4 v[{32+4*k}:{35+4*k}], v31, s[44:47], 0 offen offset:{o + 1024*k - 4096} sc1" for k in range(4)]
        A("v_add_u32 v31, 4096, v30")
    else:
        A("v_bfe_u32 v30, v0, 2, 3")
        A("v_and_b32 v31, 3, v0")
        A("v_lshlrev_b32 v30, 7, v30")
        A("v_lshl_add_u32 v30, v31, 3, v30")
        A("s_lshl_b32 s64, s50, 10")
        A(f"s_add_u32 s64, s64, {WS_F2}")
        A(f"s_add_u32 s66, s64, {128*128}")
        spin_flags(A, ["buffer_load_dwordx2 v[32:33], v30, s[44:47], s66 offen sc1"], [32])
    def dma(st):
        L2 = ["buffer_load_dwordx2 v[32:33], v30, s[44:47], s64 offen sc1"] if isB else wl(4096)
        R2 = [32] if isB else [32 + 2 * k for k in range(8)]
        if st == NSF - 3:
            for l in L2: vm(l, "f2")
        if st == NSF:
            spin_flags(A, L2, R2, vm, first_wait=lambda: vm.wait("f2"))
        bo = (st % K2_NR) * lstr
        src, so = (63, st * sstr) if st < NSF else (62, (st - NSF) * sstr)
        for q in range(nI):
            A(f"s_add_u32 m0, s58, {bo + 1024*q}")
            A(f"s_add_u32 s65, s{src}, {so + 1024*q}")
            vm("buffer_load_dwordx4 v10, s[44:47], s65 offen sc1 lds", f"d{st}")
    stamp(A, 1)
    n0 = 3 if isB else K2_NR
    if isB:
        for st in range(n0): dma(st)
    else:
        Lb = A.label("nox"); Lc = A.label("late"); Ld = A.label("done")
        A("s_cmp_lg_u32 s78, 0")
        A(f"s_cbranch_scc1 {Lb}")
        A("s_barrier")
        spin_flags(A, wl(0), [32 + 2 * k for k in range(8)], iters=2)
        A("s_cmp_eq_u32 s70, 0")
        A(f"s_cbranch_scc1 {Lc}")
        for st in range(n0): dma(st)
        A("s_barrier")
        A(f"s_branch {Ld}")
        A(f"{Lc}:")
        A("s_barrier")
        A(f"{Lb}:")
        spin_flags(A, wl(0), [32 + 2 * k for k in range(8)])
        vm.ops = []
        for st in range(n0): dma(st)
        A(f"{Ld}:")
    vm.wait("d0")
    stamp(A, 2)
    A("s_barrier")
    vm.wait("d1")
    A("s_barrier")
    for st in range(n0, K2_NR): dma(st)
    for j in range(nst - 2):
        vm.wait(f"d{j+2}")
        A("s_barrier")
        if j + K2_NR < nst: dma(j + K2_NR)
    for i in (3, 4, 5): stamp(A, i)

def p2_compute(A):
    stamp(A, 0)
    A("v_mov_b32 v26, 0")
    A(f"ds_read_b64 v[22:23], v26 offset:{K1_NONCE}")
    p2_ids(A)
    srd(A, 72, 4, T * D * 2)
    srd(A, 84 if not STAMPS else 68, 28, T * D * 4)
    A("v_cmp_eq_u32 vcc, 0, v0")
    A(f"v_mov_b32 v24, {OOB}")
    A("v_cndmask_b32 v24, v24, v26, vcc")
    L = A.label("nof")
    A("s_cmp_eq_u32 s78, 0")
    A(f"s_cbranch_scc1 {L}")
    A("s_waitcnt vmcnt(0) lgkmcnt(0)")
    A("buffer_store_dwordx2 v[22:23], v24, s[44:47], s77 offen sc1")
    A(f"{L}:")
    FRAG = 112
    ACCY = 28; ACCF = 48; XR = 68; SR = 78; DR = 82; PR = 92
    nst = K2_NST
    A("s_lshl_b32 s57, s50, 7")
    A("s_lshl_b32 s58, s49, 6")
    A("s_add_u32 s57, s57, s58")
    A("s_add_u32 s57, s57, s48")
    A("v_lshl_add_u32 v17, v6, 2, s57")
    A("v_mul_u32_u24 v18, 1280, v17")
    A("v_lshl_add_u32 v18, v5, 3, v18")
    A("s_mul_i32 s58, s51, 160")
    for m in range(5):
        A(f"buffer_load_dwordx2 v[{XR+2*m}:{XR+2*m+1}], v18, s[72:75], s58 offen offset:{32*m}")
    A("v_lshlrev_b32 v25, 4, v17")
    A(f"s_mov_b32 s62, {WS_STATS}")
    A("v_lshlrev_b32 v26, 3, v5")
    A("v_add_u32 v26, s58, v26")
    for m in range(5):
        A(f"global_load_dwordx2 v[{DR+2*m}:{DR+2*m+1}], v26, s[20:21] offset:{32*m}")
    A("s_lshl_b32 s57, s48, 10")
    A(f"s_add_u32 s57, s57, {K2_BOFF}")
    A("v_add_u32 v20, s57, v10")
    A(f"v_add_u32 v21, {K2_R0 + 3*10240}, v10")
    A(f"v_add_u32 v19, {K2_R0}, v10")
    for r in range(40):
        A(f"v_mov_b32 v{ACCY+r}, 0")
    plist = []
    P = plist.append
    mm, rs, sd = SR, SR + 1, SR + 2
    for m in range(5):
        x = XR + 2 * m; t = 2; du = 12; p = PR + 4 * m
        for hh in range(2):
            P(f"v_lshlrev_b32 v{t+2*hh}, 16, v{x+hh}")
            P(f"v_and_b32 v{t+2*hh+1}, 0xffff0000, v{x+hh}")
        for r in range(4): P(f"v_sub_f32 v{t+r}, v{t+r}, v{mm}")
        for hh in range(2):
            P(f"v_cvt_pk_bf16_f32 v{t+4+hh}, v{t+2*hh}, v{t+2*hh+1}")
        for hh in range(2):
            P(f"v_lshlrev_b32 v{t+2*hh}, 16, v{t+4+hh}")
            P(f"v_and_b32 v{t+2*hh+1}, 0xffff0000, v{t+4+hh}")
        for r in range(4): P(f"v_mul_f32 v{t+4+r}, v{t+r}, v{rs}")
        for r in range(4): P(f"v_fma_f32 v{t+r}, -v{t+4+r}, v{sd}, v{t+r}")
        for r in range(4): P(f"v_fma_f32 v{t+4+r}, v{t+r}, v{rs}, v{t+4+r}")
        for hh in range(2):
            P(f"v_cvt_pk_bf16_f32 v{t+hh}, v{t+4+2*hh}, v{t+4+2*hh+1}")
        for hh in range(2):
            P(f"v_lshlrev_b32 v{t+4+2*hh}, 16, v{t+hh}")
            P(f"v_and_b32 v{t+4+2*hh+1}, 0xffff0000, v{t+hh}")
        for hh in range(2):
            P(f"v_lshlrev_b32 v{du+2*hh}, 16, v{DR+2*m+hh}")
            P(f"v_and_b32 v{du+2*hh+1}, 0xffff0000, v{DR+2*m+hh}")
        for r in range(4): P(f"v_mul_f32 v{t+4+r}, v{t+4+r}, v{du+r}")
        for hh in range(2):
            P(f"v_cvt_pk_bf16_f32 v{t+hh}, v{t+4+2*hh}, v{t+4+2*hh+1}")
        for hh in range(2):
            P(f"v_lshlrev_b32 v{p+2*hh}, 16, v{t+hh}")
            P(f"v_and_b32 v{p+2*hh+1}, 0xffff0000, v{t+hh}")
    glist = []
    G = glist.append
    for m in range(5):
        a = ACCF + 4 * m; t = 2
        for hh in range(2):
            G(f"v_cvt_pk_bf16_f32 v{t+hh}, v{a+2*hh}, v{a+2*hh+1}")
        for hh in range(2):
            G(f"v_lshlrev_b32 v{a+2*hh}, 16, v{t+hh}")
            G(f"v_and_b32 v{a+2*hh+1}, 0xffff0000, v{t+hh}")
        for r in range(4): G(f"v_mul_f32 v{t+r}, {hexf(-LOG2E)}, v{a+r}")
        for r in range(4): G(f"v_exp_f32 v{t+r}, v{t+r}")
        for r in range(4): G(f"v_add_f32 v{t+r}, 1.0, v{t+r}")
        for r in range(4): G(f"v_rcp_f32 v{t+r}, v{t+r}")
        for r in range(4): G(f"v_mul_f32 v{t+r}, v{t+r}, v{a+r}")
        for hh in range(2):
            G(f"v_cvt_pk_bf16_f32 v{t+4+hh}, v{t+2*hh}, v{t+2*hh+1}")
        for hh in range(2):
            G(f"v_lshlrev_b32 v{a+2*hh}, 16, v{t+4+hh}")
            G(f"v_and_b32 v{a+2*hh+1}, 0xffff0000, v{t+4+hh}")
    fset = lambda stage, kk: FRAG + ((stage % 3) * 2 + kk) * 24
    def reads(stage, kk):
        sl = stage % K2_NR
        ra = 21 if sl >= 3 else 19
        oa = (sl - 3 if sl >= 3 else sl) * 10240
        f = fset(stage, kk)
        out = [f"ds_read_b128 {vr(f+20,4)}, v20 offset:{sl*8192 + kk*4096}"]
        out += [f"ds_read_b128 {vr(f+4*m,4)}, v{ra} offset:{oa + kk*5120 + m*1024}" for m in range(5)]
        return out
    def mfmas(stage, kk):
        f = fset(stage, kk); acc = ACCF if stage < NSF else ACCY
        return [f"v_mfma_f32_16x16x32_bf16 {vr(acc+4*m,4)}, {vr(f+4*m,4)}, {vr(f+20,4)}, {vr(acc+4*m,4)}" for m in range(5)]
    stamp(A, 1)
    A("s_barrier")
    stamp(A, 2)
    A(f"buffer_load_dwordx4 v[{SR}:{SR+3}], v25, s[44:47], s62 offen sc1")
    for kk in range(2):
        for r in reads(0, kk): A(r)
    A("s_barrier")
    for kk in range(2):
        for r in reads(1, kk): A(r)
    for j in range(nst):
        A(f"s_waitcnt lgkmcnt({12 if j < nst - 1 else 0})")
        mf = mfmas(j, 0) + mfmas(j, 1)
        if j < nst - 2:
            for m in mf[:2]: A(m)
            if j == 8:
                A("s_waitcnt vmcnt(0)")
                L = A.label("noy")
                A("s_cmp_lg_u32 s78, 0")
                A(f"s_cbranch_scc1 {L}")
                A("buffer_store_dwordx2 v[22:23], v24, s[44:47], s77 offen sc1")
                A(f"{L}:")
            A("s_barrier")
            rd = reads(j + 2, 0) + reads(j + 2, 1)
            rest = mf[2:]
            for i, m in enumerate(rest):
                for r in rd[(i * 12) // 8: ((i + 1) * 12) // 8]: A(r)
                A(m)
                if j >= 8:
                    for _ in range(2):
                        if plist: A(plist.pop(0))
                        elif j >= NSF + 2 and glist: A(glist.pop(0))
        else:
            for m in mf: A(m)
    assert not plist and not glist
    stamp(A, 3)
    A("v_lshlrev_b32 v18, 1, v18")
    A("s_lshl_b32 s58, s58, 1")
    so = 84 if not STAMPS else 68
    for m in range(5):
        t = 112 + 4 * m
        for hh in range(2):
            A(f"v_pk_add_f32 {vr(PR+4*m+2*hh,2)}, {vr(ACCY+4*m+2*hh,2)}, {vr(PR+4*m+2*hh,2)}")
        for hh in range(2):
            A(f"v_lshlrev_b32 v{t+2*hh}, 16, v{XR+2*m+hh}")
            A(f"v_and_b32 v{t+2*hh+1}, 0xffff0000, v{XR+2*m+hh}")
        for hh in range(2):
            A(f"v_pk_mul_f32 {vr(PR+4*m+2*hh,2)}, {vr(PR+4*m+2*hh,2)}, {vr(ACCF+4*m+2*hh,2)}")
        for hh in range(2):
            A(f"v_pk_add_f32 {vr(t+2*hh,2)}, {vr(t+2*hh,2)}, {vr(PR+4*m+2*hh,2)}")
        if os.environ.get("EPS"):
            for r in range(4): A(f"v_mul_f32 v{t+r}, {hexf(1.0 + float(os.environ['EPS']))}, v{t+r}")
        A(f"buffer_store_dwordx4 v[{t}:{t+3}], v18, s[{so}:{so+3}], s58 offen offset:{64*m}")
    stamp(A, 4); stamp(A, 5)

HEADER = open("recurrent_scan__ssm_conv_s5__dense_activation_relu__prompt.s.ref").read().split("; @launch")[0]

def kd(name, vgpr=256):
    return f""".p2align 6
.amdhsa_kernel {name}
  .amdhsa_next_free_vgpr {vgpr}
  .amdhsa_next_free_sgpr 102
  .amdhsa_accum_offset {vgpr}
  .amdhsa_group_segment_fixed_size 0
  .amdhsa_kernarg_size 120
  .amdhsa_user_sgpr_count 2
  .amdhsa_user_sgpr_kernarg_segment_ptr 1
  .amdhsa_system_sgpr_workgroup_id_x 1
.end_amdhsa_kernel
"""

def build():
    out = HEADER
    out += f"; @launch kernel=k1_kernel grid=(256,1,1) block=(512,1,1) lds={K1_LDS}\n"
    out += '.amdgcn_target "amdgcn-amd-amdhsa--gfx950"\n.text\n'
    for name, fn in (("k1_kernel", kernel1),):
        A = Asm(); A.nlabel = 0 if name == "k1_kernel" else 1000
        fn(A)
        lines = fix_hazards(A.lines, verbose=True)
        out += f".globl {name}\n.p2align 8\n.type {name},@function\n"
        out += "\n".join(("    " + l if not l.endswith(":") else l) for l in lines) + "\n"
    out += '.section .rodata,"a"\n' + kd("k1_kernel")
    return out

if __name__ == "__main__":
    if len(sys.argv) > 2: STAMPS = True; DBG = sys.argv[2]
    dst = sys.argv[1] if len(sys.argv) > 1 else "recurrent_scan__ssm_conv_s5__dense_activation_relu__prompt.s"
    txt = build()
    if os.environ.get("SINGLE", "1") == "1" and not STAMPS:
        KN = "recurrent_scan__ssm_conv_s5__dense_activation_relu__prompt_kernel"
        txt = txt.replace("; @launch kernel=k1_kernel grid", "; @launch grid").replace("k1_kernel", KN)
    open(dst, "w").write(txt)
    print("wrote", dst)
```

```python
import sys, struct
from asmlib import *

T, D, DFF = 2048, 640, 1728
WS_STATS = 0x000000
WS_E     = 0x010000
WS_WSP   = 0x0A0000
WS_WSYO  = 0x0E0000
WS_F3    = 0x0E8000
WS_F2    = 0x080000
WS_F1    = 0x090000
WS_CP    = 0x100000
WS_W2P   = 0x300000
WS_H1    = 0x600000
WS_HF    = 0xC00000
WS_S     = 0x1400000
WS_TS    = 0x1A00000
WS_SIZE  = 0x1B00000
OOB = 0x7ffffff0

import os
MAP = os.environ.get("MAP", "bp")
GI = int(os.environ.get("GI", 7))
CPF = int(os.environ.get("CPF", 1))
TLB = int(os.environ.get("TLB", 0))
STAMPS = False
DBG = "nopf"
def stamp(A, i):
    if STAMPS and i == 0:
        A("s_memrealtime s[96:97]")
    if STAMPS:
        A(f"s_memtime s[{80+2*i}:{81+2*i}]")
def stamps_flush(A, n, kidx, waitvm=True):
    if not STAMPS: return
    A("s_waitcnt lgkmcnt(0) vmcnt(0)" if waitvm else "s_waitcnt lgkmcnt(0)")
    A("s_memtime s[98:99]")
    A("s_memrealtime s[100:101]")
    A("s_waitcnt lgkmcnt(0)")
    A("s_lshl_b32 s57, s2, 3")
    A("s_add_u32 s57, s57, s34")
    A("s_lshl_b32 s57, s57, 6")
    A(f"s_add_u32 s57, s57, {WS_TS + kidx*131072}")
    A("v_mov_b32 v2, 0")
    for i in range(n):
        A(f"v_mov_b32 v3, s{80+2*i}")
        A(f"buffer_store_dword v3, v2, s[44:47], s57 offen offset:{4*i}")
    A(f"v_mov_b32 v3, s98")
    A(f"buffer_store_dword v3, v2, s[44:47], s57 offen offset:{4*n}")
    A(f"v_mov_b32 v3, s96")
    A(f"buffer_store_dword v3, v2, s[44:47], s57 offen offset:56")
    A(f"v_mov_b32 v3, s100")
    A(f"buffer_store_dword v3, v2, s[44:47], s57 offen offset:60")

def f2u(x): return struct.unpack("<I", struct.pack("<f", x))[0]
def hexf(x): return f"0x{f2u(x):08x}"
LOG2E = 1.4426950408889634
INV2PI = 0.15915494309189535

def divc(A, vq, vsrc, d, maxv):
    for sh in (16, 17, 18, 19, 20):
        mul = ((1 << sh) + d - 1) // d
        if all((c * mul) >> sh == c // d for c in range(maxv)) and maxv * mul < (1 << 32) and mul < (1 << 24):
            A(f"v_mul_u32_u24 {vr(vq)}, {mul}, {vr(vsrc)}")
            A(f"v_lshrrev_b32 {vr(vq)}, {sh}, {vr(vq)}")
            return
    raise Exception("no magic")

def srd(A, s, base, size):
    A(f"s_mov_b32 s{s}, s{base}")
    A(f"s_and_b32 s{s+1}, s{base+1}, 0xffff")
    A(f"s_mov_b32 s{s+2}, {size}")
    A(f"s_mov_b32 s{s+3}, 0x20000")

def cmul_add(A, dst, w, h, u):
    A(f"v_pk_fma_f32 {vr(dst,2)}, {vr(w,2)}, {vr(h,2)}, {vr(u,2)} op_sel:[0,0,0] op_sel_hi:[0,1,1]")
    A(f"v_pk_fma_f32 {vr(dst,2)}, {vr(w,2)}, {vr(h,2)}, {vr(dst,2)} op_sel:[1,1,0] op_sel_hi:[1,0,1] neg_lo:[1,0,0]")
def cmul(A, dst, w, h):
    A(f"v_pk_mul_f32 {vr(dst,2)}, {vr(w,2)}, {vr(h,2)} op_sel:[0,0] op_sel_hi:[0,1]")
    A(f"v_pk_fma_f32 {vr(dst,2)}, {vr(w,2)}, {vr(h,2)}, {vr(dst,2)} op_sel:[1,1,0] op_sel_hi:[1,0,1] neg_lo:[1,0,0]")

def wave_sum(A, regs):
    for mod in ("row_shr:1 row_mask:0xf bank_mask:0xf bound_ctrl:0", "row_shr:2 row_mask:0xf bank_mask:0xf bound_ctrl:0",
                "row_shr:4 row_mask:0xf bank_mask:0xf bound_ctrl:0", "row_shr:8 row_mask:0xf bank_mask:0xf bound_ctrl:0",
                "row_bcast:15 row_mask:0xa bank_mask:0xf", "row_bcast:31 row_mask:0xc bank_mask:0xf"):
        for r in regs:
            A(f"v_add_f32_dpp {vr(r)}, {vr(r)}, {vr(r)} {mod}")

def bf16r(A, r):
    A(f"v_cvt_pk_bf16_f32 {vr(r)}, {vr(r)}, {vr(r)}")
    A(f"v_lshlrev_b32 {vr(r)}, 16, {vr(r)}")

class VM:
    def __init__(s, A): s.A = A; s.ops = []
    def __call__(s, text, tag): s.A(text); s.ops.append(tag)
    def wait(s, tag, extra=""):
        idx = max([i for i, t in enumerate(s.ops) if t == tag], default=None)
        if idx is None:
            if extra: s.A(f"s_waitcnt {extra}")
            return
        n = len(s.ops) - 1 - idx
        assert n <= 63, n
        s.A(f"s_waitcnt vmcnt({n}) {extra}".strip())
        s.ops = s.ops[idx + 1:]
    def waitall(s, extra=""):
        s.A(f"s_waitcnt vmcnt(0) {extra}".strip()); s.ops = []

def common_ids(A):
    A("v_lshrrev_b32 v2, 6, v0")
    A("v_and_b32 v1, 255, v0")
    A("v_and_b32 v0, 63, v0")
    A("v_readfirstlane_b32 s34, v2")
    A("s_lshr_b32 s35, s2, 3")
    A("s_and_b32 s57, s2, 3")
    A("s_lshl_b32 s57, s57, 2")
    A("s_lshr_b32 s50, s35, 3")
    A("s_add_u32 s50, s50, s57")
    if MAP == "mixed":
        A("s_and_b32 s49, s35, 1")
        A("s_bfe_u32 s51, s35, 0x20001")
        A("s_and_b32 s57, s2, 4")
        A("s_add_u32 s51, s51, s57")
    else:
        A("s_bfe_u32 s49, s2, 0x10002")
        A("s_and_b32 s51, s35, 7")
    A("s_and_b32 s48, s34, 3")
    A("s_lshr_b32 s52, s48, 1")
    A("s_and_b32 s53, s48, 1")
    A("v_lshrrev_b32 v3, 3, v0")
    A("v_and_b32 v4, 7, v0")
    A("v_lshrrev_b32 v5, 4, v0")
    A("v_and_b32 v6, 15, v0")

def poll(A, load, stmp, scount, vtmp, target, iters=200000):
    L = A.label("poll"); Lx = A.label("pollx")
    A(f"s_mov_b32 s{scount}, {iters}")
    A(f"{L}:")
    A(load)
    A("s_waitcnt vmcnt(0)")
    A(f"v_readfirstlane_b32 s{stmp}, {vr(vtmp)}")
    A(f"s_cmp_eq_u32 s{stmp}, {target}")
    A(f"s_cbranch_scc1 {Lx}")
    A("s_sleep 1")
    A(f"s_sub_u32 s{scount}, s{scount}, 1")
    A(f"s_cmp_lg_u32 s{scount}, 0")
    A(f"s_cbranch_scc1 {L}")
    A(f"{Lx}:")

K1F_STAGE = 28672 + 16384
K1Y_STAGE = 20480 + 16384
K1_STATS = 0
K1_WS = 2048
K1_NONCE = 3008
K1F_RED = 3072
K1F_BUF = 10240
K1Y_T = 3072
K1Y_BUF = 26112
K1Y_SCR = K1Y_BUF + 3 * K1Y_STAGE
K1_LE = 157184
K1F_SL = 145408
K1_LDS = 163840

def kernel1(A):
    A("k1_kernel:")
    A("s_cmp_ge_u32 s2, 256")
    A("s_cbranch_scc1 k1_end")
    stamp(A, 0)
    A("s_load_dwordx16 s[4:19], s[0:1], 0")
    A("s_load_dwordx8 s[20:27], s[0:1], 64")
    A("s_load_dwordx4 s[28:31], s[0:1], 96")
    A("s_load_dwordx2 s[32:33], s[0:1], 112")
    common_ids(A)
    if CPF:
        Lq = A.label("nopf")
        A("s_cmp_ge_u32 s34, 4")
        A(f"s_cbranch_scc1 {Lq}")
        A("s_getpc_b64 s[66:67]")
        Lpc = A.label("pc")
        A(f"{Lpc}:")
        A(f"s_sub_u32 s66, s66, {Lpc}-k1_kernel")
        A("s_subb_u32 s67, s67, 0")
        A("s_lshl_b32 s57, s35, 2")
        A("s_add_u32 s57, s57, s48")
        A("s_lshl_b32 s57, s57, 10")
        A("s_min_u32 s57, s57, k1_codeend-k1_kernel-1024")
        A("v_lshlrev_b32 v7, 4, v0")
        A("v_add_u32 v7, s57, v7")
        A("global_load_dwordx4 v[120:123], v7, s[66:67]")
        A(f"{Lq}:")
    A("s_mul_i32 s54, s51, 14")
    A("s_cmp_eq_u32 s51, 7")
    A("s_cselect_b32 s54, 96, s54")
    A("s_waitcnt lgkmcnt(0)")
    srd(A, 36, 4, T * D * 2)
    srd(A, 44, 32, WS_SIZE)
    A("s_cmp_ge_u32 s34, 4")
    A("s_cbranch_scc1 k1_ld")
    A("s_cmp_lg_u32 s49, 0")
    A("s_cbranch_scc1 k1_cF")
    k1_compute(A, False)
    A("s_branch p2_comp")
    A("k1_cF:")
    k1_compute(A, True)
    A("p2_comp:")
    stamps_flush(A, 8, 0, False)
    p2_compute(A)
    stamps_flush(A, 6, 1)
    A("s_branch k1_end")
    A("k1_ld:")
    A("s_cmp_lg_u32 s49, 0")
    A("s_cbranch_scc1 k1_lF")
    k1_loader(A, False)
    A("s_branch p2_ld")
    A("k1_lF:")
    k1_loader(A, True)
    A("p2_ld:")
    stamps_flush(A, 8, 0, False)
    p2_loaders(A)
    A("k1_end:")
    A("s_endpgm")
    A("k1_codeend:")

def stats_compute(A, vm, SRC):
    for r in range(2):
        for i in range(5):
            A(f"v_lshlrev_b32 v{40+10*r+2*i}, 16, v{SRC+5*r+i}")
            A(f"v_and_b32 v{41+10*r+2*i}, 0xffff0000, v{SRC+5*r+i}")
    for r in range(2):
        b = 40 + 10 * r
        A(f"v_add_f32 v{60+r}, v{b}, v{b+1}")
        for i in range(2, 10):
            A(f"v_add_f32 v{60+r}, v{60+r}, v{b+i}")
    wave_sum(A, [60, 61])
    A("v_readlane_b32 s57, v60, 63")
    A("v_readlane_b32 s58, v61, 63")
    A(f"v_mov_b32 v62, {hexf(1.0/640)}")
    A("v_mul_f32 v60, s57, v62")
    A("v_mul_f32 v61, s58, v62")
    for r in range(2):
        b = 40 + 10 * r
        for i in range(10):
            A(f"v_sub_f32 v{b+i}, v{b+i}, v{60+r}")
    for r in range(2):
        b = 40 + 10 * r
        A(f"v_mul_f32 v{64+r}, v{b}, v{b}")
        for i in range(1, 10):
            A(f"v_fmac_f32 v{64+r}, v{b+i}, v{b+i}")
    wave_sum(A, [64, 65])
    A("v_readlane_b32 s57, v64, 63")
    A("v_readlane_b32 s58, v65, 63")
    A("v_mul_f32 v64, s57, v62")
    A("v_mul_f32 v65, s58, v62")
    A("v_and_b32 v66, 1, v0")
    A("v_cmp_eq_u32 vcc, 1, v66")
    A("v_cndmask_b32 v68, v60, v61, vcc")
    A("v_cndmask_b32 v70, v64, v65, vcc")
    bf16r(A, 68)
    bf16r(A, 70)
    A(f"v_add_f32 v70, {hexf(1e-5)}, v70")
    bf16r(A, 70)
    A("v_sqrt_f32 v70, v70")
    bf16r(A, 70)
    A("v_rcp_f32 v69, v70")
    A("v_fma_f32 v71, -v70, v69, 1.0")
    A("v_fma_f32 v69, v71, v69, v69")
    A("v_mov_b32 v71, 0")
    A("v_lshlrev_b32 v66, 4, v0")
    A(f"v_mov_b32 v67, {OOB}")
    A("v_cmp_gt_u32 vcc, 2, v0")
    A("v_cndmask_b32 v66, v67, v66, vcc")
    A("s_lshl_b32 s57, s63, 4")
    A(f"s_add_u32 s57, s57, {WS_STATS}")
    vm("buffer_store_dwordx4 v[68:71], v66, s[44:47], s57 offen sc1", "st")

def k1_loader(A, isF):
    vm = VM(A)
    if os.environ.get("PRIO") == "l": A("s_setprio 2")
    STG = K1F_STAGE if isF else K1Y_STAGE
    BUF = K1F_BUF if isF else K1Y_BUF
    ASZ = 28672 if isF else 20480
    if not isF:
        L = A.label("nononce")
        A("s_or_b32 s57, s2, s48")
        A("s_cmp_lg_u32 s57, 0")
        A(f"s_cbranch_scc1 {L}")
        A("s_memrealtime s[70:71]")
        A("v_mov_b32 v18, 0")
        A("s_waitcnt lgkmcnt(0)")
        A("s_or_b32 s70, s70, 1")
        A("v_mov_b32 v20, s70")
        A("v_mov_b32 v21, s71")
        A("s_mov_b64 exec, 1")
        A("global_store_dwordx2 v18, v[20:21], s[30:31] sc1")
        A("s_mov_b64 exec, -1")
        A(f"{L}:")
    A("v_xor_b32 v17, v4, v3")
    A("v_mul_u32_u24 v19, 5120, v3")
    A("v_lshl_add_u32 v247, v17, 4, v19")
    A("s_lshl_b32 s60, s50, 7")
    A("s_lshl_b32 s59, s52, 6")
    A("s_add_u32 s60, s60, s59")
    A("s_lshl_b32 s59, s53, 1")
    A("s_add_u32 s60, s60, s59")
    A("s_mul_i32 s60, s60, 1280")
    A("s_lshl_b32 s62, s48, 12")
    A(f"s_add_u32 s62, s62, {ASZ+BUF}")
    def dmaX(st):
        bo = (st % 3) * STG
        for q in range(4):
            A(f"s_add_u32 m0, s62, {bo + 1024*q}")
            A(f"s_add_u32 s65, s60, {st*128 + (32*(q&1) + (q>>1))*1280}")
            vm(f"buffer_load_dwordx4 v247, s[36:39], s65 offen lds", f"d{st}")
    stamp(A, 5)
    dmaX(0)
    if isF:
        srd(A, 40, 24, D * DFF * 2)
        A("s_mul_i32 s59, s48, 55296")
        A("s_lshl_b32 s64, s54, 5")
        A("s_add_u32 s59, s59, s64")
        A("s_mul_i32 s61, s48, 7168")
        A(f"s_add_u32 s61, s61, {BUF}")
        for q in range(7):
            A(f"v_add_u32 v17, {64*q}, v0")
            divc(A, 18, 17, 28, 448)
            A("v_mul_u32_u24 v19, 28, v18")
            A("v_sub_u32 v19, v17, v19")
            A("v_lshrrev_b32 v17, 2, v18")
            A("v_and_b32 v17, 2, v17")
            A("v_xor_b32 v19, v19, v17")
            A("v_mul_u32_u24 v18, 3456, v18")
            A(f"v_lshl_add_u32 v{240+q}, v19, 4, v18")
            A(f"s_add_u32 m0, s61, {1024*q}")
            A("s_nop 0")
            vm(f"buffer_load_dwordx4 v{240+q}, s[40:43], s59 offen lds", "d0")
    else:
        A("s_cmp_lt_u32 s48, 2")
        A("s_cselect_b32 s64, s10, s12")
        A("s_cselect_b32 s65, s11, s13")
        srd(A, 40, 64, D * D * 2)
        A("v_xor_b32 v18, s52, v17")
        A("v_mul_u32_u24 v19, 1280, v3")
        A("v_lshl_add_u32 v240, v18, 4, v19")
        A("s_mul_i32 s59, s51, 80")
        A("s_mul_i32 s64, s53, 40")
        A("s_add_u32 s59, s59, s64")
        A("s_mul_i32 s59, s59, 1280")
        A("s_mul_i32 s61, s53, 10240")
        A("s_lshl_b32 s64, s52, 10")
        A("s_add_u32 s61, s61, s64")
        A(f"s_add_u32 s61, s61, {BUF}")
    def dmaA(st):
        bo = (st % 3) * STG
        tag = f"d{st}"
        if isF:
            A(f"s_add_u32 s65, s59, {st*64*3456}")
            for q in range(7):
                A(f"s_add_u32 m0, s61, {bo + 1024*q}")
                A("s_nop 0")
                vm(f"buffer_load_dwordx4 v{240+q}, s[40:43], s65 offen lds", tag)
        else:
            for q in range(5):
                A(f"s_add_u32 m0, s61, {bo + 2048*q}")
                A(f"s_add_u32 s65, s59, {st*128 + q*8*1280}")
                vm(f"buffer_load_dwordx4 v240, s[40:43], s65 offen lds", tag)
    def dma(st):
        dmaA(st); dmaX(st)
    if not isF: dmaA(0)
    stamp(A, 6)
    if "nodpf" not in DBG: A("s_barrier")
    dma(1)
    stamp(A, 7)
    A(f"v_mov_b32 v15, {OOB}")
    A("v_mov_b32 v26, 0")
    def s5():
        A("v_bfe_u32 v20, v0, 1, 4")
        A("v_and_b32 v21, 7, v20")
        A("s_lshl_b32 s57, s50, 3")
        A("s_add_u32 s57, s57, 128")
        A("v_add_u32 v21, s57, v21")
        A("s_lshl_b32 s57, s49, 7")
        A("s_add_u32 s57, s57, s51")
        A("v_lshl_add_u32 v22, v20, 3, s57")
        A("v_cmp_gt_u32 vcc, 32, v0")
        A("v_cndmask_b32 v25, v22, v21, vcc")
        A("v_lshlrev_b32 v25, 7, v25")
        A("v_add_u32 v21, 32, v25")
        A("v_cndmask_b32 v25, v25, v21, vcc")
        A("v_and_b32 v20, 1, v0")
        A("v_lshl_add_u32 v25, v20, 4, v25")
        A(f"v_add_u32 v25, {WS_F3}, v25")
    def g1():
        vm("buffer_load_dwordx4 v[32:35], v25, s[44:47], 0 offen sc1", "fl")
    def g2():
        Lp = A.label("poll"); Lx = A.label("pollx"); Lc = A.label("pollc")
        A("s_mov_b32 s58, 200000")
        vm.wait("fl")
        A(f"s_branch {Lc}")
        A(f"{Lp}:")
        A("s_sleep 1")
        A("buffer_load_dwordx4 v[32:35], v25, s[44:47], 0 offen sc1")
        A("s_waitcnt vmcnt(0)")
        A(f"{Lc}:")
        A("v_cmp_ne_u64 vcc, v[32:33], v[28:29]")
        A("v_cmp_ne_u64 s[66:67], v[34:35], v[28:29]")
        A("s_or_b64 vcc, vcc, s[66:67]")
        A("s_cmp_eq_u64 vcc, 0")
        A(f"s_cbranch_scc1 {Lx}")
        A("s_sub_u32 s58, s58, 1")
        A("s_cmp_lg_u32 s58, 0")
        A(f"s_cbranch_scc1 {Lp}")
        A(f"{Lx}:")
        A("v_lshlrev_b32 v34, 4, v1")
        A("s_lshl_b32 s57, s50, 11")
        A(f"s_add_u32 s57, s57, {WS_STATS}")
        vm("buffer_load_dwordx4 v[36:39], v34, s[44:47], s57 offen sc1", "ga")
        A("v_lshlrev_b32 v35, 2, v1")
        if isF:
            A("s_mul_i32 s57, s51, 896")
            A(f"s_add_u32 s57, s57, {WS_WSP}")
            for sl_ in range(16):
                vm(f"buffer_load_dword v{40+sl_}, v35, s[44:47], s57 offen sc1", "ga")
                A(f"s_add_u32 s57, s57, {1792*4}")
        else:
            A("s_mul_i32 s57, s51, 640")
            A(f"s_add_u32 s57, s57, {WS_WSYO}")
            vm("buffer_load_dword v40, v35, s[44:47], s57 offen sc1", "ga")
    def g3():
        vm.wait("ga")
        A("v_cmp_gt_u32 vcc, 128, v1")
        A("s_and_saveexec_b64 s[66:67], vcc")
        A(f"ds_write_b128 v34, v[36:39] offset:{K1_STATS}")
        A("s_mov_b64 exec, s[66:67]")
        if isF:
            for sl_ in range(1, 16):
                A(f"v_add_f32 v40, v40, v{40+sl_}")
        A(f"v_cmp_gt_u32 vcc, {224 if isF else 160}, v1")
        A("s_and_saveexec_b64 s[66:67], vcc")
        A(f"ds_write_b32 v35, v40 offset:{K1_WS}")
        A("s_mov_b64 exec, s[66:67]")
    chunks = {}
    post = []
    if isF:
        A("s_mul_i32 s57, s50, 138240")
        A("s_mul_i32 s58, s48, 34560")
        A("s_add_u32 s57, s57, s58")
        A("s_add_u32 s57, s57, s64")
        A("s_mul_i32 s72, s48, 4480")
        A(f"s_add_u32 s72, s72, {K1F_SL}")
        for q in range(5):
            A(f"v_add_u32 v17, {64*q}, v0")
            divc(A, 18, 17, 28, 448)
            A("v_mul_u32_u24 v19, 28, v18")
            A("v_sub_u32 v19, v17, v19")
            A("v_mul_u32_u24 v18, 3456, v18")
            A("v_lshl_add_u32 v16, v19, 4, v18")
            A(f"s_add_u32 m0, s72, {1024*q}")
            if q == 4: A("s_mov_b64 exec, 0xffffff")
            else: A("s_nop 0")
            vm("buffer_load_dwordx4 v16, s[40:43], s57 offen lds", "sl")
            if q == 4: A("s_mov_b64 exec, -1")
        def ws1():
            divc(A, 7, 0, 28, 64)
            A("v_mul_u32_u24 v8, 28, v7")
            A("v_sub_u32 v8, v0, v8")
            A("v_min_u32 v7, 1, v7")
            A("v_mul_u32_u24 v9, 2240, v7")
            A("v_lshl_add_u32 v9, v8, 4, v9")
            A("v_add_u32 v9, s72, v9")
            vm.wait("sl")
            for r in range(5): A(f"ds_read_b128 v[{72+4*r}:{75+4*r}], v9 offset:{448*r}")
            A("s_waitcnt lgkmcnt(0)")
            for c in range(4):
                A(f"v_lshlrev_b32 v{108+2*c}, 16, v{72+c}")
                A(f"v_and_b32 v{109+2*c}, 0xffff0000, v{72+c}")
            for r in range(1, 5):
                for c in range(4):
                    A(f"v_lshlrev_b32 v116, 16, v{72+4*r+c}")
                    A(f"v_and_b32 v117, 0xffff0000, v{72+4*r+c}")
                    A(f"v_add_f32 v{108+2*c}, v{108+2*c}, v116")
                    A(f"v_add_f32 v{109+2*c}, v{109+2*c}, v117")
            A("s_mul_i32 s57, s48, 1792")
            A("v_lshlrev_b32 v9, 5, v0")
            A("v_add_u32 v9, s57, v9")
            A("v_cmp_gt_u32 vcc, 56, v0")
            A("s_and_saveexec_b64 s[66:67], vcc")
            A(f"ds_write_b128 v9, v[108:111] offset:{K1F_RED}")
            A(f"ds_write_b128 v9, v[112:115] offset:{K1F_RED+16}")
            A("s_mov_b64 exec, s[66:67]")
        def ws2():
            A("v_lshlrev_b32 v9, 2, v1")
            for r in range(8): A(f"ds_read_b32 v{108+r}, v9 offset:{K1F_RED+896*r}")
            A("s_waitcnt lgkmcnt(0)")
            for r in range(1, 8): A(f"v_add_f32 v108, v108, v{108+r}")
            A("v_cmp_gt_u32 vcc, 224, v1")
            A("s_and_saveexec_b64 s[66:67], vcc")
            A(f"ds_write_b32 v9, v108 offset:{K1_WS}")
            A("s_mov_b64 exec, s[66:67]")
        chunks = {0: [ws1], 1: [ws2]}
        def crep():
            Lq = A.label("cq")
            A("s_cmp_eq_u32 s52, 0")
            A(f"s_cbranch_scc1 {Lq}")
            srd(A, 68, 14, D * D * 2)
            sc = 80 if not STAMPS else 60
            srd(A, sc, 16, D * D * 2)
            for rd_ in range(2):
                R = 92 + 16 * rd_
                A("s_lshl_b32 s57, s50, 3")
                A("s_add_u32 s57, s57, s51")
                A("s_lshl_b32 s57, s57, 4")
                A("s_lshl_b32 s58, s53, 2")
                A("s_add_u32 s57, s57, s58")
                A(f"s_add_u32 s57, s57, {8*rd_}")
                A("v_add_u32 v10, s57, v5")
                divc(A, 11, 10, 40, 2048)
                A("v_mul_u32_u24 v12, 40, v11")
                A("v_sub_u32 v12, v10, v12")
                A("v_lshl_add_u32 v13, v11, 4, v6")
                A("v_mul_u32_u24 v13, 1280, v13")
                A("v_lshl_add_u32 v13, v12, 5, v13")
                A(f"buffer_load_dwordx4 v[{R}:{R+3}], v13, s[68:71], 0 offen")
                A(f"buffer_load_dwordx4 v[{R+4}:{R+7}], v13, s[68:71], 0 offen offset:16")
                A(f"buffer_load_dwordx4 v[{R+8}:{R+11}], v13, s[{sc}:{sc+3}], 0 offen")
                A(f"buffer_load_dwordx4 v[{R+12}:{R+15}], v13, s[{sc}:{sc+3}], 0 offen offset:16")
                divc(A, 14, 11, 5, 64)
                A("v_mul_u32_u24 v16, 5, v14")
                A("v_sub_u32 v16, v11, v16")
                A("v_mul_u32_u24 v14, 40, v14")
                A("v_add_u32 v14, v14, v12")
                A("v_mul_u32_u24 v14, 5120, v14")
                A("v_lshl_add_u32 v14, v16, 10, v14")
                A("v_lshl_add_u32 v14, v6, 4, v14")
                A("v_cmp_gt_u32 vcc, 1600, v10")
                A(f"v_cndmask_b32 v{17+rd_}, v15, v14, vcc")
            A("s_mov_b32 s57, 0x05040100")
            A("s_mov_b32 s58, 0x07060302")
            A(f"s_mov_b32 s65, {WS_CP}")
            A("s_waitcnt vmcnt(0)")
            for rd_ in range(2):
                R = 92 + 16 * rd_
                for c in range(8): A(f"v_xor_b32 v{R+8+c}, 0x80008000, v{R+8+c}")
                for g in range(4):
                    o = 40 + 16 * rd_ + 4 * g
                    A(f"v_perm_b32 v{o}, v{R+8+g}, v{R+g}, s57")
                    A(f"v_perm_b32 v{o+1}, v{R+8+g}, v{R+g}, s58")
                    A(f"v_perm_b32 v{o+2}, v{R+12+g}, v{R+4+g}, s57")
                    A(f"v_perm_b32 v{o+3}, v{R+12+g}, v{R+4+g}, s58")
                    A(f"buffer_store_dwordx4 v[{o}:{o+3}], v{17+rd_}, s[44:47], s65 offen offset:{256*g} sc1")
            A("s_waitcnt vmcnt(0)")
            A(f"{Lq}:")
            A("buffer_store_dwordx2 v[28:29], v27, s[44:47], s79 offen sc1")
        post = [lambda: A('s_barrier'), crep]
    else:
        def w2a():
            srd(A, 68, 26, D * DFF * 2)
            A("s_lshl_b32 s57, s50, 3")
            A("s_add_u32 s57, s57, s51")
            A("s_lshl_b32 s57, s57, 2")
            A("s_add_u32 s57, s57, s48")
            A("s_lshr_b32 s75, s57, 3")
            A("s_and_b32 s76, s57, 7")
            A("s_mul_i32 s58, s75, 40960")
            A("s_mul_i32 s57, s76, 160")
            A("s_add_u32 s58, s58, s57")
            A("s_mul_i32 s77, s48, 5120")
            A(f"s_add_u32 s77, s77, {K1Y_SCR}")
            for q in range(5):
                A(f"v_add_u32 v17, {64*q}, v0")
                divc(A, 18, 17, 10, 320)
                A("v_mul_u32_u24 v19, 10, v18")
                A("v_sub_u32 v19, v17, v19")
                A("v_mul_u32_u24 v18, 1280, v18")
                A("v_lshl_add_u32 v16, v19, 4, v18")
                A(f"s_add_u32 m0, s77, {1024*q}")
                A("s_nop 0")
                vm("buffer_load_dwordx4 v16, s[68:71], s58 offen lds", "w2")
        def w2b():
            A("v_lshrrev_b32 v17, 2, v6")
            A("v_lshl_add_u32 v17, v5, 2, v17")
            A("v_mul_u32_u24 v17, 160, v17")
            A("v_and_b32 v18, 3, v6")
            A("v_lshl_add_u32 v17, v18, 3, v17")
            A("v_add_u32 v17, s77, v17")
            vm.wait("w2")
            for m in range(5):
                for h in range(2):
                    A(f"ds_read_b64_tr_b16 v[{164+4*m+2*h}:{165+4*m+2*h}], v17 offset:{h*2560 + m*32}")
            A("s_mul_i32 s57, s76, 54")
            A("s_add_u32 s57, s57, s75")
            A("s_mul_i32 s57, s57, 5120")
            A(f"s_add_u32 s57, s57, {WS_W2P}")
            A("s_cmp_lt_u32 s75, 54")
            A(f"s_cselect_b32 s57, s57, {OOB}")
            A("v_lshlrev_b32 v18, 4, v0")
            A("v_add_u32 v19, 4096, v18")
            A("s_waitcnt lgkmcnt(0)")
            for m in range(5):
                vm(f"buffer_store_dwordx4 v[{164+4*m}:{167+4*m}], v18, s[44:47], s57 offen offset:{1024*m} sc1" if m < 4 else
                   f"buffer_store_dwordx4 v[{164+4*m}:{167+4*m}], v19, s[44:47], s57 offen sc1", "st2")
        def w2c():
            vm.wait("st2")
            vm("buffer_store_dwordx2 v[28:29], v27, s[44:47], s79 offen sc1", "fs")
        def lbk():
            Lq = A.label("lq")
            A("s_cmp_eq_u32 s52, 0")
            A(f"s_cbranch_scc1 {Lq}")
            A("v_min_u32 v8, 39, v0")
            A("s_mul_i32 s57, s53, 40")
            A("v_add_u32 v8, s57, v8")
            A("v_lshlrev_b32 v9, 3, v8")
            A(f"v_add_u32 v9, {K1_LE}, v9")
            A("v_mul_u32_u24 v10, 288, v8")
            A("s_mul_i32 s57, s51, 1280")
            A("v_lshlrev_b32 v11, 4, v8")
            A("v_add_u32 v11, s57, v11")
            A("s_mul_i32 s74, s50, 10240")
            A(f"s_add_u32 s74, s74, {WS_E}")
            A(f"ds_read_b64 v[72:73], v10 offset:{K1Y_T+128+8}")
            A(f"ds_read_b64 v[74:75], v10 offset:{K1Y_T+128+16}")
            A("s_barrier")
            Lp = A.label("lb"); Lx = A.label("lbx")
            A("ds_read_b64 v[64:65], v9")
            A("ds_read_b64 v[66:67], v9 offset:640")
            A("v_mov_b32 v82, v28")
            A("v_mov_b32 v83, v29")
            A("s_waitcnt lgkmcnt(0)")
            cmul_add(A, 80, 72, 64, 66)
            A("buffer_store_dwordx4 v[80:83], v11, s[44:47], s74 offen sc1")
            A("s_mov_b32 s75, 100000")
            A(f"{Lp}:")
            for i in range(15):
                A(f"s_sub_u32 s57, s50, {i+1}")
                A("s_mul_i32 s58, s57, 10240")
                A(f"s_add_u32 s58, s58, {WS_E}")
                A(f"s_cmp_gt_u32 s50, {i}")
                A(f"s_cselect_b32 s58, s58, {OOB}")
                A(f"buffer_load_dwordx4 v[{96+4*i}:{99+4*i}], v11, s[44:47], s58 offen sc1")
            A("s_waitcnt vmcnt(0)")
            A("s_mov_b64 vcc, 0")
            for i in range(15):
                A(f"v_cmp_ne_u64 s[70:71], v[{98+4*i}:{99+4*i}], v[28:29]")
                A(f"s_cmp_gt_u32 s50, {i}")
                A("s_cselect_b64 s[70:71], s[70:71], 0")
                A("s_or_b64 vcc, vcc, s[70:71]")
            A("s_cmp_eq_u64 vcc, 0")
            A(f"s_cbranch_scc1 {Lx}")
            A("s_sleep 1")
            A("s_sub_u32 s75, s75, 1")
            A("s_cmp_lg_u32 s75, 0")
            A(f"s_cbranch_scc1 {Lp}")
            A(f"{Lx}:")
            for i in range(13, -1, -1):
                cmul_add(A, 96 + 4 * i, 74, 96 + 4 * (i + 1), 96 + 4 * i)
            cmul_add(A, 84, 72, 96, 64)
            A("ds_write_b64 v9, v[96:97] offset:1280")
            A("ds_write_b64 v9, v[84:85] offset:1920")
            A("s_waitcnt lgkmcnt(0)")
            A("s_barrier")
            A(f"{Lq}:")
        chunks = {4: [w2a], 8: [w2b]}; post = [w2c, lbk]
    def n1():
        vm("global_load_dwordx2 v[28:29], v26, s[30:31] sc1", "nn")
    def n2():
        Lp = A.label("np"); Lx = A.label("npx"); Lc = A.label("npc")
        A("s_mov_b32 s58, 200000")
        vm.wait("nn")
        A(f"s_branch {Lc}")
        A(f"{Lp}:")
        A("s_sleep 1")
        A("global_load_dwordx2 v[28:29], v26, s[30:31] sc1")
        A("s_waitcnt vmcnt(0)")
        A(f"{Lc}:")
        A("v_readfirstlane_b32 s57, v28")
        A("s_cmp_lg_u32 s57, 0")
        A(f"s_cbranch_scc1 {Lx}")
        A("s_sub_u32 s58, s58, 1")
        A("s_cmp_lg_u32 s58, 0")
        A(f"s_cbranch_scc1 {Lp}")
        A(f"{Lx}:")
        A(f"ds_write_b64 v26, v[28:29] offset:{K1_NONCE}")
        A("s_lshl_b32 s57, s49, 7")
        A("s_lshl_b32 s58, s50, 3")
        A("s_add_u32 s57, s57, s58")
        A("s_add_u32 s57, s57, s51")
        A("s_lshl_b32 s57, s57, 5")
        A("s_lshl_b32 s58, s48, 3")
        A("s_add_u32 s57, s57, s58")
        A(f"s_add_u32 s79, s57, {WS_F1}")
        A("v_cmp_eq_u32 vcc, 0, v0")
        A("v_cndmask_b32 v27, v15, v26, vcc")
    sched = ((1, n1), (2, n2), (3, s5), (GI, g1), (GI + 1, g2))
    for k, f in sched:
        chunks.setdefault(k, []).append(f)
    vm.wait("d0")
    stamp(A, 1)
    A("s_barrier")
    for j in range(9):
        if j + 2 <= 9: dma(j + 2)
        for f in chunks.get(j, []): f()
        vm.wait(f"d{j+1}", "lgkmcnt(0)")
        A("s_barrier")
    stamp(A, 2)
    g3()
    A("s_waitcnt lgkmcnt(0)")
    stamp(A, 3)
    stamp(A, 4)
    A("s_barrier")
    for f in post: f()

def k1_side(A, isF):
    if isF:
        yield
    else:
        divc(A, 9, 1, 80, 256)
        A("v_mul_u32_u24 v10, 80, v9")
        A("v_sub_u32 v10, v1, v10")
        A("s_mul_i32 s57, s51, 80")
        A("v_add_u32 v11, s57, v10")
        A("v_lshlrev_b32 v11, 1, v11")
        A("global_load_ushort v92, v11, s[6:7]")
        A("global_load_ushort v93, v11, s[8:9]")
        A("global_load_ushort v94, v11, s[18:19]")
        yield
        A("s_waitcnt vmcnt(16)")
        for r in (92, 93, 94): A(f"v_lshlrev_b32 v{r}, 16, v{r}")
        A(f"v_mul_f32 v94, {hexf(LOG2E)}, v94")
        A("v_exp_f32 v94, v94")
        bf16r(A, 94)
        A("v_mul_f32 v95, v94, v92")
        A("v_mul_f32 v96, v94, v93")
        A(f"v_mul_f32 v95, {hexf(LOG2E)}, v95")
        A(f"v_mul_f32 v96, {hexf(INV2PI)}, v96")
        A("v_mul_u32_u24 v97, 288, v10")
        A("v_lshl_add_u32 v97, v9, 3, v97")
        A("v_cmp_gt_u32 vcc, 240, v1")
        A("s_and_saveexec_b64 s[66:67], vcc")
        for r in range(11):
            A(f"v_add_u32 v98, {3*r}, v9")
            A("v_lshlrev_b32 v99, 2, v98")
            A("v_lshlrev_b32 v100, 6, v98")
            A("v_subrev_u32 v100, 1024, v100")
            A("v_cmp_gt_u32 vcc, 16, v98")
            A("v_cndmask_b32 v99, v100, v99, vcc")
            A("v_cvt_f32_u32 v99, v99")
            A("v_mul_f32 v100, v99, v95")
            A("v_mul_f32 v101, v99, v96")
            A("v_exp_f32 v100, v100")
            A("v_fract_f32 v101, v101")
            A("v_cos_f32 v102, v101")
            A("v_sin_f32 v103, v101")
            A("v_mul_f32 v102, v100, v102")
            A("v_mul_f32 v103, v100, v103")
            A(f"ds_write_b64 v97, v[102:103] offset:{K1Y_T+24*r}")
        A("s_mov_b64 exec, s[66:67]")
        A("v_exp_f32 v100, v95")
        A("v_fract_f32 v101, v96")
        A("v_cos_f32 v102, v101")
        A("v_sin_f32 v103, v101")
        A("v_mul_f32 v102, v100, v102")
        A("v_mul_f32 v103, v100, v103")
        A("v_add_f32 v98, -1.0, v102")
        A("v_mul_f32 v99, v92, v92")
        A("v_fmac_f32 v99, v93, v93")
        A("v_rcp_f32 v100, v99")
        A("v_fma_f32 v101, -v99, v100, 1.0")
        A("v_fma_f32 v100, v101, v100, v100")
        A("v_add_f32 v100, v100, v100")
        A("v_mul_f32 v104, v98, v92")
        A("v_fmac_f32 v104, v103, v93")
        A("v_mul_f32 v105, v103, v92")
        A("v_fma_f32 v105, -v98, v93, v105")
        A("v_mul_f32 v104, v104, v100")
        A("v_mul_f32 v105, v105, v100")
        A("v_cmp_gt_u32 vcc, 80, v1")
        A("s_and_saveexec_b64 s[66:67], vcc")
        A(f"ds_write_b128 v97, v[102:105] offset:{K1Y_T+272}")
        A("s_mov_b64 exec, s[66:67]")
    A("s_waitcnt lgkmcnt(0)")
    yield

def k1_prefetch_setup(A, isF):
    A("s_and_b32 s57, s2, 3")
    A("s_lshl_b32 s57, s57, 9")
    A("s_lshl_b32 s59, s35, 4")
    A("s_add_u32 s57, s57, s59")
    A("s_mul_i32 s57, s57, 1280")
    A("v_lshrrev_b32 v10, 2, v0")
    A("v_and_b32 v11, 3, v0")
    A("v_mul_u32_u24 v10, 1280, v10")
    A("v_lshl_add_u32 v10, v11, 7, v10")
    A("s_mul_i32 s58, s53, 384")
    A("s_add_u32 s66, s57, s58")
    A("s_add_u32 s66, s66, 384")
    if isF:
        srd(A, 40, 24, D * DFF * 2)
        A("v_min_u32 v11, 53, v0")
        A("v_lshlrev_b32 v11, 7, v11")
        A("s_mul_i32 s67, s35, 6912")
        A("s_add_u32 s58, s48, 3")
        A(f"s_mul_i32 s58, s58, {64*3456}")
        A("s_add_u32 s67, s67, s58")
        A(f"s_add_u32 s68, s67, {4*64*3456}")
    else:
        A("s_cmp_lt_u32 s48, 2")
        A("s_cselect_b32 s64, s10, s12")
        A("s_cselect_b32 s65, s11, s13")
        srd(A, 40, 64, D * D * 2)
        divc(A, 12, 0, 20, 64)
        A("v_mul_u32_u24 v13, 20, v12")
        A("v_sub_u32 v13, v0, v13")
        A("v_min_u32 v12, 2, v12")
        A("v_mul_u32_u24 v13, 1280, v13")
        A("v_lshl_add_u32 v11, v12, 7, v13")
        A("s_mul_i32 s67, s35, 25600")
        A("s_mul_i32 s58, s53, 384")
        A("s_add_u32 s68, s67, 896")
        A("s_add_u32 s67, s67, s58")
        A("s_add_u32 s67, s67, 384")
def k1_prefetch(A, isF, batch):
    if "nopf" in DBG: return
    if batch == 0:
        A("buffer_load_dword v12, v11, s[40:43], s67 offen")
        A("buffer_load_dword v13, v10, s[36:39], s66 offen")
    else:
        A("buffer_load_dword v12, v11, s[40:43], s68 offen")

def k1_compute(A, isF):
    ACC = 128; FRAG = 32
    MT = 7 if isF else 5; NT = 4
    STG = K1F_STAGE if isF else K1Y_STAGE
    BUF = K1F_BUF if isF else K1Y_BUF
    ASZ = 28672 if isF else 20480
    if TLB:
        srd(A, 68, 28, T * D * 4)
        A("v_lshlrev_b32 v7, 19, v0")
        A("v_lshlrev_b32 v8, 17, v0")
        Lt = A.label("tlb")
        A("s_cmp_lg_u32 s48, 3")
        A(f"s_cbranch_scc1 {Lt}")
        A("buffer_load_dword v124, v7, s[44:47], 0 offen")
        A("buffer_load_dword v125, v8, s[68:71], 0 offen")
        A(f"{Lt}:")
    side = k1_side(A, isF) if "noside" not in DBG else iter([0, 0])
    next(side)
    AB = 232; BB = 244
    if isF:
        A("v_lshrrev_b32 v17, 2, v6")
        A("v_lshl_add_u32 v17, v5, 3, v17")
        A("v_mul_u32_u24 v17, 448, v17")
        A("v_and_b32 v18, 3, v6")
        A("v_lshl_add_u32 v17, v18, 3, v17")
        A("s_mul_i32 s57, s52, 224")
        A(f"s_add_u32 s57, s57, {BUF}")
        A("v_add_u32 v17, s57, v17")
        A("v_and_b32 v18, 1, v5")
        A("v_lshlrev_b32 v18, 5, v18")
        A("v_add_u32 v19, v17, v18")
        A("v_sub_u32 v17, v17, v18")
        A("s_cmp_eq_u32 s52, 0")
        A("s_cselect_b64 vcc, -1, 0")
        AB = 240; BB = 246
        A(f"v_cndmask_b32 v{AB}, v17, v19, vcc")
        A(f"v_cndmask_b32 v{AB+1}, v19, v17, vcc")
    else:
        A("v_and_b32 v17, 1, v6")
        A("v_lshrrev_b32 v18, 1, v6")
        A("v_lshl_add_u32 v19, v17, 3, v18")
        A("v_xor_b32 v17, v17, v18")
        A("v_xor_b32 v17, v17, v5")
        A("v_lshlrev_b32 v19, 7, v19")
        A("v_lshl_add_u32 v19, v17, 4, v19")
        A("s_mul_i32 s57, s52, 10240")
        A(f"s_add_u32 s57, s57, {BUF}")
        AB = 240; BB = 246
        A(f"v_add_u32 v{AB}, s57, v19")
        A(f"v_xor_b32 v{AB+1}, 64, v{AB}")
    A("v_and_b32 v18, 7, v0")
    A("v_xor_b32 v18, v18, v5")
    A("v_lshlrev_b32 v17, 7, v6")
    A("s_lshl_b32 s57, s53, 13")
    A(f"s_add_u32 s57, s57, {ASZ+BUF}")
    A("v_add_u32 v17, s57, v17")
    A(f"v_lshl_add_u32 v{BB}, v18, 4, v17")
    A(f"v_xor_b32 v{BB+1}, 64, v{BB}")
    for b in (1, 2):
        for i in range(2):
            A(f"v_add_u32 v{AB+2*b+i}, {b*STG}, v{AB+i}")
            A(f"v_add_u32 v{BB+2*b+i}, {b*STG}, v{BB+i}")
    for r in range(MT * NT * 4):
        A(f"v_mov_b32 v{ACC+r}, 0")
    fA = lambda st, m: FRAG + st * (MT + NT) * 4 + m * 4
    fB = lambda st, n: FRAG + st * (MT + NT) * 4 + MT * 4 + n * 4
    accr = lambda m, n: ACC + (m * NT + n) * 4
    def reads(stage, kk):
        b = stage % 3; st = kk
        out = []
        for n in range(NT):
            out.append(f"ds_read_b128 {vr(fB(st,n),4)}, v{BB+2*b+kk} offset:{n*2048}")
        for m in range(MT):
            if isF:
                for h in range(2):
                    out.append(f"ds_read_b64_tr_b16 {vr(fA(st,m)+2*h,2)}, v{AB+2*b+(m&1)} offset:{(32*kk+4*h)*448 + m*32}")
            else:
                out.append(f"ds_read_b128 {vr(fA(st,m),4)}, v{AB+2*b+kk} offset:{m*2048}")
        return out
    def mfmas(st):
        return [f"v_mfma_f32_16x16x32_bf16 {vr(accr(m,n),4)}, {vr(fA(st,m),4)}, {vr(fB(st,n),4)}, {vr(accr(m,n),4)}"
                for m in range(MT) for n in range(NT)]
    vm = VM(A)
    if os.environ.get("PRIO") == "c": A("s_setprio 2")
    A(f"v_mov_b32 v15, {OOB}")
    A("v_mov_b32 v26, 0")
    A("v_lshlrev_b32 v2, 2, v0")
    Lsk = A.label("sk")
    if isF:
        A("v_lshlrev_b32 v13, 4, v0")
        A("v_cmp_gt_u32 vcc, 56, v1")
        A("v_cndmask_b32 v12, v15, v13, vcc")
        A("s_mul_i32 s57, s50, 1792")
        A("s_mul_i32 s58, s51, 224")
        A("s_add_u32 s57, s57, s58")
        A("s_lshl_b32 s57, s57, 2")
        A(f"s_add_u32 s62, s57, {WS_WSP}")
        A("s_lshl_b32 s59, s51, 4")
        A("s_lshl_b32 s58, s50, 7")
        A("s_add_u32 s59, s59, s58")
        A("s_lshl_b32 s58, s48, 2")
        A("s_add_u32 s63, s59, s58")
        A("s_mul_i32 s59, s63, 1280")
        A("s_barrier")
        for r in range(4):
            for i in range(5): A(f"buffer_load_dword v{80+5*r+i}, v2, s[36:39], s59 offen offset:{256*i}")
            A("s_add_u32 s59, s59, 1280")
        A("global_load_dwordx2 v[28:29], v26, s[30:31] sc1")
        A("s_waitcnt vmcnt(11)")
        stats_compute(A, vm, 80)
        A("s_add_u32 s63, s63, 2")
        A("s_waitcnt vmcnt(2)")
        stats_compute(A, vm, 90)
    else:
        A("s_cmp_lt_u32 s48, 2")
        A("s_cselect_b32 s64, s10, s12")
        A("s_cselect_b32 s65, s11, s13")
        srd(A, 40, 64, D * D * 2)
        A("s_mul_i32 s57, s51, 80")
        A("s_mul_i32 s58, s50, 5")
        A("s_add_u32 s57, s57, s58")
        A("s_mul_i32 s58, s53, 3")
        A("s_add_u32 s72, s57, s58")
        A("s_barrier")
        A("s_mul_i32 s57, s72, 1280")
        for r in range(3):
            for i in range(5): A(f"buffer_load_dword v{72+5*r+i}, v2, s[40:43], s57 offen offset:{256*i}")
            A("s_add_u32 s57, s57, 1280")
        A("global_load_dwordx2 v[28:29], v26, s[30:31] sc1")
    next(side)
    if not isF:
        A("s_waitcnt vmcnt(0)")
        A("s_mov_b32 s57, 0x3f803f80")
        for r in range(3): A(f"v_mov_b32 v{108+r}, 0")
        for i in range(5):
            for r in range(3): A(f"v_dot2_f32_bf16 v{108+r}, v{72+5*r+i}, s57, v{108+r}")
        A("s_nop 3")
        wave_sum(A, [108, 109, 110])
        A("v_cmp_eq_u32 vcc, 63, v0")
        A("v_cndmask_b32 v12, v15, v26, vcc")
        A("s_lshl_b32 s57, s72, 1")
        A("s_add_u32 s57, s57, s52")
        A("s_lshl_b32 s57, s57, 2")
        A(f"s_add_u32 s57, s57, {WS_WSYO}")
        A("buffer_store_dword v108, v12, s[44:47], s57 offen sc1")
        A("buffer_store_dword v109, v12, s[44:47], s57 offen offset:8 sc1")
        A("s_cmp_eq_u32 s53, 0")
        A(f"s_cselect_b32 s57, s57, {OOB}")
        A("buffer_store_dword v110, v12, s[44:47], s57 offen offset:16 sc1")
    A("v_cmp_eq_u32 vcc, 0, v0")
    A("v_cndmask_b32 v16, v15, v26, vcc")
    A("s_lshl_b32 s57, s49, 7")
    A("s_lshl_b32 s58, s50, 3")
    A("s_add_u32 s57, s57, s58")
    A("s_add_u32 s57, s57, s51")
    A("s_lshl_b32 s57, s57, 7")
    A("s_lshl_b32 s58, s48, 3")
    A("s_add_u32 s57, s57, s58")
    A(f"s_add_u32 s76, s57, {WS_F3}")
    stamp(A, 1)
    A("s_barrier")
    stamp(A, 2)
    for r in reads(0, 0): A(r)
    PRE = 3
    for j in range(10):
        A("s_waitcnt lgkmcnt(0)")
        mf = mfmas(0); rd = reads(j, 1)
        for i, m in enumerate(mf):
            A(m)
            if i < len(rd): A(rd[i])
        A("s_waitcnt lgkmcnt(0)")
        mf = mfmas(1)
        if j < 9:
            rd = reads(j + 1, 0)
            for m in mf[:PRE]: A(m)
            if j == 2 and isF:
                A(f"ds_read_b128 v[120:123], v13 offset:{K1_WS}")
                A("s_waitcnt lgkmcnt(0)")
                A("buffer_store_dwordx4 v[120:123], v12, s[44:47], s62 offen sc1")
            if j == 4 and isF:
                A("s_waitcnt vmcnt(0)")
                A("buffer_store_dwordx2 v[28:29], v16, s[44:47], s76 offen sc1")
            if j == 1:
                A("s_waitcnt vmcnt(0)")
                Lp = A.label("np"); Lx = A.label("npx")
                A("s_mov_b32 s58, 200000")
                A(f"{Lp}:")
                A("v_readfirstlane_b32 s57, v28")
                A("s_cmp_lg_u32 s57, 0")
                A(f"s_cbranch_scc1 {Lx}")
                A("s_sleep 1")
                A("global_load_dwordx2 v[28:29], v26, s[30:31] sc1")
                A("s_waitcnt vmcnt(0)")
                A("s_sub_u32 s58, s58, 1")
                A("s_cmp_lg_u32 s58, 0")
                A(f"s_cbranch_scc1 {Lp}")
                A(f"{Lx}:")
                A(f"buffer_store_dwordx2 v[28:29], v16, s[44:47], s76 offen offset:{32 if isF else 0} sc1")
            A("s_barrier")
            for i, m in enumerate(mf[PRE:]):
                if i < len(rd): A(rd[i])
                A(m)
        else:
            for m in mf: A(m)
    stamp(A, 3)
    A("s_waitcnt vmcnt(0)")
    A("s_barrier")
    stamp(A, 4)
    if isF: k1F_epilogue(A, ACC)
    else: k1Y_epilogue(A, ACC)

def frag_store_plan(ntiles, parity):
    plan = []
    t = 0
    if parity == 1:
        plan.append(("single", [0], 0, 1)); t = 1
    while t + 1 < ntiles:
        plan.append(("pair", [t, t + 1], (t + parity) // 2, 0)); t += 2
    if t < ntiles:
        plan.append(("single", [t], (t + parity) // 2, 0))
    return plan

def k1F_epilogue(A, ACC):
    A("s_lshl_b32 s57, s53, 10")
    A("v_lshlrev_b32 v17, 6, v6")
    A("v_add_u32 v17, s57, v17")
    for n in range(4):
        A(f"ds_read_b64 v[{32+2*n}:{33+2*n}], v17 offset:{K1_STATS+16*n}")
    A("s_mul_i32 s57, s52, 448")
    A("v_lshlrev_b32 v18, 4, v5")
    A("v_add_u32 v18, s57, v18")
    for m in range(7):
        A(f"ds_read_b128 v[{40+4*m}:{43+4*m}], v18 offset:{K1_WS+64*m}")
    A("s_lshr_b32 s57, s54, 1")
    A("s_mul_i32 s58, s50, 54")
    A("s_add_u32 s57, s57, s58")
    A("s_lshl_b32 s57, s57, 3")
    A("s_lshl_b32 s58, s53, 2")
    A("s_add_u32 s57, s57, s58")
    A("s_lshl_b32 s57, s57, 10")
    A(f"s_add_u32 s65, s57, {WS_HF}")
    A("v_lshlrev_b32 v17, 4, v0")
    A("s_lshl_b32 s57, s53, 11")
    A(f"s_add_u32 s57, s57, {K1_LE}")
    A("v_lshlrev_b32 v19, 3, v0")
    A("v_add_u32 v19, s57, v19")
    A("s_waitcnt lgkmcnt(0)")
    def conv(m, n, dst):
        a = ACC + (m * 4 + n) * 4
        w = 40 + 4 * m; st = 32 + 2 * n
        for hh in range(2):
            A(f"v_pk_fma_f32 {vr(a+2*hh,2)}, {vr(w+2*hh,2)}, {vr(st,2)}, {vr(a+2*hh,2)} op_sel:[0,0,0] op_sel_hi:[1,0,1] neg_lo:[1,0,0] neg_hi:[1,0,0]")
        for hh in range(2):
            A(f"v_pk_mul_f32 {vr(a+2*hh,2)}, {vr(a+2*hh,2)}, {vr(st,2)} op_sel:[0,1] op_sel_hi:[1,1]")
        for hh in range(2):
            A(f"v_cvt_pk_bf16_f32 v{dst+hh}, v{a+2*hh}, v{a+2*hh+1}")
        for hh in range(2):
            A(f"v_pk_max_i16 v{dst+hh}, v{dst+hh}, 0")
    L1 = A.label("ep1"); L2 = A.label("epx")
    A("s_cmp_lg_u32 s52, 0")
    A(f"s_cbranch_scc1 {L1}")
    for n in range(4):
        conv(6, n, 72 + 2 * n)
        A(f"ds_write_b64 v19, v[{72+2*n}:{73+2*n}] offset:{512*n}")
    A("s_waitcnt lgkmcnt(0)")
    A("s_barrier")
    cnt = 0
    for p in range(3):
        A(f"s_add_u32 s57, s65, {p*8192}")
        for n in range(4):
            t = 80 + 4 * (cnt % 4); cnt += 1
            conv(2 * p, n, t); conv(2 * p + 1, n, t + 2)
            A(f"buffer_store_dwordx4 v[{t}:{t+3}], v17, s[44:47], s57 offen offset:{1024*n} sc1")
    A(f"s_branch {L2}")
    A(f"{L1}:")
    for n in range(4): conv(0, n, 98 + 4 * n)
    A("s_barrier")
    for n in range(4): A(f"ds_read_b64 v[{96+4*n}:{97+4*n}], v19 offset:{512*n}")
    for p in range(3):
        A(f"s_add_u32 s57, s65, {(4+p)*8192}")
        if p == 2:
            A("s_cmp_lt_u32 s51, 6")
            A(f"s_cselect_b32 s57, s57, {OOB}")
        for n in range(4):
            t = 80 + 4 * (cnt % 4); cnt += 1
            conv(2 * p + 1, n, t); conv(2 * p + 2, n, t + 2)
            A(f"buffer_store_dwordx4 v[{t}:{t+3}], v17, s[44:47], s57 offen offset:{1024*n} sc1")
        if p == 0:
            A(f"s_add_u32 s57, s65, {3*8192}")
            A("s_waitcnt lgkmcnt(0)")
            for n in range(4):
                A(f"buffer_store_dwordx4 v[{96+4*n}:{99+4*n}], v17, s[44:47], s57 offen offset:{1024*n} sc1")
    A(f"{L2}:")
    for i in (5, 6, 7): stamp(A, i)

def k1Y_epilogue(A, ACC):
    ST = 32; WSR = 40; P = 208; TB = 60
    A("s_lshl_b32 s57, s53, 10")
    A("v_lshlrev_b32 v17, 6, v6")
    A("v_add_u32 v17, s57, v17")
    for n in range(4):
        A(f"ds_read_b64 v[{ST+2*n}:{ST+2*n+1}], v17 offset:{K1_STATS+16*n}")
    A("v_mov_b32 v17, 0")
    A(f"ds_read_b64 v[30:31], v17 offset:{K1_NONCE}")
    A("s_mul_i32 s57, s52, 320")
    A("v_lshlrev_b32 v18, 4, v5")
    A("v_add_u32 v18, s57, v18")
    for m in range(5):
        A(f"ds_read_b128 v[{WSR+4*m}:{WSR+4*m+3}], v18 offset:{K1_WS+64*m}")
    A("s_mul_i32 s57, s52, 11520")
    A("v_mul_u32_u24 v19, 576, v5")
    A("v_add_u32 v19, s57, v19")
    A("v_lshl_add_u32 v20, v6, 3, v19")
    A("s_mul_i32 s57, s53, 640")
    A("s_mul_i32 s58, s52, 320")
    A("s_add_u32 s57, s57, s58")
    A(f"s_add_u32 s57, s57, {K1_LE}")
    A("v_lshlrev_b32 v21, 4, v5")
    A("v_add_u32 v21, s57, v21")
    A("v_lshlrev_b32 v22, 4, v0")
    A(f"v_add_u32 v22, {K1_LE+2560}, v22")
    A("v_cmp_eq_u32 vcc, 15, v6")
    A("v_cndmask_b32 v22, v22, v21, vcc")
    A("v_sub_u32 v23, 15, v6")
    A("v_lshl_add_u32 v23, v23, 3, v19")
    ta = lambda m, q: 60 + 8 * m + 4 * q
    for m in range(5):
        for q in range(2):
            o = K1Y_T + (8 * m + q) * 288
            A(f"ds_read_b64 v[{ta(m,q)}:{ta(m,q)+1}], v19 offset:{o+272}")
            A(f"ds_read_b64 v[{ta(m,q)+2}:{ta(m,q)+3}], v23 offset:{o}")
        if m == 1: A("s_waitcnt lgkmcnt(8)")
    for m in range(5):
        for n in range(4):
            for q in range(2):
                u = ACC + (m * 4 + n) * 4 + 2 * q; w = WSR + 4 * m + 2 * q; st = ST + 2 * n
                A(f"v_pk_fma_f32 {vr(u,2)}, {vr(w,2)}, {vr(st,2)}, {vr(u,2)} op_sel:[0,0,0] op_sel_hi:[1,0,1] neg_lo:[1,0,0] neg_hi:[1,0,0]")
            for q in range(2):
                u = ACC + (m * 4 + n) * 4 + 2 * q; st = ST + 2 * n
                A(f"v_pk_mul_f32 {vr(u,2)}, {vr(u,2)}, {vr(st,2)} op_sel:[0,1] op_sel_hi:[1,1]")
    A("s_waitcnt lgkmcnt(0)")
    Z = 100
    for n in range(1, 4):
        for m in range(5):
            for q in range(2):
                e = P + 4 * m + 2 * q; z = Z + 4 * m + 2 * q
                prev = (ACC + (m * 4) * 4 + 2 * q) if n == 1 else (e if n == 2 else z)
                dst = e if n in (1, 3) else z
                cmul_add(A, dst, ta(m, q), prev, ACC + (m * 4 + n) * 4 + 2 * q)
    for m in range(5):
        for q in range(2):
            cmul(A, Z + 4 * m + 2 * q, ta(m, q) + 2, P + 4 * m + 2 * q)
    for k in (8, 4, 2, 1):
        for r in range(20):
            A(f"v_add_f32_dpp v{Z+r}, v{Z+r}, v{Z+r} row_ror:{k} row_mask:0xf bank_mask:0xf")
    for m in range(5):
        A(f"ds_write_b128 v22, v[{Z+4*m}:{Z+4*m+3}] offset:{64*m}")
    A("s_waitcnt lgkmcnt(0)")
    stamp(A, 5)
    A("s_barrier")
    tbb = lambda m, q: (100 if (m & 1) == 0 else 228) + 12 * q
    def load_tabB(m):
        for q in range(2):
            o = K1Y_T + (8 * m + q) * 288; b = tbb(m, q)
            A(f"ds_read_b64 v[{b}:{b+1}], v19 offset:{o+280}")
            A(f"ds_read_b64 v[{b+2}:{b+3}], v19 offset:{o+8}")
            A(f"ds_read_b64 v[{b+4}:{b+5}], v19 offset:{o+16}")
            A(f"ds_read_b64 v[{b+6}:{b+7}], v19 offset:{o+32}")
            A(f"ds_read_b64 v[{b+8}:{b+9}], v19 offset:{o+64}")
            A(f"ds_read_b64 v[{b+10}:{b+11}], v20 offset:{o}")
    load_tabB(0)
    A("s_mul_i32 s57, s51, 5")
    A("s_lshl_b32 s58, s52, 1")
    A("s_add_u32 s57, s57, s58")
    A("s_mul_i32 s58, s50, 40")
    A("s_add_u32 s57, s57, s58")
    A("s_lshl_b32 s57, s57, 3")
    A("s_lshl_b32 s58, s53, 2")
    A("s_add_u32 s57, s57, s58")
    A("s_lshl_b32 s57, s57, 10")
    A(f"s_add_u32 s65, s57, {WS_H1}")
    A("v_lshlrev_b32 v27, 4, v0")
    TMP = 124
    for m in range(5):
        A("s_waitcnt lgkmcnt(0)")
        if m < 4: load_tabB(m + 1)
        for ki, k in enumerate((1, 2, 4, 8)):
            for q in range(2):
                e = P + 4 * m + 2 * q; t0 = TMP + 2 * q
                A(f"v_mov_b32_dpp v{t0}, v{e} row_shr:{k} row_mask:0xf bank_mask:0xf bound_ctrl:0")
                A(f"v_mov_b32_dpp v{t0+1}, v{e+1} row_shr:{k} row_mask:0xf bank_mask:0xf bound_ctrl:0")
            for q in range(2):
                e = P + 4 * m + 2 * q; t0 = TMP + 2 * q
                cmul_add(A, e, tbb(m, q) + 2 + 2 * ki, t0, e)
        for q in range(2):
            e = P + 4 * m + 2 * q; t0 = TMP + 2 * q
            A(f"v_mov_b32_dpp v{t0}, v{e} row_shr:1 row_mask:0xf bank_mask:0xf bound_ctrl:0")
            A(f"v_mov_b32_dpp v{t0+1}, v{e+1} row_shr:1 row_mask:0xf bank_mask:0xf bound_ctrl:0")
        for q in range(2):
            cmul(A, P + 4 * m + 2 * q, tbb(m, q), TMP + 2 * q)
            cmul(A, ta(m, q) + 2, tbb(m, q), tbb(m, q) + 10)
        for n in range(4):
            for q in range(2):
                u = ACC + (m * 4 + n) * 4 + 2 * q; t0 = TMP + 2 * q
                A(f"v_pk_mul_f32 {vr(t0,2)}, {vr(tbb(m,q),2)}, {vr(u,2)} op_sel:[0,0] op_sel_hi:[0,1]")
                A(f"v_pk_fma_f32 {vr(u,2)}, {vr(tbb(m,q),2)}, {vr(u,2)}, {vr(t0,2)} op_sel:[1,1,0] op_sel_hi:[1,0,1] neg_lo:[1,0,0]")
    A("s_waitcnt lgkmcnt(0)")
    A("s_barrier")
    stamp(A, 6)
    for m in range(5):
        A(f"ds_read_b128 v[{100+4*m}:{103+4*m}], v21 offset:{1280+64*m}")
    A("s_waitcnt lgkmcnt(0)")
    for m in range(5):
        for q in range(2):
            cmul_add(A, P + 4 * m + 2 * q, ta(m, q) + 2, 100 + 4 * m + 2 * q, P + 4 * m + 2 * q)
    for n in range(4):
        for m in range(5):
            for q in range(2):
                u = ACC + (m * 4 + n) * 4 + 2 * q
                prev = (P + 4 * m + 2 * q) if n == 0 else u - 4
                cmul_add(A, u, ta(m, q), prev, u)
    stamp(A, 7)
    L1 = A.label("ey1"); L2 = A.label("eyx")
    A("s_cmp_lg_u32 s52, 0")
    A(f"s_cbranch_scc1 {L1}")
    for parity in (0, 1):
        if parity == 1: A(f"{L1}:")
        cnt = 0
        for kind, tl, ks, half in frag_store_plan(5, parity):
            A(f"s_add_u32 s57, s65, {ks*8192}")
            for n in range(4):
                t = 32 + 4 * (cnt % 8); cnt += 1
                for x, m in enumerate(tl):
                    u = ACC + (m * 4 + n) * 4
                    A(f"v_cvt_pk_bf16_f32 v{t+2*x}, v{u}, v{u+1}")
                    A(f"v_cvt_pk_bf16_f32 v{t+2*x+1}, v{u+2}, v{u+3}")
                if kind == "pair":
                    A(f"buffer_store_dwordx4 v[{t}:{t+3}], v27, s[44:47], s57 offen offset:{1024*n} sc1")
                else:
                    if "nosingle" not in DBG: A(f"buffer_store_dwordx2 v[{t}:{t+1}], v27, s[44:47], s57 offen offset:{1024*n + 8*half} sc1")
        if parity == 0: A(f"s_branch {L2}")
    A(f"{L2}:")

K2_NR = 7
K2_R0 = 26112
K2_BOFF = K2_R0 + K2_NR * 10240
K2_NST = 47
NSF = 27

def p2_ids(A):
    A("s_lshl_b32 s57, s49, 7")
    A("s_lshl_b32 s58, s50, 3")
    A("s_add_u32 s57, s57, s58")
    A("s_add_u32 s57, s57, s51")
    A("s_lshl_b32 s57, s57, 7")
    A("s_lshl_b32 s58, s48, 3")
    A("s_add_u32 s57, s57, s58")
    A(f"s_add_u32 s77, s57, {WS_F2}")
    A("s_mov_b32 s78, s49")
    A("s_and_b32 s57, s2, 3")
    A("s_bfe_u32 s58, s2, 0x10002")
    A("s_lshr_b32 s59, s35, 2")
    A("s_lshl_b32 s50, s57, 2")
    A("s_lshr_b32 s57, s59, 1")
    A("s_add_u32 s50, s50, s57")
    A("s_and_b32 s49, s59, 1")
    A("s_lshl_b32 s51, s58, 2")
    A("s_and_b32 s57, s35, 3")
    A("s_add_u32 s51, s51, s57")
    A("v_lshlrev_b32 v10, 4, v0")

def spin_flags(A, loads, regs, vm=None, iters=400000, first_wait=None):
    Lp = A.label("sp"); Lx = A.label("spx")
    A(f"s_mov_b32 s70, {iters}")
    Lc = A.label("spc")
    if first_wait:
        first_wait()
        A(f"s_branch {Lc}")
    A(f"{Lp}:")
    for l in loads: A(l)
    A("s_waitcnt vmcnt(0)")
    A(f"{Lc}:")
    for i, r in enumerate(regs):
        A(f"v_cmp_ne_u64 {'vcc' if i == 0 else 's[72:73]'}, v[{r}:{r+1}], v[28:29]")
        if i: A("s_or_b64 vcc, vcc, s[72:73]")
    A("s_cmp_eq_u64 vcc, 0")
    A(f"s_cbranch_scc1 {Lx}")
    A("s_sleep 1")
    A("s_sub_u32 s70, s70, 1")
    A("s_cmp_lg_u32 s70, 0")
    A(f"s_cbranch_scc1 {Lp}")
    A(f"{Lx}:")
    if vm and not first_wait: vm.ops = []

def p2_loaders(A):
    stamp(A, 0)
    p2_ids(A)
    A("s_mul_i32 s57, s53, 5120")
    A(f"s_mul_i32 s62, s51, {20*10240}")
    A("s_add_u32 s62, s62, s57")
    A(f"s_add_u32 s62, s62, {WS_CP}")
    A(f"s_mul_i32 s63, s51, {27*10240}")
    A("s_add_u32 s63, s63, s57")
    A(f"s_add_u32 s63, s63, {WS_W2P}")
    A(f"s_add_u32 s57, s57, {K2_R0}")
    A("s_lshl_b32 s58, s53, 13")
    A("s_lshl_b32 s59, s49, 12")
    A("s_add_u32 s58, s58, s59")
    A(f"s_mul_i32 s64, s50, {40*8192}")
    A("s_add_u32 s64, s64, s58")
    A(f"s_add_u32 s64, s64, {WS_H1}")
    A(f"s_mul_i32 s66, s50, {54*8192}")
    A("s_add_u32 s66, s66, s58")
    A(f"s_add_u32 s66, s66, {WS_HF}")
    A("s_lshl_b32 s59, s53, 12")
    A(f"s_add_u32 s59, s59, {K2_BOFF}")
    A("s_cmp_lg_u32 s52, 0")
    A("s_cselect_b32 s62, s64, s62")
    A("s_cselect_b32 s63, s66, s63")
    A("s_cselect_b32 s58, s59, s57")
    A("s_cbranch_scc0 p2_lA")
    p2_loader(A, True)
    stamps_flush(A, 6, 1)
    A("s_branch k1_end")
    A("p2_lA:")
    p2_loader(A, False)
    stamps_flush(A, 6, 1)

def p2_loader(A, isB):
    vm = VM(A)
    nst = K2_NST
    nI = 4 if isB else 5
    sstr = 16384 if isB else 10240
    lstr = 8192 if isB else 10240
    if not isB:
        A("v_lshlrev_b32 v30, 4, v0")
        A(f"v_add_u32 v30, {WS_F1}, v30")
        wl = lambda o: [f"buffer_load_dwordx4 v[{32+4*k}:{35+4*k}], v30, s[44:47], 0 offen offset:{o + 1024*k} sc1" if o + 1024*k < 4096 else
                        f"buffer_load_dwordx4 v[{32+4*k}:{35+4*k}], v31, s[44:47], 0 offen offset:{o + 1024*k - 4096} sc1" for k in range(4)]
        A("v_add_u32 v31, 4096, v30")
    else:
        A("v_bfe_u32 v30, v0, 2, 3")
        A("v_and_b32 v31, 3, v0")
        A("v_lshlrev_b32 v30, 7, v30")
        A("v_lshl_add_u32 v30, v31, 3, v30")
        A("s_lshl_b32 s64, s50, 10")
        A(f"s_add_u32 s64, s64, {WS_F2}")
        A(f"s_add_u32 s66, s64, {128*128}")
        A("s_mov_b32 s74, 0")
    prod_of = lambda ks: min(ks // 7, 5) if ks < 42 else (6 if ks < 48 else 7)
    seen = set()
    def dma(st):
        if isB and st < NSF:
            need = {prod_of(2 * st), prod_of(2 * st + 1)} - seen
            if need:
                seen.update(need)
                m_ = sum((1 << (4 * j_)) | (1 << (4 * j_ + 2)) for j_ in need)
                Lp = A.label("pp"); Lx = A.label("ppx")
                A(f"s_lshl_b32 s75, {m_}, s49")
                A("s_mov_b32 s70, 400000")
                A(f"{Lp}:")
                A("s_and_b32 s71, s74, s75")
                A("s_cmp_eq_u32 s71, s75")
                A(f"s_cbranch_scc1 {Lx}")
                A("buffer_load_dwordx2 v[34:35], v30, s[44:47], s66 offen sc1")
                A("s_waitcnt vmcnt(0)")
                A("v_cmp_eq_u64 vcc, v[34:35], v[28:29]")
                A("s_nop 1")
                A("s_mov_b32 s74, vcc_lo")
                A("s_sub_u32 s70, s70, 1")
                A("s_cmp_lg_u32 s70, 0")
                A(f"s_cbranch_scc1 {Lp}")
                A(f"{Lx}:")
        L2 = ["buffer_load_dwordx2 v[32:33], v30, s[44:47], s64 offen sc1"] if isB else wl(4096)
        R2 = [32] if isB else [32 + 2 * k for k in range(8)]
        if st == NSF - 3:
            for l in L2: vm(l, "f2")
        if st == NSF:
            spin_flags(A, L2, R2, vm, first_wait=lambda: vm.wait("f2"))
        bo = (st % K2_NR) * lstr
        src, so = (63, st * sstr) if st < NSF else (62, (st - NSF) * sstr)
        for q in range(nI):
            A(f"s_add_u32 m0, s58, {bo + 1024*q}")
            A(f"s_add_u32 s65, s{src}, {so + 1024*q}")
            vm("buffer_load_dwordx4 v10, s[44:47], s65 offen sc1 lds", f"d{st}")
    stamp(A, 1)
    n0 = 3 if isB else K2_NR
    if isB:
        for st in range(n0): dma(st)
    else:
        Lb = A.label("nox"); Lc = A.label("late"); Ld = A.label("done")
        A("s_cmp_lg_u32 s78, 0")
        A(f"s_cbranch_scc1 {Lb}")
        A("s_barrier")
        spin_flags(A, wl(0), [32 + 2 * k for k in range(8)], iters=2)
        A("s_cmp_eq_u32 s70, 0")
        A(f"s_cbranch_scc1 {Lc}")
        for st in range(n0): dma(st)
        A("s_barrier")
        A(f"s_branch {Ld}")
        A(f"{Lc}:")
        A("s_barrier")
        A(f"{Lb}:")
        spin_flags(A, wl(0), [32 + 2 * k for k in range(8)])
        vm.ops = []
        for st in range(n0): dma(st)
        A(f"{Ld}:")
    vm.wait("d0")
    stamp(A, 2)
    A("s_barrier")
    vm.wait("d1")
    A("s_barrier")
    for st in range(n0, K2_NR): dma(st)
    for j in range(nst - 2):
        vm.wait(f"d{j+2}")
        A("s_barrier")
        if j + K2_NR < nst: dma(j + K2_NR)
    for i in (3, 4, 5): stamp(A, i)

def p2_compute(A):
    stamp(A, 0)
    A("v_mov_b32 v26, 0")
    A(f"ds_read_b64 v[22:23], v26 offset:{K1_NONCE}")
    p2_ids(A)
    srd(A, 72, 4, T * D * 2)
    srd(A, 84 if not STAMPS else 68, 28, T * D * 4)
    A("v_cmp_eq_u32 vcc, 0, v0")
    A(f"v_mov_b32 v24, {OOB}")
    A("v_cndmask_b32 v24, v24, v26, vcc")
    L = A.label("nof")
    A("s_cmp_eq_u32 s78, 0")
    A(f"s_cbranch_scc1 {L}")
    A("s_waitcnt vmcnt(0) lgkmcnt(0)")
    A("buffer_store_dwordx2 v[22:23], v24, s[44:47], s77 offen sc1")
    A(f"{L}:")
    FRAG = 112
    ACCY = 28; ACCF = 48; XR = 68; SR = 78; DR = 82; PR = 92
    nst = K2_NST
    A("s_lshl_b32 s57, s50, 7")
    A("s_lshl_b32 s58, s49, 6")
    A("s_add_u32 s57, s57, s58")
    A("s_add_u32 s57, s57, s48")
    A("v_lshl_add_u32 v17, v6, 2, s57")
    A("v_mul_u32_u24 v18, 1280, v17")
    A("v_lshl_add_u32 v18, v5, 3, v18")
    A("s_mul_i32 s58, s51, 160")
    for m in range(5):
        A(f"buffer_load_dwordx2 v[{XR+2*m}:{XR+2*m+1}], v18, s[72:75], s58 offen offset:{32*m}")
    A("v_lshlrev_b32 v25, 4, v17")
    A(f"s_mov_b32 s62, {WS_STATS}")
    A("v_lshlrev_b32 v26, 3, v5")
    A("v_add_u32 v26, s58, v26")
    for m in range(5):
        A(f"global_load_dwordx2 v[{DR+2*m}:{DR+2*m+1}], v26, s[20:21] offset:{32*m}")
    A("s_lshl_b32 s57, s48, 10")
    A(f"s_add_u32 s57, s57, {K2_BOFF}")
    A("v_add_u32 v20, s57, v10")
    A(f"v_add_u32 v21, {K2_R0 + 3*10240}, v10")
    A(f"v_add_u32 v19, {K2_R0}, v10")
    for r in range(40):
        A(f"v_mov_b32 v{ACCY+r}, 0")
    plist = []
    P = plist.append
    mm, rs, sd = SR, SR + 1, SR + 2
    for m in range(5):
        x = XR + 2 * m; t = 2; du = 12; p = PR + 4 * m
        for hh in range(2):
            P(f"v_lshlrev_b32 v{t+2*hh}, 16, v{x+hh}")
            P(f"v_and_b32 v{t+2*hh+1}, 0xffff0000, v{x+hh}")
        for r in range(4): P(f"v_sub_f32 v{t+r}, v{t+r}, v{mm}")
        for hh in range(2):
            P(f"v_cvt_pk_bf16_f32 v{t+4+hh}, v{t+2*hh}, v{t+2*hh+1}")
        for hh in range(2):
            P(f"v_lshlrev_b32 v{t+2*hh}, 16, v{t+4+hh}")
            P(f"v_and_b32 v{t+2*hh+1}, 0xffff0000, v{t+4+hh}")
        for r in range(4): P(f"v_mul_f32 v{t+4+r}, v{t+r}, v{rs}")
        for r in range(4): P(f"v_fma_f32 v{t+r}, -v{t+4+r}, v{sd}, v{t+r}")
        for r in range(4): P(f"v_fma_f32 v{t+4+r}, v{t+r}, v{rs}, v{t+4+r}")
        for hh in range(2):
            P(f"v_cvt_pk_bf16_f32 v{t+hh}, v{t+4+2*hh}, v{t+4+2*hh+1}")
        for hh in range(2):
            P(f"v_lshlrev_b32 v{t+4+2*hh}, 16, v{t+hh}")
            P(f"v_and_b32 v{t+4+2*hh+1}, 0xffff0000, v{t+hh}")
        for hh in range(2):
            P(f"v_lshlrev_b32 v{du+2*hh}, 16, v{DR+2*m+hh}")
            P(f"v_and_b32 v{du+2*hh+1}, 0xffff0000, v{DR+2*m+hh}")
        for r in range(4): P(f"v_mul_f32 v{t+4+r}, v{t+4+r}, v{du+r}")
        for hh in range(2):
            P(f"v_cvt_pk_bf16_f32 v{t+hh}, v{t+4+2*hh}, v{t+4+2*hh+1}")
        for hh in range(2):
            P(f"v_lshlrev_b32 v{p+2*hh}, 16, v{t+hh}")
            P(f"v_and_b32 v{p+2*hh+1}, 0xffff0000, v{t+hh}")
    glist = []
    G = glist.append
    for m in range(5):
        a = ACCF + 4 * m; t = 2
        for hh in range(2):
            G(f"v_cvt_pk_bf16_f32 v{t+hh}, v{a+2*hh}, v{a+2*hh+1}")
        for hh in range(2):
            G(f"v_lshlrev_b32 v{a+2*hh}, 16, v{t+hh}")
            G(f"v_and_b32 v{a+2*hh+1}, 0xffff0000, v{t+hh}")
        for r in range(4): G(f"v_mul_f32 v{t+r}, {hexf(-LOG2E)}, v{a+r}")
        for r in range(4): G(f"v_exp_f32 v{t+r}, v{t+r}")
        for r in range(4): G(f"v_add_f32 v{t+r}, 1.0, v{t+r}")
        for r in range(4): G(f"v_rcp_f32 v{t+r}, v{t+r}")
        for r in range(4): G(f"v_mul_f32 v{t+r}, v{t+r}, v{a+r}")
        for hh in range(2):
            G(f"v_cvt_pk_bf16_f32 v{t+4+hh}, v{t+2*hh}, v{t+2*hh+1}")
        for hh in range(2):
            G(f"v_lshlrev_b32 v{a+2*hh}, 16, v{t+4+hh}")
            G(f"v_and_b32 v{a+2*hh+1}, 0xffff0000, v{t+4+hh}")
    fset = lambda stage, kk: FRAG + ((stage % 3) * 2 + kk) * 24
    def reads(stage, kk):
        sl = stage % K2_NR
        ra = 21 if sl >= 3 else 19
        oa = (sl - 3 if sl >= 3 else sl) * 10240
        f = fset(stage, kk)
        out = [f"ds_read_b128 {vr(f+20,4)}, v20 offset:{sl*8192 + kk*4096}"]
        out += [f"ds_read_b128 {vr(f+4*m,4)}, v{ra} offset:{oa + kk*5120 + m*1024}" for m in range(5)]
        return out
    def mfmas(stage, kk):
        f = fset(stage, kk); acc = ACCF if stage < NSF else ACCY
        return [f"v_mfma_f32_16x16x32_bf16 {vr(acc+4*m,4)}, {vr(f+4*m,4)}, {vr(f+20,4)}, {vr(acc+4*m,4)}" for m in range(5)]
    stamp(A, 1)
    A("s_barrier")
    stamp(A, 2)
    A(f"buffer_load_dwordx4 v[{SR}:{SR+3}], v25, s[44:47], s62 offen sc1")
    for kk in range(2):
        for r in reads(0, kk): A(r)
    A("s_barrier")
    for kk in range(2):
        for r in reads(1, kk): A(r)
    for j in range(nst):
        A(f"s_waitcnt lgkmcnt({12 if j < nst - 1 else 0})")
        mf = mfmas(j, 0) + mfmas(j, 1)
        if j < nst - 2:
            for m in mf[:2]: A(m)
            if j == 8:
                A("s_waitcnt vmcnt(0)")
                L = A.label("noy")
                A("s_cmp_lg_u32 s78, 0")
                A(f"s_cbranch_scc1 {L}")
                A("buffer_store_dwordx2 v[22:23], v24, s[44:47], s77 offen sc1")
                A(f"{L}:")
            A("s_barrier")
            rd = reads(j + 2, 0) + reads(j + 2, 1)
            rest = mf[2:]
            for i, m in enumerate(rest):
                for r in rd[(i * 12) // 8: ((i + 1) * 12) // 8]: A(r)
                A(m)
                if j >= 8:
                    for _ in range(2):
                        if plist: A(plist.pop(0))
                        elif j >= NSF + 2 and glist: A(glist.pop(0))
        else:
            for m in mf: A(m)
    assert not plist and not glist
    stamp(A, 3)
    A("v_lshlrev_b32 v18, 1, v18")
    A("s_lshl_b32 s58, s58, 1")
    so = 84 if not STAMPS else 68
    for m in range(5):
        t = 112 + 4 * m
        for hh in range(2):
            A(f"v_pk_add_f32 {vr(PR+4*m+2*hh,2)}, {vr(ACCY+4*m+2*hh,2)}, {vr(PR+4*m+2*hh,2)}")
        for hh in range(2):
            A(f"v_lshlrev_b32 v{t+2*hh}, 16, v{XR+2*m+hh}")
            A(f"v_and_b32 v{t+2*hh+1}, 0xffff0000, v{XR+2*m+hh}")
        for hh in range(2):
            A(f"v_pk_mul_f32 {vr(PR+4*m+2*hh,2)}, {vr(PR+4*m+2*hh,2)}, {vr(ACCF+4*m+2*hh,2)}")
        for hh in range(2):
            A(f"v_pk_add_f32 {vr(t+2*hh,2)}, {vr(t+2*hh,2)}, {vr(PR+4*m+2*hh,2)}")
        if os.environ.get("EPS"):
            for r in range(4): A(f"v_mul_f32 v{t+r}, {hexf(1.0 + float(os.environ['EPS']))}, v{t+r}")
        A(f"buffer_store_dwordx4 v[{t}:{t+3}], v18, s[{so}:{so+3}], s58 offen offset:{64*m}")
    stamp(A, 4); stamp(A, 5)

HEADER = open("recurrent_scan__ssm_conv_s5__dense_activation_relu__prompt.s.ref").read().split("; @launch")[0]

def kd(name, vgpr=256):
    return f""".p2align 6
.amdhsa_kernel {name}
  .amdhsa_next_free_vgpr {vgpr}
  .amdhsa_next_free_sgpr 102
  .amdhsa_accum_offset {vgpr}
  .amdhsa_group_segment_fixed_size 0
  .amdhsa_kernarg_size 120
  .amdhsa_user_sgpr_count 2
  .amdhsa_user_sgpr_kernarg_segment_ptr 1
  .amdhsa_system_sgpr_workgroup_id_x 1
.end_amdhsa_kernel
"""

def build():
    out = HEADER
    out += f"; @launch kernel=k1_kernel grid=(256,1,1) block=(512,1,1) lds={K1_LDS}\n"
    out += '.amdgcn_target "amdgcn-amd-amdhsa--gfx950"\n.text\n'
    for name, fn in (("k1_kernel", kernel1),):
        A = Asm(); A.nlabel = 0 if name == "k1_kernel" else 1000
        fn(A)
        lines = fix_hazards(A.lines, verbose=True)
        out += f".globl {name}\n.p2align 8\n.type {name},@function\n"
        out += "\n".join(("    " + l if not l.endswith(":") else l) for l in lines) + "\n"
    out += '.section .rodata,"a"\n' + kd("k1_kernel")
    return out

if __name__ == "__main__":
    if len(sys.argv) > 2: STAMPS = True; DBG = sys.argv[2]
    dst = sys.argv[1] if len(sys.argv) > 1 else "recurrent_scan__ssm_conv_s5__dense_activation_relu__prompt.s"
    txt = build()
    if os.environ.get("SINGLE", "1") == "1" and not STAMPS:
        KN = "recurrent_scan__ssm_conv_s5__dense_activation_relu__prompt_kernel"
        txt = txt.replace("; @launch kernel=k1_kernel grid", "; @launch grid").replace("k1_kernel", KN)
    open(dst, "w").write(txt)
    print("wrote", dst)
```
